```python
import torch

def _softmax(x, axis=-1):
    return torch.softmax(x, dim=axis)

def _gelu(x):
    return torch.nn.functional.gelu(x, approximate='tanh')

def _silu(x):
    return torch.nn.functional.silu(x)

def _sigmoid(x):
    return torch.sigmoid(x)

def _layernorm(x, axis=-1, eps=1e-05):
    m = x.mean(dim=axis, keepdim=True)
    v = x.var(dim=axis, keepdim=True, unbiased=False)
    return (x - m) / torch.sqrt(v + eps)

def _scatter_add(tgt, idx, src, axis=0):
    return tgt.clone().index_add_(axis, idx, src)

def _segment_sum(src, seg, n):
    out = torch.zeros((n,) + src.shape[1:], dtype=src.dtype)
    return out.index_add_(0, seg, src)

def _pad(x, pw):
    flat = tuple((v for pair in reversed(pw) for v in pair))
    return torch.nn.functional.pad(x, flat)
kernel_name = 'recurrent_scan__spectral_gfnet__mixer_gmlp__prompt'

def setup_inputs():

    _w = lambda a: (lambda t: t.to(torch.bfloat16) if t.is_floating_point() else t)(torch.as_tensor(a))

    def _A_setup():
        B, S, D = (1, 2048, 448)
        Df = D // 2 + 1
        return {'x': _w((lambda *s: torch.randn(*s, dtype=torch.bfloat16) * 0.05)(B, S, D)), 'w_r': _w((lambda *s: torch.randn(*s, dtype=torch.bfloat16) * 0.2)(S, Df) * 0.02), 'w_i': _w((lambda *s: torch.randn(*s, dtype=torch.bfloat16) * 0.2)(S, Df) * 0.02)}
    _A_in = _A_setup()

    def _B_setup():
        B, S, D, F = (1, 2048, 448, 1792)
        Fh = F // 2
        return {'x': _w((lambda *s: torch.randn(*s, dtype=torch.bfloat16) * 0.05)(B, S, D)), 'w_in': _w((lambda *s: torch.randn(*s, dtype=torch.bfloat16) * 0.4)(D, 2 * Fh)), 'w_sp': _w(0.01 * (lambda *s: torch.randn(*s, dtype=torch.bfloat16) * 0.4)(S, S)), 'b_sp': _w(1.0 + 0.01 * (lambda *s: torch.randn(*s, dtype=torch.bfloat16) * 0.1)(S)), 'w_out': _w((lambda *s: torch.randn(*s, dtype=torch.bfloat16) * 0.1)(Fh, D))}
    _B_in = _B_setup()
    return {'A_x': _A_in['x'], 'A_w_r': _A_in['w_r'], 'A_w_i': _A_in['w_i'], 'B_x': _B_in['x'], 'B_w_in': _B_in['w_in'], 'B_w_sp': _B_in['w_sp'], 'B_b_sp': _B_in['b_sp'], 'B_w_out': _B_in['w_out']}

def reference(A_x, A_w_r, A_w_i, B_x, B_w_in, B_w_sp, B_b_sp, B_w_out):

    def _A_ref(x, w_r, w_i):
        B, S, D = x.shape
        X = (lambda x, axes=(-2, -1): torch.fft.rfft2(x.float(), dim=axes))(x, axes=(-2, -1))
        W = w_r + 1j * w_i
        X = X * W
        y = (lambda x, s, axes=(-2, -1): torch.fft.irfft2(x, s=s, dim=axes).to(torch.bfloat16))(X, (S, D), axes=(-2, -1))
        return y

    def _B_ref(x, w_in, w_sp, b_sp, w_out):
        B, S, D = x.shape
        F = w_in.shape[-1]
        Fh = F // 2
        z = _gelu(torch.einsum('bsd,df->bsf', x, w_in))
        z1 = z[..., :Fh].clone()
        z2 = _layernorm(z[..., Fh:], axis=-1)
        g = torch.einsum('ts,bsf->btf', w_sp, z2) + b_sp[None, :, None]
        return torch.einsum('bsf,fd->bsd', z1 * g, w_out)
    x = A_x
    xn = _layernorm(x, axis=-1)
    s = _A_ref(xn, A_w_r, A_w_i)
    g = _silu(_B_ref(xn, B_w_in, B_w_sp, B_b_sp, B_w_out))
    return x + s * g
```

```python
import re

TRANS = ("v_exp_f32", "v_log_f32", "v_rcp_f32", "v_rsq_f32", "v_sqrt_f32", "v_sin_f32", "v_cos_f32", "v_rcp_iflag_f32")

def _regs(tok):
    tok = tok.strip()
    tok = re.sub(r"^-", "", tok)
    m = re.match(r"^abs\((.*)\)$", tok)
    if m: tok = m.group(1)
    tok = tok.strip("|")
    m = re.match(r"^([vsa])(\d+)$", tok)
    if m: return [(m.group(1), int(m.group(2)))]
    m = re.match(r"^([vsa])\[(\d+):(\d+)\]$", tok)
    if m: return [(m.group(1), i) for i in range(int(m.group(2)), int(m.group(3))+1)]
    if tok == "vcc": return [("s", 106), ("s", 107)]
    if tok == "vcc_lo": return [("s", 106)]
    if tok == "exec": return [("s", 126), ("s", 127)]
    if tok == "m0": return [("s", 124)]
    return []

class Ins:
    __slots__ = ("text", "op", "dst", "src", "kind", "passes", "srcC", "srcAB", "dpp", "lds_dma", "wide_store_data", "states")
    def __init__(self, text):
        self.text = text
        t = text.split(";")[0].strip()
        parts = t.split(None, 1)
        self.op = parts[0]
        rest = parts[1] if len(parts) > 1 else ""
        ops = []; depth = 0; cur = ""
        for ch in rest:
            if ch == "[": depth += 1
            if ch == "]": depth -= 1
            if ch == "," and depth == 0: ops.append(cur); cur = ""
            else: cur += ch
        if cur.strip(): ops.append(cur)
        toks = []
        mods = ""
        for o in ops:
            o = o.strip()
            sp = o.split(None, 1)
            toks.append(sp[0]);
            if len(sp) > 1: mods += " " + sp[1]
        op = self.op
        self.dst = []; self.src = []; self.passes = 0; self.srcC = []; self.srcAB = []
        self.dpp = ("_dpp" in op) or ("quad_perm" in mods) or ("row_" in mods)
        self.lds_dma = False; self.wide_store_data = []
        self.states = 1
        R = [_regs(x) for x in toks]
        allr = [r for x in R for r in x]
        if op == "s_nop":
            self.kind = "nop"; self.states = int(toks[0], 0)+1
        elif op.startswith("v_mfma"):
            self.kind = "mfma"; self.dst = R[0]; self.srcAB = R[1]+R[2]; self.srcC = R[3] if len(R) > 3 else []
            self.src = self.srcAB+self.srcC
            self.passes = 8 if "32x32x16" in op else 4 if "16x16x32" in op else 16
        elif op.startswith("v_cmp"):
            self.kind = "valu"; self.dst = R[0]; self.src = [r for x in R[1:] for r in x]
        elif op.startswith("v_permlane"):
            self.kind = "valu"; self.dst = R[0]+R[1]; self.src = R[0]+R[1]
        elif op.startswith("v_"):
            self.kind = "valu"; self.dst = R[0]; self.src = [r for x in R[1:] for r in x]
            if op.startswith(("v_fmac", "v_dot2c", "v_pk_fmac")) or self.dpp: self.src = self.src+R[0]
            if op.startswith(("v_add_co", "v_addc_co", "v_sub_co", "v_subb_co")): self.dst = R[0]+R[1]; self.src = [r for x in R[2:] for r in x]
            if op.startswith("v_cndmask") and len(R) == 3: self.src += _regs("vcc")
        elif op.startswith(("buffer_load", "global_load")):
            self.kind = "vmem"
            if " lds" in (" "+mods) or "_lds_" in op:
                self.lds_dma = True; self.src = allr+_regs("m0")
            else:
                self.dst = R[0]; self.src = [r for x in R[1:] for r in x]
                if "d16" in op: self.src += R[0]
        elif op.startswith(("buffer_store", "global_store", "buffer_atomic", "global_atomic")):
            self.kind = "vmem"; self.src = allr
            if "x4" in op or "x3" in op:
                self.wide_store_data = R[0] if op.startswith("buffer") else R[1]
            if "atomic" in op and "sc0" in mods: self.dst = R[0]
        elif op.startswith("ds_read") or op.startswith("ds_bpermute") or op.startswith("ds_swizzle") or "_rtn" in op:
            self.kind = "ds"; self.dst = R[0]; self.src = [r for x in R[1:] for r in x]
            if "d16" in op: self.src += R[0]
        elif op.startswith("ds_"):
            self.kind = "ds"; self.src = allr
        elif op.startswith("s_"):
            self.kind = "salu"
            if op.startswith(("s_cmp", "s_cbranch", "s_branch", "s_waitcnt", "s_barrier", "s_endpgm", "s_sleep", "s_setprio", "s_bitcmp")):
                self.src = allr
            else:
                self.dst = R[0] if R else []; self.src = [r for x in R[1:] for r in x]
                if "saveexec" in op: self.dst = self.dst+_regs("exec")
        else:
            self.kind = "other"

def need_states(p, c):
    n = 0
    pd = set(p.dst); cs = set(c.src); cd = set(c.dst)
    if p.kind == "valu":
        vd = {r for r in pd if r[0] in "va"}; sd = {r for r in pd if r[0] == "s"}
        if c.kind == "mfma" and vd & cs: n = max(n, 2)
        if c.kind == "valu":
            if p.op in TRANS or p.op.replace("_e32", "").replace("_e64", "") in TRANS:
                if vd & (cs | cd): n = max(n, 1)
            if c.dpp and vd & cs: n = max(n, 2)
            if c.op.startswith("v_permlane") and vd & cs: n = max(n, 2)
            if c.op.startswith(("v_readlane", "v_readfirstlane")) and vd & cs: n = max(n, 1)
            if sd & cs: n = max(n, 4 if c.op.startswith(("v_readlane", "v_writelane")) else 2)
            if p.op.startswith("v_dot") and vd & (cs | cd):
                if not (c.op == p.op and vd & set(c.src[-len(vd):]) and not vd & set(c.src[:-len(vd)])): n = max(n, 3)
            if "sdwa" in p.op and vd & (cs | cd): n = max(n, 1)
        if p.op.startswith("v_dot") and c.kind != "valu" and vd & cs: n = max(n, 3)
        if (p.op in TRANS) and c.kind in ("mfma",) and vd & cs: n = max(n, 2)
        if c.kind == "vmem" and sd & cs: n = max(n, 5)
        if c.kind == "salu" and sd & cs: n = max(n, 1)
    if p.kind == "mfma":
        tab = {4: (6, 8, 8, 3), 8: (10, 12, 12, 7), 16: (18, 20, 20, 15)}[p.passes]
        if c.kind == "mfma":
            if pd & set(c.srcAB): n = max(n, tab[1])
            if pd & set(c.srcC) and not (list(c.srcC) == list(p.dst) and c.passes == p.passes): n = max(n, tab[0])
            if pd & cd and not (list(c.dst) == list(p.dst)): n = max(n, tab[0])
        elif c.kind in ("valu", "vmem", "ds"):
            if pd & (cs | cd): n = max(n, tab[2])
            if c.kind == "valu" and set(p.srcC) & cd: n = max(n, tab[3])
    if p.kind == "salu" and ("s", 124) in pd and c.lds_dma: n = max(n, 1)
    if p.wide_store_data and set(p.wide_store_data) & cd: n = max(n, 2)
    return n

class Asm:
    def __init__(self):
        self.lines = []
    def __call__(self, s):
        for l in s.split("\n"):
            l = l.strip()
            if l: self.lines.append(l)
    def raw(self, s):
        self.lines.append(("raw", s))
    def finish(self):
        out = []; hist = []
        nins = 0
        for l in self.lines:
            if isinstance(l, tuple):
                out.append(l[1]); continue
            if l.startswith((".", ";")) or l.endswith(":"):
                out.append(l); continue
            m = re.search(r"offset:(\d+)", l)
            if m and l.startswith("buffer_"): assert int(m.group(1)) < 4096, l
            if m and l.startswith("ds_"): assert int(m.group(1)) < 65536, l
            c = Ins(l)
            need = 0; dist = 0
            for p in reversed(hist[-24:]):
                n = need_states(p, c)
                if n > dist: need = max(need, n-dist)
                dist += p.states
                if dist >= 20: break
            while need > 0:
                k = min(need, 16)
                out.append(f"  s_nop {k-1}"); hist.append(Ins(f"s_nop {k-1}")); need -= k; nins += 1
            out.append("  "+l); hist.append(c)
        return "\n".join(out)+"\n"

class Vm:
    def __init__(self): self.ops = []
    def issue(self, tag): self.ops.append(tag)
    def wait(self, tag):
        idx = max(i for i, t in enumerate(self.ops) if t == tag)
        n = len(self.ops)-1-idx
        assert n <= 63, n
        return n
```

```python
import numpy as np
Z1 = 0x0000000
Z2N = 0x0400000
U = 0x0800000
WP = 0x0A00000
H = 0x0C00000
YT = 0x1000000
ST = 0x1200000
WMAX = 0x1300000
WS_BYTES = 268435456

def f2bf(x):
    x = np.ascontiguousarray(x, dtype=np.float32); u = x.view(np.uint32)
    return ((u + 0x7FFF + ((u >> 16) & 1)) >> 16).astype(np.uint16)
def bf2f(u): return (np.asarray(u).astype(np.uint32) << 16).view(np.float32)
def f32bits(x): return int(np.float32(x).view(np.uint32))

def mu(c, h, i): return 16*c + 8*(i >> 2) + 4*h + (i & 3)
def rowB(p):
    rb = p >> 6; i = (p >> 3) & 7; n2lo = p & 7
    n2hi = rb & 7; h1 = (rb >> 3) & 1; c = rb >> 4
    return 64*mu(c, h1, i) + 8*n2hi + n2lo
def rowA(p):
    rb = p >> 6; n2lo = (p >> 3) & 7; i = p & 7
    return rowB(64*rb + 8*i + n2lo)

def kd(name, vgpr, sgpr, accum=None):
    accum = accum or ((vgpr+3)//4*4)
    return f""".section .rodata,"a"
.p2align 6
.amdhsa_kernel {name}
  .amdhsa_next_free_vgpr {vgpr}
  .amdhsa_next_free_sgpr {sgpr}
  .amdhsa_accum_offset {accum}
  .amdhsa_group_segment_fixed_size 0
  .amdhsa_kernarg_size 88
  .amdhsa_user_sgpr_count 2
  .amdhsa_user_sgpr_kernarg_segment_ptr 1
  .amdhsa_system_sgpr_workgroup_id_x 1
  .amdhsa_float_denorm_mode_32 3
  .amdhsa_float_denorm_mode_16_64 3
.end_amdhsa_kernel
"""
def srd(a, d, lo, nbytes):
    a(f"s_mov_b32 s{d}, s{lo}\n s_and_b32 s{d+1}, s{lo+1}, 0xffff\n s_mov_b32 s{d+2}, {nbytes}\n s_mov_b32 s{d+3}, 0x20000")
def pc_srd(a, d, sym, nbytes):
    a(f"s_getpc_b64 s[{d}:{d+1}]")
    a(f"s_add_u32 s{d}, s{d}, {sym}@rel32@lo+4")
    a(f"s_addc_u32 s{d+1}, s{d+1}, {sym}@rel32@hi+12")
    a(f"s_and_b32 s{d+1}, s{d+1}, 0xffff\n s_mov_b32 s{d+2}, {nbytes}\n s_mov_b32 s{d+3}, 0x20000")

import os
PROF = bool(int(os.environ.get("PROF", "0")))
TS = 0x8000000
def stamp(a, i):
    if not PROF: return
    if i == 0: a("s_memrealtime s[96:97]")
    a(f"s_memtime s[{64+2*i}:{65+2*i}]")
def stamp_flush(a, kidx, n, sWS, swave, vt=250):
    if not PROF: return
    a("s_waitcnt lgkmcnt(0)")
    a(f"s_lshl_b32 s98, s2, 3\n s_add_u32 s98, s98, s{swave}\n s_lshl_b32 s98, s98, 7\n s_add_u32 s98, s98, {TS+kidx*0x100000}")
    a(f"s_mov_b64 exec, 1\n v_mov_b32 v{vt}, 0")
    for i in range(n):
        a(f"v_mov_b32 v{vt+1}, s{64+2*i}\n buffer_store_dword v{vt+1}, v{vt}, s[{sWS}:{sWS+3}], s98 offen offset:{4*i}")
    a(f"v_mov_b32 v{vt+1}, s96\n buffer_store_dword v{vt+1}, v{vt}, s[{sWS}:{sWS+3}], s98 offen offset:124")
    a("s_mov_b64 exec, -1")
```

```python
from asmlib import Asm, Vm
from common import *
import math

RING = 0; NSLOT = 6; SLOT = 16384
XN = NSLOT*SLOT
K1_LDS = XN + 64*896
UXP = 144
SIG_T = 11

C1 = -2*math.sqrt(2/math.pi)*math.log2(math.e)
C2 = C1*0.044715

def gelu_pairs(a, acc, dst, tmp, sC):
    for q in range(0, 8, 2):
        T = [tmp+6*u for u in range(2)]
        for u in range(2):
            p = q+u; t = T[u]
            a(f"v_cvt_pk_bf16_f32 v{t+4}, v{acc+2*p}, v{acc+2*p+1}")
        for u in range(2):
            t = T[u]
            a(f"v_lshlrev_b32 v{t}, 16, v{t+4}\n v_and_b32 v{t+1}, 0xffff0000, v{t+4}")
        for u in range(2):
            t = T[u]; a(f"v_pk_mul_f32 v[{t+2}:{t+3}], v[{t}:{t+1}], v[{t}:{t+1}]")
        for u in range(2):
            t = T[u]; a(f"v_pk_fma_f32 v[{t+2}:{t+3}], v[{t+2}:{t+3}], s[{sC}:{sC+1}], v[{tmp+12}:{tmp+13}]")
        for u in range(2):
            t = T[u]; a(f"v_pk_mul_f32 v[{t+2}:{t+3}], v[{t+2}:{t+3}], v[{t}:{t+1}]")
        for u in range(2):
            t = T[u]; a(f"v_exp_f32 v{t+2}, v{t+2}\n v_exp_f32 v{t+3}, v{t+3}")
        for u in range(2):
            t = T[u]; a(f"v_pk_add_f32 v[{t+2}:{t+3}], v[{t+2}:{t+3}], 1.0 op_sel_hi:[1,0]")
        for u in range(2):
            t = T[u]; a(f"v_rcp_f32 v{t+2}, v{t+2}\n v_rcp_f32 v{t+3}, v{t+3}")
        for u in range(2):
            t = T[u]; a(f"v_pk_mul_f32 v[{t+2}:{t+3}], v[{t+2}:{t+3}], v[{t}:{t+1}]")
        for u in range(2):
            p = q+u; t = T[u]; a(f"v_cvt_pk_bf16_f32 v{dst+p}, v{t+2}, v{t+3}")

def red8(a, v, t):
    a(f"v_add_f32_dpp v{v}, v{v}, v{v} quad_perm:[1,0,3,2] row_mask:0xf bank_mask:0xf")
    a(f"v_add_f32_dpp v{v}, v{v}, v{v} quad_perm:[2,3,0,1] row_mask:0xf bank_mask:0xf")
    a(f"v_add_f32_dpp v{v}, v{v}, v{v} row_half_mirror row_mask:0xf bank_mask:0xf")

def halfsum(a, v, t):
    a(f"v_mov_b32 v{t}, v{v}")
    a(f"v_permlane32_swap_b32 v{v}, v{t}")
    a(f"v_add_f32 v{v}, v{v}, v{t}")

def ln_finish(a, vmean, vS2, vmb, n, t, out_rs):
    a(f"v_sub_f32 v{t}, v{vmean}, v{vmb}")
    a(f"v_mul_f32 v{t}, v{t}, v{t}")
    a(f"v_mov_b32 v{t+1}, {hex(f32bits(1.0/n))}")
    a(f"v_fma_f32 v{t}, v{vS2}, v{t+1}, -v{t}")
    a(f"v_max_f32 v{t}, 0, v{t}")
    var_to_rs(a, t, out_rs)

def var_to_rs(a, t, out_rs):
    a(f"v_cvt_pk_bf16_f32 v{t}, v{t}, v{t}")
    a(f"v_lshlrev_b32 v{t}, 16, v{t}")
    a(f"v_add_f32 v{t}, {hex(f32bits(1e-5))}, v{t}")
    a(f"v_cvt_pk_bf16_f32 v{t}, v{t}, v{t}")
    a(f"v_lshlrev_b32 v{t}, 16, v{t}")
    a(f"v_sqrt_f32 v{t}, v{t}")
    a(f"v_cvt_pk_bf16_f32 v{t}, v{t}, v{t}")
    a(f"v_lshlrev_b32 v{t}, 16, v{t}")
    a(f"v_rcp_f32 v{out_rs}, v{t}")

def gen_k1(a):
    name = "k1_kernel"
    a(f".text\n.globl {name}\n.p2align 8\n.type {name},@function\n{name}:")
    sX, sWIN, sWS, sFT, sDBG = 4, 8, 12, 16, 20
    a("s_cmp_ge_u32 s2, 256\n s_cbranch_scc1 K1_END")
    stamp(a, 0)
    a("s_load_dwordx2 s[24:25], s[0:1], 0")
    a("s_load_dwordx4 s[28:31], s[0:1], 8")
    a("s_load_dwordx4 s[32:35], s[0:1], 32")
    a("s_load_dwordx4 s[36:39], s[0:1], 72")
    a("s_and_b32 s40, s2, 7\n s_lshr_b32 s41, s2, 3")
    a("v_lshrrev_b32 v2, 6, v0\n v_and_b32 v1, 63, v0")
    a("v_readfirstlane_b32 s42, v2")
    pc_srd(a, sFT, "TAB_FT", 7*14*8*1024)
    a("s_waitcnt lgkmcnt(0)")
    srd(a, sX, 24, 2048*896); srd(a, sWIN, 32, 448*3584); srd(a, sWS, 38, WS_BYTES); srd(a, sDBG, 36, 256)
    a("s_cmp_ge_u32 s41, 28\n s_cbranch_scc1 K1_AUX")
    vm = Vm()
    a("s_lshl_b32 s43, s40, 2\n s_and_b32 s44, s41, 3\n s_add_u32 s43, s43, s44")
    a("s_lshr_b32 s44, s41, 2")
    a("s_lshr_b32 s45, s43, 4\n s_lshl_b32 s45, s45, 4")
    a("s_lshr_b32 s46, s42, 2\n s_lshl_b32 s46, s46, 3\n s_add_u32 s45, s45, s46")
    a("s_bfe_u32 s46, s43, 0x10003\n s_lshl_b32 s46, s46, 2\n s_add_u32 s45, s45, s46")
    a("s_and_b32 s46, s42, 3\n s_add_u32 s45, s45, s46")
    a("s_lshl_b32 s45, s45, 6\n s_and_b32 s46, s43, 7\n s_lshl_b32 s46, s46, 3\n s_add_u32 s45, s45, s46")
    a("s_mul_i32 s45, s45, 896")
    vXo, vZ, vF, vW = 2, 3, 4, 5
    vTR = 6
    vAA = 12
    XF = 16
    BF = 128
    ACC = 160; ACC2 = 176; ZP = 192; TMP = 200
    a(f"v_lshrrev_b32 v{TMP}, 3, v1\n v_and_b32 v{TMP+1}, 7, v1")
    a(f"v_mul_u32_u24 v{vXo}, 896, v{TMP}\n v_lshl_add_u32 v{vXo}, v{TMP+1}, 4, v{vXo}")
    for cc in range(7):
        a(f"buffer_load_dwordx4 v[{BF+4*cc}:{BF+4*cc+3}], v{vXo}, s[{sX}:{sX+3}], s45 offen offset:{128*cc}"); vm.issue("x")
    a(f"v_lshrrev_b32 v{TMP+2}, 4, v1\n v_and_b32 v{TMP+3}, 15, v1\n v_lshlrev_b32 v{TMP+4}, 2, v{TMP+2}\n v_xor_b32 v{TMP+3}, v{TMP+3}, v{TMP+4}")
    a(f"v_mul_u32_u24 v{vZ}, 3584, v{TMP+2}\n v_lshl_add_u32 v{vZ}, v{TMP+3}, 4, v{vZ}")
    a(f"v_lshlrev_b32 v{vF}, 4, v1")
    a("s_mul_i32 s46, s42, 14336\n s_lshl_b32 s47, s44, 8\n s_add_u32 s46, s46, s47")
    a(f"s_mul_i32 s47, s44, {14*8192}\n s_lshl_b32 s48, s42, 10\n s_add_u32 s47, s47, s48")
    def dma(t):
        slot = (t % NSLOT)*SLOT
        if t < 7:
            for u in range(2):
                a(f"s_add_u32 m0, s48, {RING+slot+u*8192}")
                a(f"s_add_u32 s49, s46, {1792+(64*t+32*u)*3584}")
                a(f"buffer_load_dwordx4 v{vZ}, s[{sWIN}:{sWIN+3}], s49 offen lds"); vm.issue(("st", t))
        else:
            s2 = t-7
            a(f"s_add_u32 m0, s48, {RING+slot}")
            a(f"s_add_u32 s49, s46, {32*s2*3584}")
            a(f"buffer_load_dwordx4 v{vZ}, s[{sWIN}:{sWIN+3}], s49 offen lds"); vm.issue(("st", t))
            a(f"s_add_u32 m0, s48, {RING+slot+8192}")
            a(f"s_add_u32 s49, s47, {s2*8192}")
            a(f"buffer_load_dwordx4 v{vF}, s[{sFT}:{sFT+3}], s49 offen lds"); vm.issue(("st", t))
    D = NSLOT-1
    for t in range(D): dma(t)
    a(f"s_lshl_b32 s49, s42, 3\n v_add_u32 v{TMP+2}, s49, v{TMP}")
    a(f"v_bfe_u32 v{TMP+3}, v{TMP+2}, 1, 3\n v_xor_b32 v{TMP+3}, v{TMP+3}, v{TMP+1}")
    a(f"v_mul_u32_u24 v{vW}, 896, v{TMP+2}\n v_lshl_add_u32 v{vW}, v{TMP+3}, 4, v{vW}\n v_add_u32 v{vW}, {XN}, v{vW}")
    a(f"s_and_b32 s49, s42, 1\n s_lshl_b32 s49, s49, 5\n v_and_b32 v{TMP+2}, 31, v1\n v_add_u32 v{TMP+2}, s49, v{TMP+2}")
    a(f"v_bfe_u32 v{TMP+3}, v{TMP+2}, 1, 3\n v_lshrrev_b32 v{TMP+4}, 5, v1\n v_xor_b32 v{TMP+3}, v{TMP+3}, v{TMP+4}")
    a(f"v_mul_u32_u24 v{TMP+2}, 896, v{TMP+2}\n v_add_u32 v{TMP+2}, {XN}, v{TMP+2}")
    for c in range(4):
        a(f"v_xor_b32 v{TMP+4}, {2*c}, v{TMP+3}\n v_lshl_add_u32 v{vAA+c}, v{TMP+4}, 4, v{TMP+2}")
    a(f"v_lshrrev_b32 v{TMP+2}, 5, v1\n v_bfe_u32 v{TMP+3}, v1, 2, 2")
    a(f"v_lshl_add_u32 v{TMP+2}, v{TMP+2}, 3, v{TMP+3}\n v_lshlrev_b32 v{TMP+2}, 8, v{TMP+2}")
    a(f"v_and_b32 v{TMP+4}, 1, v1\n v_lshl_add_u32 v{TMP+2}, v{TMP+4}, 3, v{TMP+2}")
    a(f"v_bfe_u32 v{TMP+4}, v1, 4, 1\n v_bfe_u32 v{TMP+5}, v1, 1, 1\n v_lshl_add_u32 v{TMP+4}, v{TMP+4}, 1, v{TMP+5}")
    a(f"v_lshlrev_b32 v{TMP+3}, 2, v{TMP+3}\n v_xor_b32 v{TMP+4}, v{TMP+4}, v{TMP+3}")
    a("s_lshr_b32 s49, s42, 1\n s_lshl_b32 s49, s49, 2")
    a("s_and_b32 s50, s42, 2\n s_lshl_b32 s50, s50, 2\n s_add_u32 s51, s50, 4")
    for idx, sreg in enumerate((49, 50, 51)):
        a(f"v_xor_b32 v{TMP+5}, s{sreg}, v{TMP+4}\n v_lshl_add_u32 v{vTR+2*idx}, v{TMP+5}, 4, v{TMP+2}\n v_add_u32 v{vTR+2*idx+1}, 0x10000, v{vTR+2*idx}")
    a(f"s_mov_b32 s52, {hex(f32bits(C2))}\n s_mov_b32 s53, {hex(f32bits(C2))}\n s_mov_b32 s54, 0x3f803f80")
    stamp(a, 1)
    a(f"s_waitcnt vmcnt({vm.wait('x')})")
    stamp(a, 2)
    S = TMP
    for i in range(4): a(f"v_mov_b32 v{S+i}, 0")
    for i in range(28): a(f"v_dot2_f32_bf16 v{S+(i&3)}, v{BF+i}, s54, v{S+(i&3)}")
    a(f"v_add_f32 v{S}, v{S}, v{S+1}\n v_add_f32 v{S+2}, v{S+2}, v{S+3}\n v_add_f32 v{S}, v{S}, v{S+2}")
    red8(a, S, S+1)
    vM, vMB, vNM = TMP+4, TMP+5, TMP+6
    a(f"v_mul_f32 v{vM}, {hex(f32bits(1/448))}, v{S}")
    a(f"v_cvt_pk_bf16_f32 v{vMB}, v{vM}, v{vM}\n v_lshlrev_b32 v{vMB}, 16, v{vMB}\n v_sub_f32 v{vNM}, 0, v{vMB}\n v_mov_b32 v{vNM+1}, v{vNM}")
    for i in range(4): a(f"v_mov_b32 v{S+i}, 0")
    T2 = TMP+8
    for i in range(0, 28, 4):
        for u in range(4):
            t = T2+2*u; a(f"v_lshlrev_b32 v{t}, 16, v{BF+i+u}\n v_and_b32 v{t+1}, 0xffff0000, v{BF+i+u}")
        for u in range(4):
            t = T2+2*u; a(f"v_pk_add_f32 v[{t}:{t+1}], v[{t}:{t+1}], v[{vNM}:{vNM+1}]")
        for u in range(4):
            t = T2+2*u; s_ = S+2*(u & 1)
            a(f"v_pk_fma_f32 v[{s_}:{s_+1}], v[{t}:{t+1}], v[{t}:{t+1}], v[{s_}:{s_+1}]")
            a(f"v_cvt_pk_bf16_f32 v{BF+i+u}, v{t}, v{t+1}")
    a(f"v_add_f32 v{S}, v{S}, v{S+1}\n v_add_f32 v{S+2}, v{S+2}, v{S+3}\n v_add_f32 v{S}, v{S}, v{S+2}")
    red8(a, S, S+1)
    vRS = TMP+6
    ln_finish(a, vM, S, vMB, 448, S+2, vRS)
    a(f"v_mov_b32 v{vRS+1}, v{vRS}")
    for i in range(0, 28, 4):
        for u in range(4):
            t = T2+2*u; a(f"v_lshlrev_b32 v{t}, 16, v{BF+i+u}\n v_and_b32 v{t+1}, 0xffff0000, v{BF+i+u}")
        for u in range(4):
            t = T2+2*u; a(f"v_pk_mul_f32 v[{t}:{t+1}], v[{t}:{t+1}], v[{vRS}:{vRS+1}]")
        for u in range(4):
            t = T2+2*u; a(f"v_cvt_pk_bf16_f32 v{BF+i+u}, v{t}, v{t+1}")
        a(f"ds_write_b128 v{vW}, v[{BF+i}:{BF+i+3}] offset:{32*i}")
    a(f"v_mov_b32 v{TMP+12}, {hex(f32bits(C1))}\n v_mov_b32 v{TMP+13}, {hex(f32bits(C1))}")
    a("s_waitcnt lgkmcnt(0)")
    stamp(a, 3)
    def trbase(idx, t):
        slot = (t % NSLOT)*SLOT
        return (vTR+2*idx+(1 if slot >= 65536 else 0), slot-(65536 if slot >= 65536 else 0))
    def reads1(t):
        b = BF+16*(t & 1)
        vb, so = trbase(0, t)
        for k in range(4):
            c16 = 4*t+k
            a(f"ds_read_b128 v[{XF+4*c16}:{XF+4*c16+3}], v{vAA+(c16&3)} offset:{(c16>>2)*128}")
            for tt in range(2):
                a(f"ds_read_b64_tr_b16 v[{b+4*k+2*tt}:{b+4*k+2*tt+1}], v{vb} offset:{so+k*4096+tt*1024}")
    def mfma1(t):
        b = BF+16*(t & 1)
        for k in range(4):
            c16 = 4*t+k
            cin = "0" if c16 == 0 else f"v[{ACC}:{ACC+15}]"
            a(f"v_mfma_f32_32x32x16_bf16 v[{ACC}:{ACC+15}], v[{b+4*k}:{b+4*k+3}], v[{XF+4*c16}:{XF+4*c16+3}], {cin}")
    def head(t):
        a(f"s_waitcnt vmcnt({vm.wait(('st', t))})")
        a("s_barrier")
        if t+D < 21: dma(t+D)
    for t in range(7):
        head(t)
        if t == 0: stamp(a, 4)
        reads1(t)
        if t > 0: mfma1(t-1)
        a("s_waitcnt lgkmcnt(0)")
    mfma1(6)
    stamp(a, 5)
    gelu_pairs(a, ACC, ZP, TMP, 52)
    Sx = ACC
    for p in range(8):
        a(f"v_lshlrev_b32 v{Sx+2*p}, 16, v{ZP+p}\n v_and_b32 v{Sx+2*p+1}, 0xffff0000, v{ZP+p}")
    a(f"v_pk_add_f32 v[{TMP}:{TMP+1}], v[{Sx}:{Sx+1}], v[{Sx+2}:{Sx+3}]\n v_pk_add_f32 v[{TMP+2}:{TMP+3}], v[{Sx+4}:{Sx+5}], v[{Sx+6}:{Sx+7}]")
    a(f"v_pk_add_f32 v[{TMP+4}:{TMP+5}], v[{Sx+8}:{Sx+9}], v[{Sx+10}:{Sx+11}]\n v_pk_add_f32 v[{TMP+6}:{TMP+7}], v[{Sx+12}:{Sx+13}], v[{Sx+14}:{Sx+15}]")
    a(f"v_pk_add_f32 v[{TMP}:{TMP+1}], v[{TMP}:{TMP+1}], v[{TMP+2}:{TMP+3}]\n v_pk_add_f32 v[{TMP+4}:{TMP+5}], v[{TMP+4}:{TMP+5}], v[{TMP+6}:{TMP+7}]")
    a(f"v_pk_add_f32 v[{TMP}:{TMP+1}], v[{TMP}:{TMP+1}], v[{TMP+4}:{TMP+5}]\n v_add_f32 v{TMP}, v{TMP}, v{TMP+1}")
    halfsum(a, TMP, TMP+1)
    a(f"v_mul_f32 v{TMP+8}, {hex(f32bits(1/32))}, v{TMP}")
    a(f"v_sub_f32 v{TMP+2}, 0, v{TMP+8}\n v_mov_b32 v{TMP+3}, v{TMP+2}")
    for p in range(8):
        a(f"v_pk_add_f32 v[{Sx+2*p}:{Sx+2*p+1}], v[{Sx+2*p}:{Sx+2*p+1}], v[{TMP+2}:{TMP+3}]")
    a(f"v_pk_mul_f32 v[{TMP+4}:{TMP+5}], v[{Sx}:{Sx+1}], v[{Sx}:{Sx+1}]\n v_pk_mul_f32 v[{TMP+6}:{TMP+7}], v[{Sx+2}:{Sx+3}], v[{Sx+2}:{Sx+3}]")
    for p in range(2, 8):
        d = TMP+4+2*(p & 1)
        a(f"v_pk_fma_f32 v[{d}:{d+1}], v[{Sx+2*p}:{Sx+2*p+1}], v[{Sx+2*p}:{Sx+2*p+1}], v[{d}:{d+1}]")
    a(f"v_pk_add_f32 v[{TMP+4}:{TMP+5}], v[{TMP+4}:{TMP+5}], v[{TMP+6}:{TMP+7}]\n v_add_f32 v{TMP+9}, v{TMP+4}, v{TMP+5}")
    halfsum(a, TMP+9, TMP+1)
    a("s_mul_i32 s55, s43, 14336\n s_lshl_b32 s56, s44, 11\n s_add_u32 s56, s56, s55")
    a(f"s_lshr_b32 s57, s42, 1\n s_lshl_b32 s57, s57, 9\n s_add_u32 s56, s56, s57\n s_and_b32 s57, s42, 1\n s_lshl_b32 s57, s57, 8\n s_add_u32 s56, s56, s57\n s_add_u32 s56, s56, {ST}")
    a(f"v_and_b32 v{TMP+10}, 31, v1\n v_lshlrev_b32 v{TMP+10}, 3, v{TMP+10}")
    a("s_mov_b32 exec_hi, 0")
    a(f"buffer_store_dwordx2 v[{TMP+8}:{TMP+9}], v{TMP+10}, s[{sWS}:{sWS+3}], s56 offen sc1"); vm.issue("stats")
    a("s_mov_b64 exec, -1")
    stamp(a, 6)
    a("s_cmp_ge_u32 s42, 4\n s_cbranch_scc1 K1_P2Z")
    vm_save = list(vm.ops)
    def signal():
        pass
    for path in ("F", "Z"):
        vm.ops = list(vm_save)
        if path == "Z": a("K1_P2Z:")
        else:
            a(f"s_lshr_b32 s57, s42, 1\n s_lshl_b32 s57, s57, 12\n v_add_u32 v{vTR+2}, s57, v{vF}\n v_add_u32 v{vTR+3}, 0x10000, v{vTR+2}")
        def reads2(t):
            b = BF+16*(t & 1)
            if path == "F":
                vb, so = trbase(1, t)
                for f in range(4):
                    a(f"ds_read_b128 v[{b+4*f}:{b+4*f+3}], v{vb} offset:{so+8192+f*1024}")
            else:
                for tile in range(2):
                    vb, so = trbase(1+tile, t)
                    for k in range(2):
                        for tt in range(2):
                            f = tile*2+k
                            a(f"ds_read_b64_tr_b16 v[{b+4*f+2*tt}:{b+4*f+2*tt+1}], v{vb} offset:{so+k*4096+tt*1024}")
        def mfma2(t):
            b = BF+16*(t & 1); s2 = t-7
            if path == "F":
                for f in range(4):
                    c16 = 2*s2+(f >> 1)
                    cin = "0" if (s2 == 0 and f == 0) else f"v[{ACC}:{ACC+15}]"
                    a(f"v_mfma_f32_32x32x16_bf16 v[{ACC}:{ACC+15}], v[{XF+4*c16}:{XF+4*c16+3}], v[{b+4*f}:{b+4*f+3}], {cin}")
            else:
                for k in range(2):
                    for tile in range(2):
                        f = tile*2+k; c16 = 2*s2+k; ac = ACC if tile == 0 else ACC2
                        cin = "0" if c16 == 0 else f"v[{ac}:{ac+15}]"
                        a(f"v_mfma_f32_32x32x16_bf16 v[{ac}:{ac+15}], v[{b+4*f}:{b+4*f+3}], v[{XF+4*c16}:{XF+4*c16+3}], {cin}")
        for t in range(7, 21):
            n = vm.wait(("st", t))
            if t == SIG_T: n = min(n, vm.wait("stats"))
            a(f"s_waitcnt vmcnt({n})")
            a("s_barrier")
            if t == SIG_T:
                if path == "F":
                    a(f"s_cmp_lg_u32 s42, 0\n s_cbranch_scc1 K1_NOSIG")
                    a(f"s_lshl_b32 s57, s43, 2\n v_mov_b32 v{TMP}, 1\n v_mov_b32 v{TMP+1}, s57")
                    a("s_mov_b64 exec, 1")
                    a(f"buffer_atomic_add v{TMP}, v{TMP+1}, s[{sDBG}:{sDBG+3}], 0 offen sc1")
                    a("s_mov_b64 exec, -1")
                    a("K1_NOSIG:")
            if t+D < 21: dma(t+D)
            reads2(t)
            if t > 7: mfma2(t-1)
            a("s_waitcnt lgkmcnt(0)")
        mfma2(20)
        stamp(a, 7)
        if path == "F":
            a(f"v_and_b32 v{TMP}, 31, v1\n s_lshr_b32 s57, s42, 1\n s_lshl_b32 s57, s57, 5\n v_add_u32 v{TMP}, s57, v{TMP}")
            a(f"v_mul_u32_u24 v{TMP}, {UXP}, v{TMP}\n v_lshrrev_b32 v{TMP+1}, 5, v1\n v_lshl_add_u32 v{TMP}, v{TMP+1}, 6, v{TMP}")
            a(f"s_and_b32 s57, s42, 1\n s_lshl_b32 s57, s57, 3\n v_add_u32 v{TMP}, s57, v{TMP}")
            for r in range(4):
                a(f"v_cvt_pk_f16_f32 v{TMP+2+2*r}, v{ACC+r}, v{ACC+4+r}\n v_cvt_pk_f16_f32 v{TMP+3+2*r}, v{ACC+8+r}, v{ACC+12+r}")
                a(f"ds_write_b64 v{TMP}, v[{TMP+2+2*r}:{TMP+3+2*r}] offset:{16*r}")
            a("s_cmp_lg_u32 s42, 0\n s_cbranch_scc1 K1_NOPOLL")
            a(f"s_lshl_b32 s57, s43, 2\n v_mov_b32 v{TMP+1}, s57\n s_mov_b32 s58, 0")
            a("K1_POLL:")
            a(f"buffer_load_dword v{TMP+10}, v{TMP+1}, s[{sDBG}:{sDBG+3}], 0 offen sc1")
            a("s_waitcnt vmcnt(0)")
            a(f"v_readfirstlane_b32 s59, v{TMP+10}")
            a("s_add_u32 s58, s58, 1\n s_cmp_ge_u32 s59, 7\n s_cbranch_scc1 K1_NOPOLL")
            a("s_sleep 1\n s_cmp_lt_u32 s58, 0x40000\n s_cbranch_scc1 K1_POLL")
            a("K1_NOPOLL:")
            a("s_branch K1_JOIN")
        else:
            a("s_lshl_b32 s57, s43, 1\n s_and_b32 s58, s42, 1\n s_add_u32 s57, s57, s58\n s_mul_i32 s57, s57, 56")
            a("s_lshl_b32 s58, s44, 3\n s_add_u32 s57, s57, s58\n s_and_b32 s58, s42, 2\n s_lshl_b32 s58, s58, 1\n s_add_u32 s57, s57, s58\n s_lshl_b32 s57, s57, 10")
            if Z1: a(f"s_add_u32 s57, s57, {Z1}")
            for tile in range(2):
                ac = ACC if tile == 0 else ACC2
                dst = BF+8*tile
                gelu_pairs(a, ac, dst, TMP, 52)
                for q in range(2):
                    a(f"buffer_store_dwordx4 v[{dst+4*q}:{dst+4*q+3}], v{vF}, s[{sWS}:{sWS+3}], s57 offen offset:{(2*tile+q)*1024}")
    a("K1_JOIN:")
    stamp(a, 8)
    a("s_waitcnt lgkmcnt(0)\n s_barrier")
    stamp(a, 9)
    a(f"v_and_b32 v{TMP}, 31, v1\n v_lshlrev_b32 v{TMP}, 3, v{TMP}\n v_lshrrev_b32 v{TMP+1}, 5, v1\n v_mul_u32_u24 v{TMP+1}, 7168, v{TMP+1}\n v_add_u32 v{TMP}, v{TMP}, v{TMP+1}")
    a(f"s_and_b32 s57, s42, 1\n s_lshl_b32 s57, s57, 8\n s_add_u32 s57, s57, s55\n s_add_u32 s57, s57, {ST}\n s_add_u32 s58, s57, 3584")
    PS = XF
    for i in range(14):
        sreg = 57 if i < 7 else 58
        a(f"buffer_load_dwordx2 v[{PS+2*i}:{PS+2*i+1}], v{TMP}, s[{sWS}:{sWS+3}], s{sreg} offen offset:{(i%7)*512} sc1")
    a(f"v_lshrrev_b32 v{TMP+2}, 3, v0\n v_and_b32 v{TMP+3}, 7, v0")
    a(f"v_mul_u32_u24 v{TMP+4}, {UXP}, v{TMP+2}\n v_lshl_add_u32 v{TMP+4}, v{TMP+3}, 4, v{TMP+4}")
    a(f"ds_read_b128 v[{TMP+8}:{TMP+11}], v{TMP+4}")
    a(f"v_lshlrev_b32 v{TMP+2}, 12, v{TMP+2}\n v_lshl_add_u32 v{TMP+2}, v{TMP+3}, 4, v{TMP+2}")
    a(f"s_lshl_b32 s57, s44, 18\n s_lshl_b32 s58, s43, 7\n s_add_u32 s57, s57, s58\n s_add_u32 s57, s57, {U}")
    a("s_waitcnt lgkmcnt(0)")
    a(f"buffer_store_dwordx4 v[{TMP+8}:{TMP+11}], v{TMP+2}, s[{sWS}:{sWS+3}], s57 offen")
    a("s_waitcnt vmcnt(1)")
    stamp(a, 10)
    A0 = ACC
    a(f"v_pk_add_f32 v[{A0}:{A0+1}], v[{PS}:{PS+1}], v[{PS+2}:{PS+3}]")
    for i in range(2, 14): a(f"v_pk_add_f32 v[{A0}:{A0+1}], v[{A0}:{A0+1}], v[{PS+2*i}:{PS+2*i+1}]")
    halfsum(a, A0, A0+2); halfsum(a, A0+1, A0+2)
    a(f"v_mul_f32 v{A0}, {hex(f32bits(1/28))}, v{A0}")
    a(f"v_mov_b32 v{A0+3}, 0")
    for i in range(14):
        a(f"v_sub_f32 v{A0+4+(i&1)}, v{PS+2*i}, v{A0}\n v_fmac_f32 v{A0+3}, v{A0+4+(i&1)}, v{A0+4+(i&1)}")
    halfsum(a, A0+3, A0+2)
    a(f"v_mov_b32 v{A0+2}, 0x42000000\n v_fma_f32 v{A0+1}, v{A0+3}, v{A0+2}, v{A0+1}")
    a(f"v_mul_f32 v{A0+1}, {hex(f32bits(1/896))}, v{A0+1}")
    var_to_rs(a, A0+1, A0+6)
    a(f"v_mov_b32 v{A0+7}, v{A0+6}")
    a(f"v_cvt_pk_bf16_f32 v{A0+4}, v{A0}, v{A0}\n v_lshlrev_b32 v{A0+4}, 16, v{A0+4}\n v_sub_f32 v{A0+4}, 0, v{A0+4}\n v_mov_b32 v{A0+5}, v{A0+4}")
    T3 = ACC2
    for p in range(8): a(f"v_lshlrev_b32 v{T3+2*p}, 16, v{ZP+p}\n v_and_b32 v{T3+2*p+1}, 0xffff0000, v{ZP+p}")
    for p in range(8): a(f"v_pk_add_f32 v[{T3+2*p}:{T3+2*p+1}], v[{T3+2*p}:{T3+2*p+1}], v[{A0+4}:{A0+5}]")
    for p in range(8): a(f"v_cvt_pk_bf16_f32 v{ZP+p}, v{T3+2*p}, v{T3+2*p+1}")
    for p in range(8): a(f"v_lshlrev_b32 v{T3+2*p}, 16, v{ZP+p}\n v_and_b32 v{T3+2*p+1}, 0xffff0000, v{ZP+p}")
    for p in range(8): a(f"v_pk_mul_f32 v[{T3+2*p}:{T3+2*p+1}], v[{T3+2*p}:{T3+2*p+1}], v[{A0+6}:{A0+7}]")
    for p in range(8): a(f"v_cvt_pk_bf16_f32 v{ZP+p}, v{T3+2*p}, v{T3+2*p+1}")
    a("s_lshl_b32 s57, s43, 1\n s_and_b32 s58, s42, 1\n s_add_u32 s57, s57, s58\n s_mul_i32 s57, s57, 56")
    a(f"s_lshl_b32 s58, s44, 3\n s_add_u32 s57, s57, s58\n s_and_b32 s58, s42, 6\n s_add_u32 s57, s57, s58\n s_lshl_b32 s57, s57, 10\n s_add_u32 s57, s57, {Z2N}")
    for q in range(2):
        a(f"buffer_store_dwordx4 v[{ZP+4*q}:{ZP+4*q+3}], v{vF}, s[{sWS}:{sWS+3}], s57 offen offset:{q*1024}")
    stamp(a, 11)
    if PROF: a("s_waitcnt vmcnt(0)")
    stamp(a, 12)
    stamp_flush(a, 0, 13, sWS, 42)
    a("s_endpgm")
    a("K1_AUX:")
    sWR, sWI, sSP = 4, 8, 16
    srd(a, sWR, 28, 2048*450); srd(a, sWI, 30, 2048*450); srd(a, sSP, 34, 2048*4096)
    a("s_sub_u32 s41, s41, 28")
    a("s_lshl_b32 s43, s41, 3\n s_add_u32 s43, s43, s40")
    a("s_lshr_b32 s44, s43, 1\n s_lshl_b32 s44, s44, 2\n s_and_b32 s45, s42, 3\n s_add_u32 s44, s44, s45\n s_lshl_b32 s44, s44, 5")
    a("s_and_b32 s45, s43, 1\n s_lshl_b32 s45, s45, 4\n s_add_u32 s44, s44, s45\n s_mul_i32 s44, s44, 450")
    a("v_lshlrev_b32 v4, 4, v1")
    a("s_lshl_b32 s46, s42, 13")
    a("s_cmp_ge_u32 s42, 4\n s_cbranch_scc1 K1_AUXI")
    for arr, sr in (("R", sWR), ("I", sWI)):
        if arr == "I": a("K1_AUXI:")
        for i in range(8):
            a(f"s_add_u32 m0, s46, {i*1024}\n s_add_u32 s47, s44, {i*1024}")
            a(f"buffer_load_dwordx4 v4, s[{sr}:{sr+3}], s47 offen lds")
        if arr == "R": a("s_branch K1_AUXJ")
    a("K1_AUXJ:")
    a("s_bfe_u32 s47, s40, 0x10001\n s_lshl_b32 s47, s47, 4\n s_lshr_b32 s48, s40, 2\n s_lshl_b32 s48, s48, 3\n s_add_u32 s47, s47, s48")
    a("s_and_b32 s48, s40, 1\n s_lshl_b32 s48, s48, 2\n s_add_u32 s47, s47, s48\n s_add_u32 s47, s47, s41\n s_lshl_b32 s47, s47, 18")
    a("v_lshlrev_b32 v5, 4, v0")
    for i in range(32):
        a(f"buffer_load_dwordx4 v[{64+4*(i%8)}:{67+4*(i%8)}], v5, s[{sSP}:{sSP+3}], s47 offen")
        if i < 31: a("s_add_u32 s47, s47, 8192")
    stamp(a, 1)
    a("s_waitcnt vmcnt(32)\n s_barrier")
    stamp(a, 2)
    a("v_and_b32 v6, 15, v0\n v_lshrrev_b32 v7, 4, v0")
    a("v_mul_u32_u24 v8, 450, v6\n v_lshl_add_u32 v8, v7, 1, v8")
    a("v_lshlrev_b32 v9, 13, v7\n v_lshl_add_u32 v9, v6, 4, v9")
    a(f"s_lshl_b32 s47, s43, 8\n s_add_u32 s47, s47, {WP}")
    a("v_mov_b32 v10, 0")
    for it in range(8):
        d = 16+4*it
        for r in range(4):
            a(f"ds_read_u16 v{d+r}, v8 offset:{r*8192+64*it}")
            a(f"ds_read_u16 v{d+r+96}, v8 offset:{(4+r)*8192+64*it}")
    a("s_waitcnt lgkmcnt(0)")
    for it in range(8):
        d = 16+4*it
        for r in range(4): a(f"v_lshl_or_b32 v{d+r}, v{d+r+96}, 16, v{d+r}")
        if it == 7:
            a("v_cmp_gt_u32 vcc, 16, v0\n s_and_saveexec_b64 s[50:51], vcc\n s_cbranch_execz K1_AUXSK")
        a(f"buffer_store_dwordx4 v[{d}:{d+3}], v9, s[{sWS}:{sWS+3}], s47 offen")
        for r in range(4):
            a(f"v_and_b32 v{12+(r&1)}, 0x7fff7fff, v{d+r}\n v_pk_max_u16 v10, v10, v{12+(r&1)}")
        if it < 7: a(f"s_add_u32 s47, s47, {32*8192}")
    a("K1_AUXSK:\n s_mov_b64 exec, -1")
    a("v_lshrrev_b32 v11, 16, v10\n v_and_b32 v10, 0xffff, v10\n v_max_u32 v10, v10, v11")
    a("v_max_u32_dpp v10, v10, v10 quad_perm:[1,0,3,2] row_mask:0xf bank_mask:0xf")
    a("v_max_u32_dpp v10, v10, v10 quad_perm:[2,3,0,1] row_mask:0xf bank_mask:0xf")
    a("v_max_u32_dpp v10, v10, v10 row_half_mirror row_mask:0xf bank_mask:0xf")
    a("v_max_u32_dpp v10, v10, v10 row_mirror row_mask:0xf bank_mask:0xf")
    a("v_readlane_b32 s50, v10, 0\n v_readlane_b32 s51, v10, 16\n v_readlane_b32 s52, v10, 32\n v_readlane_b32 s53, v10, 48")
    a("s_max_u32 s50, s50, s51\n s_max_u32 s52, s52, s53\n s_max_u32 s50, s50, s52")
    a(f"s_lshl_b32 s47, s43, 3\n s_add_u32 s47, s47, s42\n s_lshl_b32 s47, s47, 2\n s_add_u32 s47, s47, {WMAX}")
    a("v_mov_b32 v10, s50\n v_mov_b32 v11, s47\n s_mov_b64 exec, 1")
    a(f"buffer_store_dword v10, v11, s[{sWS}:{sWS+3}], 0 offen")
    a("s_mov_b64 exec, -1")
    stamp(a, 3)
    if PROF: a("s_waitcnt vmcnt(0)")
    stamp(a, 4)
    stamp_flush(a, 0, 5, sWS, 42)
    a("K1_END:\n s_endpgm")
    a.raw(kd(name, 256 if PROF else 232, 100 if PROF else 64))

def tables_ft(a):
    j = np.arange(448)
    v = (np.cos(2*np.pi*j/448)/16).astype(np.float32)
    v[112] = 0; v[336] = 0
    hi = f2bf(v); lo = f2bf(v-bf2f(hi))
    L = ['.section .rodata,"a"']
    for i in range(448): L.append(f".set FH{i},{hi[i]}\n.set FL{i},{lo[i]}")
    L.append(r""".altmacro
.macro EMH q0_,q1_,q2_,q3_,q4_,q5_,q6_,q7_
.long FH\q0_|(FH\q1_<<16),FH\q2_|(FH\q3_<<16),FH\q4_|(FH\q5_<<16),FH\q6_|(FH\q7_<<16)
.endm
.macro EML q0_,q1_,q2_,q3_,q4_,q5_,q6_,q7_
.long FL\q0_|(FL\q1_<<16),FL\q2_|(FL\q3_<<16),FL\q4_|(FL\q5_<<16),FL\q6_|(FL\q7_<<16)
.endm
.p2align 8
TAB_FT:
.set ff, 0
.rept 392
.set pp, 0
.rept 2
.set ll, 0
.rept 64
.set kc, (ff/56)*64+((ff>>1)&1)*32+(ll&31)
.set d0, ((((ff%56)>>2)*2)+(ff&1))*16+(ll>>5)*8
.set kk, (kc>>1)+224*(kc==1)*(-1)
.set bb, d0*kk+(kc&1)*112*(1+(kc==1))
.if pp==0
EMH %(bb%448),%((bb+kk)%448),%((bb+2*kk)%448),%((bb+3*kk)%448),%((bb+4*kk)%448),%((bb+5*kk)%448),%((bb+6*kk)%448),%((bb+7*kk)%448)
.else
EML %(bb%448),%((bb+kk)%448),%((bb+2*kk)%448),%((bb+3*kk)%448),%((bb+4*kk)%448),%((bb+5*kk)%448),%((bb+6*kk)%448),%((bb+7*kk)%448)
.endif
.set ll, ll+1
.endr
.set pp, pp+1
.endr
.set ff, ff+1
.endr
.noaltmacro""")
    a.raw("\n".join(L))
```

```python
from asmlib import Asm, Vm
from common import *

NSLOT = 6; SLOT = 24576
K2_LDS = NSLOT*SLOT
FT_BYTES = 56*1024
O_C64R, O_C64I, O_TW1, O_TW2, O_C32 = 0, 8192, 16384, 32768, 49152

def wmax_scale(a, sWS, v, sdst_e):
    a(f"v_lshlrev_b32 v{v+4}, 4, v1\n s_mov_b32 s{sdst_e}, {WMAX}")
    a(f"buffer_load_dwordx4 v[{v}:{v+3}], v{v+4}, s[{sWS}:{sWS+3}], s{sdst_e} offen")
def wmax_reduce(a, v, se, st):
    a(f"v_max_u32 v{v}, v{v}, v{v+1}\n v_max3_u32 v{v}, v{v}, v{v+2}, v{v+3}")
    a(f"v_max_u32_dpp v{v}, v{v}, v{v} quad_perm:[1,0,3,2] row_mask:0xf bank_mask:0xf")
    a(f"v_max_u32_dpp v{v}, v{v}, v{v} quad_perm:[2,3,0,1] row_mask:0xf bank_mask:0xf")
    a(f"v_max_u32_dpp v{v}, v{v}, v{v} row_half_mirror row_mask:0xf bank_mask:0xf")
    a(f"v_max_u32_dpp v{v}, v{v}, v{v} row_mirror row_mask:0xf bank_mask:0xf")
    a(f"v_readlane_b32 s{se}, v{v}, 0\n v_readlane_b32 s{st}, v{v}, 16\n v_readlane_b32 s{st+1}, v{v}, 32\n v_readlane_b32 s{st+2}, v{v}, 48")
    a(f"s_max_u32 s{se}, s{se}, s{st}\n s_max_u32 s{st+1}, s{st+1}, s{st+2}\n s_max_u32 s{se}, s{se}, s{st+1}")
    a(f"s_lshr_b32 s{se}, s{se}, 7\n s_max_u32 s{se}, s{se}, 2\n s_min_u32 s{se}, s{se}, 252")

def gen_k2(a):
    name = "k2_kernel"
    a(f".text\n.globl {name}\n.p2align 8\n.type {name},@function\n{name}:")
    sSP, sWS, sBS, sTB = 4, 8, 12, 16
    a("s_cmp_ge_u32 s2, 256\n s_cbranch_scc1 K2_END")
    stamp(a, 0)
    a("s_load_dwordx4 s[24:27], s[0:1], 40")
    a("s_load_dwordx2 s[28:29], s[0:1], 80")
    a("s_and_b32 s40, s2, 7\n s_lshr_b32 s41, s2, 3")
    a("v_lshrrev_b32 v2, 6, v0\n v_and_b32 v1, 63, v0")
    a("v_readfirstlane_b32 s42, v2")
    pc_srd(a, sTB, "TAB_FFT", FT_BYTES)
    a("s_waitcnt lgkmcnt(0)")
    srd(a, sSP, 24, 2048*4096); srd(a, sWS, 28, WS_BYTES); srd(a, sBS, 26, 4096)
    a("s_cmp_ge_u32 s41, 28\n s_cbranch_scc1 K2_FFT")
    vm = Vm()
    a("s_and_b32 s43, s40, 3\n s_lshl_b32 s43, s43, 2\n s_and_b32 s44, s41, 3\n s_add_u32 s43, s43, s44")
    a("s_lshr_b32 s44, s40, 2\n s_mul_i32 s44, s44, 7\n s_lshr_b32 s45, s41, 2\n s_add_u32 s44, s44, s45")
    a("s_lshr_b32 s45, s43, 3\n s_lshl_b32 s45, s45, 4\n s_bfe_u32 s46, s43, 0x10002\n s_lshl_b32 s46, s46, 2\n s_add_u32 s45, s45, s46")
    a("s_lshr_b32 s46, s42, 2\n s_lshl_b32 s46, s46, 3\n s_add_u32 s46, s46, s45\n s_and_b32 s47, s42, 3\n s_add_u32 s46, s46, s47")
    a("s_lshl_b32 s46, s46, 6\n s_and_b32 s47, s43, 3\n s_lshl_b32 s47, s47, 4\n s_add_u32 s46, s46, s47\n s_lshl_b32 s46, s46, 12")
    vA, vB, vL = 2, 3, 4
    T = 100
    a(f"v_lshrrev_b32 v{T}, 3, v1\n v_and_b32 v{T+1}, 7, v1\n v_lshrrev_b32 v{T+2}, 1, v{T}")
    a(f"s_and_b32 s47, s42, 1\n s_lshl_b32 s47, s47, 2\n v_add_u32 v{T+2}, s47, v{T+2}\n v_xor_b32 v{T+1}, v{T+1}, v{T+2}")
    a(f"v_lshlrev_b32 v{vA}, 12, v{T}\n v_lshl_add_u32 v{vA}, v{T+1}, 4, v{vA}")
    a(f"v_lshrrev_b32 v{T}, 5, v1\n v_bfe_u32 v{T+1}, v1, 3, 1\n v_lshl_add_u32 v{T}, v{T}, 1, v{T+1}\n v_lshlrev_b32 v{vB}, 10, v{T}")
    a(f"v_bfe_u32 v{T}, v1, 2, 1\n v_lshl_add_u32 v{vB}, v{T}, 9, v{vB}\n v_bfe_u32 v{T}, v1, 4, 1\n v_lshl_add_u32 v{vB}, v{T}, 6, v{vB}")
    a(f"v_and_b32 v{T}, 3, v1\n v_lshl_add_u32 v{vB}, v{T}, 4, v{vB}")
    a(f"v_lshlrev_b32 v{vL}, 4, v1")
    a(f"s_lshl_b32 s47, s44, 12\n s_mul_i32 s48, s42, {2*57344}\n s_add_u32 s47, s47, s48\n s_add_u32 s47, s47, {Z2N}")
    a("s_lshl_b32 s48, s42, 10")
    def dma(t):
        slot = (t % NSLOT)*SLOT
        sg = t
        zoff = (2*(8*((sg >> 2) & 1)+16*(sg >> 4))+((sg >> 3) & 1))*57344+(sg & 3)*128
        a(f"s_add_u32 m0, s48, {slot}\n s_add_u32 s49, s46, {sg*128}")
        a(f"buffer_load_dwordx4 v{vA}, s[{sSP}:{sSP+3}], s49 offen lds"); vm.issue(("st", t))
        a(f"s_add_u32 m0, s48, {slot+8192}\n s_add_u32 s49, s46, {sg*128+8*4096}")
        a(f"buffer_load_dwordx4 v{vA}, s[{sSP}:{sSP+3}], s49 offen lds"); vm.issue(("st", t))
        a(f"s_add_u32 m0, s48, {slot+16384}\n s_add_u32 s49, s47, {zoff}")
        a(f"buffer_load_dwordx4 v{vB}, s[{sWS}:{sWS+3}], s49 offen lds"); vm.issue(("st", t))
    D = NSLOT-1
    for t in range(D): dma(t)
    ZR = 88; BS = 96
    a("s_lshr_b32 s50, s42, 1\n s_and_b32 s51, s42, 1")
    a("s_lshl_b32 s52, s43, 2\n s_add_u32 s52, s52, s50\n s_mul_i32 s52, s52, 56\n s_lshl_b32 s53, s44, 2\n s_add_u32 s52, s52, s53\n s_lshl_b32 s53, s51, 1\n s_add_u32 s52, s52, s53\n s_lshl_b32 s52, s52, 10")
    a(f"s_add_u32 s53, s52, {Z1}" if Z1 else "s_mov_b32 s53, s52")
    for q in range(2):
        a(f"buffer_load_dwordx4 v[{ZR+4*q}:{ZR+4*q+3}], v{vL}, s[{sWS}:{sWS+3}], s53 offen offset:{q*1024}"); vm.issue("z1")
    a("s_and_b32 s53, s50, 1\n s_lshl_b32 s53, s53, 3\n s_add_u32 s53, s53, s45\n s_lshl_b32 s53, s53, 6")
    a("s_and_b32 s54, s43, 3\n s_lshl_b32 s54, s54, 1\n s_lshr_b32 s55, s50, 1\n s_add_u32 s54, s54, s55\n s_lshl_b32 s54, s54, 3\n s_add_u32 s53, s53, s54\n s_lshl_b32 s53, s53, 1")
    a(f"v_bfe_u32 v{T}, v1, 3, 2\n v_and_b32 v{T+1}, 7, v1\n v_lshlrev_b32 v{T}, 7, v{T}\n v_lshl_add_u32 v{T}, v{T+1}, 1, v{T}")
    a(f"buffer_load_ushort v{BS}, v{T}, s[{sBS}:{sBS+3}], s53 offen"); vm.issue("z1")
    vTR = 5
    vWA = 8
    a(f"v_lshrrev_b32 v{T}, 5, v1\n v_lshlrev_b32 v{T}, 10, v{T}\n v_bfe_u32 v{T+1}, v1, 4, 1\n v_lshl_add_u32 v{T}, v{T+1}, 7, v{T}")
    a(f"v_and_b32 v{T+1}, 1, v1\n v_lshl_add_u32 v{T}, v{T+1}, 6, v{T}\n v_bfe_u32 v{T+1}, v1, 2, 2\n v_lshl_add_u32 v{T}, v{T+1}, 4, v{T}")
    a(f"v_bfe_u32 v{T+1}, v1, 1, 1\n v_lshl_add_u32 v{T}, v{T+1}, 3, v{T}\n s_lshl_b32 s53, s51, 9\n v_add_u32 v{vTR}, s53, v{T}")
    a(f"v_add_u32 v{vTR+1}, {2*SLOT}, v{vTR}\n v_add_u32 v{vTR+2}, {4*SLOT}, v{vTR}")
    a(f"v_and_b32 v{T}, 31, v1\n s_lshl_b32 s53, s50, 5\n v_add_u32 v{T}, s53, v{T}")
    a(f"v_bfe_u32 v{T+1}, v{T}, 1, 3\n v_lshrrev_b32 v{T+2}, 5, v1\n v_xor_b32 v{T+1}, v{T+1}, v{T+2}\n v_lshlrev_b32 v{T}, 7, v{T}")
    for k in range(4):
        a(f"v_xor_b32 v{T+2}, {2*k}, v{T+1}\n v_lshl_add_u32 v{vWA+k}, v{T+2}, 4, v{T}")
        a(f"v_add_u32 v{vWA+4+k}, {2*SLOT}, v{vWA+k}\n v_add_u32 v{vWA+8+k}, {4*SLOT}, v{vWA+k}")
    FR = 20
    ACC = 104
    def rd(t, k):
        b = FR+32*(t & 1); sl = t % NSLOT; win = sl >> 1; so = (sl & 1)*SLOT
        out = []
        for tt in range(2):
            out.append(f"ds_read_b64_tr_b16 v[{b+8*k+2*tt}:{b+8*k+2*tt+1}], v{vTR+win} offset:{so+16384+2048*k+256*tt}")
        out.append(f"ds_read_b128 v[{b+8*k+4}:{b+8*k+7}], v{vWA+4*win+k} offset:{so}")
        return out
    def mf(t, k):
        b = FR+32*(t & 1)
        cin = "0" if (t == 0 and k == 0) else f"v[{ACC}:{ACC+15}]"
        return f"v_mfma_f32_32x32x16_bf16 v[{ACC}:{ACC+15}], v[{b+8*k}:{b+8*k+3}], v[{b+8*k+4}:{b+8*k+7}], {cin}"
    stamp(a, 1)
    for t in range(32):
        a(f"s_waitcnt vmcnt({vm.wait(('st', t))})")
        a("s_barrier")
        if t == 0: stamp(a, 2)
        if t == 16: stamp(a, 3)
        for k in range(4):
            if t > 0: a(mf(t-1, k))
            for l in rd(t, k): a(l)
            if k == 0 and t+D < 32: dma(t+D)
        a("s_waitcnt lgkmcnt(0)")
    for k in range(4): a(mf(31, k))
    stamp(a, 4)
    a(f"v_lshlrev_b32 v{BS}, 16, v{BS}\n v_mov_b32 v{BS+1}, v{BS}")
    E = FR
    for p in range(8): a(f"v_cvt_pk_bf16_f32 v{E+32+p}, v{ACC+2*p}, v{ACC+2*p+1}")
    for p in range(8): a(f"v_lshlrev_b32 v{E+2*p}, 16, v{E+32+p}\n v_and_b32 v{E+2*p+1}, 0xffff0000, v{E+32+p}")
    for p in range(8): a(f"v_pk_add_f32 v[{E+2*p}:{E+2*p+1}], v[{E+2*p}:{E+2*p+1}], v[{BS}:{BS+1}]")
    for p in range(8): a(f"v_cvt_pk_bf16_f32 v{E+32+p}, v{E+2*p}, v{E+2*p+1}")
    for p in range(8): a(f"v_lshlrev_b32 v{E+2*p}, 16, v{E+32+p}\n v_and_b32 v{E+2*p+1}, 0xffff0000, v{E+32+p}")
    for p in range(8): a(f"v_lshlrev_b32 v{E+16+2*p}, 16, v{ZR+p}\n v_and_b32 v{E+16+2*p+1}, 0xffff0000, v{ZR+p}")
    for p in range(8): a(f"v_pk_mul_f32 v[{E+2*p}:{E+2*p+1}], v[{E+2*p}:{E+2*p+1}], v[{E+16+2*p}:{E+16+2*p+1}]")
    for p in range(8): a(f"v_cvt_pk_bf16_f32 v{E+32+p}, v{E+2*p}, v{E+2*p+1}")
    a(f"s_add_u32 s53, s52, {H}")
    for q in range(2):
        a(f"buffer_store_dwordx4 v[{E+32+4*q}:{E+35+4*q}], v{vL}, s[{sWS}:{sWS+3}], s53 offen offset:{q*1024}")
    stamp(a, 5)
    if PROF: a("s_waitcnt vmcnt(0)")
    stamp(a, 6)
    stamp_flush(a, 1, 7, sWS, 42)
    a("s_endpgm")
    a("K2_FFT:")
    a("s_sub_u32 s41, s41, 28\n s_lshl_b32 s43, s41, 3\n s_add_u32 s43, s43, s40")
    a("s_cmp_ge_u32 s43, 29\n s_cbranch_scc1 K2_END")
    a("s_lshl_b32 s44, s43, 3\n s_add_u32 s44, s44, s42")
    vL = 4
    a(f"v_lshlrev_b32 v{vL}, 4, v1")
    a("s_mul_i32 s45, s42, 7168")
    for i in range(7):
        a(f"s_add_u32 m0, s45, {i*1024}\n s_add_u32 s46, s45, {i*1024}")
        a(f"buffer_load_dwordx4 v{vL}, s[{sTB}:{sTB+3}], s46 offen lds")
    a("s_min_u32 s47, s44, 224")
    OPR, OPI, OPN = 16, 32, 48
    DR, DI = 64, 96
    WV = 128; C32 = 160; CF = 184; TWB = 216
    a("s_lshl_b32 s48, s47, 1\n s_add_u32 s49, s48, 1\n s_min_u32 s49, s49, 447\n s_cmp_eq_u32 s47, 224\n s_cselect_b32 s48, 1, s48")
    a("s_cmp_eq_u32 s47, 224\n s_cselect_b32 s50, 1, 0\n s_cmp_eq_u32 s47, 0\n s_cselect_b32 s50, 1, s50")
    a(f"s_lshl_b32 s48, s48, 12\n s_lshl_b32 s49, s49, 12\n s_add_u32 s51, s48, {U}\n s_add_u32 s52, s49, {U}")
    a(f"v_and_b32 v5, 31, v1\n v_lshrrev_b32 v6, 5, v1\n v_lshlrev_b32 v7, 4, v5\n v_lshl_add_u32 v7, v6, 10, v7")
    for mt in range(2):
        for c in range(2):
            f = 2*mt+c
            a(f"buffer_load_dwordx4 v[{OPR+4*f}:{OPR+4*f+3}], v7, s[{sWS}:{sWS+3}], s51 offen offset:{(32*mt+128*c)*16}")
            a(f"buffer_load_dwordx4 v[{OPI+4*f}:{OPI+4*f+3}], v7, s[{sWS}:{sWS+3}], s52 offen offset:{(32*mt+128*c)*16}")
    wmax_scale(a, sWS, 8, 53)
    a(f"s_lshl_b32 s54, s47, 13\n s_add_u32 s54, s54, {WP}\n s_add_u32 s55, s54, 4096")
    for i in range(8):
        a(f"buffer_load_dwordx4 v[{WV+4*i}:{WV+4*i+3}], v{vL}, s[{sWS}:{sWS+3}], s{54 if i < 4 else 55} offen offset:{(i&3)*1024}")
    a("s_waitcnt vmcnt(17)\n s_barrier")
    stamp(a, 1)
    a("s_cmp_ge_u32 s44, 225\n s_cbranch_scc1 K2_END")
    for i in range(6):
        a(f"ds_read_b128 v[{C32+4*i}:{C32+4*i+3}], v{vL} offset:{O_C32+i*1024}")
    CR = lambda c: f"v[{C32+4*c}:{C32+4*c+3}]"
    CI = lambda c: f"v[{C32+8+4*c}:{C32+8+4*c+3}]"
    CN = lambda c: f"v[{C32+16+4*c}:{C32+16+4*c+3}]"
    op = lambda base, f: f"v[{base+4*f}:{base+4*f+3}]"
    dd = lambda base, t: f"v[{base+16*t}:{base+16*t+15}]"
    a("s_waitcnt vmcnt(8)")
    wmax_reduce(a, 8, 53, 56)
    a("s_sub_u32 s56, 254, s53\n s_sub_u32 s56, s56, s50\n s_lshl_b32 s56, s56, 23\n s_mov_b32 s57, s56")
    a("s_cmp_eq_u32 s50, 0\n s_cbranch_scc1 K2_NSP")
    for i in range(16): a(f"v_mov_b32 v{OPI+i}, 0")
    a("K2_NSP:")
    a("s_waitcnt lgkmcnt(0)")
    stamp(a, 2)
    def mfma(d, x, y, first): a(f"v_mfma_f32_32x32x16_f16 {d}, {x}, {y}, {'0' if first else d}")
    for mt in range(2):
        for c in range(2):
            f = 2*mt+c
            mfma(dd(DR, mt), op(OPR, f), CR(c), c == 0)
            mfma(dd(DI, mt), op(OPR, f), CI(c), c == 0)
            mfma(dd(DR, mt), op(OPI, f), CN(c), False)
            mfma(dd(DI, mt), op(OPI, f), CR(c), False)
    def twiddle(otab, neg):
        def ld(g):
            b = TWB+8*(g & 3)
            a(f"ds_read_b128 v[{b}:{b+3}], v{vL} offset:{otab+g*2048}")
            a(f"ds_read_b128 v[{b+4}:{b+7}], v{vL} offset:{otab+g*2048+1024}")
        for g in range(3): ld(g)
        for g in range(8):
            if g+3 < 8: ld(g+3)
            a(f"s_waitcnt lgkmcnt({2*min(3, 7-g)})")
            b = TWB+8*(g & 3)
            for pr in range(2):
                v = 4*g+2*pr
                re = f"v[{DR+v}:{DR+v+1}]"; im = f"v[{DI+v}:{DI+v+1}]"
                tr = f"v[{b+2*pr}:{b+2*pr+1}]"; ti = f"v[{b+4+2*pr}:{b+4+2*pr+1}]"
                t0 = 8+4*pr; t1 = t0+2
                a(f"v_pk_mul_f32 v[{t0}:{t0+1}], {re}, {tr}\n v_pk_mul_f32 v[{t1}:{t1+1}], {re}, {ti}")
                a(f"v_pk_fma_f32 v[{t0}:{t0+1}], {im}, {ti}, v[{t0}:{t0+1}] neg_lo:[1,0,0] neg_hi:[1,0,0]")
                a(f"v_pk_fma_f32 v[{t1}:{t1+1}], {im}, {tr}, v[{t1}:{t1+1}]")
                a(f"v_cvt_pk_f16_f32 v{OPR+v//2}, v{t0}, v{t0+1}\n v_cvt_pk_f16_f32 v{OPI+v//2}, v{t1}, v{t1+1}")
                if neg: a(f"v_xor_b32 v{OPN+v//2}, 0x80008000, v{OPI+v//2}")
    twiddle(O_TW1, True)
    stamp(a, 3)
    def big(step):
        def ld(i):
            b = CF+8*(i & 3)
            a(f"ds_read_b128 v[{b}:{b+3}], v{vL} offset:{O_C64R+i*1024}")
            a(f"ds_read_b128 v[{b+4}:{b+7}], v{vL} offset:{O_C64I+i*1024}")
        for i in range(3): ld(i)
        for i in range(8):
            if i+3 < 8: ld(i+3)
            a(f"s_waitcnt lgkmcnt({2*min(3, 7-i)})")
            b = CF+8*(i & 3); cr = f"v[{b}:{b+3}]"; ci = f"v[{b+4}:{b+7}]"
            t = i >> 2; c = i & 3
            if step == 3:
                mfma(dd(DR, t), cr, op(OPR, c), c == 0)
                mfma(dd(DI, t), ci, op(OPR, c), c == 0)
                mfma(dd(DR, t), ci, op(OPN, c), False)
                mfma(dd(DI, t), cr, op(OPI, c), False)
            else:
                mfma(dd(DR, t), op(OPR, c), cr, c == 0)
                mfma(dd(DI, t), op(OPI, c), cr, c == 0)
                mfma(dd(DR, t), op(OPI, c), ci, False)
                mfma(dd(DI, t), op(OPN, c), ci, False)
    big(3)
    stamp(a, 4)
    a("s_waitcnt vmcnt(0)")
    for v in range(0, 32, 2):
        b = TWB+8*((v >> 1) & 3)
        wr = f"v[{b}:{b+1}]"; wi = f"v[{b+2}:{b+3}]"; t0 = b+4; t1 = b+6
        re = f"v[{DR+v}:{DR+v+1}]"; im = f"v[{DI+v}:{DI+v+1}]"
        a(f"v_lshlrev_b32 v{b}, 16, v{WV+v}\n v_lshlrev_b32 v{b+1}, 16, v{WV+v+1}\n v_and_b32 v{b+2}, 0xffff0000, v{WV+v}\n v_and_b32 v{b+3}, 0xffff0000, v{WV+v+1}")
        a(f"v_pk_mul_f32 {wr}, {wr}, s[56:57]\n v_pk_mul_f32 {wi}, {wi}, s[56:57]")
        a(f"v_pk_mul_f32 v[{t0}:{t0+1}], {re}, {wr}\n v_pk_mul_f32 v[{t1}:{t1+1}], {re}, {wi}")
        a(f"v_pk_fma_f32 v[{t0}:{t0+1}], {im}, {wi}, v[{t0}:{t0+1}] neg_lo:[1,0,0] neg_hi:[1,0,0]")
        a(f"v_pk_fma_f32 v[{t1}:{t1+1}], {im}, {wr}, v[{t1}:{t1+1}]")
        a(f"v_cvt_pk_f16_f32 v{OPR+v//2}, v{t0}, v{t0+1}\n v_cvt_pk_f16_f32 v{OPI+v//2}, v{t1}, v{t1+1}")
        a(f"v_xor_b32 v{OPN+v//2}, 0x80008000, v{OPR+v//2}")
    stamp(a, 5)
    big(5)
    stamp(a, 6)
    twiddle(O_TW2, False)
    stamp(a, 7)
    for nt in range(2):
        for c in range(2):
            f = 2*nt+c
            mfma(dd(DR, nt), op(OPR, f), CR(c), c == 0)
            mfma(dd(DI, nt), op(OPI, f), CR(c), c == 0)
            mfma(dd(DR, nt), op(OPI, f), CI(c), False)
            mfma(dd(DI, nt), op(OPR, f), CN(c), False)
    a("v_lshlrev_b32 v7, 4, v5\n v_lshl_add_u32 v7, v6, 9, v7")
    a(f"s_add_u32 s51, s48, {YT}\n s_add_u32 s52, s49, {YT}")
    for part, base, sreg in ((0, DR, 51), (1, DI, 52)):
        if part == 1: a("s_cmp_lg_u32 s50, 0\n s_cbranch_scc1 K2_FDONE")
        for nt in range(2):
            for q in range(2):
                o = WV+16*part+8*nt+4*q; v = base+16*nt+8*q
                for i in range(4): a(f"v_cvt_pk_f16_f32 v{o+i}, v{v+2*i}, v{v+2*i+1}")
                a(f"v_permlane32_swap_b32 v{o}, v{o+2}\n v_permlane32_swap_b32 v{o+1}, v{o+3}")
                a(f"buffer_store_dwordx4 v[{o}:{o+3}], v7, s[{sWS}:{sWS+3}], s{sreg} offen offset:{(4*nt+2*q)*512}")
    a("K2_FDONE:")
    stamp(a, 8)
    if PROF: a("s_waitcnt vmcnt(0)")
    stamp(a, 9)
    stamp_flush(a, 1, 10, sWS, 42)
    a("K2_END:\n s_endpgm")
    a.raw(kd(name, 256 if PROF else 248, 100 if PROF else 64))

def fft_tables_np():
    l = np.arange(64); i = np.arange(8)
    t = np.zeros(FT_BYTES//2, np.uint16)
    def frag16(vals): return vals.astype(np.float16).view(np.uint16).reshape(-1)
    for tile in range(2):
        for c in range(4):
            m = 32*tile+(l[:, None] & 31); k = 16*c+8*(i[None, :] >> 2)+4*(l[:, None] >> 5)+(i[None, :] & 3)
            ang = 2*np.pi*((m*k) % 64)/64
            o = (tile*4+c)*512
            t[O_C64R//2+o:O_C64R//2+o+512] = frag16(np.cos(ang)/8)
            t[O_C64I//2+o:O_C64I//2+o+512] = frag16(-np.sin(ang)/8)
    for c in range(2):
        m = (l[:, None] & 31); k = 16*c+8*(i[None, :] >> 2)+4*(l[:, None] >> 5)+(i[None, :] & 3)
        ang = 2*np.pi*((m*k) % 32)/32
        for idx, vals in enumerate((np.cos(ang)/4, -np.sin(ang)/4, np.sin(ang)/4)):
            o = O_C32//2+(idx*2+c)*512
            t[o:o+512] = frag16(vals)
    tf = t.view(np.float32)
    r = np.arange(4)
    for tile in range(2):
        for vq in range(4):
            row = 8*vq+4*(l[:, None] >> 5)+r[None, :]; col = (l[:, None] & 31)
            g = tile*4+vq
            ang = 2*np.pi*((32*tile+row)*col)/2048
            tf[O_TW1//4+g*512:O_TW1//4+g*512+256] = np.cos(ang).reshape(-1)
            tf[O_TW1//4+g*512+256:O_TW1//4+g*512+512] = (-np.sin(ang)).reshape(-1)
            ang = 2*np.pi*(row*(32*tile+col))/2048
            tf[O_TW2//4+g*512:O_TW2//4+g*512+256] = np.cos(ang).reshape(-1)
            tf[O_TW2//4+g*512+256:O_TW2//4+g*512+512] = np.sin(ang).reshape(-1)
    return t

def tables_fft(a):
    t = fft_tables_np().view(np.uint64)
    L = ['.section .rodata,"a"', ".p2align 8", "TAB_FFT:"]
    for i in range(0, len(t), 8):
        L.append(".quad "+",".join(hex(int(x)) for x in t[i:i+8]))
    a.raw("\n".join(L))
```

```python
from asmlib import Asm, Vm
from common import *
from k2 import wmax_scale, wmax_reduce
import math

NSLOT = 6; SLOT = 24576
K3_LDS = NSLOT*SLOT
TT_BYTES = 7*56*1024
EX = 2*SLOT; EXP = 144

def gen_k3(a):
    name = "k3_kernel"
    a(f".text\n.globl {name}\n.p2align 8\n.type {name},@function\n{name}:")
    sX, sWO, sWS, sOUT, sTB, sC = 4, 8, 12, 16, 20, 24
    a("s_cmp_ge_u32 s2, 224\n s_cbranch_scc1 K3_END")
    stamp(a, 0)
    a("s_load_dwordx2 s[28:29], s[0:1], 0")
    a("s_load_dwordx4 s[32:35], s[0:1], 56")
    a("s_load_dwordx2 s[36:37], s[0:1], 80")
    a("s_and_b32 s40, s2, 7\n s_lshr_b32 s41, s2, 3")
    a("v_lshrrev_b32 v2, 6, v0\n v_and_b32 v1, 63, v0")
    a("v_readfirstlane_b32 s42, v2")
    pc_srd(a, sTB, "TAB_TT", TT_BYTES)
    a("s_waitcnt lgkmcnt(0)")
    srd(a, sX, 28, 2048*896); srd(a, sWO, 32, 896*896); srd(a, sWS, 36, WS_BYTES); srd(a, sOUT, 34, 2048*896)
    vm = Vm()
    a("s_lshl_b32 s43, s40, 2\n s_and_b32 s44, s41, 3\n s_add_u32 s43, s43, s44\n s_lshr_b32 s44, s41, 2")
    a("s_lshr_b32 s45, s43, 4\n s_lshl_b32 s45, s45, 4\n s_bfe_u32 s46, s43, 0x10003\n s_lshl_b32 s46, s46, 2\n s_add_u32 s45, s45, s46")
    vL, vB, vC = 2, 3, 4
    T = 100
    a(f"v_lshlrev_b32 v{vL}, 4, v1")
    a(f"v_lshrrev_b32 v{T}, 3, v1\n v_and_b32 v{T+1}, 7, v1\n v_bfe_u32 v{T+2}, v1, 4, 1\n v_lshlrev_b32 v{T+2}, 2, v{T+2}\n v_xor_b32 v{T+1}, v{T+1}, v{T+2}")
    a(f"v_mul_u32_u24 v{vB}, 896, v{T}\n v_lshl_add_u32 v{vB}, v{T+1}, 4, v{vB}")
    a(f"s_lshl_b32 s46, s43, 1\n s_lshr_b32 s47, s42, 2\n s_add_u32 s46, s46, s47\n s_mul_i32 s46, s46, 56\n s_and_b32 s47, s42, 3\n s_add_u32 s46, s46, s47\n s_lshl_b32 s46, s46, 10\n s_add_u32 s46, s46, {H}")
    a("s_mul_i32 s47, s42, 7168\n s_lshl_b32 s48, s44, 7\n s_add_u32 s47, s47, s48")
    a("s_lshl_b32 s48, s42, 10")
    a("s_cmp_ge_u32 s42, 4\n s_cbranch_scc1 K3_CT")
    for i in range(4): a(f"s_mov_b32 s{sC+i}, s{sWS+i}")
    a(f"v_lshrrev_b32 v{T+2}, 2, v{T+1}\n v_and_b32 v{T+3}, 3, v{T+1}\n v_lshl_add_u32 v{T+2}, v{T+2}, 3, v{T+3}\n v_lshlrev_b32 v{vC}, 12, v{T}\n v_lshl_add_u32 v{vC}, v{T+2}, 4, v{vC}")
    a(f"s_lshl_b32 s49, s42, 15\n s_and_b32 s50, s43, 7\n s_lshl_b32 s50, s50, 9\n s_add_u32 s49, s49, s50\n s_lshl_b32 s50, s45, 4\n s_add_u32 s49, s49, s50\n s_add_u32 s49, s49, {YT}")
    a(f"s_mov_b32 s50, {32*4096}")
    a("s_branch K3_CJ")
    a("K3_CT:")
    for i in range(4): a(f"s_mov_b32 s{sC+i}, s{sTB+i}")
    a(f"v_mov_b32 v{vC}, v{vL}")
    a("s_mul_i32 s49, s44, 56\n s_add_u32 s49, s49, s42\n s_sub_u32 s49, s49, 4\n s_lshl_b32 s49, s49, 10\n s_mov_b32 s50, 4096")
    a("K3_CJ:")
    def dma(t):
        slot = (t % NSLOT)*SLOT
        a(f"s_add_u32 m0, s48, {slot}\n s_add_u32 s51, s46, {4*t*1024}")
        a(f"buffer_load_dwordx4 v{vL}, s[{sWS}:{sWS+3}], s51 offen lds"); vm.issue(("st", t))
        a(f"s_add_u32 m0, s48, {slot+8192}\n s_add_u32 s51, s47, {64*t*896}")
        a(f"buffer_load_dwordx4 v{vB}, s[{sWO}:{sWO+3}], s51 offen lds"); vm.issue(("st", t))
        a(f"s_add_u32 m0, s48, {slot+16384}")
        a(f"buffer_load_dwordx4 v{vC}, s[{sC}:{sC+3}], s49 offen lds"); vm.issue(("st", t))
        a("s_add_u32 s49, s49, s50")
    D = NSLOT-1
    for t in range(D): dma(t)
    XR = 88; vO = 92
    a("s_lshr_b32 s52, s42, 2\n s_lshl_b32 s52, s52, 3\n s_add_u32 s52, s52, s45\n s_and_b32 s53, s42, 3\n s_add_u32 s52, s52, s53\n s_lshl_b32 s52, s52, 6")
    a("s_and_b32 s53, s43, 7\n s_lshl_b32 s53, s53, 3\n s_add_u32 s52, s52, s53\n s_mul_i32 s52, s52, 896\n s_lshl_b32 s53, s44, 7\n s_add_u32 s52, s52, s53")
    a(f"v_and_b32 v{T+2}, 7, v1\n v_mul_u32_u24 v{vO}, 896, v{T}\n v_lshl_add_u32 v{vO}, v{T+2}, 4, v{vO}")
    a(f"buffer_load_dwordx4 v[{XR}:{XR+3}], v{vO}, s[{sX}:{sX+3}], s52 offen"); vm.issue("x")
    wmax_scale(a, sWS, 94, 53); vm.issue("x")
    vTR, vFR = 5, 8
    a(f"v_bfe_u32 v{T}, v1, 2, 2\n v_lshrrev_b32 v{T+1}, 5, v1")
    a(f"v_bfe_u32 v{T+2}, v1, 4, 1\n v_bfe_u32 v{T+3}, v1, 1, 1\n v_lshl_add_u32 v{T+2}, v{T+2}, 1, v{T+3}")
    a(f"v_lshrrev_b32 v{T+3}, 1, v{T}\n v_lshlrev_b32 v{T+3}, 2, v{T+3}\n v_xor_b32 v{T+2}, v{T+2}, v{T+3}")
    a(f"v_and_b32 v{T+3}, 1, v1\n v_lshlrev_b32 v{T+3}, 3, v{T+3}\n v_lshl_add_u32 v{T+3}, v{T}, 7, v{T+3}")
    a("s_and_b32 s54, s42, 1\n s_bfe_u32 s55, s42, 0x10001")
    FRG = 20; ACC = 104
    vm_save = list(vm.ops)
    a("s_cmp_ge_u32 s42, 4\n s_cbranch_scc1 K3_S")
    for path in ("O", "S"):
        vm.ops = list(vm_save)
        if path == "S": a("K3_S:")
        if path == "O":
            a(f"s_lshl_b32 s56, s55, 2\n v_xor_b32 v{T+2}, s56, v{T+2}\n v_lshl_add_u32 v{vTR}, v{T+2}, 4, v{T+3}\n v_lshl_add_u32 v{vTR}, v{T+1}, 9, v{vTR}\n v_add_u32 v{vTR}, 8192, v{vTR}")
            a(f"s_lshl_b32 s56, s54, 12\n v_add_u32 v{vFR}, s56, v{vL}")
            nk = 4
        else:
            a(f"s_lshl_b32 s56, s54, 2\n v_xor_b32 v{T+2}, s56, v{T+2}\n v_lshl_add_u32 v{vTR}, v{T+2}, 4, v{T+3}\n v_lshl_add_u32 v{vTR}, v{T+1}, 10, v{vTR}\n v_add_u32 v{vTR}, 16384, v{vTR}")
            a(f"s_lshl_b32 s56, s55, 10\n s_add_u32 s56, s56, 20480\n v_add_u32 v{vFR}, s56, v{vL}")
            nk = 2
        for b in (vTR, vFR):
            a(f"v_add_u32 v{b+1}, {2*SLOT}, v{b}\n v_add_u32 v{b+2}, {4*SLOT}, v{b}")
        def rd(t, k):
            b = FRG+32*(t & 1); sl = t % NSLOT; win = sl >> 1; so = (sl & 1)*SLOT
            out = []
            for tt in range(2):
                off = k*2048+tt*(1024 if path == "O" else 512)
                out.append(f"ds_read_b64_tr_b16 v[{b+8*k+2*tt}:{b+8*k+2*tt+1}], v{vTR+win} offset:{so+off}")
            out.append(f"ds_read_b128 v[{b+8*k+4}:{b+8*k+7}], v{vFR+win} offset:{so+k*(1024 if path == 'O' else 2048)}")
            return out
        def mf(t, k):
            b = FRG+32*(t & 1)
            cin = "0" if (t == 0 and k == 0) else f"v[{ACC}:{ACC+15}]"
            if path == "O":
                return f"v_mfma_f32_32x32x16_bf16 v[{ACC}:{ACC+15}], v[{b+8*k}:{b+8*k+3}], v[{b+8*k+4}:{b+8*k+7}], {cin}"
            return f"v_mfma_f32_32x32x16_f16 v[{ACC}:{ACC+15}], v[{b+8*k+4}:{b+8*k+7}], v[{b+8*k}:{b+8*k+3}], {cin}"
        stamp(a, 1)
        for t in range(14):
            a(f"s_waitcnt vmcnt({vm.wait(('st', t))})")
            a("s_barrier")
            if t == 0: stamp(a, 2)
            for k in range(nk):
                if t > 0: a(mf(t-1, k))
                for l in rd(t, k): a(l)
                if k == 0 and t+D < 14: dma(t+D)
            if t == 6 and path == "S":
                wmax_reduce(a, 94, 53, 56)
                a(f"s_lshl_b32 s56, s53, 23\n v_mov_b32 v98, {hex(f32bits(1/28))}\n v_mul_f32 v98, s56, v98\n v_mov_b32 v99, v98")
            a("s_waitcnt lgkmcnt(0)")
        for k in range(nk): a(mf(13, k))
        stamp(a, 3)
        a(f"v_and_b32 v{T}, 31, v1\n s_lshl_b32 s56, s54, 5\n v_add_u32 v{T}, s56, v{T}\n v_mul_u32_u24 v{T}, {EXP}, v{T}")
        a(f"v_lshrrev_b32 v{T+1}, 5, v1\n v_lshl_add_u32 v{T}, v{T+1}, 3, v{T}\n s_lshl_b32 s56, s55, 6\n s_add_u32 s56, s56, {EX+(0 if path == 'O' else 64*EXP)}\n v_add_u32 v{T}, s56, v{T}")
        for j in range(4):
            if path == "S":
                a(f"v_pk_mul_f32 v[{ACC+4*j}:{ACC+4*j+1}], v[{ACC+4*j}:{ACC+4*j+1}], v[98:99]\n v_pk_mul_f32 v[{ACC+4*j+2}:{ACC+4*j+3}], v[{ACC+4*j+2}:{ACC+4*j+3}], v[98:99]")
            a(f"v_cvt_pk_bf16_f32 v{FRG+2*j}, v{ACC+4*j}, v{ACC+4*j+1}\n v_cvt_pk_bf16_f32 v{FRG+2*j+1}, v{ACC+4*j+2}, v{ACC+4*j+3}")
            a(f"ds_write_b64 v{T}, v[{FRG+2*j}:{FRG+2*j+1}] offset:{16*j}")
        if path == "O": a("s_branch K3_J")
    a("K3_J:")
    a("s_waitcnt lgkmcnt(0)\n s_barrier")
    a(f"v_lshrrev_b32 v{T}, 3, v0\n v_and_b32 v{T+1}, 7, v0\n v_mul_u32_u24 v{T}, {EXP}, v{T}\n v_lshl_add_u32 v{T}, v{T+1}, 4, v{T}")
    O_, S_ = 20, 24
    a(f"ds_read_b128 v[{O_}:{O_+3}], v{T} offset:{EX}\n ds_read_b128 v[{S_}:{S_+3}], v{T} offset:{EX+64*EXP}")
    a(f"s_mov_b32 s56, {hex(f32bits(-math.log2(math.e)))}\n s_mov_b32 s57, s56")
    a("s_waitcnt lgkmcnt(0)")
    A_, B_ = 32, 40
    for p in range(4): a(f"v_lshlrev_b32 v{A_+2*p}, 16, v{O_+p}\n v_and_b32 v{A_+2*p+1}, 0xffff0000, v{O_+p}")
    for p in range(4): a(f"v_pk_mul_f32 v[{B_+2*p}:{B_+2*p+1}], v[{A_+2*p}:{A_+2*p+1}], s[56:57]")
    for i in range(8): a(f"v_exp_f32 v{B_+i}, v{B_+i}")
    for p in range(4): a(f"v_pk_add_f32 v[{B_+2*p}:{B_+2*p+1}], v[{B_+2*p}:{B_+2*p+1}], 1.0 op_sel_hi:[1,0]")
    for i in range(8): a(f"v_rcp_f32 v{B_+i}, v{B_+i}")
    for p in range(4): a(f"v_pk_mul_f32 v[{A_+2*p}:{A_+2*p+1}], v[{A_+2*p}:{A_+2*p+1}], v[{B_+2*p}:{B_+2*p+1}]")
    for p in range(4): a(f"v_cvt_pk_bf16_f32 v{O_+p}, v{A_+2*p}, v{A_+2*p+1}")
    for p in range(4): a(f"v_lshlrev_b32 v{A_+2*p}, 16, v{O_+p}\n v_and_b32 v{A_+2*p+1}, 0xffff0000, v{O_+p}")
    for p in range(4): a(f"v_lshlrev_b32 v{B_+2*p}, 16, v{S_+p}\n v_and_b32 v{B_+2*p+1}, 0xffff0000, v{S_+p}")
    for p in range(4): a(f"v_pk_mul_f32 v[{A_+2*p}:{A_+2*p+1}], v[{A_+2*p}:{A_+2*p+1}], v[{B_+2*p}:{B_+2*p+1}]")
    for p in range(4): a(f"v_cvt_pk_bf16_f32 v{O_+p}, v{A_+2*p}, v{A_+2*p+1}")
    for p in range(4): a(f"v_lshlrev_b32 v{A_+2*p}, 16, v{O_+p}\n v_and_b32 v{A_+2*p+1}, 0xffff0000, v{O_+p}")
    for p in range(4): a(f"v_lshlrev_b32 v{B_+2*p}, 16, v{XR+p}\n v_and_b32 v{B_+2*p+1}, 0xffff0000, v{XR+p}")
    for p in range(4): a(f"v_pk_add_f32 v[{A_+2*p}:{A_+2*p+1}], v[{A_+2*p}:{A_+2*p+1}], v[{B_+2*p}:{B_+2*p+1}]")
    for p in range(4): a(f"v_cvt_pk_bf16_f32 v{O_+p}, v{A_+2*p}, v{A_+2*p+1}")
    a(f"buffer_store_dwordx4 v[{O_}:{O_+3}], v{vO}, s[{sOUT}:{sOUT+3}], s52 offen")
    stamp(a, 4)
    if PROF: a("s_waitcnt vmcnt(0)")
    stamp(a, 5)
    stamp_flush(a, 2, 6, sWS, 42, vt=110)
    a("K3_END:\n s_endpgm")
    a.raw(kd(name, 120, 100 if PROF else 64))

def tables_tt(a):
    j = np.arange(448)
    v = np.cos(2*np.pi*j/448); v[112] = 0; v[336] = 0
    hv = v.astype(np.float16).view(np.uint16)
    L = ['.section .rodata,"a"']
    for i in range(448): L.append(f".set TH{i},{hv[i]}")
    L.append(r""".altmacro
.macro EMT q0_,q1_,q2_,q3_,q4_,q5_,q6_,q7_
.long TH\q0_|(TH\q1_<<16),TH\q2_|(TH\q3_<<16),TH\q4_|(TH\q5_<<16),TH\q6_|(TH\q7_<<16)
.endm
.p2align 8
TAB_TT:
.set ff, 0
.rept 392
.set ll, 0
.rept 64
.set dd, (ff/56)*64+(ff&1)*32+(ll&31)
.set k0, (((ff%56)>>1)*16+(ll>>5)*8)>>1
.set bb, dd*k0
.set b1, bb+112
.if k0==0
.set b1, dd*224
.endif
EMT %(bb%448),%(b1%448),%((bb+dd)%448),%((bb+dd+112)%448),%((bb+2*dd)%448),%((bb+2*dd+112)%448),%((bb+3*dd)%448),%((bb+3*dd+112)%448)
.set ll, ll+1
.endr
.set ff, ff+1
.endr
.noaltmacro""")
    a.raw("\n".join(L))
```

```python
import sys
sys.path.insert(0, "gen")
from asmlib import Asm
import k1
HDR = open("recurrent_scan__spectral_gfnet__mixer_gmlp__prompt.s.ref").read().split("; Override launch")[0]
def build(kernels=("k1", "k2", "k3")):
    a = Asm()
    launches = []
    a('.amdgcn_target "amdgcn-amd-amdhsa--gfx950"')
    if "k1" in kernels:
        launches.append(f"; @launch kernel=k1_kernel grid=(256,1,1) block=(512,1,1) lds={k1.K1_LDS}")
        k1.gen_k1(a)
    if "k2" in kernels:
        import k2
        launches.append(f"; @launch kernel=k2_kernel grid=(256,1,1) block=(512,1,1) lds={k2.K2_LDS}")
        k2.gen_k2(a)
    if "k3" in kernels:
        import k3
        launches.append(f"; @launch kernel=k3_kernel grid=(256,1,1) block=(512,1,1) lds={k3.K3_LDS}")
        k3.gen_k3(a)
    if "k1" in kernels: k1.tables_ft(a)
    if "k2" in kernels: k2.tables_fft(a)
    if "k3" in kernels: k3.tables_tt(a)
    return HDR + "\n".join(launches) + "\n" + a.finish()
if __name__ == "__main__":
    ks = sys.argv[2].split(",") if len(sys.argv) > 2 else ("k1", "k2", "k3")
    open(sys.argv[1], "w").write(build(ks))
```

```python
import numpy as np
Z1 = 0x0000000
Z2N = 0x0400000
U = 0x0800000
WP = 0x0A00000
H = 0x0C00000
YT = 0x1000000
ST = 0x1200000
WMAX = 0x1300000
WS_BYTES = 268435456

def f2bf(x):
    x = np.ascontiguousarray(x, dtype=np.float32); u = x.view(np.uint32)
    return ((u + 0x7FFF + ((u >> 16) & 1)) >> 16).astype(np.uint16)
def bf2f(u): return (np.asarray(u).astype(np.uint32) << 16).view(np.float32)
def f32bits(x): return int(np.float32(x).view(np.uint32))

def mu(c, h, i): return 16*c + 8*(i >> 2) + 4*h + (i & 3)
def rowB(p):
    rb = p >> 6; i = (p >> 3) & 7; n2lo = p & 7
    n2hi = rb & 7; h1 = (rb >> 3) & 1; c = rb >> 4
    return 64*mu(c, h1, i) + 8*n2hi + n2lo
def rowA(p):
    rb = p >> 6; n2lo = (p >> 3) & 7; i = p & 7
    return rowB(64*rb + 8*i + n2lo)

def kd(name, vgpr, sgpr, accum=None):
    accum = accum or ((vgpr+3)//4*4)
    return f""".section .rodata,"a"
.p2align 6
.amdhsa_kernel {name}
  .amdhsa_next_free_vgpr {vgpr}
  .amdhsa_next_free_sgpr {sgpr}
  .amdhsa_accum_offset {accum}
  .amdhsa_group_segment_fixed_size 0
  .amdhsa_kernarg_size 88
  .amdhsa_user_sgpr_count 2
  .amdhsa_user_sgpr_kernarg_segment_ptr 1
  .amdhsa_system_sgpr_workgroup_id_x 1
  .amdhsa_float_denorm_mode_32 3
  .amdhsa_float_denorm_mode_16_64 3
.end_amdhsa_kernel
"""
def srd(a, d, lo, nbytes):
    a(f"s_mov_b32 s{d}, s{lo}\n s_and_b32 s{d+1}, s{lo+1}, 0xffff\n s_mov_b32 s{d+2}, {nbytes}\n s_mov_b32 s{d+3}, 0x20000")
def pc_srd(a, d, sym, nbytes):
    a(f"s_getpc_b64 s[{d}:{d+1}]")
    a(f"s_add_u32 s{d}, s{d}, {sym}@rel32@lo+4")
    a(f"s_addc_u32 s{d+1}, s{d+1}, {sym}@rel32@hi+12")
    a(f"s_and_b32 s{d+1}, s{d+1}, 0xffff\n s_mov_b32 s{d+2}, {nbytes}\n s_mov_b32 s{d+3}, 0x20000")

import os
PROF = bool(int(os.environ.get("PROF", "0")))
TS = 0x8000000
def stamp(a, i):
    if not PROF: return
    if i == 0: a("s_memrealtime s[96:97]")
    a(f"s_memtime s[{64+2*i}:{65+2*i}]")
def stamp_flush(a, kidx, n, sWS, swave, vt=250):
    if not PROF: return
    a("s_memrealtime s[94:95]")
    a("s_waitcnt lgkmcnt(0)")
    a(f"s_lshl_b32 s98, s2, 3\n s_add_u32 s98, s98, s{swave}\n s_lshl_b32 s98, s98, 7\n s_add_u32 s98, s98, {TS+kidx*0x100000}")
    a(f"s_mov_b64 exec, 1\n v_mov_b32 v{vt}, 0")
    for i in range(n):
        a(f"v_mov_b32 v{vt+1}, s{64+2*i}\n buffer_store_dword v{vt+1}, v{vt}, s[{sWS}:{sWS+3}], s98 offen offset:{4*i}")
    a(f"v_mov_b32 v{vt+1}, s96\n buffer_store_dword v{vt+1}, v{vt}, s[{sWS}:{sWS+3}], s98 offen offset:124")
    a(f"v_mov_b32 v{vt+1}, s94\n buffer_store_dword v{vt+1}, v{vt}, s[{sWS}:{sWS+3}], s98 offen offset:120")
    a("s_mov_b64 exec, -1")


class StageStamps:
    def __init__(self, a, vs): self.a = a; self.vs = vs; self.pending = None
    def __call__(self, idx):
        if not PROF: return
        a = self.a
        if self.pending is not None:
            a("s_waitcnt lgkmcnt(0)")
            a(f"v_writelane_b32 v{self.vs}, s100, {self.pending}")
        a("s_memtime s[100:101]")
        self.pending = idx
    def flush(self, kidx, sWS, swave, vt):
        if not PROF: return
        a = self.a
        a("s_waitcnt lgkmcnt(0)")
        a(f"v_writelane_b32 v{self.vs}, s100, {self.pending}")
        a(f"s_lshl_b32 s98, s2, 3\n s_add_u32 s98, s98, s{swave}\n s_lshl_b32 s98, s98, 8\n s_add_u32 s98, s98, {TS+0x800000+kidx*0x100000}")
        a(f"v_lshlrev_b32 v{vt}, 2, v1\n buffer_store_dword v{self.vs}, v{vt}, s[{sWS}:{sWS+3}], s98 offen")
```

```python
from asmlib import Asm, Vm
from common import *
import math

RING = 0; NSLOT = 6; SLOT = 16384
XN = NSLOT*SLOT
SX = XN + 64*896
K1_LDS = SX + 4096
UXP = 144
SIG_T = 7
LD_T = 14; CHK_T = 17
WSP_K1 = 16
ST_FLAG = " sc1"
BG_PER_MFMA = 8

C1 = -2*math.sqrt(2/math.pi)*math.log2(math.e)
C2 = C1*0.044715

def gelu_pairs(a, acc, dst, tmp, sC, vC1):
    for q in range(0, 16, 4):
        R = [tmp+i for i in range(4)]; T = [tmp+4+i for i in range(4)]
        for i in range(4): a(f"v_cvt_pk_bf16_f32 v{R[i]}, 0, v{acc+q+i}")
        for i in range(4): a(f"v_mul_f32 v{T[i]}, v{R[i]}, v{R[i]}")
        for i in range(4): a(f"v_fma_f32 v{T[i]}, v{T[i]}, s{sC}, v{vC1}")
        for i in range(4): a(f"v_mul_f32 v{T[i]}, v{T[i]}, v{R[i]}")
        for i in range(4): a(f"v_exp_f32 v{T[i]}, v{T[i]}")
        for i in range(4): a(f"v_add_f32 v{T[i]}, 1.0, v{T[i]}")
        for i in range(4): a(f"v_rcp_f32 v{T[i]}, v{T[i]}")
        for i in range(4): a(f"v_mul_f32 v{T[i]}, v{T[i]}, v{R[i]}")
        for i in range(2): a(f"v_cvt_pk_bf16_f32 v{dst+q//2+i}, v{T[2*i]}, v{T[2*i+1]}")

def red8(a, v):
    a(f"v_add_f32_dpp v{v}, v{v}, v{v} quad_perm:[1,0,3,2] row_mask:0xf bank_mask:0xf")
    a(f"v_add_f32_dpp v{v}, v{v}, v{v} quad_perm:[2,3,0,1] row_mask:0xf bank_mask:0xf")
    a(f"v_add_f32_dpp v{v}, v{v}, v{v} row_half_mirror row_mask:0xf bank_mask:0xf")

def halfsum(a, v, t):
    a(f"v_mov_b32 v{t}, v{v}")
    a(f"v_permlane32_swap_b32 v{v}, v{t}")
    a(f"v_add_f32 v{v}, v{v}, v{t}")

def var_to_rs(a, t, out_rs):
    a(f"v_cvt_pk_bf16_f32 v{t}, v{t}, v{t}")
    a(f"v_lshlrev_b32 v{t}, 16, v{t}")
    a(f"v_add_f32 v{t}, {hex(f32bits(1e-5))}, v{t}")
    a(f"v_cvt_pk_bf16_f32 v{t}, v{t}, v{t}")
    a(f"v_lshlrev_b32 v{t}, 16, v{t}")
    a(f"v_sqrt_f32 v{t}, v{t}")
    a(f"v_cvt_pk_bf16_f32 v{t}, v{t}, v{t}")
    a(f"v_lshlrev_b32 v{t}, 16, v{t}")
    a(f"v_rcp_f32 v{out_rs}, v{t}")

def gen_k1(a):
    name = "k1_kernel"
    a(f".text\n.globl {name}\n.p2align 8\n.type {name},@function\n{name}:")
    sX, sWIN, sWS, sFT, sDBG = 4, 8, 12, 16, 20
    a("s_cmp_ge_u32 s2, 256\n s_cbranch_scc1 K1_END")
    stamp(a, 0)
    a("s_load_dwordx2 s[24:25], s[0:1], 0")
    a("s_load_dwordx4 s[28:31], s[0:1], 8")
    a("s_load_dwordx4 s[32:35], s[0:1], 32")
    a("s_load_dwordx4 s[36:39], s[0:1], 72")
    a("s_and_b32 s40, s2, 7\n s_lshr_b32 s41, s2, 3")
    a("v_lshrrev_b32 v2, 6, v0\n v_and_b32 v1, 63, v0")
    a("v_readfirstlane_b32 s42, v2")
    pc_srd(a, sFT, "TAB_FT", 7*14*8*1024)
    vXo, vZ, vF, vW = 2, 3, 4, 5
    vTR = 6
    vZ2 = 10
    vAA = 12
    XF = 16; BF = 128; ACC = 160; ACC2 = 176; ZP = 192; TMP = 200; VC1 = 226; PS = 228
    a("s_and_b32 s62, s40, 3\n s_mul_i32 s43, s62, 28\n s_add_u32 s43, s43, s41\n s_lshr_b32 s44, s43, 4\n s_and_b32 s43, s43, 15")
    a("s_lshr_b32 s45, s40, 2\n s_lshl_b32 s45, s45, 4\n s_add_u32 s43, s43, s45")
    a("s_lshr_b32 s45, s43, 4\n s_lshl_b32 s45, s45, 4")
    a("s_lshr_b32 s46, s42, 2\n s_lshl_b32 s46, s46, 3\n s_add_u32 s45, s45, s46")
    a("s_bfe_u32 s46, s43, 0x10003\n s_lshl_b32 s46, s46, 2\n s_add_u32 s45, s45, s46")
    a("s_and_b32 s46, s42, 3\n s_add_u32 s45, s45, s46")
    a("s_lshl_b32 s45, s45, 6\n s_and_b32 s46, s43, 7\n s_lshl_b32 s46, s46, 3\n s_add_u32 s45, s45, s46")
    a("s_mul_i32 s45, s45, 896")
    a(f"v_lshrrev_b32 v{TMP}, 3, v1\n v_and_b32 v{TMP+1}, 7, v1")
    a(f"v_mul_u32_u24 v{vXo}, 896, v{TMP}\n v_lshl_add_u32 v{vXo}, v{TMP+1}, 4, v{vXo}")
    a("s_waitcnt lgkmcnt(0)")
    srd(a, sX, 24, 2048*896)
    a("s_cmp_ge_u32 s41, 28\n s_cbranch_scc1 K1_AUX0")
    vm = Vm()
    for cc in range(7):
        a(f"buffer_load_dwordx4 v[{BF+4*cc}:{BF+4*cc+3}], v{vXo}, s[{sX}:{sX+3}], s45 offen offset:{128*cc}"); vm.issue("x")
    a("K1_AUX0:")
    srd(a, sWIN, 32, 448*3584); srd(a, sWS, 38, WS_BYTES); srd(a, sDBG, 36, 256)
    a("s_cmp_ge_u32 s41, 28\n s_cbranch_scc1 K1_AUX")
    a(f"v_mov_b32 v{TMP+25}, 0")
    a("s_add_u32 s49, s2, s42\n s_cmp_lg_u32 s49, 0\n s_cbranch_scc1 K1_NN")
    a("s_memrealtime s[50:51]\n s_waitcnt lgkmcnt(0)\n s_or_b32 s50, s50, 1")
    a(f"v_mov_b32 v{TMP+24}, s50\n s_mov_b64 exec, 1")
    a(f"buffer_store_dword v{TMP+24}, v{TMP+25}, s[{sDBG}:{sDBG+3}], 0 offen sc1")
    a("s_mov_b64 exec, -1\nK1_NN:")
    vT = TMP+8
    a("s_mul_i32 s46, s62, 28\n s_lshr_b32 s46, s46, 4")
    a("s_mul_i32 s47, s62, 28\n s_add_u32 s47, s47, 27\n s_lshr_b32 s47, s47, 4")
    a("s_lshl_b32 s48, s41, 4\n s_lshl_b32 s49, s42, 1\n s_add_u32 s48, s48, s49\n s_mul_i32 s48, s48, 3584\n s_lshl_b32 s49, s46, 8\n s_add_u32 s48, s48, s49\n s_add_u32 s48, s48, 1792")
    for rr in range(2):
        for ln in range(6):
            a(f"s_buffer_load_dword s28, s[{sWIN}:{sWIN+3}], s48 offset:{rr*3584+ln*128}")
    VPF = 252
    a(f"v_and_b32 v{vT}, 127, v0\n v_lshrrev_b32 v{vT+1}, 5, v{vT}\n v_add_u32 v{vT+1}, s46, v{vT+1}\n v_cmp_lt_u32 vcc, s47, v{vT+1}\n v_mov_b32 v{vT+5}, 0x8000\n v_cndmask_b32 v{vT+1}, v{vT+1}, v{vT+5}, vcc")
    a(f"s_lshl_b32 s48, s41, 5\n v_and_b32 v{vT+2}, 31, v0\n v_add_u32 v{vT+2}, s48, v{vT+2}")
    a(f"v_lshrrev_b32 v{VPF}, 1, v{vT+2}\n v_mul_u32_u24 v{VPF}, 3584, v{VPF}\n v_lshl_add_u32 v{VPF}, v{vT+1}, 8, v{VPF}\n v_and_b32 v{vT+3}, 1, v{vT+2}\n v_lshl_add_u32 v{VPF}, v{vT+3}, 7, v{VPF}")
    a(f"s_mov_b32 s48, 114688\n v_mul_lo_u32 v{VPF+1}, v{vT+1}, s48\n v_lshl_add_u32 v{VPF+1}, v{vT+2}, 7, v{VPF+1}")
    def touch2():
        a("s_cmp_ge_u32 s42, 2\n s_cbranch_scc1 K1_PFB")
        a(f"buffer_load_dword v{VPF+2}, v{VPF}, s[{sWIN}:{sWIN+3}], 0 offen")
        a("s_branch K1_PFD\nK1_PFB:")
        a("s_cmp_ge_u32 s42, 4\n s_cselect_b32 s49, 0x10000000, 0")
        a(f"buffer_load_dword v{VPF+2}, v{VPF+1}, s[{sFT}:{sFT+3}], s49 offen")
        a("K1_PFD:"); vm.issue("pf")
    a("s_barrier")
    a(f"v_lshrrev_b32 v{TMP+2}, 4, v1\n v_and_b32 v{TMP+3}, 15, v1\n v_lshlrev_b32 v{TMP+4}, 2, v{TMP+2}\n v_xor_b32 v{TMP+3}, v{TMP+3}, v{TMP+4}")
    a(f"v_mul_u32_u24 v{vZ}, 3584, v{TMP+2}\n v_lshl_add_u32 v{vZ}, v{TMP+3}, 4, v{vZ}")
    a(f"v_lshlrev_b32 v{vF}, 4, v1")
    a("s_mul_i32 s46, s42, 14336\n s_lshl_b32 s47, s44, 8\n s_add_u32 s46, s46, s47")
    a("s_mul_i32 s60, s42, 28672\n s_add_u32 s60, s60, s47")
    a(f"s_mul_i32 s47, s44, {14*8192}\n s_lshl_b32 s48, s42, 10\n s_add_u32 s47, s47, s48")
    def dma(t):
        slot = (t % NSLOT)*SLOT
        if t < 7:
            for u in range(2):
                a(f"s_add_u32 m0, s48, {RING+slot+u*8192}")
                a(f"s_add_u32 s49, s46, {1792+(64*t+32*u)*3584}")
                a(f"buffer_load_dwordx4 v{vZ}, s[{sWIN}:{sWIN+3}], s49 offen lds"); vm.issue(("st", t))
        else:
            s2 = t-7
            a(f"s_add_u32 m0, s48, {RING+slot}")
            a(f"s_add_u32 s49, s46, {32*s2*3584}")
            a(f"buffer_load_dwordx4 v{vZ}, s[{sWIN}:{sWIN+3}], s49 offen lds"); vm.issue(("st", t))
            a(f"s_add_u32 m0, s48, {RING+slot+8192}")
            a(f"s_add_u32 s49, s47, {s2*8192}")
            a(f"buffer_load_dwordx4 v{vF}, s[{sFT}:{sFT+3}], s49 offen lds"); vm.issue(("st", t))
    D = NSLOT-1
    a(f"s_lshl_b32 s49, s42, 3\n v_add_u32 v{TMP+2}, s49, v{TMP}")
    a(f"v_bfe_u32 v{TMP+3}, v{TMP+2}, 1, 3\n v_xor_b32 v{TMP+3}, v{TMP+3}, v{TMP+1}")
    a(f"v_mul_u32_u24 v{vW}, 896, v{TMP+2}\n v_lshl_add_u32 v{vW}, v{TMP+3}, 4, v{vW}\n v_add_u32 v{vW}, {XN}, v{vW}")
    a(f"s_and_b32 s49, s42, 1\n s_lshl_b32 s49, s49, 5\n v_and_b32 v{TMP+2}, 31, v1\n v_add_u32 v{TMP+2}, s49, v{TMP+2}")
    a(f"v_bfe_u32 v{TMP+3}, v{TMP+2}, 1, 3\n v_lshrrev_b32 v{TMP+4}, 5, v1\n v_xor_b32 v{TMP+3}, v{TMP+3}, v{TMP+4}")
    a(f"v_mul_u32_u24 v{TMP+2}, 896, v{TMP+2}\n v_add_u32 v{TMP+2}, {XN}, v{TMP+2}")
    for c in range(4):
        a(f"v_xor_b32 v{TMP+4}, {2*c}, v{TMP+3}\n v_lshl_add_u32 v{vAA+c}, v{TMP+4}, 4, v{TMP+2}")
    a(f"v_lshrrev_b32 v{TMP+2}, 5, v1\n v_bfe_u32 v{TMP+3}, v1, 2, 2")
    a(f"v_lshl_add_u32 v{TMP+2}, v{TMP+2}, 3, v{TMP+3}")
    a(f"v_and_b32 v{TMP+6}, 1, v1\n v_lshlrev_b32 v{TMP+6}, 3, v{TMP+6}")
    a(f"v_bfe_u32 v{TMP+4}, v1, 4, 1\n v_bfe_u32 v{TMP+5}, v1, 1, 1\n v_lshl_add_u32 v{TMP+4}, v{TMP+4}, 1, v{TMP+5}")
    a(f"v_lshlrev_b32 v{TMP+5}, 2, v{TMP+3}\n v_xor_b32 v{TMP+5}, v{TMP+4}, v{TMP+5}")
    a(f"s_lshr_b32 s49, s42, 1\n s_lshl_b32 s49, s49, 2\n v_xor_b32 v{TMP+5}, s49, v{TMP+5}")
    a(f"v_lshl_add_u32 v{vTR}, v{TMP+2}, 8, v{TMP+6}\n v_lshl_add_u32 v{vTR}, v{TMP+5}, 4, v{vTR}\n v_add_u32 v{vTR+1}, 0x10000, v{vTR}")
    a(f"v_lshlrev_b32 v{TMP+5}, 2, v{TMP+3}\n v_xor_b32 v{TMP+5}, v{TMP+4}, v{TMP+5}")
    a("s_and_b32 s49, s42, 2\n s_lshl_b32 s49, s49, 2\n s_add_u32 s50, s49, 4")
    for idx, sreg in ((1, 49), (2, 50)):
        a(f"v_xor_b32 v{TMP+7}, s{sreg}, v{TMP+5}\n v_lshl_add_u32 v{vTR+2*idx}, v{TMP+2}, 8, v{TMP+6}\n v_lshl_add_u32 v{vTR+2*idx}, v{TMP+7}, 4, v{vTR+2*idx}\n v_add_u32 v{vTR+2*idx+1}, 0x10000, v{vTR+2*idx}")
    a(f"s_mov_b32 s52, {hex(f32bits(C2))}\n s_mov_b32 s53, {hex(f32bits(C2))}\n s_mov_b32 s54, 0x3f803f80")
    a(f"v_mov_b32 v{VC1}, {hex(f32bits(C1))}\n v_mov_b32 v{VC1+1}, {hex(f32bits(C1))}")
    a(f"s_lshl_b32 s55, s43, 1\n s_and_b32 s57, s42, 1\n s_add_u32 s55, s55, s57\n s_mul_i32 s55, s55, 3584\n s_add_u32 s55, s55, {ST}")
    a("s_lshl_b32 s61, s44, 9\n s_add_u32 s61, s61, s55")
    a(f"s_lshl_b32 s56, s57, 10\n s_lshr_b32 s57, s42, 1\n s_lshl_b32 s57, s57, 3\n s_add_u32 s56, s56, s57\n s_add_u32 s56, s56, {SX}")
    a("s_lshl_b32 s57, s43, 1\n s_and_b32 s58, s42, 1\n s_add_u32 s57, s57, s58\n s_mul_i32 s57, s57, 56\n s_lshl_b32 s58, s44, 3\n s_add_u32 s57, s57, s58")
    a(f"s_and_b32 s58, s42, 6\n s_add_u32 s58, s58, s57\n s_lshl_b32 s58, s58, 10\n s_add_u32 s58, s58, {Z2N}")
    a(f"s_and_b32 s59, s42, 2\n s_lshl_b32 s59, s59, 1\n s_add_u32 s57, s57, s59\n s_lshl_b32 s57, s57, 10" + (f"\n s_add_u32 s57, s57, {Z1}" if Z1 else ""))
    stamp(a, 1)
    a(f"s_waitcnt vmcnt({vm.wait('x')})")
    stamp(a, 2)
    S = TMP
    DV = XF
    a("s_mov_b32 s50, 0x00003f80\n s_mov_b32 s51, 0x3f800000")
    for i in range(4): a(f"v_mov_b32 v{S+i}, 0")
    for i in range(28): a(f"v_dot2_f32_bf16 v{S+(i&3)}, v{BF+i}, s54, v{S+(i&3)}")
    dma(0)
    a(f"v_add_f32 v{S}, v{S}, v{S+1}\n v_add_f32 v{S+2}, v{S+2}, v{S+3}\n v_add_f32 v{S}, v{S}, v{S+2}")
    red8(a, S)
    vM, vMB, vNM = TMP+4, TMP+5, TMP+6
    a(f"v_mul_f32 v{vM}, {hex(f32bits(1/448))}, v{S}")
    a(f"v_cvt_pk_bf16_f32 v{vMB}, 0, v{vM}\n v_sub_f32 v{vNM}, 0, v{vMB}")
    for i in range(4): a(f"v_mov_b32 v{S+i}, 0")
    for i in range(0, 28, 4):
        for u in range(4):
            d = DV+2*(i+u)
            a(f"v_dot2_f32_bf16 v{d}, v{BF+i+u}, s50, v{vNM}\n v_dot2_f32_bf16 v{d+1}, v{BF+i+u}, s51, v{vNM}")
        if i >= 4:
            for u in range(4):
                d = DV+2*(i-4+u); s_ = S+2*(u & 1)
                a(f"v_pk_fma_f32 v[{s_}:{s_+1}], v[{d}:{d+1}], v[{d}:{d+1}], v[{s_}:{s_+1}]")
        if i == 8: dma(1)
        if i == 20: dma(2)
    for u in range(4):
        d = DV+2*(24+u); s_ = S+2*(u & 1)
        a(f"v_pk_fma_f32 v[{s_}:{s_+1}], v[{d}:{d+1}], v[{d}:{d+1}], v[{s_}:{s_+1}]")
    a(f"v_add_f32 v{S}, v{S}, v{S+1}\n v_add_f32 v{S+2}, v{S+2}, v{S+3}\n v_add_f32 v{S}, v{S}, v{S+2}")
    for i in range(16): a(f"v_cvt_pk_bf16_f32 v{DV+i}, 0, v{DV+i}")
    red8(a, S)
    vRS = TMP+6
    t = S+2
    a(f"v_sub_f32 v{t}, v{vM}, v{vMB}\n v_mul_f32 v{t}, v{t}, v{t}\n v_mov_b32 v{t+1}, {hex(f32bits(1.0/448))}\n v_fma_f32 v{t}, v{S}, v{t+1}, -v{t}\n v_max_f32 v{t}, 0, v{t}")
    n0 = len(a.lines); var_to_rs(a, t, vRS); a(f"v_mov_b32 v{vRS+1}, v{vRS}"); chain = a.lines[n0:]; del a.lines[n0:]
    for i in range(16, 56):
        a(f"v_cvt_pk_bf16_f32 v{DV+i}, 0, v{DV+i}")
        if chain and i % 3 == 0: a(chain.pop(0))
    for l in chain: a(l)
    dma(3)
    for i in range(0, 28, 4):
        for u in range(4):
            d = DV+2*(i+u); a(f"v_pk_mul_f32 v[{d}:{d+1}], v[{d}:{d+1}], v[{vRS}:{vRS+1}]")
        for u in range(4):
            d = DV+2*(i+u); a(f"v_cvt_pk_bf16_f32 v{BF+i+u}, v{d}, v{d+1}")
        a(f"ds_write_b128 v{vW}, v[{BF+i}:{BF+i+3}] offset:{32*i}")
    stamp(a, 3)
    dma(4); touch2()
    a("s_waitcnt lgkmcnt(0)")
    def capture(fn, *args):
        n0 = len(a.lines); fn(*args); out = a.lines[n0:]; del a.lines[n0:]; return out
    def trbase(idx, t):
        slot = (t % NSLOT)*SLOT
        return (vTR+2*idx+(1 if slot >= 65536 else 0), slot-(65536 if slot >= 65536 else 0))
    def reads1(t):
        b = BF+16*(t & 1)
        vb, so = trbase(0, t)
        for k in range(4):
            c16 = 4*(t % 7)+k
            if t < 7: a(f"ds_read_b128 v[{XF+4*c16}:{XF+4*c16+3}], v{vAA+(c16&3)} offset:{(c16>>2)*128}")
            for tt in range(2):
                a(f"ds_read_b64_tr_b16 v[{b+4*k+2*tt}:{b+4*k+2*tt+1}], v{vb} offset:{so+k*4096+tt*1024}")
    def mfma1(t):
        b = BF+16*(t & 1); ac = ACC if t < 7 else ACC2
        for k in range(4):
            c16 = 4*(t % 7)+k
            cin = "0" if c16 == 0 else f"v[{ac}:{ac+15}]"
            a(f"v_mfma_f32_32x32x16_bf16 v[{ac}:{ac+15}], v[{b+4*k}:{b+4*k+3}], v[{XF+4*c16}:{XF+4*c16+3}], {cin}")
    bg = []
    def emit_bg(n):
        while n > 0 and bg:
            x = bg.pop(0)
            if isinstance(x, tuple): a(x[2]); vm.issue(x[1])
            else: a(x)
            n -= 1
    def stage_body(mf, rd, t, nbg=BG_PER_MFMA):
        n = max(len(mf), 1); h = (len(rd)+1)//2 if n > 1 else len(rd)
        for i in range(n):
            if i < len(mf): a(mf[i])
            if i == 0:
                for l in rd[:h]: a(l)
            if i == 1:
                for l in rd[h:]: a(l)
            if i == min(2, n-1) and t+D < 21: dma(t+D)
            emit_bg(nbg if i >= 2 else max(nbg-4, 0))
    stg = StageStamps(a, 246)
    for t in range(7):
        a(f"s_waitcnt vmcnt({vm.wait(('st', t))})")
        a("s_barrier")
        stg(t)
        if t == 0: stamp(a, 4)
        if t == 1:
            a(f"s_and_b32 s49, s42, 6\n s_cmp_lg_u32 s49, 4\n s_cbranch_scc1 K1_NOP2")
            a(f"buffer_load_dword v{TMP+24}, v{TMP+25}, s[{sDBG}:{sDBG+3}], 0 offen sc1")
            a("K1_NOP2:")
        stage_body(capture(mfma1, t-1) if t > 0 else [], capture(reads1, t), t)
        a("s_waitcnt lgkmcnt(0)")
    stamp(a, 5)
    def z2_epi():
        gelu_pairs(a, ACC, ZP, TMP, 52, VC1)
        Sx = ACC
        for p in range(8):
            a(f"v_lshlrev_b32 v{Sx+2*p}, 16, v{ZP+p}\n v_and_b32 v{Sx+2*p+1}, 0xffff0000, v{ZP+p}")
        for i in range(4): a(f"v_add_f32 v{TMP+i}, v{Sx+i}, v{Sx+4+i}")
        for i in range(4): a(f"v_add_f32 v{TMP+4+i}, v{Sx+8+i}, v{Sx+12+i}")
        for i in range(4): a(f"v_add_f32 v{TMP+i}, v{TMP+i}, v{TMP+4+i}")
        a(f"v_add_f32 v{TMP}, v{TMP}, v{TMP+1}\n v_add_f32 v{TMP+2}, v{TMP+2}, v{TMP+3}\n v_add_f32 v{TMP}, v{TMP}, v{TMP+2}")
        halfsum(a, TMP, TMP+1)
        a(f"v_mul_f32 v{TMP+8}, {hex(f32bits(1/32))}, v{TMP}")
        for i in range(16): a(f"v_sub_f32 v{Sx+i}, v{Sx+i}, v{TMP+8}")
        for i in range(4): a(f"v_mul_f32 v{TMP+i}, v{Sx+i}, v{Sx+i}")
        for i in range(4, 16): a(f"v_fmac_f32 v{TMP+(i&3)}, v{Sx+i}, v{Sx+i}")
        a(f"v_add_f32 v{TMP}, v{TMP}, v{TMP+1}\n v_add_f32 v{TMP+2}, v{TMP+2}, v{TMP+3}\n v_add_f32 v{TMP+9}, v{TMP}, v{TMP+2}")
        halfsum(a, TMP+9, TMP+1)
        a(f"v_and_b32 v{TMP+10}, 31, v1\n v_lshlrev_b32 v{TMP+10}, 5, v{TMP+10}\n v_add_u32 v{TMP+10}, s56, v{TMP+10}")
        a(f"ds_write_b64 v{TMP+10}, v[{TMP+8}:{TMP+9}]")
    z2_lines = capture(z2_epi)
    def norm_job():
        A0 = TMP
        a(f"s_and_b32 s29, s42, 1\n s_lshl_b32 s29, s29, 8\n s_add_u32 s29, s29, {SX+2048}\n v_and_b32 v{A0}, 31, v1\n v_lshlrev_b32 v{A0}, 3, v{A0}\n v_add_u32 v{A0}, s29, v{A0}")
        a(f"ds_read_b64 v[{A0+2}:{A0+3}], v{A0}\n s_waitcnt lgkmcnt(0)")
        T3 = PS
        for p in range(8): a(f"v_lshlrev_b32 v{T3+2*p}, 16, v{ZP+p}\n v_and_b32 v{T3+2*p+1}, 0xffff0000, v{ZP+p}")
        for i in range(16): a(f"v_add_f32 v{T3+i}, v{T3+i}, v{A0+2}")
        for i in range(16): a(f"v_cvt_pk_bf16_f32 v{T3+i}, 0, v{T3+i}")
        for i in range(16): a(f"v_mul_f32 v{T3+i}, v{T3+i}, v{A0+3}")
        for p in range(8): a(f"v_cvt_pk_bf16_f32 v{ZP+p}, v{T3+2*p}, v{T3+2*p+1}")
        for q in range(2):
            a(f"buffer_store_dwordx4 v[{ZP+4*q}:{ZP+4*q+3}], v{vF}, s[{sWS}:{sWS+3}], s58 offen offset:{q*1024}{ST_FLAG}")
    Z1P = TMP+12
    G = PS
    def z1_epi():
        L = capture(gelu_pairs, a, ACC2, Z1P, TMP, 52, VC1)
        for q in range(2):
            L.append(("vm", "z1", f"buffer_store_dwordx4 v[{Z1P+4*q}:{Z1P+4*q+3}], v{vF}, s[{sWS}:{sWS+3}], s57 offen offset:{q*1024}{ST_FLAG}"))
        return L
    def is45(label):
        a(f"s_and_b32 s49, s42, 6\n s_cmp_lg_u32 s49, 4\n s_cbranch_scc1 {label}")
    def publish():
        is45("K1_NOSIG")
        a("s_mov_b32 s50, 0")
        a("K1_NON:")
        a(f"v_readfirstlane_b32 s63, v{TMP+24}")
        a("s_add_u32 s50, s50, 1\n s_cmp_lg_u32 s63, 0\n s_cbranch_scc1 K1_NONOK")
        a("s_cmp_ge_u32 s50, 0x8000\n s_cbranch_scc1 K1_NONOK")
        a(f"s_sleep 2\n buffer_load_dword v{TMP+24}, v{TMP+25}, s[{sDBG}:{sDBG+3}], 0 offen sc1\n s_waitcnt vmcnt(0)\n s_branch K1_NON")
        a("K1_NONOK:")
        B0 = TMP
        a(f"v_and_b32 v{B0+10}, 31, v1\n v_lshlrev_b32 v{B0+11}, 5, v{B0+10}\n s_sub_u32 s49, s56, 16\n v_add_u32 v{B0+11}, s49, v{B0+11}")
        a(f"ds_read_b128 v[{B0}:{B0+3}], v{B0+11}\n ds_read_b128 v[{B0+4}:{B0+7}], v{B0+11} offset:16\n s_waitcnt lgkmcnt(0)")
        a(f"v_add_f32 v{B0+8}, v{B0}, v{B0+2}\n v_add_f32 v{B0+9}, v{B0+4}, v{B0+6}\n v_add_f32 v{B0+8}, v{B0+8}, v{B0+9}\n v_mul_f32 v{B0+12}, 0.25, v{B0+8}")
        a(f"v_add_f32 v{B0+14}, v{B0+1}, v{B0+3}\n v_add_f32 v{B0+9}, v{B0+5}, v{B0+7}\n v_add_f32 v{B0+14}, v{B0+14}, v{B0+9}\n v_mov_b32 v{B0+8}, 0")
        for i in range(4): a(f"v_sub_f32 v{B0+9}, v{B0+2*i}, v{B0+12}\n v_fmac_f32 v{B0+8}, v{B0+9}, v{B0+9}")
        a(f"v_mov_b32 v{B0+9}, 0x42000000\n v_fma_f32 v{B0+14}, v{B0+8}, v{B0+9}, v{B0+14}")
        a(f"v_mov_b32 v{B0+13}, s63\n v_mov_b32 v{B0+15}, s63\n v_lshlrev_b32 v{B0+10}, 4, v{B0+10}")
        a(f"buffer_store_dwordx4 v[{B0+12}:{B0+15}], v{B0+10}, s[{sWS}:{sWS+3}], s61 offen sc1")
        a("s_nop 1")
        a("K1_NOSIG:")
    mfma1(6)
    for l in z2_lines: a(l)
    a("s_waitcnt lgkmcnt(0)")
    stamp(a, 6)
    a("s_cmp_ge_u32 s42, 4\n s_cbranch_scc1 K1_P2Z")
    vm_save = list(vm.ops)
    ACC3 = ACC
    def gloads():
        for i in range(4):
            a(f"buffer_load_dwordx4 v[{G+4*i}:{G+4*i+3}], v{TMP+20 if i < 3 else TMP+21}, s[{sWS}:{sWS+3}], s55 offen offset:{(i % 3)*512} sc1")
    for path in ("F", "Z"):
        vm.ops = list(vm_save)
        del bg[:]
        if path == "Z": a("K1_P2Z:")
        else:
            a(f"s_lshr_b32 s49, s42, 1\n s_lshl_b32 s49, s49, 12\n v_add_u32 v{vTR+2}, s49, v{vF}\n v_add_u32 v{vTR+3}, 0x10000, v{vTR+2}")
        def reads2(t):
            b = BF+16*(t & 1)
            if path == "F":
                vb, so = trbase(1, t)
                for f in range(4):
                    a(f"ds_read_b128 v[{b+4*f}:{b+4*f+3}], v{vb} offset:{so+8192+f*1024}")
            else:
                for k in range(2):
                    for tile in range(2):
                        vb, so = trbase(1+tile, t)
                        for tt in range(2):
                            f = tile*2+k
                            a(f"ds_read_b64_tr_b16 v[{b+4*f+2*tt}:{b+4*f+2*tt+1}], v{vb} offset:{so+k*4096+tt*1024}")
        def mfma2(t):
            b = BF+16*(t & 1); s2 = t-7
            if path == "F":
                for f in range(4):
                    c16 = 2*s2+(f >> 1)
                    cin = "0" if (s2 == 0 and f == 0) else f"v[{ACC2}:{ACC2+15}]"
                    a(f"v_mfma_f32_32x32x16_bf16 v[{ACC2}:{ACC2+15}], v[{XF+4*c16}:{XF+4*c16+3}], v[{b+4*f}:{b+4*f+3}], {cin}")
            else:
                for k in range(2):
                    for tile in range(2):
                        f = tile*2+k; c16 = 2*s2+k; ac = ACC2 if tile == 0 else ACC3
                        cin = "0" if c16 == 0 else f"v[{ac}:{ac+15}]"
                        a(f"v_mfma_f32_32x32x16_bf16 v[{ac}:{ac+15}], v[{b+4*f}:{b+4*f+3}], v[{XF+4*c16}:{XF+4*c16+3}], {cin}")
        for t in range(7, 21):
            n = vm.wait(("st", t))
            if t == CHK_T and path == "Z": n = min(n, vm.wait("gl"))
            a(f"s_waitcnt vmcnt({n})")
            if t == CHK_T and path == "Z":
                is45("K1_NOCHK")
                a("s_mov_b32 s50, 0")
                a("K1_CHK:")
                a(f"v_cmp_eq_u32 vcc, s63, v{G+1}")
                for i in range(1, 8):
                    a(f"v_cmp_eq_u32 s[30:31], s63, v{G+1+2*i}\n s_and_b64 vcc, vcc, s[30:31]")
                a("s_add_u32 s50, s50, 1\n s_cmp_eq_u64 vcc, exec\n s_cbranch_scc1 K1_CHKOK")
                a("s_cmp_ge_u32 s50, 0x8000\n s_cbranch_scc1 K1_CHKOK")
                a("s_sleep 2")
                gloads()
                a("s_waitcnt vmcnt(0)\n s_branch K1_CHK")
                a("K1_CHKOK:")
                B0 = TMP
                a(f"v_mul_f32 v{B0}, 0.5, v{G+12}\n v_mul_f32 v{B0+1}, 0.5, v{G+14}")
                for i in range(3): a(f"v_add_f32 v{B0}, v{B0}, v{G+4*i}\n v_add_f32 v{B0+1}, v{B0+1}, v{G+4*i+2}")
                halfsum(a, B0, B0+2); halfsum(a, B0+1, B0+2)
                a(f"v_mul_f32 v{B0}, {hex(f32bits(1/7))}, v{B0}")
                a(f"v_sub_f32 v{B0+4}, v{G+12}, v{B0}\n v_mul_f32 v{B0+3}, v{B0+4}, v{B0+4}\n v_mul_f32 v{B0+3}, 0.5, v{B0+3}")
                for i in range(3): a(f"v_sub_f32 v{B0+4}, v{G+4*i}, v{B0}\n v_fmac_f32 v{B0+3}, v{B0+4}, v{B0+4}")
                halfsum(a, B0+3, B0+2)
                a(f"v_mov_b32 v{B0+2}, 0x43000000\n v_fma_f32 v{B0+1}, v{B0+3}, v{B0+2}, v{B0+1}")
                a(f"v_mul_f32 v{B0+1}, {hex(f32bits(1/896))}, v{B0+1}")
                var_to_rs(a, B0+1, B0+5)
                a(f"v_cvt_pk_bf16_f32 v{B0+4}, v{B0}, v{B0}\n v_lshlrev_b32 v{B0+4}, 16, v{B0+4}\n v_sub_f32 v{B0+4}, 0, v{B0+4}")
                a(f"s_and_b32 s49, s42, 1\n s_lshl_b32 s49, s49, 8\n s_add_u32 s49, s49, {SX+2048}\n v_and_b32 v{B0+6}, 31, v1\n v_lshlrev_b32 v{B0+6}, 3, v{B0+6}\n v_add_u32 v{B0+6}, s49, v{B0+6}")
                a(f"ds_write_b64 v{B0+6}, v[{B0+4}:{B0+5}]\n s_waitcnt lgkmcnt(0)")
                a("K1_NOCHK:")
            a("s_barrier")
            if t == 7: stg.pending = 6
            stg(t)
            if path == "Z":
                if t == SIG_T: publish()
                if t == LD_T:
                    a(f"v_and_b32 v{TMP+21}, 31, v1\n v_lshlrev_b32 v{TMP+21}, 4, v{TMP+21}\n v_lshrrev_b32 v{TMP+20}, 5, v1\n v_mul_u32_u24 v{TMP+20}, 1536, v{TMP+20}\n v_add_u32 v{TMP+20}, v{TMP+20}, v{TMP+21}\n v_add_u32 v{TMP+21}, 3072, v{TMP+21}")
                    a("s_cmp_ge_u32 s42, 6\n s_cselect_b32 s55, 0x20000000, s55")
                    gloads()
                    for i in range(4): vm.issue("gl")
            if t == CHK_T: bg.extend(capture(norm_job))
            stage_body(capture(mfma2, t-1) if t > 7 else [], capture(reads2, t), t)
            a("s_waitcnt lgkmcnt(0)")
        stage_body(capture(mfma2, 20), [], 99)
        emit_bg(10**6)
        stamp(a, 8)
        if path == "F":
            a(f"v_and_b32 v{TMP}, 31, v1\n s_lshr_b32 s49, s42, 1\n s_lshl_b32 s49, s49, 5\n v_add_u32 v{TMP}, s49, v{TMP}")
            a(f"v_mul_u32_u24 v{TMP}, {UXP}, v{TMP}\n v_lshrrev_b32 v{TMP+1}, 5, v1\n v_lshl_add_u32 v{TMP}, v{TMP+1}, 6, v{TMP}")
            a(f"s_and_b32 s49, s42, 1\n s_lshl_b32 s49, s49, 3\n v_add_u32 v{TMP}, s49, v{TMP}")
            for r in range(4):
                a(f"v_cvt_pk_f16_f32 v{TMP+2+2*r}, v{ACC2+r}, v{ACC2+4+r}\n v_cvt_pk_f16_f32 v{TMP+3+2*r}, v{ACC2+8+r}, v{ACC2+12+r}")
                a(f"ds_write_b64 v{TMP}, v[{TMP+2+2*r}:{TMP+3+2*r}] offset:{16*r}")
            a("s_waitcnt lgkmcnt(0)\n s_barrier")
            a(f"v_lshrrev_b32 v{TMP+2}, 3, v0\n v_and_b32 v{TMP+3}, 7, v0")
            a(f"v_mul_u32_u24 v{TMP+4}, {UXP}, v{TMP+2}\n v_lshl_add_u32 v{TMP+4}, v{TMP+3}, 4, v{TMP+4}")
            a(f"ds_read_b128 v[{TMP+8}:{TMP+11}], v{TMP+4}\n ds_read_b128 v[{TMP+12}:{TMP+15}], v{TMP+4} offset:{32*UXP}")
            a(f"v_lshlrev_b32 v{TMP+2}, 12, v{TMP+2}\n v_lshl_add_u32 v{TMP+2}, v{TMP+3}, 4, v{TMP+2}")
            a(f"s_lshl_b32 s49, s44, 18\n s_lshl_b32 s50, s43, 7\n s_add_u32 s49, s49, s50\n s_add_u32 s49, s49, {U}\n s_add_u32 s50, s49, {32*4096}")
            a("s_waitcnt lgkmcnt(0)")
            a(f"buffer_store_dwordx4 v[{TMP+8}:{TMP+11}], v{TMP+2}, s[{sWS}:{sWS+3}], s49 offen{ST_FLAG}")
            a(f"buffer_store_dwordx4 v[{TMP+12}:{TMP+15}], v{TMP+2}, s[{sWS}:{sWS+3}], s50 offen{ST_FLAG}")
        else:
            for tile, ac in enumerate((ACC2, ACC3)):
                for p in range(8): a(f"v_cvt_pk_bf16_f32 v{BF+8*tile+p}, v{ac+2*p}, v{ac+2*p+1}")
                for q in range(2):
                    a(f"buffer_store_dwordx4 v[{BF+8*tile+4*q}:{BF+8*tile+4*q+3}], v{vF}, s[{sWS}:{sWS+3}], s57 offen offset:{(2*tile+q)*1024}{ST_FLAG}")
            if PROF: a("s_barrier")
        stamp(a, 9); stamp(a, 10)
        if PROF: a("s_waitcnt vmcnt(0)")
        stamp(a, 11)
        stg.flush(0, sWS, 42, 247)
        stamp_flush(a, 0, 14, sWS, 42)
        a("s_endpgm")
    a("K1_AUX:")
    sWR, sWI, sSP = 4, 8, 16
    srd(a, sWR, 28, 2048*450); srd(a, sWI, 30, 2048*450); srd(a, sSP, 34, 2048*4096)
    a("s_sub_u32 s41, s41, 28")
    a("s_lshl_b32 s43, s41, 3\n s_add_u32 s43, s43, s40")
    a("s_lshr_b32 s44, s43, 1\n s_lshl_b32 s44, s44, 2\n s_and_b32 s45, s42, 3\n s_add_u32 s44, s44, s45\n s_lshl_b32 s44, s44, 5")
    a("s_and_b32 s45, s43, 1\n s_lshl_b32 s45, s45, 4\n s_add_u32 s44, s44, s45\n s_mul_i32 s44, s44, 450")
    a("v_lshlrev_b32 v4, 4, v1")
    a("s_lshl_b32 s46, s42, 13")
    a("s_cmp_ge_u32 s42, 4\n s_cbranch_scc1 K1_AUXI")
    for arr, sr in (("R", sWR), ("I", sWI)):
        if arr == "I": a("K1_AUXI:")
        for i in range(8):
            a(f"s_add_u32 m0, s46, {i*1024}\n s_add_u32 s47, s44, {i*1024}")
            a(f"buffer_load_dwordx4 v4, s[{sr}:{sr+3}], s47 offen lds")
        if arr == "R": a("s_branch K1_AUXJ")
    a("K1_AUXJ:")
    a("v_and_b32 v5, 63, v0\n v_lshlrev_b32 v5, 12, v5\n v_lshrrev_b32 v6, 6, v0\n v_lshl_add_u32 v5, v6, 7, v5\n s_lshl_b32 s47, s43, 18")
    stamp(a, 1)
    a("s_waitcnt vmcnt(0)\n s_barrier")
    stamp(a, 2)
    a("v_and_b32 v6, 15, v0\n v_lshrrev_b32 v7, 4, v0")
    a("v_mul_u32_u24 v8, 450, v6\n v_lshl_add_u32 v8, v7, 1, v8")
    a("v_lshlrev_b32 v9, 13, v7\n v_lshl_add_u32 v9, v6, 4, v9")
    a(f"s_lshl_b32 s48, s43, 8\n s_add_u32 s48, s48, {WP}")
    a("v_mov_b32 v10, 0")
    for it in range(8):
        d = 16+4*it
        for r in range(4):
            a(f"ds_read_u16 v{d+r}, v8 offset:{r*8192+64*it}")
            a(f"ds_read_u16 v{d+r+96}, v8 offset:{(4+r)*8192+64*it}")
    a(f"buffer_load_dword v65, v5, s[{sSP}:{sSP+3}], s47 offen")
    a("s_waitcnt lgkmcnt(0)")
    for it in range(8):
        d = 16+4*it
        for r in range(4): a(f"v_lshl_or_b32 v{d+r}, v{d+r+96}, 16, v{d+r}")
        if it == 7:
            a("v_cmp_gt_u32 vcc, 16, v0\n s_and_saveexec_b64 s[50:51], vcc\n s_cbranch_execz K1_AUXSK")
        a(f"buffer_store_dwordx4 v[{d}:{d+3}], v9, s[{sWS}:{sWS+3}], s48 offen{ST_FLAG}")
        for r in range(4):
            a(f"v_and_b32 v{12+(r&1)}, 0x7fff7fff, v{d+r}\n v_pk_max_u16 v10, v10, v{12+(r&1)}")
        if it < 7: a(f"s_add_u32 s48, s48, {32*8192}")
    a("K1_AUXSK:\n s_mov_b64 exec, -1")
    a("v_lshrrev_b32 v11, 16, v10\n v_and_b32 v10, 0xffff, v10\n v_max_u32 v10, v10, v11")
    a("v_max_u32_dpp v10, v10, v10 quad_perm:[1,0,3,2] row_mask:0xf bank_mask:0xf")
    a("v_max_u32_dpp v10, v10, v10 quad_perm:[2,3,0,1] row_mask:0xf bank_mask:0xf")
    a("v_max_u32_dpp v10, v10, v10 row_half_mirror row_mask:0xf bank_mask:0xf")
    a("v_max_u32_dpp v10, v10, v10 row_mirror row_mask:0xf bank_mask:0xf")
    a("v_readlane_b32 s50, v10, 0\n v_readlane_b32 s51, v10, 16\n v_readlane_b32 s52, v10, 32\n v_readlane_b32 s53, v10, 48")
    a("s_max_u32 s50, s50, s51\n s_max_u32 s52, s52, s53\n s_max_u32 s50, s50, s52")
    a(f"s_lshl_b32 s47, s43, 3\n s_add_u32 s47, s47, s42\n s_lshl_b32 s47, s47, 2\n s_add_u32 s47, s47, {WMAX}")
    a("v_mov_b32 v10, s50\n v_mov_b32 v11, s47\n s_mov_b64 exec, 1")
    a(f"buffer_store_dword v10, v11, s[{sWS}:{sWS+3}], 0 offen")
    a("s_mov_b64 exec, -1")
    a("s_lshl_b32 s47, s43, 18")
    for rnd in range(1, WSP_K1//8):
        a(f"buffer_load_dword v{65+rnd}, v5, s[{sSP}:{sSP+3}], s47 offen offset:{1024*rnd}")
    pc_srd(a, 20, "TAB_FFT", 56*1024)
    a("s_mul_i32 s49, s43, 1792")
    a("v_cmp_gt_u32 vcc, 14, v0\n s_and_saveexec_b64 s[50:51], vcc\n s_cbranch_execz K1_AUXP")
    a("v_lshlrev_b32 v5, 7, v0\n buffer_load_dword v72, v5, s[20:23], s49 offen")
    a("K1_AUXP:")
    a("s_mov_b64 exec, -1")
    stamp(a, 3)
    if PROF: a("s_waitcnt vmcnt(0)")
    stamp(a, 4)
    stamp_flush(a, 0, 5, sWS, 42)
    a("K1_END:\n s_endpgm")
    a.raw(kd(name, 256, 102 if PROF else 64))

from k1_v1 import tables_ft
```

```python
from asmlib import Asm, Vm
from common import *

NSLOT = 6; SLOT = 24576
K2_LDS = NSLOT*SLOT
FT_BYTES = 56*1024
O_C64R, O_C64I, O_TW1, O_TW2, O_C32 = 0, 8192, 16384, 32768, 49152

def wmax_scale(a, sWS, v, sdst_e):
    a(f"v_lshlrev_b32 v{v+4}, 4, v1\n s_mov_b32 s{sdst_e}, {WMAX}")
    a(f"buffer_load_dwordx4 v[{v}:{v+3}], v{v+4}, s[{sWS}:{sWS+3}], s{sdst_e} offen")
def wmax_reduce(a, v, se, st):
    a(f"v_max_u32 v{v}, v{v}, v{v+1}\n v_max3_u32 v{v}, v{v}, v{v+2}, v{v+3}")
    a(f"v_max_u32_dpp v{v}, v{v}, v{v} quad_perm:[1,0,3,2] row_mask:0xf bank_mask:0xf")
    a(f"v_max_u32_dpp v{v}, v{v}, v{v} quad_perm:[2,3,0,1] row_mask:0xf bank_mask:0xf")
    a(f"v_max_u32_dpp v{v}, v{v}, v{v} row_half_mirror row_mask:0xf bank_mask:0xf")
    a(f"v_max_u32_dpp v{v}, v{v}, v{v} row_mirror row_mask:0xf bank_mask:0xf")
    a(f"v_readlane_b32 s{se}, v{v}, 0\n v_readlane_b32 s{st}, v{v}, 16\n v_readlane_b32 s{st+1}, v{v}, 32\n v_readlane_b32 s{st+2}, v{v}, 48")
    a(f"s_max_u32 s{se}, s{se}, s{st}\n s_max_u32 s{st+1}, s{st+1}, s{st+2}\n s_max_u32 s{se}, s{se}, s{st+1}")
    a(f"s_lshr_b32 s{se}, s{se}, 7\n s_max_u32 s{se}, s{se}, 2\n s_min_u32 s{se}, s{se}, 252")

def gen_k2(a):
    name = "k2_kernel"
    a(f".text\n.globl {name}\n.p2align 8\n.type {name},@function\n{name}:")
    sSP, sWS, sBS, sTB = 4, 8, 12, 16
    a("s_cmp_ge_u32 s2, 256\n s_cbranch_scc1 K2_END")
    stamp(a, 0)
    a("s_load_dwordx4 s[24:27], s[0:1], 40")
    a("s_load_dwordx2 s[28:29], s[0:1], 80")
    a("s_and_b32 s40, s2, 7\n s_lshr_b32 s41, s2, 3")
    a("v_lshrrev_b32 v2, 6, v0\n v_and_b32 v1, 63, v0")
    a("v_readfirstlane_b32 s42, v2")
    pc_srd(a, sTB, "TAB_FFT", FT_BYTES)
    a("s_waitcnt lgkmcnt(0)")
    srd(a, sSP, 24, 2048*4096); srd(a, sWS, 28, WS_BYTES); srd(a, sBS, 26, 4096)
    a("s_cmp_ge_u32 s41, 28\n s_cbranch_scc1 K2_FFT")
    vm = Vm()
    a("s_and_b32 s43, s40, 3\n s_lshl_b32 s43, s43, 2\n s_and_b32 s44, s41, 3\n s_add_u32 s43, s43, s44")
    a("s_lshr_b32 s44, s40, 2\n s_mul_i32 s44, s44, 7\n s_lshr_b32 s45, s41, 2\n s_add_u32 s44, s44, s45")
    a("s_lshr_b32 s45, s43, 3\n s_lshl_b32 s45, s45, 4\n s_bfe_u32 s46, s43, 0x10002\n s_lshl_b32 s46, s46, 2\n s_add_u32 s45, s45, s46")
    a("s_lshr_b32 s46, s42, 2\n s_lshl_b32 s46, s46, 3\n s_add_u32 s46, s46, s45\n s_and_b32 s47, s42, 3\n s_add_u32 s46, s46, s47")
    a("s_lshl_b32 s46, s46, 6\n s_and_b32 s47, s43, 3\n s_lshl_b32 s47, s47, 4\n s_add_u32 s46, s46, s47\n s_lshl_b32 s46, s46, 12")
    vA, vB, vL = 2, 3, 4
    T = 100
    a(f"v_lshrrev_b32 v{T}, 3, v1\n v_and_b32 v{T+1}, 7, v1\n v_lshrrev_b32 v{T+2}, 1, v{T}")
    a(f"s_and_b32 s47, s42, 1\n s_lshl_b32 s47, s47, 2\n v_add_u32 v{T+2}, s47, v{T+2}\n v_xor_b32 v{T+1}, v{T+1}, v{T+2}")
    a(f"v_lshlrev_b32 v{vA}, 12, v{T}\n v_lshl_add_u32 v{vA}, v{T+1}, 4, v{vA}")
    a(f"v_lshrrev_b32 v{T}, 5, v1\n v_bfe_u32 v{T+1}, v1, 3, 1\n v_lshl_add_u32 v{T}, v{T}, 1, v{T+1}\n v_lshlrev_b32 v{vB}, 10, v{T}")
    a(f"v_bfe_u32 v{T}, v1, 2, 1\n v_lshl_add_u32 v{vB}, v{T}, 9, v{vB}\n v_bfe_u32 v{T}, v1, 4, 1\n v_lshl_add_u32 v{vB}, v{T}, 6, v{vB}")
    a(f"v_and_b32 v{T}, 3, v1\n v_lshl_add_u32 v{vB}, v{T}, 4, v{vB}")
    a(f"v_lshlrev_b32 v{vL}, 4, v1")
    a(f"s_lshl_b32 s47, s44, 12\n s_mul_i32 s48, s42, {2*57344}\n s_add_u32 s47, s47, s48\n s_add_u32 s47, s47, {Z2N}")
    a("s_lshl_b32 s48, s42, 10")
    def dma(t):
        slot = (t % NSLOT)*SLOT
        sg = t
        zoff = (2*(8*((sg >> 2) & 1)+16*(sg >> 4))+((sg >> 3) & 1))*57344+(sg & 3)*128
        a(f"s_add_u32 m0, s48, {slot}\n s_add_u32 s49, s46, {sg*128}")
        a(f"buffer_load_dwordx4 v{vA}, s[{sSP}:{sSP+3}], s49 offen lds"); vm.issue(("st", t))
        a(f"s_add_u32 m0, s48, {slot+8192}\n s_add_u32 s49, s46, {sg*128+8*4096}")
        a(f"buffer_load_dwordx4 v{vA}, s[{sSP}:{sSP+3}], s49 offen lds"); vm.issue(("st", t))
        a(f"s_add_u32 m0, s48, {slot+16384}\n s_add_u32 s49, s47, {zoff}")
        a(f"buffer_load_dwordx4 v{vB}, s[{sWS}:{sWS+3}], s49 offen lds"); vm.issue(("st", t))
    D = NSLOT-1
    for t in range(D):
        dma(t); a("s_barrier")
    ZR = 88; BS = 96
    a("s_lshr_b32 s50, s42, 1\n s_and_b32 s51, s42, 1")
    a("s_lshl_b32 s52, s43, 2\n s_add_u32 s52, s52, s50\n s_mul_i32 s52, s52, 56\n s_lshl_b32 s53, s44, 2\n s_add_u32 s52, s52, s53\n s_lshl_b32 s53, s51, 1\n s_add_u32 s52, s52, s53\n s_lshl_b32 s52, s52, 10")
    vTR = 5
    vWA = 8
    a(f"v_lshrrev_b32 v{T}, 5, v1\n v_lshlrev_b32 v{T}, 10, v{T}\n v_bfe_u32 v{T+1}, v1, 4, 1\n v_lshl_add_u32 v{T}, v{T+1}, 7, v{T}")
    a(f"v_and_b32 v{T+1}, 1, v1\n v_lshl_add_u32 v{T}, v{T+1}, 6, v{T}\n v_bfe_u32 v{T+1}, v1, 2, 2\n v_lshl_add_u32 v{T}, v{T+1}, 4, v{T}")
    a(f"v_bfe_u32 v{T+1}, v1, 1, 1\n v_lshl_add_u32 v{T}, v{T+1}, 3, v{T}\n s_lshl_b32 s53, s51, 9\n v_add_u32 v{vTR}, s53, v{T}")
    a(f"v_add_u32 v{vTR+1}, {2*SLOT}, v{vTR}\n v_add_u32 v{vTR+2}, {4*SLOT}, v{vTR}")
    a(f"v_and_b32 v{T}, 31, v1\n s_lshl_b32 s53, s50, 5\n v_add_u32 v{T}, s53, v{T}")
    a(f"v_bfe_u32 v{T+1}, v{T}, 1, 3\n v_lshrrev_b32 v{T+2}, 5, v1\n v_xor_b32 v{T+1}, v{T+1}, v{T+2}\n v_lshlrev_b32 v{T}, 7, v{T}")
    for k in range(4):
        a(f"v_xor_b32 v{T+2}, {2*k}, v{T+1}\n v_lshl_add_u32 v{vWA+k}, v{T+2}, 4, v{T}")
        a(f"v_add_u32 v{vWA+4+k}, {2*SLOT}, v{vWA+k}\n v_add_u32 v{vWA+8+k}, {4*SLOT}, v{vWA+k}")
    FR = 20
    ACC = 104
    def rd(t, k):
        b = FR+32*(t & 1); sl = t % NSLOT; win = sl >> 1; so = (sl & 1)*SLOT
        out = []
        for tt in range(2):
            out.append(f"ds_read_b64_tr_b16 v[{b+8*k+2*tt}:{b+8*k+2*tt+1}], v{vTR+win} offset:{so+16384+2048*k+256*tt}")
        out.append(f"ds_read_b128 v[{b+8*k+4}:{b+8*k+7}], v{vWA+4*win+k} offset:{so}")
        return out
    def mf(t, k):
        b = FR+32*(t & 1)
        cin = "0" if (t == 0 and k == 0) else f"v[{ACC}:{ACC+15}]"
        return f"v_mfma_f32_32x32x16_bf16 v[{ACC}:{ACC+15}], v[{b+8*k}:{b+8*k+3}], v[{b+8*k+4}:{b+8*k+7}], {cin}"
    def late_loads():
        a(f"s_add_u32 s53, s52, {Z1}" if Z1 else "s_mov_b32 s53, s52")
        for q in range(2):
            a(f"buffer_load_dwordx4 v[{ZR+4*q}:{ZR+4*q+3}], v{vL}, s[{sWS}:{sWS+3}], s53 offen offset:{q*1024}"); vm.issue("z1")
        a("s_and_b32 s53, s50, 1\n s_lshl_b32 s53, s53, 3\n s_add_u32 s53, s53, s45\n s_lshl_b32 s53, s53, 6")
        a("s_and_b32 s54, s43, 3\n s_lshl_b32 s54, s54, 1\n s_lshr_b32 s55, s50, 1\n s_add_u32 s54, s54, s55\n s_lshl_b32 s54, s54, 3\n s_add_u32 s53, s53, s54\n s_lshl_b32 s53, s53, 1")
        a(f"v_bfe_u32 v{T}, v1, 3, 2\n v_and_b32 v{T+1}, 7, v1\n v_lshlrev_b32 v{T}, 7, v{T}\n v_lshl_add_u32 v{T}, v{T+1}, 1, v{T}")
        a(f"buffer_load_ushort v{BS}, v{T}, s[{sBS}:{sBS+3}], s53 offen"); vm.issue("z1")
    from k1 import C1, C2
    Z1F = 124; GT = 140
    n0 = len(a.lines)
    a(f"s_mov_b32 s56, {hex(f32bits(C2))}\n v_mov_b32 v{GT+8}, {hex(f32bits(C1))}")
    for q in range(0, 16, 4):
        R = [Z1F+q+i for i in range(4)]; Tt = [GT+i for i in range(4)]
        for i in range(2): a(f"v_lshlrev_b32 v{R[2*i]}, 16, v{ZR+q//2+i}\n v_and_b32 v{R[2*i+1]}, 0xffff0000, v{ZR+q//2+i}")
        for i in range(4): a(f"v_mul_f32 v{Tt[i]}, v{R[i]}, v{R[i]}")
        for i in range(4): a(f"v_fma_f32 v{Tt[i]}, v{Tt[i]}, s56, v{GT+8}")
        for i in range(4): a(f"v_mul_f32 v{Tt[i]}, v{Tt[i]}, v{R[i]}")
        for i in range(4): a(f"v_exp_f32 v{Tt[i]}, v{Tt[i]}")
        for i in range(4): a(f"v_add_f32 v{Tt[i]}, 1.0, v{Tt[i]}")
        for i in range(4): a(f"v_rcp_f32 v{Tt[i]}, v{Tt[i]}")
        for i in range(4): a(f"v_mul_f32 v{Tt[i]}, v{Tt[i]}, v{R[i]}")
        for i in range(4): a(f"v_cvt_pk_bf16_f32 v{R[i]}, 0, v{Tt[i]}")
    a(f"v_lshlrev_b32 v{BS}, 16, v{BS}")
    gl = a.lines[n0:]; del a.lines[n0:]
    stamp(a, 1)
    stg = StageStamps(a, 122)
    for t in range(32):
        a(f"s_waitcnt vmcnt({vm.wait(('st', t))})")
        a("s_barrier")
        if t == 0: stamp(a, 2)
        if t == 16: stamp(a, 3)
        stg(t)
        for k in range(4):
            if t > 0: a(mf(t-1, k))
            if k < 2:
                for l in rd(t, 2*k)+rd(t, 2*k+1): a(l)
            if k == 2 and t+D < 32: dma(t+D)
            if k == 2 and t == 6: late_loads()
            if t >= 12:
                for _ in range(3):
                    if gl: a(gl.pop(0))
        a("s_waitcnt lgkmcnt(0)")
    for k in range(4): a(mf(31, k))
    stamp(a, 4)
    assert not gl
    E = FR
    for i in range(16): a(f"v_cvt_pk_bf16_f32 v{E+i}, 0, v{ACC+i}")
    for i in range(16): a(f"v_add_f32 v{E+i}, v{E+i}, v{BS}")
    for i in range(16): a(f"v_cvt_pk_bf16_f32 v{E+i}, 0, v{E+i}")
    for i in range(16): a(f"v_mul_f32 v{E+i}, v{E+i}, v{Z1F+i}")
    for p in range(8): a(f"v_cvt_pk_bf16_f32 v{E+32+p}, v{E+2*p}, v{E+2*p+1}")
    a(f"s_add_u32 s53, s52, {H}")
    for q in range(2):
        a(f"buffer_store_dwordx4 v[{E+32+4*q}:{E+35+4*q}], v{vL}, s[{sWS}:{sWS+3}], s53 offen offset:{q*1024} sc1")
    stamp(a, 5)
    if PROF: a("s_waitcnt vmcnt(0)")
    stamp(a, 6)
    stg.flush(1, sWS, 42, 123)
    stamp_flush(a, 1, 7, sWS, 42)
    a("s_endpgm")
    a("K2_FFT:")
    a("s_sub_u32 s41, s41, 28\n s_lshl_b32 s43, s41, 3\n s_add_u32 s43, s43, s40")
    a("s_mul_i32 s44, s43, 7\n s_add_u32 s44, s44, s42")
    vL = 4
    a(f"v_lshlrev_b32 v{vL}, 4, v1")
    a("s_mul_i32 s45, s42, 7168")
    for i in range(7):
        a(f"s_add_u32 m0, s45, {i*1024}\n s_add_u32 s46, s45, {i*1024}")
        a(f"buffer_load_dwordx4 v{vL}, s[{sTB}:{sTB+3}], s46 offen lds")
    a("s_cmp_eq_u32 s42, 7\n s_cbranch_scc1 K2_PF")
    a("s_mov_b32 s60, 0")
    a("K2_COL:")
    a("s_mov_b32 s47, s44")
    OPR, OPI, OPN = 16, 32, 48
    DR, DI = 64, 96
    WV = 128; C32 = 160; CF = 184; TWB = 216
    a("s_lshl_b32 s48, s47, 1\n s_add_u32 s49, s48, 1\n s_min_u32 s49, s49, 447\n s_cmp_eq_u32 s47, 224\n s_cselect_b32 s48, 1, s48")
    a("s_cmp_eq_u32 s47, 224\n s_cselect_b32 s50, 1, 0\n s_cmp_eq_u32 s47, 0\n s_cselect_b32 s50, 1, s50")
    a(f"s_lshl_b32 s48, s48, 12\n s_lshl_b32 s49, s49, 12\n s_add_u32 s51, s48, {U}\n s_add_u32 s52, s49, {U}")
    a(f"v_and_b32 v5, 31, v1\n v_lshrrev_b32 v6, 5, v1\n v_lshlrev_b32 v7, 4, v5\n v_lshl_add_u32 v7, v6, 10, v7")
    for mt in range(2):
        for c in range(2):
            f = 2*mt+c
            a(f"buffer_load_dwordx4 v[{OPR+4*f}:{OPR+4*f+3}], v7, s[{sWS}:{sWS+3}], s51 offen offset:{(32*mt+128*c)*16}")
            a(f"buffer_load_dwordx4 v[{OPI+4*f}:{OPI+4*f+3}], v7, s[{sWS}:{sWS+3}], s52 offen offset:{(32*mt+128*c)*16}")
    wmax_scale(a, sWS, 8, 53)
    a(f"s_lshl_b32 s54, s47, 13\n s_add_u32 s54, s54, {WP}\n s_add_u32 s55, s54, 4096")
    for i in range(8):
        a(f"buffer_load_dwordx4 v[{WV+4*i}:{WV+4*i+3}], v{vL}, s[{sWS}:{sWS+3}], s{54 if i < 4 else 55} offen offset:{(i&3)*1024}")
    npf = 0
    a("s_cmp_lg_u32 s60, 0\n s_cbranch_scc1 K2_NB")
    a(f"s_waitcnt vmcnt(17)\n s_barrier")
    a("K2_NB:")
    stamp(a, 1)
    for i in range(6):
        a(f"ds_read_b128 v[{C32+4*i}:{C32+4*i+3}], v{vL} offset:{O_C32+i*1024}")
    CR = lambda c: f"v[{C32+4*c}:{C32+4*c+3}]"
    CI = lambda c: f"v[{C32+8+4*c}:{C32+8+4*c+3}]"
    CN = lambda c: f"v[{C32+16+4*c}:{C32+16+4*c+3}]"
    op = lambda base, f: f"v[{base+4*f}:{base+4*f+3}]"
    dd = lambda base, t: f"v[{base+16*t}:{base+16*t+15}]"
    a(f"s_waitcnt vmcnt({8+npf})")
    wmax_reduce(a, 8, 53, 56)
    a("s_sub_u32 s56, 254, s53\n s_sub_u32 s56, s56, s50\n s_lshl_b32 s56, s56, 23\n s_mov_b32 s57, s56")
    a("s_cmp_eq_u32 s50, 0\n s_cbranch_scc1 K2_NSP")
    for i in range(16): a(f"v_mov_b32 v{OPI+i}, 0")
    a("K2_NSP:")
    a("s_waitcnt lgkmcnt(0)")
    stamp(a, 2)
    def mfma(d, x, y, first): a(f"v_mfma_f32_32x32x16_f16 {d}, {x}, {y}, {'0' if first else d}")
    for mt in range(2):
        for c in range(2):
            f = 2*mt+c
            mfma(dd(DR, mt), op(OPR, f), CR(c), c == 0)
            mfma(dd(DI, mt), op(OPR, f), CI(c), c == 0)
            mfma(dd(DR, mt), op(OPI, f), CN(c), False)
            mfma(dd(DI, mt), op(OPI, f), CR(c), False)
    def twiddle(otab, neg):
        def ld(g):
            b = TWB+8*(g & 3)
            a(f"ds_read_b128 v[{b}:{b+3}], v{vL} offset:{otab+g*2048}")
            a(f"ds_read_b128 v[{b+4}:{b+7}], v{vL} offset:{otab+g*2048+1024}")
        for g in range(3): ld(g)
        for g in range(8):
            if g+3 < 8: ld(g+3)
            a(f"s_waitcnt lgkmcnt({2*min(3, 7-g)})")
            b = TWB+8*(g & 3)
            for pr in range(2):
                v = 4*g+2*pr
                re = f"v[{DR+v}:{DR+v+1}]"; im = f"v[{DI+v}:{DI+v+1}]"
                tr = f"v[{b+2*pr}:{b+2*pr+1}]"; ti = f"v[{b+4+2*pr}:{b+4+2*pr+1}]"
                t0 = 8+4*pr; t1 = t0+2
                a(f"v_pk_mul_f32 v[{t0}:{t0+1}], {re}, {tr}\n v_pk_mul_f32 v[{t1}:{t1+1}], {re}, {ti}")
                a(f"v_pk_fma_f32 v[{t0}:{t0+1}], {im}, {ti}, v[{t0}:{t0+1}] neg_lo:[1,0,0] neg_hi:[1,0,0]")
                a(f"v_pk_fma_f32 v[{t1}:{t1+1}], {im}, {tr}, v[{t1}:{t1+1}]")
                a(f"v_cvt_pk_f16_f32 v{OPR+v//2}, v{t0}, v{t0+1}\n v_cvt_pk_f16_f32 v{OPI+v//2}, v{t1}, v{t1+1}")
                if neg: a(f"v_xor_b32 v{OPN+v//2}, 0x80008000, v{OPI+v//2}")
    twiddle(O_TW1, True)
    stamp(a, 3)
    def big(step):
        def ld(i):
            b = CF+8*(i & 3)
            a(f"ds_read_b128 v[{b}:{b+3}], v{vL} offset:{O_C64R+i*1024}")
            a(f"ds_read_b128 v[{b+4}:{b+7}], v{vL} offset:{O_C64I+i*1024}")
        for i in range(3): ld(i)
        for i in range(8):
            if i+3 < 8: ld(i+3)
            a(f"s_waitcnt lgkmcnt({2*min(3, 7-i)})")
            b = CF+8*(i & 3); cr = f"v[{b}:{b+3}]"; ci = f"v[{b+4}:{b+7}]"
            t = i >> 2; c = i & 3
            if step == 3:
                mfma(dd(DR, t), cr, op(OPR, c), c == 0)
                mfma(dd(DI, t), ci, op(OPR, c), c == 0)
                mfma(dd(DR, t), ci, op(OPN, c), False)
                mfma(dd(DI, t), cr, op(OPI, c), False)
            else:
                mfma(dd(DR, t), op(OPR, c), cr, c == 0)
                mfma(dd(DI, t), op(OPI, c), cr, c == 0)
                mfma(dd(DR, t), op(OPI, c), ci, False)
                mfma(dd(DI, t), op(OPN, c), ci, False)
    big(3)
    stamp(a, 4)
    a(f"s_waitcnt vmcnt({npf})")
    for v in range(0, 32, 2):
        b = TWB+8*((v >> 1) & 3)
        wr = f"v[{b}:{b+1}]"; wi = f"v[{b+2}:{b+3}]"; t0 = b+4; t1 = b+6
        re = f"v[{DR+v}:{DR+v+1}]"; im = f"v[{DI+v}:{DI+v+1}]"
        a(f"v_lshlrev_b32 v{b}, 16, v{WV+v}\n v_lshlrev_b32 v{b+1}, 16, v{WV+v+1}\n v_and_b32 v{b+2}, 0xffff0000, v{WV+v}\n v_and_b32 v{b+3}, 0xffff0000, v{WV+v+1}")
        a(f"v_pk_mul_f32 {wr}, {wr}, s[56:57]\n v_pk_mul_f32 {wi}, {wi}, s[56:57]")
        a(f"v_pk_mul_f32 v[{t0}:{t0+1}], {re}, {wr}\n v_pk_mul_f32 v[{t1}:{t1+1}], {re}, {wi}")
        a(f"v_pk_fma_f32 v[{t0}:{t0+1}], {im}, {wi}, v[{t0}:{t0+1}] neg_lo:[1,0,0] neg_hi:[1,0,0]")
        a(f"v_pk_fma_f32 v[{t1}:{t1+1}], {im}, {wr}, v[{t1}:{t1+1}]")
        a(f"v_cvt_pk_f16_f32 v{OPR+v//2}, v{t0}, v{t0+1}\n v_cvt_pk_f16_f32 v{OPI+v//2}, v{t1}, v{t1+1}")
        a(f"v_xor_b32 v{OPN+v//2}, 0x80008000, v{OPR+v//2}")
    stamp(a, 5)
    big(5)
    stamp(a, 6)
    twiddle(O_TW2, False)
    stamp(a, 7)
    for nt in range(2):
        for c in range(2):
            f = 2*nt+c
            mfma(dd(DR, nt), op(OPR, f), CR(c), c == 0)
            mfma(dd(DI, nt), op(OPI, f), CR(c), c == 0)
            mfma(dd(DR, nt), op(OPI, f), CI(c), False)
            mfma(dd(DI, nt), op(OPR, f), CN(c), False)
    a("v_lshlrev_b32 v7, 4, v5\n v_lshl_add_u32 v7, v6, 9, v7")
    a(f"s_add_u32 s51, s48, {YT}\n s_add_u32 s52, s49, {YT}")
    for part, base, sreg in ((0, DR, 51), (1, DI, 52)):
        if part == 1: a("s_cmp_lg_u32 s50, 0\n s_cbranch_scc1 K2_FDONE")
        for nt in range(2):
            for q in range(2):
                o = WV+16*part+8*nt+4*q; v = base+16*nt+8*q
                for i in range(4): a(f"v_cvt_pk_f16_f32 v{o+i}, v{v+2*i}, v{v+2*i+1}")
                a(f"v_permlane32_swap_b32 v{o}, v{o+2}\n v_permlane32_swap_b32 v{o+1}, v{o+3}")
                a(f"buffer_store_dwordx4 v[{o}:{o+3}], v7, s[{sWS}:{sWS+3}], s{sreg} offen offset:{(4*nt+2*q)*512} sc1")
    a("K2_FDONE:")
    a("s_cmp_lg_u32 s44, 3\n s_cbranch_scc1 K2_FEND")
    a("s_mov_b32 s44, 224\n s_mov_b32 s60, 1\n s_waitcnt vmcnt(0)\n s_branch K2_COL")
    a("K2_FEND:")
    stamp(a, 8)
    if PROF: a("s_waitcnt vmcnt(0)")
    stamp(a, 9)
    stamp_flush(a, 1, 10, sWS, 42)
    a("s_endpgm")
    a("K2_PF:")
    from k1 import WSP_K1
    a("s_load_dwordx2 s[24:25], s[0:1], 56")
    a("s_waitcnt vmcnt(0)\n s_barrier")
    a(f"v_lshlrev_b32 v5, 7, v1\n buffer_load_dword v6, v5, s[{sBS}:{sBS+3}], 0 offen")
    a(f"s_lshl_b32 s58, s43, 18\n v_lshlrev_b32 v13, 12, v1")
    for st in range(WSP_K1, 32):
        a(f"buffer_load_dword v{16+st}, v13, s[{sSP}:{sSP+3}], s58 offen offset:{128*st}")
    pc_srd(a, 12, "TAB_TT", 7*56*1024)
    a("s_waitcnt lgkmcnt(0)")
    srd(a, 4, 24, 896*896)
    a("v_lshlrev_b32 v5, 7, v1\n s_mul_i32 s44, s43, 25088\n s_mul_i32 s45, s43, 12544")
    for i in range(4):
        a(f"buffer_load_dword v{8+i}, v5, s[4:7], s44 offen\n s_add_u32 s44, s44, 8192")
    for i in range(2):
        a(f"buffer_load_dword v{14+i}, v5, s[12:15], s45 offen\n s_add_u32 s45, s45, 8192")
    a("K2_END:\n s_endpgm")
    a.raw(kd(name, 256, 102 if PROF else 64))

def fft_tables_np():
    l = np.arange(64); i = np.arange(8)
    t = np.zeros(FT_BYTES//2, np.uint16)
    def frag16(vals): return vals.astype(np.float16).view(np.uint16).reshape(-1)
    for tile in range(2):
        for c in range(4):
            m = 32*tile+(l[:, None] & 31); k = 16*c+8*(i[None, :] >> 2)+4*(l[:, None] >> 5)+(i[None, :] & 3)
            ang = 2*np.pi*((m*k) % 64)/64
            o = (tile*4+c)*512
            t[O_C64R//2+o:O_C64R//2+o+512] = frag16(np.cos(ang)/8)
            t[O_C64I//2+o:O_C64I//2+o+512] = frag16(-np.sin(ang)/8)
    for c in range(2):
        m = (l[:, None] & 31); k = 16*c+8*(i[None, :] >> 2)+4*(l[:, None] >> 5)+(i[None, :] & 3)
        ang = 2*np.pi*((m*k) % 32)/32
        for idx, vals in enumerate((np.cos(ang)/4, -np.sin(ang)/4, np.sin(ang)/4)):
            o = O_C32//2+(idx*2+c)*512
            t[o:o+512] = frag16(vals)
    tf = t.view(np.float32)
    r = np.arange(4)
    for tile in range(2):
        for vq in range(4):
            row = 8*vq+4*(l[:, None] >> 5)+r[None, :]; col = (l[:, None] & 31)
            g = tile*4+vq
            ang = 2*np.pi*((32*tile+row)*col)/2048
            tf[O_TW1//4+g*512:O_TW1//4+g*512+256] = np.cos(ang).reshape(-1)
            tf[O_TW1//4+g*512+256:O_TW1//4+g*512+512] = (-np.sin(ang)).reshape(-1)
            ang = 2*np.pi*(row*(32*tile+col))/2048
            tf[O_TW2//4+g*512:O_TW2//4+g*512+256] = np.cos(ang).reshape(-1)
            tf[O_TW2//4+g*512+256:O_TW2//4+g*512+512] = np.sin(ang).reshape(-1)
    return t

def tables_fft(a):
    t = fft_tables_np().view(np.uint64)
    L = ['.section .rodata,"a"', ".p2align 8", "TAB_FFT:"]
    for i in range(0, len(t), 8):
        L.append(".quad "+",".join(hex(int(x)) for x in t[i:i+8]))
    a.raw("\n".join(L))
```

```python
from asmlib import Asm, Vm
from common import *
from k2 import wmax_scale, wmax_reduce
import math

NSLOT = 6; SLOT = 24576
K3_LDS = NSLOT*SLOT
TT_BYTES = 7*56*1024
EX = 2*SLOT; EXP = 144

def gen_k3(a):
    name = "k3_kernel"
    a(f".text\n.globl {name}\n.p2align 8\n.type {name},@function\n{name}:")
    sX, sWO, sWS, sOUT, sTB, sC = 4, 8, 12, 16, 20, 24
    a("s_cmp_ge_u32 s2, 224\n s_cbranch_scc1 K3_END")
    stamp(a, 0)
    a("s_load_dwordx2 s[28:29], s[0:1], 0")
    a("s_load_dwordx4 s[32:35], s[0:1], 56")
    a("s_load_dwordx2 s[36:37], s[0:1], 80")
    a("s_and_b32 s40, s2, 7\n s_lshr_b32 s41, s2, 3")
    a("v_lshrrev_b32 v2, 6, v0\n v_and_b32 v1, 63, v0")
    a("v_readfirstlane_b32 s42, v2")
    pc_srd(a, sTB, "TAB_TT", TT_BYTES)
    a("s_waitcnt lgkmcnt(0)")
    srd(a, sX, 28, 2048*896); srd(a, sWO, 32, 896*896); srd(a, sWS, 36, WS_BYTES); srd(a, sOUT, 34, 2048*896)
    vm = Vm()
    a("s_lshl_b32 s43, s40, 2\n s_and_b32 s44, s41, 3\n s_add_u32 s43, s43, s44\n s_lshr_b32 s44, s41, 2")
    a("s_lshr_b32 s45, s43, 4\n s_lshl_b32 s45, s45, 4\n s_bfe_u32 s46, s43, 0x10003\n s_lshl_b32 s46, s46, 2\n s_add_u32 s45, s45, s46")
    vL, vB, vC = 2, 3, 4
    T = 100
    a(f"v_lshlrev_b32 v{vL}, 4, v1")
    a(f"v_lshrrev_b32 v{T}, 3, v1\n v_and_b32 v{T+1}, 7, v1\n v_bfe_u32 v{T+2}, v1, 4, 1\n v_lshlrev_b32 v{T+2}, 2, v{T+2}\n v_xor_b32 v{T+1}, v{T+1}, v{T+2}")
    a(f"v_mul_u32_u24 v{vB}, 896, v{T}\n v_lshl_add_u32 v{vB}, v{T+1}, 4, v{vB}")
    a(f"s_lshl_b32 s46, s43, 1\n s_lshr_b32 s47, s42, 2\n s_add_u32 s46, s46, s47\n s_mul_i32 s46, s46, 56\n s_and_b32 s47, s42, 3\n s_add_u32 s46, s46, s47\n s_lshl_b32 s46, s46, 10\n s_add_u32 s46, s46, {H}")
    a("s_mul_i32 s47, s42, 7168\n s_lshl_b32 s48, s44, 7\n s_add_u32 s47, s47, s48")
    a("s_lshl_b32 s48, s42, 10")
    a("s_cmp_ge_u32 s42, 4\n s_cbranch_scc1 K3_CT")
    for i in range(4): a(f"s_mov_b32 s{sC+i}, s{sWS+i}")
    a(f"v_lshrrev_b32 v{T+2}, 2, v{T+1}\n v_and_b32 v{T+3}, 3, v{T+1}\n v_lshl_add_u32 v{T+2}, v{T+2}, 3, v{T+3}\n v_lshlrev_b32 v{vC}, 12, v{T}\n v_lshl_add_u32 v{vC}, v{T+2}, 4, v{vC}")
    a(f"s_lshl_b32 s49, s42, 15\n s_and_b32 s50, s43, 7\n s_lshl_b32 s50, s50, 9\n s_add_u32 s49, s49, s50\n s_lshl_b32 s50, s45, 4\n s_add_u32 s49, s49, s50\n s_add_u32 s49, s49, {YT}")
    a(f"s_mov_b32 s50, {32*4096}")
    a("s_branch K3_CJ")
    a("K3_CT:")
    for i in range(4): a(f"s_mov_b32 s{sC+i}, s{sTB+i}")
    a(f"v_mov_b32 v{vC}, v{vL}")
    a("s_mul_i32 s49, s44, 56\n s_add_u32 s49, s49, s42\n s_sub_u32 s49, s49, 4\n s_lshl_b32 s49, s49, 10\n s_mov_b32 s50, 4096")
    a("K3_CJ:")
    def dma(t):
        slot = (t % NSLOT)*SLOT
        a(f"s_add_u32 m0, s48, {slot}\n s_add_u32 s51, s46, {4*t*1024}")
        a(f"buffer_load_dwordx4 v{vL}, s[{sWS}:{sWS+3}], s51 offen lds"); vm.issue(("st", t))
        a(f"s_add_u32 m0, s48, {slot+8192}\n s_add_u32 s51, s47, {64*t*896}")
        a(f"buffer_load_dwordx4 v{vB}, s[{sWO}:{sWO+3}], s51 offen lds"); vm.issue(("st", t))
        a(f"s_add_u32 m0, s48, {slot+16384}")
        a(f"buffer_load_dwordx4 v{vC}, s[{sC}:{sC+3}], s49 offen lds"); vm.issue(("st", t))
        a("s_add_u32 s49, s49, s50")
    D = NSLOT-1
    for t in range(D):
        dma(t); a("s_barrier")
    XR = 88; vO = 92
    a("s_lshr_b32 s52, s42, 2\n s_lshl_b32 s52, s52, 3\n s_add_u32 s52, s52, s45\n s_and_b32 s53, s42, 3\n s_add_u32 s52, s52, s53\n s_lshl_b32 s52, s52, 6")
    a("s_and_b32 s53, s43, 7\n s_lshl_b32 s53, s53, 3\n s_add_u32 s52, s52, s53\n s_mul_i32 s52, s52, 896\n s_lshl_b32 s53, s44, 7\n s_add_u32 s52, s52, s53")
    a(f"v_and_b32 v{T+2}, 7, v1\n v_mul_u32_u24 v{vO}, 896, v{T}\n v_lshl_add_u32 v{vO}, v{T+2}, 4, v{vO}")
    a(f"buffer_load_dwordx4 v[{XR}:{XR+3}], v{vO}, s[{sX}:{sX+3}], s52 offen"); vm.issue("x")
    wmax_scale(a, sWS, 94, 53); vm.issue("x")
    vTR, vFR = 5, 8
    a(f"v_bfe_u32 v{T}, v1, 2, 2\n v_lshrrev_b32 v{T+1}, 5, v1")
    a(f"v_bfe_u32 v{T+2}, v1, 4, 1\n v_bfe_u32 v{T+3}, v1, 1, 1\n v_lshl_add_u32 v{T+2}, v{T+2}, 1, v{T+3}")
    a(f"v_lshrrev_b32 v{T+3}, 1, v{T}\n v_lshlrev_b32 v{T+3}, 2, v{T+3}\n v_xor_b32 v{T+2}, v{T+2}, v{T+3}")
    a(f"v_and_b32 v{T+3}, 1, v1\n v_lshlrev_b32 v{T+3}, 3, v{T+3}\n v_lshl_add_u32 v{T+3}, v{T}, 7, v{T+3}")
    a("s_and_b32 s54, s42, 1\n s_bfe_u32 s55, s42, 0x10001")
    FRG = 20; ACC = 104
    vm_save = list(vm.ops)
    stg = StageStamps(a, 120)
    a("s_cmp_ge_u32 s42, 4\n s_cbranch_scc1 K3_S")
    for path in ("O", "S"):
        vm.ops = list(vm_save)
        if path == "S": a("K3_S:")
        if path == "O":
            a(f"s_lshl_b32 s56, s55, 2\n v_xor_b32 v{T+2}, s56, v{T+2}\n v_lshl_add_u32 v{vTR}, v{T+2}, 4, v{T+3}\n v_lshl_add_u32 v{vTR}, v{T+1}, 9, v{vTR}\n v_add_u32 v{vTR}, 8192, v{vTR}")
            a(f"s_lshl_b32 s56, s54, 12\n v_add_u32 v{vFR}, s56, v{vL}")
            nk = 4
        else:
            a(f"s_lshl_b32 s56, s54, 2\n v_xor_b32 v{T+2}, s56, v{T+2}\n v_lshl_add_u32 v{vTR}, v{T+2}, 4, v{T+3}\n v_lshl_add_u32 v{vTR}, v{T+1}, 10, v{vTR}\n v_add_u32 v{vTR}, 16384, v{vTR}")
            a(f"s_lshl_b32 s56, s55, 10\n s_add_u32 s56, s56, 20480\n v_add_u32 v{vFR}, s56, v{vL}")
            nk = 2
        for b in (vTR, vFR):
            a(f"v_add_u32 v{b+1}, {2*SLOT}, v{b}\n v_add_u32 v{b+2}, {4*SLOT}, v{b}")
        def rd(t, k):
            b = FRG+32*(t & 1); sl = t % NSLOT; win = sl >> 1; so = (sl & 1)*SLOT
            out = []
            for tt in range(2):
                off = k*2048+tt*(1024 if path == "O" else 512)
                out.append(f"ds_read_b64_tr_b16 v[{b+8*k+2*tt}:{b+8*k+2*tt+1}], v{vTR+win} offset:{so+off}")
            out.append(f"ds_read_b128 v[{b+8*k+4}:{b+8*k+7}], v{vFR+win} offset:{so+k*(1024 if path == 'O' else 2048)}")
            return out
        def mf(t, k):
            b = FRG+32*(t & 1)
            cin = "0" if (t == 0 and k == 0) else f"v[{ACC}:{ACC+15}]"
            if path == "O":
                return f"v_mfma_f32_32x32x16_bf16 v[{ACC}:{ACC+15}], v[{b+8*k}:{b+8*k+3}], v[{b+8*k+4}:{b+8*k+7}], {cin}"
            return f"v_mfma_f32_32x32x16_f16 v[{ACC}:{ACC+15}], v[{b+8*k+4}:{b+8*k+7}], v[{b+8*k}:{b+8*k+3}], {cin}"
        stamp(a, 1)
        for t in range(14):
            a(f"s_waitcnt vmcnt({vm.wait(('st', t))})")
            a("s_barrier")
            if t == 0: stamp(a, 2)
            if t == 0: stg.pending = None
            stg(t)
            for k in range(nk):
                if t > 0: a(mf(t-1, k))
                if 2*k < nk:
                    for l in rd(t, 2*k)+rd(t, 2*k+1): a(l)
                if k == nk//2 and t+D < 14: dma(t+D)
            if t == 6 and path == "S":
                wmax_reduce(a, 94, 53, 56)
                a(f"s_lshl_b32 s56, s53, 23\n v_mov_b32 v98, {hex(f32bits(1/28))}\n v_mul_f32 v98, s56, v98\n v_mov_b32 v99, v98")
            a("s_waitcnt lgkmcnt(0)")
        for k in range(nk): a(mf(13, k))
        stamp(a, 3)
        a(f"v_and_b32 v{T}, 31, v1\n s_lshl_b32 s56, s54, 5\n v_add_u32 v{T}, s56, v{T}\n v_mul_u32_u24 v{T}, {EXP}, v{T}")
        a(f"v_lshrrev_b32 v{T+1}, 5, v1\n v_lshl_add_u32 v{T}, v{T+1}, 3, v{T}\n s_lshl_b32 s56, s55, 6\n s_add_u32 s56, s56, {EX+(0 if path == 'O' else 64*EXP)}\n v_add_u32 v{T}, s56, v{T}")
        for j in range(4):
            if path == "S":
                a(f"v_pk_mul_f32 v[{ACC+4*j}:{ACC+4*j+1}], v[{ACC+4*j}:{ACC+4*j+1}], v[98:99]\n v_pk_mul_f32 v[{ACC+4*j+2}:{ACC+4*j+3}], v[{ACC+4*j+2}:{ACC+4*j+3}], v[98:99]")
            a(f"v_cvt_pk_bf16_f32 v{FRG+2*j}, v{ACC+4*j}, v{ACC+4*j+1}\n v_cvt_pk_bf16_f32 v{FRG+2*j+1}, v{ACC+4*j+2}, v{ACC+4*j+3}")
            a(f"ds_write_b64 v{T}, v[{FRG+2*j}:{FRG+2*j+1}] offset:{16*j}")
        if path == "O": a("s_branch K3_J")
    a("K3_J:")
    a("s_waitcnt lgkmcnt(0)\n s_barrier")
    a(f"v_lshrrev_b32 v{T}, 3, v0\n v_and_b32 v{T+1}, 7, v0\n v_mul_u32_u24 v{T}, {EXP}, v{T}\n v_lshl_add_u32 v{T}, v{T+1}, 4, v{T}")
    O_, S_ = 20, 24
    a(f"ds_read_b128 v[{O_}:{O_+3}], v{T} offset:{EX}\n ds_read_b128 v[{S_}:{S_+3}], v{T} offset:{EX+64*EXP}")
    a(f"s_mov_b32 s56, {hex(f32bits(-math.log2(math.e)))}\n s_mov_b32 s57, s56")
    a("s_waitcnt lgkmcnt(0)")
    A_, B_ = 32, 40
    for p in range(4): a(f"v_lshlrev_b32 v{A_+2*p}, 16, v{O_+p}\n v_and_b32 v{A_+2*p+1}, 0xffff0000, v{O_+p}")
    for p in range(4): a(f"v_pk_mul_f32 v[{B_+2*p}:{B_+2*p+1}], v[{A_+2*p}:{A_+2*p+1}], s[56:57]")
    for i in range(8): a(f"v_exp_f32 v{B_+i}, v{B_+i}")
    for p in range(4): a(f"v_pk_add_f32 v[{B_+2*p}:{B_+2*p+1}], v[{B_+2*p}:{B_+2*p+1}], 1.0 op_sel_hi:[1,0]")
    for i in range(8): a(f"v_rcp_f32 v{B_+i}, v{B_+i}")
    for p in range(4): a(f"v_pk_mul_f32 v[{A_+2*p}:{A_+2*p+1}], v[{A_+2*p}:{A_+2*p+1}], v[{B_+2*p}:{B_+2*p+1}]")
    for p in range(4): a(f"v_cvt_pk_bf16_f32 v{O_+p}, v{A_+2*p}, v{A_+2*p+1}")
    for p in range(4): a(f"v_lshlrev_b32 v{A_+2*p}, 16, v{O_+p}\n v_and_b32 v{A_+2*p+1}, 0xffff0000, v{O_+p}")
    for p in range(4): a(f"v_lshlrev_b32 v{B_+2*p}, 16, v{S_+p}\n v_and_b32 v{B_+2*p+1}, 0xffff0000, v{S_+p}")
    for p in range(4): a(f"v_pk_mul_f32 v[{A_+2*p}:{A_+2*p+1}], v[{A_+2*p}:{A_+2*p+1}], v[{B_+2*p}:{B_+2*p+1}]")
    for p in range(4): a(f"v_cvt_pk_bf16_f32 v{O_+p}, v{A_+2*p}, v{A_+2*p+1}")
    for p in range(4): a(f"v_lshlrev_b32 v{A_+2*p}, 16, v{O_+p}\n v_and_b32 v{A_+2*p+1}, 0xffff0000, v{O_+p}")
    for p in range(4): a(f"v_lshlrev_b32 v{B_+2*p}, 16, v{XR+p}\n v_and_b32 v{B_+2*p+1}, 0xffff0000, v{XR+p}")
    for p in range(4): a(f"v_pk_add_f32 v[{A_+2*p}:{A_+2*p+1}], v[{A_+2*p}:{A_+2*p+1}], v[{B_+2*p}:{B_+2*p+1}]")
    for p in range(4): a(f"v_cvt_pk_bf16_f32 v{O_+p}, v{A_+2*p}, v{A_+2*p+1}")
    a(f"buffer_store_dwordx4 v[{O_}:{O_+3}], v{vO}, s[{sOUT}:{sOUT+3}], s52 offen")
    stamp(a, 4)
    if PROF: a("s_waitcnt vmcnt(0)")
    stamp(a, 5)
    stg.flush(2, sWS, 42, 121)
    stamp_flush(a, 2, 6, sWS, 42, vt=110)
    a("K3_END:\n s_endpgm")
    a.raw(kd(name, 128 if PROF else 120, 102 if PROF else 64))

def tables_tt(a):
    j = np.arange(448)
    v = np.cos(2*np.pi*j/448); v[112] = 0; v[336] = 0
    hv = v.astype(np.float16).view(np.uint16)
    L = ['.section .rodata,"a"']
    for i in range(448): L.append(f".set TH{i},{hv[i]}")
    L.append(r""".altmacro
.macro EMT q0_,q1_,q2_,q3_,q4_,q5_,q6_,q7_
.long TH\q0_|(TH\q1_<<16),TH\q2_|(TH\q3_<<16),TH\q4_|(TH\q5_<<16),TH\q6_|(TH\q7_<<16)
.endm
.p2align 8
TAB_TT:
.set ff, 0
.rept 392
.set ll, 0
.rept 64
.set dd, (ff/56)*64+(ff&1)*32+(ll&31)
.set k0, (((ff%56)>>1)*16+(ll>>5)*8)>>1
.set bb, dd*k0
.set b1, bb+112
.if k0==0
.set b1, dd*224
.endif
EMT %(bb%448),%(b1%448),%((bb+dd)%448),%((bb+dd+112)%448),%((bb+2*dd)%448),%((bb+2*dd+112)%448),%((bb+3*dd)%448),%((bb+3*dd+112)%448)
.set ll, ll+1
.endr
.set ff, ff+1
.endr
.noaltmacro""")
    a.raw("\n".join(L))
```

```python
from asmlib import Asm, Vm
from common import *
from k1 import gelu_pairs, red8, halfsum, var_to_rs, C1, C2
from k2 import O_C64R, O_C64I, O_TW1, O_TW2, O_C32, FT_BYTES, wmax_reduce
import math

NAME = "recurrent_scan__spectral_gfnet__mixer_gmlp__prompt_kernel"
S1 = 16384; N1 = 6; XN = N1*S1
S2 = 24576; PERM = [4, 5, 2, 3, 0, 1]
UX = 147456; UXP = 144
SX = 156672
LDS_BYTES = SX+4096
EXP = 144
FL = 0x1310000
FLZ, FLU, FLW, FLH, FLY = FL, FL+0x8000, FL+0x10000, FL+0x18000, FL+0x20000
LD_T, CHK_T = 14, 17
WSP_K1 = 24
SPIN = 0x4000
CODE_BYTES = 40960
D = 5

def gen(a):
    a(f".text\n.globl {NAME}\n.p2align 8\n.type {NAME},@function\n{NAME}:")
    sX, sWIN, sWS, sFT, sDBG, sSP = 4, 8, 12, 16, 20, 24
    sWO, sTT, sOUT, sBS, sC = 8, 16, 64, 68, 72
    stg = StageStamps(a, 246); stg2 = StageStamps(a, 247)
    a("s_cmp_ge_u32 s2, 256\n s_cbranch_scc1 L_END")
    if PROF: a("s_memrealtime s[96:97]")
    stg(0)
    a("s_load_dwordx2 s[76:77], s[0:1], 0")
    a("s_load_dwordx4 s[28:31], s[0:1], 8")
    a("s_load_dwordx4 s[32:35], s[0:1], 32")
    a("s_load_dwordx4 s[36:39], s[0:1], 72")
    a("s_load_dwordx4 s[80:83], s[0:1], 48")
    a("s_load_dwordx2 s[78:79], s[0:1], 64")
    a("s_and_b32 s40, s2, 7\n s_lshr_b32 s41, s2, 3")
    a("v_lshrrev_b32 v2, 6, v0\n v_and_b32 v1, 63, v0")
    a("v_readfirstlane_b32 s42, v2")
    pc_srd(a, sFT, "TAB_FT", 7*14*8*1024)
    vXo, vZ, vF, vW = 2, 3, 4, 5
    vTR = 6; vAA = 12
    XF = 16; BF = 128; ACC = 160; ACC2 = 176; ZP = 192; TMP = 200; VC1 = 226; PS = 228
    vA2, vB2 = 244, 245; VPF = 252; vZERO = 248; vPOLL = 249; vPA = 250
    a("s_and_b32 s62, s40, 3\n s_mul_i32 s43, s62, 28\n s_add_u32 s43, s43, s41\n s_lshr_b32 s44, s43, 4\n s_and_b32 s43, s43, 15")
    a("s_lshr_b32 s45, s40, 2\n s_lshl_b32 s45, s45, 4\n s_add_u32 s43, s43, s45")
    a("s_lshr_b32 s45, s43, 4\n s_lshl_b32 s45, s45, 4")
    a("s_lshr_b32 s46, s42, 2\n s_lshl_b32 s46, s46, 3\n s_add_u32 s45, s45, s46")
    a("s_bfe_u32 s46, s43, 0x10003\n s_lshl_b32 s46, s46, 2\n s_add_u32 s45, s45, s46")
    a("s_and_b32 s46, s42, 3\n s_add_u32 s45, s45, s46")
    a("s_lshl_b32 s45, s45, 6\n s_and_b32 s46, s43, 7\n s_lshl_b32 s46, s46, 3\n s_add_u32 s45, s45, s46")
    a("s_mul_i32 s45, s45, 896")
    a(f"v_lshrrev_b32 v{TMP}, 3, v1\n v_and_b32 v{TMP+1}, 7, v1")
    a(f"v_mul_u32_u24 v{vXo}, 896, v{TMP}\n v_lshl_add_u32 v{vXo}, v{TMP+1}, 4, v{vXo}")
    a(f"v_mov_b32 v{vZERO}, 0\n v_lshlrev_b32 v{vF}, 4, v1")
    a("s_waitcnt lgkmcnt(0)")
    srd(a, sX, 76, 2048*896)
    a("s_cmp_ge_u32 s41, 28\n s_cbranch_scc1 L_AUX0")
    vm = Vm()
    for cc in range(7):
        a(f"buffer_load_dwordx4 v[{BF+4*cc}:{BF+4*cc+3}], v{vXo}, s[{sX}:{sX+3}], s45 offen offset:{128*cc}"); vm.issue("x")
    a("L_AUX0:")
    srd(a, sWIN, 32, 448*3584); srd(a, sWS, 38, WS_BYTES); srd(a, sDBG, 36, 256); srd(a, sSP, 34, 2048*4096)
    srd(a, sOUT, 78, 2048*896); srd(a, sBS, 80, 4096)
    a("s_cmp_ge_u32 s41, 28\n s_cbranch_scc1 L_AUX")

    def get_nonce(lbl):
        a(f"s_mov_b32 s50, 0\n{lbl}:")
        a(f"v_readfirstlane_b32 s63, v{vPOLL}")
        a(f"s_add_u32 s50, s50, 1\n s_cmp_lg_u32 s63, 0\n s_cbranch_scc1 {lbl}_OK")
        a(f"s_cmp_ge_u32 s50, {SPIN}\n s_cbranch_scc1 {lbl}_OK")
        a(f"s_sleep 4\n buffer_load_dword v{vPOLL}, v{vZERO}, s[{sDBG}:{sDBG+3}], 0 offen sc1\n s_waitcnt vmcnt(0)\n s_branch {lbl}")
        a(f"{lbl}_OK:")
    def set_flag(lbl, soff):
        a(f"s_cmp_lg_u32 s42, 0\n s_cbranch_scc1 {lbl}")
        a(f"v_mov_b32 v{vPOLL}, s63\n s_mov_b64 exec, 1")
        a(f"buffer_store_dword v{vPOLL}, v{vZERO}, s[{sWS}:{sWS+3}], s{soff} offen sc1")
        a(f"s_mov_b64 exec, -1\n{lbl}:")
    def poll_issue(lbl, soff, vdst, wide=False):
        a(f"s_cmp_lg_u32 s42, 0\n s_cbranch_scc1 {lbl}")
        if wide: a(f"buffer_load_dwordx4 v[{vdst}:{vdst+3}], v{vF}, s[{sWS}:{sWS+3}], s{soff} offen sc1")
        else: a(f"buffer_load_dword v{vdst}, v{vPA}, s[{sWS}:{sWS+3}], s{soff} offen sc1")
        a(f"{lbl}:")
    def poll_check(lbl, soff, vdst, wide=False, allwaves=False, sleep=2, covered=False):
        if not allwaves: a(f"s_cmp_lg_u32 s42, 0\n s_cbranch_scc1 {lbl}_OK")
        a("s_mov_b32 s50, 0")
        if covered: a(f"s_branch {lbl}_1")
        a(f"{lbl}:\n s_waitcnt vmcnt(0)\n{lbl}_1:")
        a(f"v_cmp_eq_u32 vcc, s63, v{vdst}")
        if wide:
            for i in range(1, 4): a(f"v_cmp_eq_u32 s[30:31], s63, v{vdst+i}\n s_and_b64 vcc, vcc, s[30:31]")
        a(f"s_add_u32 s50, s50, 1\n s_cmp_eq_u64 vcc, exec\n s_cbranch_scc1 {lbl}_OK")
        a(f"s_cmp_ge_u32 s50, {SPIN}\n s_cbranch_scc1 {lbl}_OK")
        a(f"s_sleep {sleep}")
        if wide: a(f"buffer_load_dwordx4 v[{vdst}:{vdst+3}], v{vF}, s[{sWS}:{sWS+3}], s{soff} offen sc1")
        else: a(f"buffer_load_dword v{vdst}, v{vPA}, s[{sWS}:{sWS+3}], s{soff} offen sc1")
        a(f"s_branch {lbl}\n{lbl}_OK:")

    def poll_pipe(lbl, soff, r0, gap=4):
        a(f"s_cmp_lg_u32 s42, 0\n s_cbranch_scc1 {lbl}_OK")
        a("s_mov_b32 s50, 0")
        for i in range(4):
            a(f"buffer_load_dword v{r0+i}, v{vPA}, s[{sWS}:{sWS+3}], s{soff} offen sc1")
            if i < 3: a(f"s_sleep {gap}")
        a(f"{lbl}:")
        for i in range(4):
            a("s_waitcnt vmcnt(3)")
            a(f"v_cmp_eq_u32 vcc, s63, v{r0+i}")
            a(f"s_cmp_eq_u64 vcc, exec\n s_cbranch_scc1 {lbl}_OK")
            a(f"buffer_load_dword v{r0+i}, v{vPA}, s[{sWS}:{sWS+3}], s{soff} offen sc1")
            a(f"s_sleep {gap//2}")
        a(f"s_add_u32 s50, s50, 1\n s_cmp_lt_u32 s50, {SPIN}\n s_cbranch_scc1 {lbl}")
        a(f"{lbl}_OK:")

    a("s_add_u32 s49, s2, s42\n s_cmp_lg_u32 s49, 0\n s_cbranch_scc1 L_NN")
    a("s_memrealtime s[50:51]\n s_waitcnt lgkmcnt(0)\n s_or_b32 s50, s50, 1")
    a(f"v_mov_b32 v{vPOLL}, s50\n s_mov_b64 exec, 1")
    a(f"buffer_store_dword v{vPOLL}, v{vZERO}, s[{sDBG}:{sDBG+3}], 0 offen sc1")
    a("s_mov_b64 exec, -1\nL_NN:")
    vT = TMP+8
    a("s_mul_i32 s46, s62, 28\n s_lshr_b32 s46, s46, 4")
    a("s_mul_i32 s47, s62, 28\n s_add_u32 s47, s47, 27\n s_lshr_b32 s47, s47, 4")
    a("s_lshl_b32 s48, s41, 4\n s_lshl_b32 s49, s42, 1\n s_add_u32 s48, s48, s49\n s_mul_i32 s48, s48, 3584\n s_lshl_b32 s49, s46, 8\n s_add_u32 s48, s48, s49\n s_add_u32 s48, s48, 1792")
    for rr in range(2):
        for ln in range(6):
            a(f"s_buffer_load_dword s28, s[{sWIN}:{sWIN+3}], s48 offset:{rr*3584+ln*128}")
    a(f"v_and_b32 v{vT}, 127, v0\n v_lshrrev_b32 v{vT+1}, 5, v{vT}\n v_add_u32 v{vT+1}, s46, v{vT+1}\n v_cmp_lt_u32 vcc, s47, v{vT+1}\n v_mov_b32 v{vT+5}, 0x8000\n v_cndmask_b32 v{vT+1}, v{vT+1}, v{vT+5}, vcc")
    a(f"s_lshl_b32 s48, s41, 5\n v_and_b32 v{vT+2}, 31, v0\n v_add_u32 v{vT+2}, s48, v{vT+2}")
    a(f"v_lshrrev_b32 v{VPF}, 1, v{vT+2}\n v_mul_u32_u24 v{VPF}, 3584, v{VPF}\n v_lshl_add_u32 v{VPF}, v{vT+1}, 8, v{VPF}\n v_and_b32 v{vT+3}, 1, v{vT+2}\n v_lshl_add_u32 v{VPF}, v{vT+3}, 7, v{VPF}")
    a(f"s_mov_b32 s48, 114688\n v_mul_lo_u32 v{VPF+1}, v{vT+1}, s48\n v_lshl_add_u32 v{VPF+1}, v{vT+2}, 7, v{VPF+1}")
    def touch2():
        a("s_cmp_ge_u32 s42, 2\n s_cbranch_scc1 L_PFB")
        a(f"buffer_load_dword v{VPF+2}, v{VPF}, s[{sWIN}:{sWIN+3}], 0 offen")
        a("s_branch L_PFD\nL_PFB:")
        a("s_cmp_ge_u32 s42, 4\n s_cselect_b32 s49, 0x10000000, 0")
        a(f"buffer_load_dword v{VPF+2}, v{VPF+1}, s[{sFT}:{sFT+3}], s49 offen")
        a("L_PFD:"); vm.issue("pf")
    a("s_barrier")
    a(f"v_lshrrev_b32 v{TMP+2}, 4, v1\n v_and_b32 v{TMP+3}, 15, v1\n v_lshlrev_b32 v{TMP+4}, 2, v{TMP+2}\n v_xor_b32 v{TMP+3}, v{TMP+3}, v{TMP+4}")
    a(f"v_mul_u32_u24 v{vZ}, 3584, v{TMP+2}\n v_lshl_add_u32 v{vZ}, v{TMP+3}, 4, v{vZ}")
    a("s_mul_i32 s46, s42, 14336\n s_lshl_b32 s47, s44, 8\n s_add_u32 s46, s46, s47")
    a(f"s_mul_i32 s47, s44, {14*8192}\n s_lshl_b32 s48, s42, 10\n s_add_u32 s47, s47, s48")
    def dma(t):
        slot = (t % N1)*S1
        if t < 7:
            for u in range(2):
                a(f"s_add_u32 m0, s48, {slot+u*8192}")
                a(f"s_add_u32 s49, s46, {1792+(64*t+32*u)*3584}")
                a(f"buffer_load_dwordx4 v{vZ}, s[{sWIN}:{sWIN+3}], s49 offen lds"); vm.issue(("st", t))
        else:
            s2 = t-7
            a(f"s_add_u32 m0, s48, {slot}")
            a(f"s_add_u32 s49, s46, {32*s2*3584}")
            a(f"buffer_load_dwordx4 v{vZ}, s[{sWIN}:{sWIN+3}], s49 offen lds"); vm.issue(("st", t))
            a(f"s_add_u32 m0, s48, {slot+8192}")
            a(f"s_add_u32 s49, s47, {s2*8192}")
            a(f"buffer_load_dwordx4 v{vF}, s[{sFT}:{sFT+3}], s49 offen lds"); vm.issue(("st", t))
    a(f"s_lshl_b32 s49, s42, 3\n v_add_u32 v{TMP+2}, s49, v{TMP}")
    a(f"v_bfe_u32 v{TMP+3}, v{TMP+2}, 1, 3\n v_xor_b32 v{TMP+3}, v{TMP+3}, v{TMP+1}")
    a(f"v_mul_u32_u24 v{vW}, 896, v{TMP+2}\n v_lshl_add_u32 v{vW}, v{TMP+3}, 4, v{vW}\n v_add_u32 v{vW}, {XN}, v{vW}")
    a("s_and_b32 s84, s40, 3\n s_lshl_b32 s84, s84, 2\n s_and_b32 s85, s41, 3\n s_add_u32 s84, s84, s85")
    a("s_lshr_b32 s85, s40, 2\n s_mul_i32 s85, s85, 7\n s_lshr_b32 s86, s41, 2\n s_add_u32 s85, s85, s86")
    a("s_lshr_b32 s86, s84, 3\n s_lshl_b32 s86, s86, 4\n s_bfe_u32 s87, s84, 0x10002\n s_lshl_b32 s87, s87, 2\n s_add_u32 s86, s86, s87")
    a("s_lshr_b32 s87, s42, 2\n s_lshl_b32 s87, s87, 3\n s_add_u32 s87, s87, s86\n s_and_b32 s88, s42, 3\n s_add_u32 s87, s87, s88")
    a("s_lshl_b32 s87, s87, 6\n s_and_b32 s88, s84, 3\n s_lshl_b32 s88, s88, 4\n s_add_u32 s87, s87, s88\n s_lshl_b32 s87, s87, 12")
    a(f"v_lshrrev_b32 v{TMP+2}, 1, v{TMP}\n s_and_b32 s88, s42, 1\n s_lshl_b32 s88, s88, 2\n v_add_u32 v{TMP+2}, s88, v{TMP+2}\n v_xor_b32 v{TMP+2}, v{TMP+1}, v{TMP+2}")
    a(f"v_lshlrev_b32 v{vA2}, 12, v{TMP}\n v_lshl_add_u32 v{vA2}, v{TMP+2}, 4, v{vA2}")
    a(f"v_lshrrev_b32 v{TMP+2}, 5, v1\n v_bfe_u32 v{TMP+3}, v1, 3, 1\n v_lshl_add_u32 v{TMP+2}, v{TMP+2}, 1, v{TMP+3}\n v_lshlrev_b32 v{vB2}, 10, v{TMP+2}")
    a(f"v_bfe_u32 v{TMP+2}, v1, 2, 1\n v_lshl_add_u32 v{vB2}, v{TMP+2}, 9, v{vB2}\n v_bfe_u32 v{TMP+2}, v1, 4, 1\n v_lshl_add_u32 v{vB2}, v{TMP+2}, 6, v{vB2}")
    a(f"v_and_b32 v{TMP+2}, 3, v1\n v_lshl_add_u32 v{vB2}, v{TMP+2}, 4, v{vB2}")
    a(f"s_lshl_b32 s88, s85, 12\n s_mul_i32 s89, s42, {2*57344}\n s_add_u32 s88, s88, s89\n s_add_u32 s88, s88, {Z2N}")
    def slot2(T): return PERM[T % 6]*S2
    def dmaA(T):
        for u in range(2):
            a(f"s_add_u32 m0, s48, {slot2(T)+u*8192}\n s_add_u32 s49, s87, {T*128+u*8*4096}")
            a(f"buffer_load_dwordx4 v{vA2}, s[{sSP}:{sSP+3}], s49 offen lds"); vm.issue(("g", T))
    def dmaB(T):
        zoff = (2*(8*((T >> 2) & 1)+16*(T >> 4))+((T >> 3) & 1))*57344+(T & 3)*128
        a(f"s_add_u32 m0, s48, {slot2(T)+16384}\n s_add_u32 s49, s88, {zoff}")
        a(f"buffer_load_dwordx4 v{vB2}, s[{sWS}:{sWS+3}], s49 offen sc1 lds"); vm.issue(("g", T))
    a(f"s_and_b32 s49, s42, 1\n s_lshl_b32 s49, s49, 5\n v_and_b32 v{TMP+2}, 31, v1\n v_add_u32 v{TMP+2}, s49, v{TMP+2}")
    a(f"v_bfe_u32 v{TMP+3}, v{TMP+2}, 1, 3\n v_lshrrev_b32 v{TMP+4}, 5, v1\n v_xor_b32 v{TMP+3}, v{TMP+3}, v{TMP+4}")
    a(f"v_mul_u32_u24 v{TMP+2}, 896, v{TMP+2}\n v_add_u32 v{TMP+2}, {XN}, v{TMP+2}")
    for c in range(4):
        a(f"v_xor_b32 v{TMP+4}, {2*c}, v{TMP+3}\n v_lshl_add_u32 v{vAA+c}, v{TMP+4}, 4, v{TMP+2}")
    a(f"v_lshrrev_b32 v{TMP+2}, 5, v1\n v_bfe_u32 v{TMP+3}, v1, 2, 2")
    a(f"v_lshl_add_u32 v{TMP+2}, v{TMP+2}, 3, v{TMP+3}")
    a(f"v_and_b32 v{TMP+6}, 1, v1\n v_lshlrev_b32 v{TMP+6}, 3, v{TMP+6}")
    a(f"v_bfe_u32 v{TMP+4}, v1, 4, 1\n v_bfe_u32 v{TMP+5}, v1, 1, 1\n v_lshl_add_u32 v{TMP+4}, v{TMP+4}, 1, v{TMP+5}")
    a(f"v_lshlrev_b32 v{TMP+5}, 2, v{TMP+3}\n v_xor_b32 v{TMP+5}, v{TMP+4}, v{TMP+5}")
    a("s_lshr_b32 s51, s42, 1\n s_lshl_b32 s51, s51, 2\n s_and_b32 s49, s42, 2\n s_lshl_b32 s49, s49, 2\n s_add_u32 s50, s49, 4")
    for idx, sreg in ((0, 51), (1, 49), (2, 50)):
        a(f"v_xor_b32 v{TMP+7}, s{sreg}, v{TMP+5}\n v_lshl_add_u32 v{vTR+2*idx}, v{TMP+2}, 8, v{TMP+6}\n v_lshl_add_u32 v{vTR+2*idx}, v{TMP+7}, 4, v{vTR+2*idx}\n v_add_u32 v{vTR+2*idx+1}, 0x10000, v{vTR+2*idx}")
    a(f"s_mov_b32 s52, {hex(f32bits(C2))}\n s_mov_b32 s54, 0x3f803f80")
    a(f"v_mov_b32 v{VC1}, {hex(f32bits(C1))}")
    a(f"s_lshl_b32 s55, s43, 1\n s_and_b32 s57, s42, 1\n s_add_u32 s55, s55, s57\n s_mul_i32 s55, s55, 3584\n s_add_u32 s55, s55, {ST}")
    a("s_lshl_b32 s61, s44, 9\n s_add_u32 s61, s61, s55")
    a(f"s_lshl_b32 s56, s57, 10\n s_lshr_b32 s57, s42, 1\n s_lshl_b32 s57, s57, 3\n s_add_u32 s56, s56, s57\n s_add_u32 s56, s56, {SX}")
    a("s_and_b32 s49, s42, 6\n s_cmp_eq_u32 s49, 4\n s_cselect_b32 s55, s55, 0x20000000")
    a("s_lshl_b32 s57, s43, 1\n s_and_b32 s58, s42, 1\n s_add_u32 s57, s57, s58\n s_mul_i32 s57, s57, 56\n s_lshl_b32 s58, s44, 3\n s_add_u32 s57, s57, s58")
    a(f"s_and_b32 s58, s42, 6\n s_add_u32 s58, s58, s57\n s_lshl_b32 s58, s58, 10\n s_add_u32 s58, s58, {Z2N}")
    a(f"s_and_b32 s59, s42, 2\n s_lshl_b32 s59, s59, 1\n s_add_u32 s57, s57, s59\n s_lshl_b32 s57, s57, 10" + (f"\n s_add_u32 s57, s57, {Z1}" if Z1 else ""))
    a(f"s_lshl_b32 s59, s44, 5\n s_add_u32 s59, s59, s43\n s_lshl_b32 s59, s59, 7\n s_add_u32 s60, s59, {FLU}\n s_add_u32 s59, s59, {FLZ}")
    a(f"s_lshr_b32 s89, s85, 1\n s_lshl_b32 s89, s89, 12\n s_add_u32 s90, s89, {FLU}\n s_add_u32 s89, s89, {FLZ}")
    a(f"v_and_b32 v{vPA}, 31, v1\n v_lshlrev_b32 v{vPA}, 7, v{vPA}")
    a(f"s_waitcnt vmcnt({vm.wait('x')})")
    stg(1)
    S = TMP; DV = XF
    a("s_mov_b32 s50, 0x00003f80\n s_mov_b32 s51, 0x3f800000")
    for i in range(4): a(f"v_mov_b32 v{S+i}, 0")
    for i in range(28): a(f"v_dot2_f32_bf16 v{S+(i&3)}, v{BF+i}, s54, v{S+(i&3)}")
    dma(0)
    a(f"v_add_f32 v{S}, v{S}, v{S+1}\n v_add_f32 v{S+2}, v{S+2}, v{S+3}\n v_add_f32 v{S}, v{S}, v{S+2}")
    red8(a, S)
    vM, vMB, vNM = TMP+4, TMP+5, TMP+6
    a(f"v_mul_f32 v{vM}, {hex(f32bits(1/448))}, v{S}")
    a(f"v_cvt_pk_bf16_f32 v{vMB}, 0, v{vM}\n v_sub_f32 v{vNM}, 0, v{vMB}")
    for i in range(4): a(f"v_mov_b32 v{S+i}, 0")
    for i in range(0, 28, 4):
        for u in range(4):
            d = DV+2*(i+u)
            a(f"v_dot2_f32_bf16 v{d}, v{BF+i+u}, s50, v{vNM}\n v_dot2_f32_bf16 v{d+1}, v{BF+i+u}, s51, v{vNM}")
        if i >= 4:
            for u in range(4):
                d = DV+2*(i-4+u); s_ = S+2*(u & 1)
                a(f"v_pk_fma_f32 v[{s_}:{s_+1}], v[{d}:{d+1}], v[{d}:{d+1}], v[{s_}:{s_+1}]")
        if i == 8: dma(1)
        if i == 20: dma(2)
    for u in range(4):
        d = DV+2*(24+u); s_ = S+2*(u & 1)
        a(f"v_pk_fma_f32 v[{s_}:{s_+1}], v[{d}:{d+1}], v[{d}:{d+1}], v[{s_}:{s_+1}]")
    a(f"v_add_f32 v{S}, v{S}, v{S+1}\n v_add_f32 v{S+2}, v{S+2}, v{S+3}\n v_add_f32 v{S}, v{S}, v{S+2}")
    for i in range(16): a(f"v_cvt_pk_bf16_f32 v{DV+i}, 0, v{DV+i}")
    red8(a, S)
    vRS = TMP+6; t = S+2
    a(f"v_sub_f32 v{t}, v{vM}, v{vMB}\n v_mul_f32 v{t}, v{t}, v{t}\n v_mov_b32 v{t+1}, {hex(f32bits(1.0/448))}\n v_fma_f32 v{t}, v{S}, v{t+1}, -v{t}\n v_max_f32 v{t}, 0, v{t}")
    n0 = len(a.lines); var_to_rs(a, t, vRS); a(f"v_mov_b32 v{vRS+1}, v{vRS}"); chain = a.lines[n0:]; del a.lines[n0:]
    for i in range(16, 56):
        a(f"v_cvt_pk_bf16_f32 v{DV+i}, 0, v{DV+i}")
        if chain and i % 3 == 0: a(chain.pop(0))
    for l in chain: a(l)
    dma(3)
    for i in range(0, 28, 4):
        for u in range(4):
            d = DV+2*(i+u); a(f"v_pk_mul_f32 v[{d}:{d+1}], v[{d}:{d+1}], v[{vRS}:{vRS+1}]")
        for u in range(4):
            d = DV+2*(i+u); a(f"v_cvt_pk_bf16_f32 v{BF+i+u}, v{d}, v{d+1}")
        a(f"ds_write_b128 v{vW}, v[{BF+i}:{BF+i+3}] offset:{32*i}")
    stg(2)
    dma(4); touch2()
    a("s_waitcnt lgkmcnt(0)")
    def capture(fn, *args):
        n0 = len(a.lines); fn(*args); out = a.lines[n0:]; del a.lines[n0:]; return out
    def trbase(idx, t):
        slot = (t % N1)*S1
        return (vTR+2*idx+(1 if slot >= 65536 else 0), slot-(65536 if slot >= 65536 else 0))
    def reads1(t):
        b = BF+16*(t & 1); vb, so = trbase(0, t)
        for k in range(4):
            c16 = 4*t+k
            a(f"ds_read_b128 v[{XF+4*c16}:{XF+4*c16+3}], v{vAA+(c16&3)} offset:{(c16>>2)*128}")
            for tt in range(2):
                a(f"ds_read_b64_tr_b16 v[{b+4*k+2*tt}:{b+4*k+2*tt+1}], v{vb} offset:{so+k*4096+tt*1024}")
    def mfma1(t):
        b = BF+16*(t & 1)
        for k in range(4):
            c16 = 4*t+k
            cin = "0" if c16 == 0 else f"v[{ACC}:{ACC+15}]"
            a(f"v_mfma_f32_32x32x16_bf16 v[{ACC}:{ACC+15}], v[{b+4*k}:{b+4*k+3}], v[{XF+4*c16}:{XF+4*c16+3}], {cin}")
    def body(mf, rd, issue, bgq=None, nbg=0):
        n = max(len(mf), 1); h = (len(rd)+1)//2 if n > 1 else len(rd)
        for i in range(n):
            if i < len(mf): a(mf[i])
            if i == 0:
                for l in rd[:h]: a(l)
            if i == 1:
                for l in rd[h:]: a(l)
            if i == min(2, n-1): issue()
            if bgq:
                for _ in range(nbg):
                    if bgq: a(bgq.pop(0))
    for t in range(7):
        a(f"s_waitcnt vmcnt({vm.wait(('st', t))})")
        a("s_barrier")
        stg(3+t)
        if t == 1:
            a(f"buffer_load_dword v{vPOLL}, v{vZERO}, s[{sDBG}:{sDBG+3}], 0 offen sc1"); vm.issue("nonce")
        body(capture(mfma1, t-1) if t > 0 else [], capture(reads1, t), lambda: dma(t+D))
        a("s_waitcnt lgkmcnt(0)")
    mfma1(6)
    get_nonce("L_NON")
    gelu_pairs(a, ACC, ZP, TMP, 52, VC1)
    Sx = ACC
    for p in range(8): a(f"v_lshlrev_b32 v{Sx+2*p}, 16, v{ZP+p}\n v_and_b32 v{Sx+2*p+1}, 0xffff0000, v{ZP+p}")
    for i in range(4): a(f"v_add_f32 v{TMP+i}, v{Sx+i}, v{Sx+4+i}")
    for i in range(4): a(f"v_add_f32 v{TMP+4+i}, v{Sx+8+i}, v{Sx+12+i}")
    for i in range(4): a(f"v_add_f32 v{TMP+i}, v{TMP+i}, v{TMP+4+i}")
    a(f"v_add_f32 v{TMP}, v{TMP}, v{TMP+1}\n v_add_f32 v{TMP+2}, v{TMP+2}, v{TMP+3}\n v_add_f32 v{TMP}, v{TMP}, v{TMP+2}")
    halfsum(a, TMP, TMP+1)
    a(f"v_mul_f32 v{TMP+8}, {hex(f32bits(1/32))}, v{TMP}")
    for i in range(16): a(f"v_sub_f32 v{Sx+i}, v{Sx+i}, v{TMP+8}")
    for i in range(4): a(f"v_mul_f32 v{TMP+i}, v{Sx+i}, v{Sx+i}")
    for i in range(4, 16): a(f"v_fmac_f32 v{TMP+(i&3)}, v{Sx+i}, v{Sx+i}")
    a(f"v_add_f32 v{TMP}, v{TMP}, v{TMP+1}\n v_add_f32 v{TMP+2}, v{TMP+2}, v{TMP+3}\n v_add_f32 v{TMP+9}, v{TMP}, v{TMP+2}")
    halfsum(a, TMP+9, TMP+1)
    a(f"v_and_b32 v{TMP+10}, 31, v1\n v_lshlrev_b32 v{TMP+10}, 5, v{TMP+10}\n v_add_u32 v{TMP+10}, s56, v{TMP+10}")
    a(f"ds_write_b64 v{TMP+10}, v[{TMP+8}:{TMP+9}]")
    a(f"v_and_b32 v{TMP+21}, 31, v1\n v_lshlrev_b32 v{TMP+21}, 4, v{TMP+21}\n v_lshrrev_b32 v{TMP+20}, 5, v1\n v_mul_u32_u24 v{TMP+20}, 1536, v{TMP+20}\n v_add_u32 v{TMP+20}, v{TMP+20}, v{TMP+21}\n v_add_u32 v{TMP+21}, 3072, v{TMP+21}")
    a("s_waitcnt lgkmcnt(0)")
    G = PS; ACC3 = ACC
    def is45(label): a(f"s_and_b32 s49, s42, 6\n s_cmp_lg_u32 s49, 4\n s_cbranch_scc1 {label}")
    def gloads():
        for i in range(4):
            a(f"buffer_load_dwordx4 v[{G+4*i}:{G+4*i+3}], v{TMP+20 if i < 3 else TMP+21}, s[{sWS}:{sWS+3}], s55 offen offset:{(i % 3)*512} sc1")
    def norm_job():
        A0 = TMP; T3 = PS
        a(f"s_and_b32 s29, s42, 1\n s_lshl_b32 s29, s29, 8\n s_add_u32 s29, s29, {SX+2048}\n v_and_b32 v{A0}, 31, v1\n v_lshlrev_b32 v{A0}, 3, v{A0}\n v_add_u32 v{A0}, s29, v{A0}")
        a(f"ds_read_b64 v[{A0+2}:{A0+3}], v{A0}")
        for p in range(8): a(f"v_lshlrev_b32 v{T3+2*p}, 16, v{ZP+p}\n v_and_b32 v{T3+2*p+1}, 0xffff0000, v{ZP+p}")
        a("s_waitcnt lgkmcnt(0)")
        for i in range(16): a(f"v_add_f32 v{T3+i}, v{T3+i}, v{A0+2}")
        for i in range(16): a(f"v_cvt_pk_bf16_f32 v{T3+i}, 0, v{T3+i}")
        for i in range(16): a(f"v_mul_f32 v{T3+i}, v{T3+i}, v{A0+3}")
        for p in range(8): a(f"v_cvt_pk_bf16_f32 v{ZP+p}, v{T3+2*p}, v{T3+2*p+1}")
    a("s_cmp_ge_u32 s42, 4\n s_cbranch_scc1 L_P2Z")
    vm_save = list(vm.ops); vm_end = {}
    pend = stg.pending
    EARLY = {16: [0], 17: [1, 2], 18: [3]}
    for path in ("F", "Z"):
        vm.ops = list(vm_save); stg.pending = pend
        if path == "Z": a("L_P2Z:")
        else:
            a(f"s_lshr_b32 s49, s42, 1\n s_lshl_b32 s49, s49, 12\n v_add_u32 v{vTR+2}, s49, v{vF}\n v_add_u32 v{vTR+3}, 0x10000, v{vTR+2}")
        def reads2(t):
            b = BF+16*(t & 1)
            if path == "F":
                vb, so = trbase(1, t)
                for f in range(4): a(f"ds_read_b128 v[{b+4*f}:{b+4*f+3}], v{vb} offset:{so+8192+f*1024}")
            else:
                for k in range(2):
                    for tile in range(2):
                        vb, so = trbase(1+tile, t)
                        for tt in range(2):
                            f = tile*2+k
                            a(f"ds_read_b64_tr_b16 v[{b+4*f+2*tt}:{b+4*f+2*tt+1}], v{vb} offset:{so+k*4096+tt*1024}")
        def mfma2(t):
            b = BF+16*(t & 1); s2 = t-7
            if path == "F":
                for f in range(4):
                    c16 = 2*s2+(f >> 1)
                    cin = "0" if (s2 == 0 and f == 0) else f"v[{ACC2}:{ACC2+15}]"
                    a(f"v_mfma_f32_32x32x16_bf16 v[{ACC2}:{ACC2+15}], v[{XF+4*c16}:{XF+4*c16+3}], v[{b+4*f}:{b+4*f+3}], {cin}")
            else:
                for k in range(2):
                    for tile in range(2):
                        f = tile*2+k; c16 = 2*s2+k; ac = ACC2 if tile == 0 else ACC3
                        cin = "0" if c16 == 0 else f"v[{ac}:{ac+15}]"
                        a(f"v_mfma_f32_32x32x16_bf16 v[{ac}:{ac+15}], v[{b+4*f}:{b+4*f+3}], v[{XF+4*c16}:{XF+4*c16+3}], {cin}")
        bgq = []
        for t in range(7, 21):
            n = vm.wait(("st", t))
            if t == CHK_T and path == "Z": n = min(n, vm.wait("gl"))
            a(f"s_waitcnt vmcnt({n})")
            if t == CHK_T and path == "Z":
                is45("L_NOCHK")
                a("s_mov_b32 s50, 0\nL_CHK:")
                a(f"v_cmp_eq_u32 vcc, s63, v{G+1}")
                for i in range(1, 8): a(f"v_cmp_eq_u32 s[30:31], s63, v{G+1+2*i}\n s_and_b64 vcc, vcc, s[30:31]")
                a("s_add_u32 s50, s50, 1\n s_cmp_eq_u64 vcc, exec\n s_cbranch_scc1 L_CHKOK")
                a(f"s_cmp_ge_u32 s50, {SPIN}\n s_cbranch_scc1 L_CHKOK")
                a("s_sleep 2"); gloads()
                a("s_waitcnt vmcnt(0)\n s_branch L_CHK\nL_CHKOK:")
                B0 = TMP
                a(f"v_mul_f32 v{B0}, 0.5, v{G+12}\n v_mul_f32 v{B0+1}, 0.5, v{G+14}")
                for i in range(3): a(f"v_add_f32 v{B0}, v{B0}, v{G+4*i}\n v_add_f32 v{B0+1}, v{B0+1}, v{G+4*i+2}")
                halfsum(a, B0, B0+2); halfsum(a, B0+1, B0+2)
                a(f"v_mul_f32 v{B0}, {hex(f32bits(1/7))}, v{B0}")
                a(f"v_sub_f32 v{B0+4}, v{G+12}, v{B0}\n v_mul_f32 v{B0+3}, v{B0+4}, v{B0+4}\n v_mul_f32 v{B0+3}, 0.5, v{B0+3}")
                for i in range(3): a(f"v_sub_f32 v{B0+4}, v{G+4*i}, v{B0}\n v_fmac_f32 v{B0+3}, v{B0+4}, v{B0+4}")
                halfsum(a, B0+3, B0+2)
                a(f"v_mov_b32 v{B0+2}, 0x43000000\n v_fma_f32 v{B0+1}, v{B0+3}, v{B0+2}, v{B0+1}")
                a(f"v_mul_f32 v{B0+1}, {hex(f32bits(1/896))}, v{B0+1}")
                var_to_rs(a, B0+1, B0+5)
                a(f"v_cvt_pk_bf16_f32 v{B0+4}, 0, v{B0}\n v_sub_f32 v{B0+4}, 0, v{B0+4}")
                a(f"s_and_b32 s49, s42, 1\n s_lshl_b32 s49, s49, 8\n s_add_u32 s49, s49, {SX+2048}\n v_and_b32 v{B0+6}, 31, v1\n v_lshlrev_b32 v{B0+6}, 3, v{B0+6}\n v_add_u32 v{B0+6}, s49, v{B0+6}")
                a(f"ds_write_b64 v{B0+6}, v[{B0+4}:{B0+5}]\n s_waitcnt lgkmcnt(0)")
                a("L_NOCHK:")
            a("s_barrier")
            stg(3+t)
            if t == 7 and path == "Z":
                is45("L_NOSIG")
                B0 = TMP
                a(f"v_and_b32 v{B0+10}, 31, v1\n v_lshlrev_b32 v{B0+11}, 5, v{B0+10}\n s_sub_u32 s49, s56, 16\n v_add_u32 v{B0+11}, s49, v{B0+11}")
                a(f"ds_read_b128 v[{B0}:{B0+3}], v{B0+11}\n ds_read_b128 v[{B0+4}:{B0+7}], v{B0+11} offset:16\n s_waitcnt lgkmcnt(0)")
                a(f"v_add_f32 v{B0+8}, v{B0}, v{B0+2}\n v_add_f32 v{B0+9}, v{B0+4}, v{B0+6}\n v_add_f32 v{B0+8}, v{B0+8}, v{B0+9}\n v_mul_f32 v{B0+12}, 0.25, v{B0+8}")
                a(f"v_add_f32 v{B0+14}, v{B0+1}, v{B0+3}\n v_add_f32 v{B0+9}, v{B0+5}, v{B0+7}\n v_add_f32 v{B0+14}, v{B0+14}, v{B0+9}\n v_mov_b32 v{B0+8}, 0")
                for i in range(4): a(f"v_sub_f32 v{B0+9}, v{B0+2*i}, v{B0+12}\n v_fmac_f32 v{B0+8}, v{B0+9}, v{B0+9}")
                a(f"v_mov_b32 v{B0+9}, 0x42000000\n v_fma_f32 v{B0+14}, v{B0+8}, v{B0+9}, v{B0+14}")
                a(f"v_mov_b32 v{B0+13}, s63\n v_mov_b32 v{B0+15}, s63\n v_lshlrev_b32 v{B0+10}, 4, v{B0+10}")
                a(f"buffer_store_dwordx4 v[{B0+12}:{B0+15}], v{B0+10}, s[{sWS}:{sWS+3}], s61 offen sc1")
                a("s_nop 1\nL_NOSIG:")
            if t == LD_T:
                gloads()
                for i in range(4): vm.issue("gl")
            if t == CHK_T: bgq = capture(norm_job)
            def issue():
                if t+D < 21: dma(t+D)
                for T in EARLY.get(t, []): dmaA(T)
            body(capture(mfma2, t-1) if t > 7 else [], capture(reads2, t), issue, bgq, 20)
            if t == CHK_T:
                for l in bgq: a(l)
                del bgq[:]
                for q in range(2):
                    a(f"buffer_store_dwordx4 v[{ZP+4*q}:{ZP+4*q+3}], v{vF}, s[{sWS}:{sWS+3}], s58 offen offset:{q*1024} sc1"); vm.issue("z2n")
            a("s_waitcnt lgkmcnt(0)")
        mfma2(20)
        stg(24)
        if path == "F":
            a(f"v_and_b32 v{TMP}, 31, v1\n s_lshr_b32 s49, s42, 1\n s_lshl_b32 s49, s49, 5\n v_add_u32 v{TMP}, s49, v{TMP}")
            a(f"v_mul_u32_u24 v{TMP}, {UXP}, v{TMP}\n v_lshrrev_b32 v{TMP+1}, 5, v1\n v_lshl_add_u32 v{TMP}, v{TMP+1}, 6, v{TMP}")
            a(f"s_and_b32 s49, s42, 1\n s_lshl_b32 s49, s49, 3\n s_add_u32 s49, s49, {UX}\n v_add_u32 v{TMP}, s49, v{TMP}")
            for r in range(4):
                a(f"v_cvt_pk_f16_f32 v{TMP+2+2*r}, v{ACC2+r}, v{ACC2+4+r}\n v_cvt_pk_f16_f32 v{TMP+3+2*r}, v{ACC2+8+r}, v{ACC2+12+r}")
                a(f"ds_write_b64 v{TMP}, v[{TMP+2+2*r}:{TMP+3+2*r}] offset:{16*r}")
            a("s_mov_b32 s49, 0x20000000")
            for i in range(4):
                a(f"buffer_store_dword v{vZERO}, v{vZERO}, s[{sWS}:{sWS+3}], s49 offen"); vm.issue("fin")
            a("s_branch L_J1")
        else:
            for tile, ac in enumerate((ACC2, ACC3)):
                for p in range(8): a(f"v_cvt_pk_bf16_f32 v{BF+8*tile+p}, v{ac+2*p}, v{ac+2*p+1}")
                for q in range(2):
                    a(f"buffer_store_dwordx4 v[{BF+8*tile+4*q}:{BF+8*tile+4*q+3}], v{vF}, s[{sWS}:{sWS+3}], s57 offen offset:{(2*tile+q)*1024} sc1"); vm.issue("fin")
        vm_end[path] = list(vm.ops)
    assert vm_end["F"] == vm_end["Z"]
    a("L_J1:")
    a(f"s_waitcnt vmcnt({vm.wait('z2n')}) lgkmcnt(0)\n s_barrier")
    set_flag("L_FZ", 59)
    a(f"v_lshrrev_b32 v{TMP+2}, 3, v0\n v_and_b32 v{TMP+3}, 7, v0")
    a(f"v_mul_u32_u24 v{TMP+4}, {UXP}, v{TMP+2}\n v_lshl_add_u32 v{TMP+4}, v{TMP+3}, 4, v{TMP+4}\n v_add_u32 v{TMP+4}, {UX}, v{TMP+4}")
    a(f"ds_read_b128 v[{TMP+8}:{TMP+11}], v{TMP+4}")
    a(f"v_lshlrev_b32 v{TMP+2}, 12, v{TMP+2}\n v_lshl_add_u32 v{TMP+2}, v{TMP+3}, 4, v{TMP+2}")
    a(f"s_lshl_b32 s49, s44, 18\n s_lshl_b32 s50, s43, 7\n s_add_u32 s49, s49, s50\n s_add_u32 s49, s49, {U}")
    a("s_waitcnt lgkmcnt(0)")
    a(f"buffer_store_dwordx4 v[{TMP+8}:{TMP+11}], v{TMP+2}, s[{sWS}:{sWS+3}], s49 offen sc1"); vm.issue("fin")
    dmaA(4)
    T = 100; ZR = 88; BS = 96; FR = 20; AC = 104; Z1F = 124; GT = 140
    vTR2 = 5; vWA = 8
    a("s_lshr_b32 s43, s42, 1\n s_and_b32 s44, s42, 1")
    a("s_lshl_b32 s45, s84, 2\n s_add_u32 s45, s45, s43\n s_mul_i32 s45, s45, 56\n s_lshl_b32 s46, s85, 2\n s_add_u32 s45, s45, s46\n s_lshl_b32 s46, s44, 1\n s_add_u32 s45, s45, s46\n s_lshl_b32 s45, s45, 10")
    a(f"v_lshrrev_b32 v{T}, 5, v1\n v_lshlrev_b32 v{T}, 10, v{T}\n v_bfe_u32 v{T+1}, v1, 4, 1\n v_lshl_add_u32 v{T}, v{T+1}, 7, v{T}")
    a(f"v_and_b32 v{T+1}, 1, v1\n v_lshl_add_u32 v{T}, v{T+1}, 6, v{T}\n v_bfe_u32 v{T+1}, v1, 2, 2\n v_lshl_add_u32 v{T}, v{T+1}, 4, v{T}")
    a(f"v_bfe_u32 v{T+1}, v1, 1, 1\n v_lshl_add_u32 v{T}, v{T+1}, 3, v{T}\n s_lshl_b32 s46, s44, 9\n v_add_u32 v{vTR2}, s46, v{T}")
    a(f"v_add_u32 v{vTR2+1}, {2*S2}, v{vTR2}\n v_add_u32 v{vTR2+2}, {4*S2}, v{vTR2}")
    a(f"v_and_b32 v{T}, 31, v1\n s_lshl_b32 s46, s43, 5\n v_add_u32 v{T}, s46, v{T}")
    a(f"v_bfe_u32 v{T+1}, v{T}, 1, 3\n v_lshrrev_b32 v{T+2}, 5, v1\n v_xor_b32 v{T+1}, v{T+1}, v{T+2}\n v_lshlrev_b32 v{T}, 7, v{T}")
    for k in range(4):
        a(f"v_xor_b32 v{T+2}, {2*k}, v{T+1}\n v_lshl_add_u32 v{vWA+k}, v{T+2}, 4, v{T}")
        a(f"v_add_u32 v{vWA+4+k}, {2*S2}, v{vWA+k}\n v_add_u32 v{vWA+8+k}, {4*S2}, v{vWA+k}")
    vB3, vY3, vO3, XR = 150, 151, 152, 156
    srd(a, sWO, 82, 896*896)
    pc_srd(a, sTT, "TAB_TT", 7*56*1024)
    a("s_lshl_b32 s51, s40, 2\n s_and_b32 s52, s41, 3\n s_add_u32 s51, s51, s52\n s_lshr_b32 s52, s41, 2")
    a("s_lshr_b32 s53, s51, 4\n s_lshl_b32 s53, s53, 4\n s_bfe_u32 s54, s51, 0x10003\n s_lshl_b32 s54, s54, 2\n s_add_u32 s53, s53, s54")
    a(f"v_lshrrev_b32 v{T}, 3, v1\n v_and_b32 v{T+1}, 7, v1\n v_bfe_u32 v{T+2}, v1, 4, 1\n v_lshlrev_b32 v{T+2}, 2, v{T+2}\n v_xor_b32 v{T+2}, v{T+1}, v{T+2}")
    a(f"v_mul_u32_u24 v{vB3}, 896, v{T}\n v_lshl_add_u32 v{vO3}, v{T+1}, 4, v{vB3}\n v_lshl_add_u32 v{vB3}, v{T+2}, 4, v{vB3}")
    a(f"v_lshrrev_b32 v{T+1}, 2, v{T+2}\n v_and_b32 v{T+3}, 3, v{T+2}\n v_lshl_add_u32 v{T+1}, v{T+1}, 3, v{T+3}\n v_lshlrev_b32 v{vY3}, 12, v{T}\n v_lshl_add_u32 v{vY3}, v{T+1}, 4, v{vY3}")
    a(f"s_lshl_b32 s54, s51, 1\n s_lshr_b32 s55, s42, 2\n s_add_u32 s54, s54, s55\n s_mul_i32 s54, s54, 56\n s_and_b32 s55, s42, 3\n s_add_u32 s54, s54, s55\n s_lshl_b32 s54, s54, 10\n s_add_u32 s54, s54, {H}")
    a("s_mul_i32 s55, s42, 7168\n s_lshl_b32 s56, s52, 7\n s_add_u32 s55, s55, s56")
    a(f"s_lshl_b32 s56, s42, 15\n s_and_b32 s57, s51, 7\n s_lshl_b32 s57, s57, 9\n s_add_u32 s56, s56, s57\n s_lshl_b32 s57, s53, 4\n s_add_u32 s56, s56, s57\n s_add_u32 s56, s56, {YT}")
    a("s_mul_i32 s57, s52, 56\n s_add_u32 s57, s57, s42\n s_lshl_b32 s57, s57, 10")
    a("s_lshr_b32 s58, s42, 2\n s_lshl_b32 s58, s58, 3\n s_add_u32 s58, s58, s53\n s_and_b32 s59, s42, 3\n s_add_u32 s58, s58, s59\n s_lshl_b32 s58, s58, 6")
    a("s_and_b32 s59, s51, 7\n s_lshl_b32 s59, s59, 3\n s_add_u32 s58, s58, s59\n s_mul_i32 s58, s58, 896\n s_lshl_b32 s59, s52, 7\n s_add_u32 s58, s58, s59")
    a(f"s_lshl_b32 s59, s84, 11\n s_lshl_b32 s61, s85, 7\n s_add_u32 s59, s59, s61\n s_add_u32 s59, s59, {FLH}")
    a(f"s_lshr_b32 s61, s51, 1\n s_lshl_b32 s61, s61, 11\n s_add_u32 s61, s61, {FLH}\n s_mov_b32 s62, {FLY}")
    def dmaI(Tg):
        if Tg < 32: dmaA(Tg)
        elif Tg < 39:
            a(f"s_add_u32 m0, s48, {slot2(Tg)+8192}\n s_add_u32 s49, s57, {(Tg-32)*8192}")
            a(f"buffer_load_dwordx4 v{vF}, s[{sTT}:{sTT+3}], s49 offen lds"); vm.issue(("g", Tg))
        elif Tg < 53:
            a(f"s_add_u32 m0, s48, {slot2(Tg)+8192}\n s_add_u32 s49, s55, {64*(Tg-39)*896}")
            a(f"buffer_load_dwordx4 v{vB3}, s[{sWO}:{sWO+3}], s49 offen lds"); vm.issue(("g", Tg))
    def dmaD(Tg):
        if Tg < 32: dmaB(Tg)
        elif Tg < 39:
            a(f"s_add_u32 m0, s48, {slot2(Tg)}\n s_add_u32 s49, s56, {(Tg-32)*64*4096}")
            a(f"buffer_load_dwordx4 v{vY3}, s[{sWS}:{sWS+3}], s49 offen sc1 lds"); vm.issue(("g", Tg))
        elif Tg < 53:
            a(f"s_add_u32 m0, s48, {slot2(Tg)}\n s_add_u32 s49, s54, {4*(Tg-39)*1024}")
            a(f"buffer_load_dwordx4 v{vF}, s[{sWS}:{sWS+3}], s49 offen sc1 lds"); vm.issue(("g", Tg))
    a(f"s_waitcnt vmcnt({vm.wait('fin')})\n s_barrier")
    set_flag("L_FU", 60)
    poll_pipe("L_CZ", 89, 240)
    a("s_barrier")
    stg(25)
    for Tg in range(D): dmaB(Tg)
    def win(Tg): sl = PERM[Tg % 6]; return sl >> 1, (sl & 1)*S2
    def rd2(Tg, k):
        b = FR+32*(Tg & 1); w_, so = win(Tg)
        return [f"ds_read_b64_tr_b16 v[{b+8*k+2*tt}:{b+8*k+2*tt+1}], v{vTR2+w_} offset:{so+16384+2048*k+256*tt}" for tt in range(2)] + \
               [f"ds_read_b128 v[{b+8*k+4}:{b+8*k+7}], v{vWA+4*w_+k} offset:{so}"]
    def mf2(Tg):
        b = FR+32*(Tg & 1)
        return [f"v_mfma_f32_32x32x16_bf16 v[{AC}:{AC+15}], v[{b+8*k}:{b+8*k+3}], v[{b+8*k+4}:{b+8*k+7}], " + ("0" if (Tg == 0 and k == 0) else f"v[{AC}:{AC+15}]") for k in range(4)]
    def late_loads():
        a(f"s_add_u32 s49, s45, {Z1}" if Z1 else "s_mov_b32 s49, s45")
        for q in range(2):
            a(f"buffer_load_dwordx4 v[{ZR+4*q}:{ZR+4*q+3}], v{vF}, s[{sWS}:{sWS+3}], s49 offen offset:{q*1024} sc1"); vm.issue("z1")
        a("s_and_b32 s46, s43, 1\n s_lshl_b32 s46, s46, 3\n s_add_u32 s46, s46, s86\n s_lshl_b32 s46, s46, 6")
        a("s_and_b32 s47, s84, 3\n s_lshl_b32 s47, s47, 1\n s_lshr_b32 s49, s43, 1\n s_add_u32 s47, s47, s49\n s_lshl_b32 s47, s47, 3\n s_add_u32 s46, s46, s47\n s_lshl_b32 s46, s46, 1")
        a(f"v_bfe_u32 v{T}, v1, 3, 2\n v_and_b32 v{T+1}, 7, v1\n v_lshlrev_b32 v{T}, 7, v{T}\n v_lshl_add_u32 v{T}, v{T+1}, 1, v{T}")
        a(f"buffer_load_ushort v{BS}, v{T}, s[{sBS}:{sBS+3}], s46 offen"); vm.issue("z1")
        a(f"buffer_load_dwordx4 v[{XR}:{XR+3}], v{vO3}, s[{sX}:{sX+3}], s58 offen"); vm.issue("z1")
    n0 = len(a.lines)
    a(f"s_mov_b32 s47, {hex(f32bits(C2))}\n v_mov_b32 v{GT+8}, {hex(f32bits(C1))}")
    for q in range(0, 16, 4):
        R = [Z1F+q+i for i in range(4)]; Tt = [GT+i for i in range(4)]
        for i in range(2): a(f"v_lshlrev_b32 v{R[2*i]}, 16, v{ZR+q//2+i}\n v_and_b32 v{R[2*i+1]}, 0xffff0000, v{ZR+q//2+i}")
        for i in range(4): a(f"v_mul_f32 v{Tt[i]}, v{R[i]}, v{R[i]}")
        for i in range(4): a(f"v_fma_f32 v{Tt[i]}, v{Tt[i]}, s47, v{GT+8}")
        for i in range(4): a(f"v_mul_f32 v{Tt[i]}, v{Tt[i]}, v{R[i]}")
        for i in range(4): a(f"v_exp_f32 v{Tt[i]}, v{Tt[i]}")
        for i in range(4): a(f"v_add_f32 v{Tt[i]}, 1.0, v{Tt[i]}")
        for i in range(4): a(f"v_rcp_f32 v{Tt[i]}, v{Tt[i]}")
        for i in range(4): a(f"v_mul_f32 v{Tt[i]}, v{Tt[i]}, v{R[i]}")
        for i in range(4): a(f"v_cvt_pk_bf16_f32 v{R[i]}, 0, v{Tt[i]}")
    a(f"v_lshlrev_b32 v{BS}, 16, v{BS}")
    gl = a.lines[n0:]; del a.lines[n0:]
    PY = 160
    WM = 164
    U_T, Y_T = 7, 27
    for Tg in range(32):
        n = vm.wait(("g", Tg))
        a(f"s_waitcnt vmcnt({n})")
        if Tg == U_T: poll_check("L_CU", 90, vPOLL, covered=True)
        if Tg == Y_T: poll_check("L_CY", 62, PY, covered=True)
        a("s_barrier")
        stg(26+Tg)
        def issue():
            if Tg == U_T-D: poll_issue("L_PU", 90, vPOLL)
            if Tg == Y_T-D: poll_issue("L_PY", 62, PY)
            if Tg == U_T: late_loads()
            if Tg == Y_T:
                a(f"s_mov_b32 s49, {WMAX}")
                a(f"buffer_load_dwordx4 v[{WM}:{WM+3}], v{vF}, s[{sWS}:{sWS+3}], s49 offen sc1"); vm.issue("wm")
            dmaI(Tg+D); dmaD(Tg+D)
        rd = rd2(Tg, 0)+rd2(Tg, 1)+rd2(Tg, 2)+rd2(Tg, 3)
        body(mf2(Tg-1) if Tg > 0 else [], rd, issue, gl if Tg >= U_T+6 else None, 3)
        a("s_waitcnt lgkmcnt(0)")
    assert not gl
    vTR3, vFR3 = 168, 171; FG = 176; AC3 = 208
    a(f"v_bfe_u32 v{T}, v1, 2, 2\n v_lshrrev_b32 v{T+1}, 5, v1")
    a(f"v_bfe_u32 v{T+2}, v1, 4, 1\n v_bfe_u32 v{T+3}, v1, 1, 1\n v_lshl_add_u32 v{T+2}, v{T+2}, 1, v{T+3}")
    a(f"v_lshrrev_b32 v{T+3}, 1, v{T}\n v_lshlrev_b32 v{T+3}, 2, v{T+3}\n v_xor_b32 v{T+2}, v{T+2}, v{T+3}")
    a(f"v_and_b32 v{T+3}, 1, v1\n v_lshlrev_b32 v{T+3}, 3, v{T+3}\n v_lshl_add_u32 v{T+3}, v{T}, 7, v{T+3}")
    a("s_and_b32 s46, s42, 1\n s_bfe_u32 s47, s42, 0x10001")
    a(f"v_and_b32 v{vPA}, 15, v1\n v_min_u32 v{vPA}, 13, v{vPA}\n v_lshlrev_b32 v{vPA}, 7, v{vPA}")
    stg2.pending = None
    a("s_cmp_ge_u32 s42, 4\n s_cbranch_scc1 L_S")
    vm_save = list(vm.ops)
    HF_T, HP_T, HC_T = 35, 37, 38
    EX = slot2(49)
    for path in ("O", "S"):
        vm.ops = list(vm_save); stg2.pending = None
        if path == "S": a("L_S:")
        if path == "O":
            a(f"s_lshl_b32 s49, s47, 2\n v_xor_b32 v{T+2}, s49, v{T+2}\n v_lshl_add_u32 v{vTR3}, v{T+2}, 4, v{T+3}\n v_lshl_add_u32 v{vTR3}, v{T+1}, 9, v{vTR3}\n v_add_u32 v{vTR3}, 8192, v{vTR3}")
            a(f"s_lshl_b32 s49, s46, 12\n v_add_u32 v{vFR3}, s49, v{vF}")
        else:
            a(f"s_lshl_b32 s49, s46, 2\n v_xor_b32 v{T+2}, s49, v{T+2}\n v_lshl_add_u32 v{vTR3}, v{T+2}, 4, v{T+3}\n v_lshl_add_u32 v{vTR3}, v{T+1}, 10, v{vTR3}")
            a(f"s_lshl_b32 s49, s47, 10\n s_add_u32 s49, s49, 8192\n v_add_u32 v{vFR3}, s49, v{vF}")
        for b in (vTR3, vFR3): a(f"v_add_u32 v{b+1}, {2*S2}, v{b}\n v_add_u32 v{b+2}, {4*S2}, v{b}")
        mine = (lambda Tg: 39 <= Tg < 53) if path == "O" else (lambda Tg: 32 <= Tg < 39)
        first = 39 if path == "O" else 32
        def fb(Tg): return (FR if (Tg & 1) == 0 else FG) if False else (FG if (Tg & 1) else FR)
        def rd3(Tg):
            if not mine(Tg): return []
            b = fb(Tg); w_, so = win(Tg); out = []
            for k in range(4):
                for tt in range(2):
                    off = k*2048+tt*(1024 if path == "O" else 512)
                    out.append(f"ds_read_b64_tr_b16 v[{b+8*k+2*tt}:{b+8*k+2*tt+1}], v{vTR3+w_} offset:{so+off}")
                out.append(f"ds_read_b128 v[{b+8*k+4}:{b+8*k+7}], v{vFR3+w_} offset:{so+k*(1024 if path == 'O' else 2048)}")
            return out
        def mf3(Tg):
            if not mine(Tg): return []
            b = fb(Tg); out = []
            for k in range(4):
                cin = "0" if (Tg == first and k == 0) else f"v[{AC3}:{AC3+15}]"
                if path == "O": out.append(f"v_mfma_f32_32x32x16_bf16 v[{AC3}:{AC3+15}], v[{b+8*k}:{b+8*k+3}], v[{b+8*k+4}:{b+8*k+7}], {cin}")
                else: out.append(f"v_mfma_f32_32x32x16_f16 v[{AC3}:{AC3+15}], v[{b+8*k+4}:{b+8*k+7}], v[{b+8*k}:{b+8*k+3}], {cin}")
            return out
        def ex_write():
            a(f"v_and_b32 v{T}, 31, v1\n s_lshl_b32 s49, s46, 5\n v_add_u32 v{T}, s49, v{T}\n v_mul_u32_u24 v{T}, {EXP}, v{T}")
            a(f"v_lshrrev_b32 v{T+1}, 5, v1\n v_lshl_add_u32 v{T}, v{T+1}, 3, v{T}\n s_lshl_b32 s49, s47, 6\n s_add_u32 s49, s49, {EX+(0 if path == 'O' else 64*EXP)}\n v_add_u32 v{T}, s49, v{T}")
            for j in range(4):
                if path == "S":
                    for i in range(4): a(f"v_mul_f32 v{AC3+4*j+i}, v{AC3+4*j+i}, v174")
                a(f"v_cvt_pk_bf16_f32 v{ZR+2*j}, v{AC3+4*j}, v{AC3+4*j+1}\n v_cvt_pk_bf16_f32 v{ZR+2*j+1}, v{AC3+4*j+2}, v{AC3+4*j+3}")
                a(f"ds_write_b64 v{T}, v[{ZR+2*j}:{ZR+2*j+1}] offset:{16*j}")
        for Tg in range(32, 53):
            n = vm.wait(("g", Tg))
            if Tg == HF_T: n = min(n, vm.wait("h"))
            a(f"s_waitcnt vmcnt({n})")
            if Tg == HC_T and path == "O": poll_pipe("L_CH", 61, 240)
            a("s_barrier")
            stg2(Tg-32)
            if Tg == HF_T and path == "O": set_flag("L_FH", 59)
            def issue():
                dmaI(Tg+D)
                if Tg+D < 39 or Tg > HC_T: dmaD(Tg+D)
                if Tg == HC_T:
                    for X in range(39, HC_T+D+1): dmaD(X)
            body(mf2(31) if Tg == 32 else mf3(Tg-1), rd3(Tg), issue)
            if Tg == 32:
                E = FR+32
                for i in range(16): a(f"v_cvt_pk_bf16_f32 v{E+i}, 0, v{AC+i}")
                for i in range(16): a(f"v_add_f32 v{E+i}, v{E+i}, v{BS}")
                for i in range(16): a(f"v_cvt_pk_bf16_f32 v{E+i}, 0, v{E+i}")
                for i in range(16): a(f"v_mul_f32 v{E+i}, v{E+i}, v{Z1F+i}")
                for p in range(8): a(f"v_cvt_pk_bf16_f32 v{E+16+p}, v{E+2*p}, v{E+2*p+1}")
                a(f"s_add_u32 s49, s45, {H}")
                for q in range(2):
                    a(f"buffer_store_dwordx4 v[{E+16+4*q}:{E+19+4*q}], v{vF}, s[{sWS}:{sWS+3}], s49 offen offset:{q*1024} sc1"); vm.issue("h")
            if Tg == 36 and path == "S":
                wmax_reduce(a, WM, 28, 29)
                a(f"s_lshl_b32 s28, s28, 23\n v_mov_b32 v174, {hex(f32bits(1/28))}\n v_mul_f32 v174, s28, v174")
            if Tg == 51 and path == "S": ex_write()
            a("s_waitcnt lgkmcnt(0)")
        if path == "O":
            for l in mf3(52): a(l)
            ex_write()
            a("s_branch L_J3")
    a("L_J3:")
    stg2(21)
    a("s_waitcnt lgkmcnt(0)\n s_barrier")
    a(f"v_lshrrev_b32 v{T}, 3, v0\n v_and_b32 v{T+1}, 7, v0\n v_mul_u32_u24 v{T}, {EXP}, v{T}\n v_lshl_add_u32 v{T}, v{T+1}, 4, v{T}\n v_add_u32 v{T}, {EX}, v{T}")
    O_, S_ = 20, 24; A_, B_ = 32, 40
    a(f"ds_read_b128 v[{O_}:{O_+3}], v{T}\n ds_read_b128 v[{S_}:{S_+3}], v{T} offset:{64*EXP}")
    a(f"s_mov_b32 s46, {hex(f32bits(-math.log2(math.e)))}\n s_mov_b32 s47, s46")
    a("s_waitcnt lgkmcnt(0)")
    for p in range(4): a(f"v_lshlrev_b32 v{A_+2*p}, 16, v{O_+p}\n v_and_b32 v{A_+2*p+1}, 0xffff0000, v{O_+p}")
    for p in range(4): a(f"v_pk_mul_f32 v[{B_+2*p}:{B_+2*p+1}], v[{A_+2*p}:{A_+2*p+1}], s[46:47]")
    for i in range(8): a(f"v_exp_f32 v{B_+i}, v{B_+i}")
    for p in range(4): a(f"v_pk_add_f32 v[{B_+2*p}:{B_+2*p+1}], v[{B_+2*p}:{B_+2*p+1}], 1.0 op_sel_hi:[1,0]")
    for i in range(8): a(f"v_rcp_f32 v{B_+i}, v{B_+i}")
    for p in range(4): a(f"v_pk_mul_f32 v[{A_+2*p}:{A_+2*p+1}], v[{A_+2*p}:{A_+2*p+1}], v[{B_+2*p}:{B_+2*p+1}]")
    for i in range(8): a(f"v_cvt_pk_bf16_f32 v{A_+i}, 0, v{A_+i}")
    for p in range(4): a(f"v_lshlrev_b32 v{B_+2*p}, 16, v{S_+p}\n v_and_b32 v{B_+2*p+1}, 0xffff0000, v{S_+p}")
    for p in range(4): a(f"v_pk_mul_f32 v[{A_+2*p}:{A_+2*p+1}], v[{A_+2*p}:{A_+2*p+1}], v[{B_+2*p}:{B_+2*p+1}]")
    for i in range(8): a(f"v_cvt_pk_bf16_f32 v{A_+i}, 0, v{A_+i}")
    for p in range(4): a(f"v_lshlrev_b32 v{B_+2*p}, 16, v{XR+p}\n v_and_b32 v{B_+2*p+1}, 0xffff0000, v{XR+p}")
    for p in range(4): a(f"v_pk_add_f32 v[{A_+2*p}:{A_+2*p+1}], v[{A_+2*p}:{A_+2*p+1}], v[{B_+2*p}:{B_+2*p+1}]")
    for p in range(4): a(f"v_cvt_pk_bf16_f32 v{O_+p}, v{A_+2*p}, v{A_+2*p+1}")
    a(f"buffer_store_dwordx4 v[{O_}:{O_+3}], v{vO3}, s[{sOUT}:{sOUT+3}], s58 offen")
    def prof_end():
        if not PROF: return
        stg2(22); a("s_waitcnt vmcnt(0)"); stg2(23)
        a("s_memrealtime s[94:95]\n s_waitcnt lgkmcnt(0)")
        a("v_writelane_b32 v247, s100, 23\n v_writelane_b32 v247, s96, 62\n v_writelane_b32 v247, s94, 63")
        a(f"s_lshl_b32 s98, s2, 3\n s_add_u32 s98, s98, s42\n s_lshl_b32 s98, s98, 9\n s_add_u32 s98, s98, {TS}")
        a(f"v_lshlrev_b32 v251, 2, v1\n buffer_store_dword v246, v251, s[{sWS}:{sWS+3}], s98 offen\n buffer_store_dword v247, v251, s[{sWS}:{sWS+3}], s98 offen offset:256")
    prof_end()
    a("s_endpgm")
    gen_aux(a, locals())
    a("L_END:\n s_endpgm")
    a.raw(kd(NAME, 256, 102))

def gen_aux(a, L):
    sWS, sDBG, sSP, sBS = L["sWS"], L["sDBG"], L["sSP"], L["sBS"]
    vZERO, vPOLL, vPA, vF = L["vZERO"], L["vPOLL"], L["vPA"], L["vF"]
    stg, stg2 = L["stg"], L["stg2"]
    get_nonce, poll_check = L["get_nonce"], L["poll_check"]
    a("L_AUX:")
    stg.pending = 0; stg2.pending = None
    sWR, sWI, sTB = 4, 8, 16
    srd(a, sWR, 28, 2048*450); srd(a, sWI, 30, 2048*450)
    pc_srd(a, sTB, "TAB_FFT", FT_BYTES)
    a("s_sub_u32 s41, s41, 28")
    a("s_lshl_b32 s43, s41, 3\n s_add_u32 s43, s43, s40")
    a("s_cmp_lg_u32 s41, 0\n s_cbranch_scc1 L_NOCODE")
    pc_srd(a, 44, NAME, "L_END-"+NAME)
    a("v_lshlrev_b32 v5, 7, v0\n buffer_load_dword v254, v5, s[44:47], 0 offen")
    a("L_NOCODE:")
    a("s_lshr_b32 s44, s43, 1\n s_lshl_b32 s44, s44, 2\n s_and_b32 s45, s42, 3\n s_add_u32 s44, s44, s45\n s_lshl_b32 s44, s44, 5")
    a("s_and_b32 s45, s43, 1\n s_lshl_b32 s45, s45, 4\n s_add_u32 s44, s44, s45\n s_mul_i32 s44, s44, 450")
    WL = 65536
    a(f"s_lshl_b32 s46, s42, 13\n s_add_u32 s46, s46, {WL}")
    a("s_cmp_ge_u32 s42, 4\n s_cbranch_scc1 L_AUXI")
    for arr, sr in (("R", sWR), ("I", sWI)):
        if arr == "I": a("L_AUXI:")
        for i in range(8):
            a(f"s_add_u32 m0, s46, {i*1024}\n s_add_u32 s47, s44, {i*1024}")
            a(f"buffer_load_dwordx4 v{vF}, s[{sr}:{sr+3}], s47 offen lds")
        if arr == "R": a("s_branch L_AUXJ")
    a("L_AUXJ:")
    a("s_mul_i32 s45, s42, 7168")
    for i in range(7):
        a(f"s_add_u32 m0, s45, {i*1024}\n s_add_u32 s46, s45, {i*1024}")
        a(f"buffer_load_dwordx4 v{vF}, s[{sTB}:{sTB+3}], s46 offen lds")
    a(f"buffer_load_dword v{vPOLL}, v{vZERO}, s[{sDBG}:{sDBG+3}], 0 offen sc1")
    a("v_and_b32 v5, 63, v0\n v_lshlrev_b32 v5, 12, v5\n v_lshrrev_b32 v6, 6, v0\n v_lshl_add_u32 v5, v6, 7, v5\n s_lshl_b32 s47, s43, 18")
    a(f"buffer_load_dword v252, v5, s[{sSP}:{sSP+3}], s47 offen")
    a("s_waitcnt vmcnt(1)\n s_barrier")
    stg(1)
    a("v_and_b32 v6, 15, v0\n v_lshrrev_b32 v7, 4, v0")
    a(f"v_mul_u32_u24 v8, 450, v6\n v_lshl_add_u32 v8, v7, 1, v8\n v_add_u32 v8, {WL}, v8")
    a("v_lshlrev_b32 v9, 13, v7\n v_lshl_add_u32 v9, v6, 4, v9")
    a(f"s_lshl_b32 s48, s43, 8\n s_add_u32 s48, s48, {WP}")
    a("v_mov_b32 v10, 0")
    for it in range(8):
        d = 16+4*it
        for r in range(4):
            a(f"ds_read_u16 v{d+r}, v8 offset:{r*8192+64*it}")
            a(f"ds_read_u16 v{d+r+96}, v8 offset:{(4+r)*8192+64*it}")
    get_nonce("L_ANON")
    a("s_waitcnt lgkmcnt(0)")
    for it in range(8):
        d = 16+4*it
        for r in range(4): a(f"v_lshl_or_b32 v{d+r}, v{d+r+96}, 16, v{d+r}")
        if it == 7:
            a("v_cmp_gt_u32 vcc, 16, v0\n s_and_saveexec_b64 s[50:51], vcc\n s_cbranch_execz L_AUXSK")
        a(f"buffer_store_dwordx4 v[{d}:{d+3}], v9, s[{sWS}:{sWS+3}], s48 offen sc1")
        for r in range(4):
            a(f"v_and_b32 v{12+(r&1)}, 0x7fff7fff, v{d+r}\n v_pk_max_u16 v10, v10, v{12+(r&1)}")
        if it < 7: a(f"s_add_u32 s48, s48, {32*8192}")
    a("L_AUXSK:\n s_mov_b64 exec, -1")
    a("v_lshrrev_b32 v11, 16, v10\n v_and_b32 v10, 0xffff, v10\n v_max_u32 v10, v10, v11")
    a("v_max_u32_dpp v10, v10, v10 quad_perm:[1,0,3,2] row_mask:0xf bank_mask:0xf")
    a("v_max_u32_dpp v10, v10, v10 quad_perm:[2,3,0,1] row_mask:0xf bank_mask:0xf")
    a("v_max_u32_dpp v10, v10, v10 row_half_mirror row_mask:0xf bank_mask:0xf")
    a("v_max_u32_dpp v10, v10, v10 row_mirror row_mask:0xf bank_mask:0xf")
    a("v_readlane_b32 s50, v10, 0\n v_readlane_b32 s51, v10, 16\n v_readlane_b32 s52, v10, 32\n v_readlane_b32 s53, v10, 48")
    a("s_max_u32 s50, s50, s51\n s_max_u32 s52, s52, s53\n s_max_u32 s50, s50, s52")
    a(f"s_lshl_b32 s49, s43, 3\n s_add_u32 s49, s49, s42\n s_lshl_b32 s49, s49, 2\n s_add_u32 s49, s49, {WMAX}")
    a("v_mov_b32 v10, s50\n s_mov_b64 exec, 1")
    a(f"buffer_store_dword v10, v{vZERO}, s[{sWS}:{sWS+3}], s49 offen sc1")
    a("s_mov_b64 exec, -1")
    a("s_waitcnt vmcnt(0)\n s_barrier")
    stg(2)
    a(f"s_lshl_b32 s49, s43, 7\n s_add_u32 s49, s49, {FLW}")
    L["set_flag"]("L_FW", 49)
    for rnd in range(1, WSP_K1//8):
        a(f"buffer_load_dword v{252+rnd}, v5, s[{sSP}:{sSP+3}], s47 offen offset:{1024*rnd}")
    a(f"v_mov_b32 v8, {SX}\n ds_write_b32 v8, v{vZERO}")
    a(f"v_and_b32 v{vPA}, 31, v1\n v_lshlrev_b32 v{vPA}, 7, v{vPA}\n s_mov_b32 s59, {FLW}")
    L["poll_issue"]("L_PW", 59, vPOLL)
    poll_check("L_CW", 59, vPOLL, sleep=16)
    a("s_barrier")
    a("s_mul_i32 s44, s43, 7\n s_add_u32 s44, s44, s42\n s_cmp_eq_u32 s42, 7\n s_cselect_b32 s44, 224, s44")
    a(f"s_mov_b32 s53, {WMAX}\n buffer_load_dwordx4 v[12:15], v{vF}, s[{sWS}:{sWS+3}], s53 offen sc1")
    a(f"s_lshl_b32 s54, s44, 13\n s_add_u32 s54, s54, {WP}\n s_add_u32 s55, s54, 4096")
    for i in range(8):
        a(f"buffer_load_dwordx4 v[{128+4*i}:{131+4*i}], v{vF}, s[{sWS}:{sWS+3}], s{54 if i < 4 else 55} offen offset:{(i&3)*1024} sc1")
    a("s_mul_i32 s51, s43, 14\n s_add_u32 s52, s51, 13\n s_lshr_b32 s51, s51, 6\n s_lshr_b32 s52, s52, 6\n s_lshl_b32 s51, s51, 12\n s_lshl_b32 s52, s52, 12")
    a(f"v_mov_b32 v8, s51\n v_mov_b32 v9, s52\n v_cmp_gt_u32 vcc, 32, v1\n v_cndmask_b32 v8, v9, v8, vcc\n v_add_u32 v{vPA}, v{vPA}, v8\n s_mov_b32 s59, {FLU}")
    L["poll_issue"]("L_PF", 59, vPOLL)
    poll_check("L_CF", 59, vPOLL, sleep=8)
    a("s_waitcnt lgkmcnt(0)\n s_barrier")
    stg(3)
    a("s_cmp_lg_u32 s42, 7\n s_cbranch_scc1 L_FFT0\n s_cmp_lg_u32 s43, 0\n s_cbranch_scc1 L_PFW\nL_FFT0:")

    vL = vF
    OPR, OPI, OPN = 16, 32, 48
    DR, DI = 64, 96
    WV = 128; C32 = 160; CF = 184; TWB = 216
    a("s_lshl_b32 s48, s44, 1\n s_add_u32 s49, s48, 1\n s_min_u32 s49, s49, 447\n s_cmp_eq_u32 s44, 224\n s_cselect_b32 s48, 1, s48")
    a("s_cmp_eq_u32 s44, 224\n s_cselect_b32 s58, 1, 0\n s_cmp_eq_u32 s44, 0\n s_cselect_b32 s58, 1, s58")
    a(f"s_lshl_b32 s48, s48, 12\n s_lshl_b32 s49, s49, 12\n s_add_u32 s51, s48, {U}\n s_add_u32 s52, s49, {U}")
    a(f"v_and_b32 v5, 31, v1\n v_lshrrev_b32 v6, 5, v1\n v_lshlrev_b32 v7, 4, v5\n v_lshl_add_u32 v7, v6, 10, v7")
    for mt in range(2):
        for c in range(2):
            f = 2*mt+c
            a(f"buffer_load_dwordx4 v[{OPR+4*f}:{OPR+4*f+3}], v7, s[{sWS}:{sWS+3}], s51 offen offset:{(32*mt+128*c)*16} sc1")
            a(f"buffer_load_dwordx4 v[{OPI+4*f}:{OPI+4*f+3}], v7, s[{sWS}:{sWS+3}], s52 offen offset:{(32*mt+128*c)*16} sc1")
    for i in range(6): a(f"ds_read_b128 v[{C32+4*i}:{C32+4*i+3}], v{vL} offset:{O_C32+i*1024}")
    CR = lambda c: f"v[{C32+4*c}:{C32+4*c+3}]"
    CI = lambda c: f"v[{C32+8+4*c}:{C32+8+4*c+3}]"
    CN = lambda c: f"v[{C32+16+4*c}:{C32+16+4*c+3}]"
    op = lambda base, f: f"v[{base+4*f}:{base+4*f+3}]"
    dd = lambda base, t: f"v[{base+16*t}:{base+16*t+15}]"
    a("s_waitcnt vmcnt(8)")
    wmax_reduce(a, 12, 53, 28)
    a("s_sub_u32 s56, 254, s53\n s_sub_u32 s56, s56, s58\n s_lshl_b32 s56, s56, 23\n s_mov_b32 s57, s56")
    a("s_waitcnt vmcnt(0)")
    a("s_cmp_eq_u32 s58, 0\n s_cbranch_scc1 L_NSP")
    for i in range(16): a(f"v_mov_b32 v{OPI+i}, 0")
    a("L_NSP:")
    a("s_waitcnt lgkmcnt(0)")
    stg(4)
    def mfma(d, x, y, first): a(f"v_mfma_f32_32x32x16_f16 {d}, {x}, {y}, {'0' if first else d}")
    for mt in range(2):
        for c in range(2):
            f = 2*mt+c
            mfma(dd(DR, mt), op(OPR, f), CR(c), c == 0); mfma(dd(DI, mt), op(OPR, f), CI(c), c == 0)
            mfma(dd(DR, mt), op(OPI, f), CN(c), False); mfma(dd(DI, mt), op(OPI, f), CR(c), False)
    def twiddle(otab, neg):
        def ld(g):
            b = TWB+8*(g % 3)
            a(f"ds_read_b128 v[{b}:{b+3}], v{vL} offset:{otab+g*2048}")
            a(f"ds_read_b128 v[{b+4}:{b+7}], v{vL} offset:{otab+g*2048+1024}")
        for g in range(2): ld(g)
        for g in range(8):
            if g+2 < 8: ld(g+2)
            a(f"s_waitcnt lgkmcnt({2*min(2, 7-g)})")
            b = TWB+8*(g % 3)
            v = 4*g
            for i in range(4): a(f"v_mul_f32 v{8+i}, v{DR+v+i}, v{b+i}\n v_mul_f32 v{12+i}, v{DR+v+i}, v{b+4+i}")
            for i in range(4): a(f"v_fma_f32 v{8+i}, -v{DI+v+i}, v{b+4+i}, v{8+i}\n v_fmac_f32 v{12+i}, v{DI+v+i}, v{b+i}")
            for pr in range(2):
                a(f"v_cvt_pk_f16_f32 v{OPR+v//2+pr}, v{8+2*pr}, v{9+2*pr}\n v_cvt_pk_f16_f32 v{OPI+v//2+pr}, v{12+2*pr}, v{13+2*pr}")
            if neg:
                for pr in range(2): a(f"v_xor_b32 v{OPN+v//2+pr}, 0x80008000, v{OPI+v//2+pr}")
    def big(step):
        def ld(i):
            b = CF+8*(i & 3)
            a(f"ds_read_b128 v[{b}:{b+3}], v{vL} offset:{O_C64R+i*1024}")
            a(f"ds_read_b128 v[{b+4}:{b+7}], v{vL} offset:{O_C64I+i*1024}")
        for i in range(3): ld(i)
        for i in range(8):
            if i+3 < 8: ld(i+3)
            a(f"s_waitcnt lgkmcnt({2*min(3, 7-i)})")
            b = CF+8*(i & 3); cr = f"v[{b}:{b+3}]"; ci = f"v[{b+4}:{b+7}]"
            t = i >> 2; c = i & 3
            if step == 3:
                mfma(dd(DR, t), cr, op(OPR, c), c == 0); mfma(dd(DI, t), ci, op(OPR, c), c == 0)
                mfma(dd(DR, t), ci, op(OPN, c), False); mfma(dd(DI, t), cr, op(OPI, c), False)
            else:
                mfma(dd(DR, t), op(OPR, c), cr, c == 0); mfma(dd(DI, t), op(OPI, c), cr, c == 0)
                mfma(dd(DR, t), op(OPI, c), ci, False); mfma(dd(DI, t), op(OPN, c), ci, False)
    twiddle(O_TW1, True)
    stg(5)
    big(3)
    stg(6)
    a("s_waitcnt vmcnt(0)")
    for v in range(0, 32, 4):
        b = TWB+8*((v >> 2) % 3)
        for i in range(4): a(f"v_lshlrev_b32 v{b+i}, 16, v{WV+v+i}\n v_and_b32 v{b+4+i}, 0xffff0000, v{WV+v+i}")
        for i in range(8): a(f"v_mul_f32 v{b+i}, s56, v{b+i}")
        for i in range(4): a(f"v_mul_f32 v{8+i}, v{DR+v+i}, v{b+i}\n v_mul_f32 v{12+i}, v{DR+v+i}, v{b+4+i}")
        for i in range(4): a(f"v_fma_f32 v{8+i}, -v{DI+v+i}, v{b+4+i}, v{8+i}\n v_fmac_f32 v{12+i}, v{DI+v+i}, v{b+i}")
        for pr in range(2):
            a(f"v_cvt_pk_f16_f32 v{OPR+v//2+pr}, v{8+2*pr}, v{9+2*pr}\n v_cvt_pk_f16_f32 v{OPI+v//2+pr}, v{12+2*pr}, v{13+2*pr}")
        for pr in range(2): a(f"v_xor_b32 v{OPN+v//2+pr}, 0x80008000, v{OPR+v//2+pr}")
    stg(7)
    big(5)
    stg(8)
    twiddle(O_TW2, False)
    stg(9)
    for nt in range(2):
        for c in range(2):
            f = 2*nt+c
            mfma(dd(DR, nt), op(OPR, f), CR(c), c == 0); mfma(dd(DI, nt), op(OPI, f), CR(c), c == 0)
            mfma(dd(DR, nt), op(OPI, f), CI(c), False); mfma(dd(DI, nt), op(OPR, f), CN(c), False)
    a("v_lshlrev_b32 v7, 4, v5\n v_lshl_add_u32 v7, v6, 9, v7")
    a(f"s_add_u32 s51, s48, {YT}\n s_add_u32 s52, s49, {YT}")
    for part, base, sreg in ((0, DR, 51), (1, DI, 52)):
        if part == 1: a("s_cmp_lg_u32 s58, 0\n s_cbranch_scc1 L_FDONE")
        for nt in range(2):
            for q in range(2):
                o = WV+16*part+8*nt+4*q; v = base+16*nt+8*q
                for i in range(4): a(f"v_cvt_pk_f16_f32 v{o+i}, v{v+2*i}, v{v+2*i+1}")
                a(f"v_permlane32_swap_b32 v{o}, v{o+2}\n v_permlane32_swap_b32 v{o+1}, v{o+3}")
                a(f"buffer_store_dwordx4 v[{o}:{o+3}], v7, s[{sWS}:{sWS+3}], s{sreg} offen offset:{(4*nt+2*q)*512} sc1")
    a("L_FDONE:")
    stg(10)
    a("s_waitcnt vmcnt(0)")
    a(f"v_mov_b32 v8, {SX}\n v_mov_b32 v9, 1\n s_mov_b64 exec, 1\n ds_add_rtn_u32 v9, v8, v9\n s_waitcnt lgkmcnt(0)\n v_readfirstlane_b32 s49, v9")
    a("s_cmp_eq_u32 s43, 0\n s_cselect_b32 s50, 7, 6\n s_cmp_lg_u32 s49, s50\n s_cbranch_scc1 L_NFY")
    a(f"s_lshl_b32 s49, s43, 7\n s_add_u32 s49, s49, {FLY}\n v_mov_b32 v{vPOLL}, s63")
    a(f"buffer_store_dword v{vPOLL}, v{vZERO}, s[{sWS}:{sWS+3}], s49 offen sc1")
    a("L_NFY:\n s_mov_b64 exec, -1")
    stg(11)
    if PROF:
        a("s_waitcnt lgkmcnt(0)\n v_writelane_b32 v246, s100, 11")
        stg2.pending = None
        L["prof_end"]()
    a("s_endpgm")
    a("L_PFW:")
    a(f"v_lshlrev_b32 v5, 7, v1\n buffer_load_dword v6, v5, s[{sBS}:{sBS+3}], 0 offen")
    a("s_sleep 8")
    NL = (32-WSP_K1)*2048
    a("s_sub_u32 s58, s43, 1\n s_lshl_b32 s58, s58, 6\n v_add_u32 v13, s58, v1")
    for it in range(-(-NL//(31*64))):
        a(f"v_and_b32 v14, 2047, v13\n v_lshrrev_b32 v15, 11, v13\n v_min_u32 v15, {31-WSP_K1}, v15\n v_lshlrev_b32 v14, 12, v14\n v_lshl_add_u32 v14, v15, 7, v14")
        a(f"buffer_load_dword v{20+it}, v14, s[{sSP}:{sSP+3}], 0 offen offset:{128*WSP_K1}")
        a(f"v_add_u32 v13, {31*64}, v13")
    pc_srd(a, 8, "TAB_TT", 7*56*1024)
    srd(a, 4, 82, 896*896)
    a("s_sub_u32 s44, s43, 1\n s_lshl_b32 s44, s44, 13\n s_mov_b32 s45, s44")
    for i in range(4): a(f"buffer_load_dword v{8+i}, v5, s[4:7], s44 offen\n s_add_u32 s44, s44, {31*8192}")
    for i in range(2): a(f"buffer_load_dword v{16+i}, v5, s[8:11], s45 offen\n s_add_u32 s45, s45, {31*8192}")
    a("s_endpgm")
```

```python
import sys
sys.path.insert(0, "gen")
from asmlib import Asm
import fused, k1, k2, k3
HDR = open("recurrent_scan__spectral_gfnet__mixer_gmlp__prompt.s.ref").read().split("; Override launch")[0]
a = Asm()
a('.amdgcn_target "amdgcn-amd-amdhsa--gfx950"')
fused.gen(a)
k1.tables_ft(a); k2.tables_fft(a); k3.tables_tt(a)
open(sys.argv[1], "w").write(HDR + f"; @launch grid=(256,1,1) block=(512,1,1) lds={fused.LDS_BYTES}\n" + a.finish())
```

```python
from asmlib import Asm, Vm
from common import *
from k1 import gelu_pairs, red8, halfsum, var_to_rs, C1, C2
from k2 import O_C64R, O_C64I, O_TW1, O_TW2, O_C32, FT_BYTES, wmax_reduce
import math

NAME = "recurrent_scan__spectral_gfnet__mixer_gmlp__prompt_kernel"
S1 = 16384; N1 = 6; XN = N1*S1
S2 = 24576; PERM = [4, 5, 2, 3, 0, 1]
UX = 147456; UXP = 144
SX = 156672
LDS_BYTES = SX+4096
EXP = 144
FL = 0x1310000
FLZ, FLU, FLW, FLH, FLY = FL, FL+0x8000, FL+0x10000, FL+0x18000, FL+0x20000
LD_T, CHK_T = 14, 17
WSP_K1 = 24
SPIN = 0x4000
CODE_BYTES = 40960
D = 5

DBGT = bool(int(os.environ.get("DBGT", "0")))
def gen(a):
    a(f".text\n.globl {NAME}\n.p2align 8\n.type {NAME},@function\n{NAME}:")
    sX, sWIN, sWS, sFT, sDBG, sSP = 4, 8, 12, 16, 20, 24
    sWO, sTT, sOUT, sBS, sC = 8, 16, 64, 68, 72
    stg = StageStamps(a, 246); stg2 = StageStamps(a, 247)
    a("s_cmp_ge_u32 s2, 256\n s_cbranch_scc1 L_END")
    if PROF: a("s_memrealtime s[96:97]")
    stg(0)
    a("s_load_dwordx2 s[76:77], s[0:1], 0")
    a("s_load_dwordx4 s[28:31], s[0:1], 8")
    a("s_load_dwordx4 s[32:35], s[0:1], 32")
    a("s_load_dwordx4 s[36:39], s[0:1], 72")
    a("s_load_dwordx4 s[80:83], s[0:1], 48")
    a("s_load_dwordx2 s[78:79], s[0:1], 64")
    a("s_and_b32 s40, s2, 7\n s_lshr_b32 s41, s2, 3")
    a("v_lshrrev_b32 v2, 6, v0\n v_and_b32 v1, 63, v0")
    a("v_readfirstlane_b32 s42, v2")
    pc_srd(a, sFT, "TAB_FT", 7*14*8*1024)
    vXo, vZ, vF, vW = 2, 3, 4, 5
    vTR = 6; vAA = 12
    XF = 16; BF = 128; ACC = 160; ACC2 = 176; ZP = 192; TMP = 200; VC1 = 226; PS = 228
    vA2, vB2 = 244, 245; VPF = 252; vZERO = 248; vPOLL = 249; vPA = 250
    a("s_and_b32 s62, s40, 3\n s_mul_i32 s43, s62, 28\n s_add_u32 s43, s43, s41\n s_lshr_b32 s44, s43, 4\n s_and_b32 s43, s43, 15")
    a("s_lshr_b32 s45, s40, 2\n s_lshl_b32 s45, s45, 4\n s_add_u32 s43, s43, s45")
    a("s_lshr_b32 s45, s43, 4\n s_lshl_b32 s45, s45, 4")
    a("s_lshr_b32 s46, s42, 2\n s_lshl_b32 s46, s46, 3\n s_add_u32 s45, s45, s46")
    a("s_bfe_u32 s46, s43, 0x10003\n s_lshl_b32 s46, s46, 2\n s_add_u32 s45, s45, s46")
    a("s_and_b32 s46, s42, 3\n s_add_u32 s45, s45, s46")
    a("s_lshl_b32 s45, s45, 6\n s_and_b32 s46, s43, 7\n s_lshl_b32 s46, s46, 3\n s_add_u32 s45, s45, s46")
    a("s_mul_i32 s45, s45, 896")
    a(f"v_lshrrev_b32 v{TMP}, 3, v1\n v_and_b32 v{TMP+1}, 7, v1")
    a(f"v_mul_u32_u24 v{vXo}, 896, v{TMP}\n v_lshl_add_u32 v{vXo}, v{TMP+1}, 4, v{vXo}")
    a(f"v_mov_b32 v{vZERO}, 0\n v_lshlrev_b32 v{vF}, 4, v1")
    a("s_waitcnt lgkmcnt(0)")
    srd(a, sX, 76, 2048*896)
    a("s_cmp_ge_u32 s41, 28\n s_cbranch_scc1 L_AUX0")
    vm = Vm()
    for cc in range(7):
        a(f"buffer_load_dwordx4 v[{BF+4*cc}:{BF+4*cc+3}], v{vXo}, s[{sX}:{sX+3}], s45 offen offset:{128*cc}"); vm.issue("x")
    a("L_AUX0:")
    srd(a, sWIN, 32, 448*3584); srd(a, sWS, 38, WS_BYTES); srd(a, sDBG, 36, 256); srd(a, sSP, 34, 2048*4096)
    srd(a, sOUT, 78, 2048*896); srd(a, sBS, 80, 4096)
    a("s_cmp_ge_u32 s41, 28\n s_cbranch_scc1 L_AUX")

    dcount = [0]
    def dbgt(idx, op=None):
        if not DBGT: return
        lbl = f"L_DBG{dcount[0]}"; dcount[0] += 1
        if op is None: a(f"s_cmp_lg_u32 s2, 9\n s_cbranch_scc1 {lbl}")
        a(f"s_cmp_lg_u32 s42, 0\n s_cbranch_scc1 {lbl}")
        a("s_memrealtime s[98:99]\n s_waitcnt lgkmcnt(0)")
        if op == "min": a("s_not_b32 s98, s98")
        a(f"v_mov_b32 v251, s98\n s_mov_b64 exec, 1")
        if op is None: a(f"buffer_store_dword v251, v{vZERO}, s[{sDBG}:{sDBG+3}], 0 offen offset:{4*idx}")
        else: a(f"buffer_atomic_umax v251, v{vZERO}, s[{sDBG}:{sDBG+3}], 0 offen offset:{4*idx}")
        a(f"s_mov_b64 exec, -1\n{lbl}:")
    dbgt(2, "min"); dbgt(1, "max"); dbgt(4)
    def get_nonce(lbl):
        a(f"s_mov_b32 s50, 0\n{lbl}:")
        a(f"v_readfirstlane_b32 s63, v{vPOLL}")
        a(f"s_add_u32 s50, s50, 1\n s_cmp_lg_u32 s63, 0\n s_cbranch_scc1 {lbl}_OK")
        a(f"s_cmp_ge_u32 s50, {SPIN}\n s_cbranch_scc1 {lbl}_OK")
        a(f"s_sleep 4\n buffer_load_dword v{vPOLL}, v{vZERO}, s[{sDBG}:{sDBG+3}], 0 offen sc1\n s_waitcnt vmcnt(0)\n s_branch {lbl}")
        a(f"{lbl}_OK:")
    def set_flag(lbl, soff):
        a(f"s_cmp_lg_u32 s42, 0\n s_cbranch_scc1 {lbl}")
        a(f"v_mov_b32 v{vPOLL}, s63\n s_mov_b64 exec, 1")
        a(f"buffer_store_dword v{vPOLL}, v{vZERO}, s[{sWS}:{sWS+3}], s{soff} offen sc1")
        a(f"s_mov_b64 exec, -1\n{lbl}:")
    def poll_issue(lbl, soff, vdst, wide=False):
        a(f"s_cmp_lg_u32 s42, 0\n s_cbranch_scc1 {lbl}")
        if wide: a(f"buffer_load_dwordx4 v[{vdst}:{vdst+3}], v{vF}, s[{sWS}:{sWS+3}], s{soff} offen sc1")
        else: a(f"buffer_load_dword v{vdst}, v{vPA}, s[{sWS}:{sWS+3}], s{soff} offen sc1")
        a(f"{lbl}:")
    def poll_check(lbl, soff, vdst, wide=False, allwaves=False, sleep=2, covered=False):
        if not allwaves: a(f"s_cmp_lg_u32 s42, 0\n s_cbranch_scc1 {lbl}_OK")
        a("s_mov_b32 s50, 0")
        if covered: a(f"s_branch {lbl}_1")
        a(f"{lbl}:\n s_waitcnt vmcnt(0)\n{lbl}_1:")
        a(f"v_cmp_eq_u32 vcc, s63, v{vdst}")
        if wide:
            for i in range(1, 4): a(f"v_cmp_eq_u32 s[30:31], s63, v{vdst+i}\n s_and_b64 vcc, vcc, s[30:31]")
        a(f"s_add_u32 s50, s50, 1\n s_cmp_eq_u64 vcc, exec\n s_cbranch_scc1 {lbl}_OK")
        a(f"s_cmp_ge_u32 s50, {SPIN}\n s_cbranch_scc1 {lbl}_OK")
        a(f"s_sleep {sleep}")
        if wide: a(f"buffer_load_dwordx4 v[{vdst}:{vdst+3}], v{vF}, s[{sWS}:{sWS+3}], s{soff} offen sc1")
        else: a(f"buffer_load_dword v{vdst}, v{vPA}, s[{sWS}:{sWS+3}], s{soff} offen sc1")
        a(f"s_branch {lbl}\n{lbl}_OK:")

    def poll_pipe(lbl, soff, r0, gap=4):
        a(f"s_cmp_lg_u32 s42, 0\n s_cbranch_scc1 {lbl}_OK")
        a("s_mov_b32 s50, 0")
        for i in range(4):
            a(f"buffer_load_dword v{r0+i}, v{vPA}, s[{sWS}:{sWS+3}], s{soff} offen sc1")
            if i < 3: a(f"s_sleep {gap}")
        a(f"{lbl}:")
        for i in range(4):
            a("s_waitcnt vmcnt(3)")
            a(f"v_cmp_eq_u32 vcc, s63, v{r0+i}")
            a(f"s_cmp_eq_u64 vcc, exec\n s_cbranch_scc1 {lbl}_OK")
            a(f"buffer_load_dword v{r0+i}, v{vPA}, s[{sWS}:{sWS+3}], s{soff} offen sc1")
            a(f"s_sleep {gap//2}")
        a(f"s_add_u32 s50, s50, 1\n s_cmp_lt_u32 s50, {SPIN}\n s_cbranch_scc1 {lbl}")
        a(f"{lbl}_OK:")

    a("s_add_u32 s49, s2, s42\n s_cmp_lg_u32 s49, 0\n s_cbranch_scc1 L_NN")
    a("s_memrealtime s[50:51]\n s_waitcnt lgkmcnt(0)\n s_or_b32 s50, s50, 1")
    a(f"v_mov_b32 v{vPOLL}, s50\n s_mov_b64 exec, 1")
    a(f"buffer_store_dword v{vPOLL}, v{vZERO}, s[{sDBG}:{sDBG+3}], 0 offen sc1")
    a("s_mov_b64 exec, -1\nL_NN:")
    vT = TMP+8
    a("s_mul_i32 s46, s62, 28\n s_lshr_b32 s46, s46, 4")
    a("s_mul_i32 s47, s62, 28\n s_add_u32 s47, s47, 27\n s_lshr_b32 s47, s47, 4")
    a("s_lshl_b32 s48, s41, 4\n s_lshl_b32 s49, s42, 1\n s_add_u32 s48, s48, s49\n s_mul_i32 s48, s48, 3584\n s_lshl_b32 s49, s46, 8\n s_add_u32 s48, s48, s49\n s_add_u32 s48, s48, 1792")
    for rr in range(2):
        for ln in range(6):
            a(f"s_buffer_load_dword s28, s[{sWIN}:{sWIN+3}], s48 offset:{rr*3584+ln*128}")
    a(f"v_and_b32 v{vT}, 127, v0\n v_lshrrev_b32 v{vT+1}, 5, v{vT}\n v_add_u32 v{vT+1}, s46, v{vT+1}\n v_cmp_lt_u32 vcc, s47, v{vT+1}\n v_mov_b32 v{vT+5}, 0x8000\n v_cndmask_b32 v{vT+1}, v{vT+1}, v{vT+5}, vcc")
    a(f"s_lshl_b32 s48, s41, 5\n v_and_b32 v{vT+2}, 31, v0\n v_add_u32 v{vT+2}, s48, v{vT+2}")
    a(f"v_lshrrev_b32 v{VPF}, 1, v{vT+2}\n v_mul_u32_u24 v{VPF}, 3584, v{VPF}\n v_lshl_add_u32 v{VPF}, v{vT+1}, 8, v{VPF}\n v_and_b32 v{vT+3}, 1, v{vT+2}\n v_lshl_add_u32 v{VPF}, v{vT+3}, 7, v{VPF}")
    a(f"s_mov_b32 s48, 114688\n v_mul_lo_u32 v{VPF+1}, v{vT+1}, s48\n v_lshl_add_u32 v{VPF+1}, v{vT+2}, 7, v{VPF+1}")
    def touch2():
        a("s_cmp_ge_u32 s42, 2\n s_cbranch_scc1 L_PFB")
        a(f"buffer_load_dword v{VPF+2}, v{VPF}, s[{sWIN}:{sWIN+3}], 0 offen")
        a("s_branch L_PFD\nL_PFB:")
        a("s_cmp_ge_u32 s42, 4\n s_cselect_b32 s49, 0x10000000, 0")
        a(f"buffer_load_dword v{VPF+2}, v{VPF+1}, s[{sFT}:{sFT+3}], s49 offen")
        a("L_PFD:"); vm.issue("pf")
    a("s_barrier")
    a(f"v_lshrrev_b32 v{TMP+2}, 4, v1\n v_and_b32 v{TMP+3}, 15, v1\n v_lshlrev_b32 v{TMP+4}, 2, v{TMP+2}\n v_xor_b32 v{TMP+3}, v{TMP+3}, v{TMP+4}")
    a(f"v_mul_u32_u24 v{vZ}, 3584, v{TMP+2}\n v_lshl_add_u32 v{vZ}, v{TMP+3}, 4, v{vZ}")
    a("s_mul_i32 s46, s42, 14336\n s_lshl_b32 s47, s44, 8\n s_add_u32 s46, s46, s47")
    a(f"s_mul_i32 s47, s44, {14*8192}\n s_lshl_b32 s48, s42, 10\n s_add_u32 s47, s47, s48")
    def dma(t):
        slot = (t % N1)*S1
        if t < 7:
            for u in range(2):
                a(f"s_add_u32 m0, s48, {slot+u*8192}")
                a(f"s_add_u32 s49, s46, {1792+(64*t+32*u)*3584}")
                a(f"buffer_load_dwordx4 v{vZ}, s[{sWIN}:{sWIN+3}], s49 offen lds"); vm.issue(("st", t))
        else:
            s2 = t-7
            a(f"s_add_u32 m0, s48, {slot}")
            a(f"s_add_u32 s49, s46, {32*s2*3584}")
            a(f"buffer_load_dwordx4 v{vZ}, s[{sWIN}:{sWIN+3}], s49 offen lds"); vm.issue(("st", t))
            a(f"s_add_u32 m0, s48, {slot+8192}")
            a(f"s_add_u32 s49, s47, {s2*8192}")
            a(f"buffer_load_dwordx4 v{vF}, s[{sFT}:{sFT+3}], s49 offen lds"); vm.issue(("st", t))
    a(f"s_lshl_b32 s49, s42, 3\n v_add_u32 v{TMP+2}, s49, v{TMP}")
    a(f"v_bfe_u32 v{TMP+3}, v{TMP+2}, 1, 3\n v_xor_b32 v{TMP+3}, v{TMP+3}, v{TMP+1}")
    a(f"v_mul_u32_u24 v{vW}, 896, v{TMP+2}\n v_lshl_add_u32 v{vW}, v{TMP+3}, 4, v{vW}\n v_add_u32 v{vW}, {XN}, v{vW}")
    a("s_and_b32 s84, s40, 3\n s_lshl_b32 s84, s84, 2\n s_and_b32 s85, s41, 3\n s_add_u32 s84, s84, s85")
    a("s_lshr_b32 s85, s40, 2\n s_mul_i32 s85, s85, 7\n s_lshr_b32 s86, s41, 2\n s_add_u32 s85, s85, s86")
    a("s_lshr_b32 s86, s84, 3\n s_lshl_b32 s86, s86, 4\n s_bfe_u32 s87, s84, 0x10002\n s_lshl_b32 s87, s87, 2\n s_add_u32 s86, s86, s87")
    a("s_lshr_b32 s87, s42, 2\n s_lshl_b32 s87, s87, 3\n s_add_u32 s87, s87, s86\n s_and_b32 s88, s42, 3\n s_add_u32 s87, s87, s88")
    a("s_lshl_b32 s87, s87, 6\n s_and_b32 s88, s84, 3\n s_lshl_b32 s88, s88, 4\n s_add_u32 s87, s87, s88\n s_lshl_b32 s87, s87, 12")
    a(f"v_lshrrev_b32 v{TMP+2}, 1, v{TMP}\n s_and_b32 s88, s42, 1\n s_lshl_b32 s88, s88, 2\n v_add_u32 v{TMP+2}, s88, v{TMP+2}\n v_xor_b32 v{TMP+2}, v{TMP+1}, v{TMP+2}")
    a(f"v_lshlrev_b32 v{vA2}, 12, v{TMP}\n v_lshl_add_u32 v{vA2}, v{TMP+2}, 4, v{vA2}")
    a(f"v_lshrrev_b32 v{TMP+2}, 5, v1\n v_bfe_u32 v{TMP+3}, v1, 3, 1\n v_lshl_add_u32 v{TMP+2}, v{TMP+2}, 1, v{TMP+3}\n v_lshlrev_b32 v{vB2}, 10, v{TMP+2}")
    a(f"v_bfe_u32 v{TMP+2}, v1, 2, 1\n v_lshl_add_u32 v{vB2}, v{TMP+2}, 9, v{vB2}\n v_bfe_u32 v{TMP+2}, v1, 4, 1\n v_lshl_add_u32 v{vB2}, v{TMP+2}, 6, v{vB2}")
    a(f"v_and_b32 v{TMP+2}, 3, v1\n v_lshl_add_u32 v{vB2}, v{TMP+2}, 4, v{vB2}")
    a(f"s_lshl_b32 s88, s85, 12\n s_mul_i32 s89, s42, {2*57344}\n s_add_u32 s88, s88, s89\n s_add_u32 s88, s88, {Z2N}")
    def slot2(T): return PERM[T % 6]*S2
    def dmaA(T):
        for u in range(2):
            a(f"s_add_u32 m0, s48, {slot2(T)+u*8192}\n s_add_u32 s49, s87, {T*128+u*8*4096}")
            a(f"buffer_load_dwordx4 v{vA2}, s[{sSP}:{sSP+3}], s49 offen lds"); vm.issue(("g", T))
    def dmaB(T):
        zoff = (2*(8*((T >> 2) & 1)+16*(T >> 4))+((T >> 3) & 1))*57344+(T & 3)*128
        a(f"s_add_u32 m0, s48, {slot2(T)+16384}\n s_add_u32 s49, s88, {zoff}")
        a(f"buffer_load_dwordx4 v{vB2}, s[{sWS}:{sWS+3}], s49 offen sc1 lds"); vm.issue(("g", T))
    a(f"s_and_b32 s49, s42, 1\n s_lshl_b32 s49, s49, 5\n v_and_b32 v{TMP+2}, 31, v1\n v_add_u32 v{TMP+2}, s49, v{TMP+2}")
    a(f"v_bfe_u32 v{TMP+3}, v{TMP+2}, 1, 3\n v_lshrrev_b32 v{TMP+4}, 5, v1\n v_xor_b32 v{TMP+3}, v{TMP+3}, v{TMP+4}")
    a(f"v_mul_u32_u24 v{TMP+2}, 896, v{TMP+2}\n v_add_u32 v{TMP+2}, {XN}, v{TMP+2}")
    for c in range(4):
        a(f"v_xor_b32 v{TMP+4}, {2*c}, v{TMP+3}\n v_lshl_add_u32 v{vAA+c}, v{TMP+4}, 4, v{TMP+2}")
    a(f"v_lshrrev_b32 v{TMP+2}, 5, v1\n v_bfe_u32 v{TMP+3}, v1, 2, 2")
    a(f"v_lshl_add_u32 v{TMP+2}, v{TMP+2}, 3, v{TMP+3}")
    a(f"v_and_b32 v{TMP+6}, 1, v1\n v_lshlrev_b32 v{TMP+6}, 3, v{TMP+6}")
    a(f"v_bfe_u32 v{TMP+4}, v1, 4, 1\n v_bfe_u32 v{TMP+5}, v1, 1, 1\n v_lshl_add_u32 v{TMP+4}, v{TMP+4}, 1, v{TMP+5}")
    a(f"v_lshlrev_b32 v{TMP+5}, 2, v{TMP+3}\n v_xor_b32 v{TMP+5}, v{TMP+4}, v{TMP+5}")
    a("s_lshr_b32 s51, s42, 1\n s_lshl_b32 s51, s51, 2\n s_and_b32 s49, s42, 2\n s_lshl_b32 s49, s49, 2\n s_add_u32 s50, s49, 4")
    for idx, sreg in ((0, 51), (1, 49), (2, 50)):
        a(f"v_xor_b32 v{TMP+7}, s{sreg}, v{TMP+5}\n v_lshl_add_u32 v{vTR+2*idx}, v{TMP+2}, 8, v{TMP+6}\n v_lshl_add_u32 v{vTR+2*idx}, v{TMP+7}, 4, v{vTR+2*idx}\n v_add_u32 v{vTR+2*idx+1}, 0x10000, v{vTR+2*idx}")
    a(f"s_mov_b32 s52, {hex(f32bits(C2))}\n s_mov_b32 s54, 0x3f803f80")
    a(f"v_mov_b32 v{VC1}, {hex(f32bits(C1))}")
    a(f"s_lshl_b32 s55, s43, 1\n s_and_b32 s57, s42, 1\n s_add_u32 s55, s55, s57\n s_mul_i32 s55, s55, 3584\n s_add_u32 s55, s55, {ST}")
    a("s_lshl_b32 s61, s44, 9\n s_add_u32 s61, s61, s55")
    a(f"s_lshl_b32 s56, s57, 10\n s_lshr_b32 s57, s42, 1\n s_lshl_b32 s57, s57, 3\n s_add_u32 s56, s56, s57\n s_add_u32 s56, s56, {SX}")
    a("s_and_b32 s49, s42, 6\n s_cmp_eq_u32 s49, 4\n s_cselect_b32 s55, s55, 0x20000000")
    a("s_lshl_b32 s57, s43, 1\n s_and_b32 s58, s42, 1\n s_add_u32 s57, s57, s58\n s_mul_i32 s57, s57, 56\n s_lshl_b32 s58, s44, 3\n s_add_u32 s57, s57, s58")
    a(f"s_and_b32 s58, s42, 6\n s_add_u32 s58, s58, s57\n s_lshl_b32 s58, s58, 10\n s_add_u32 s58, s58, {Z2N}")
    a(f"s_and_b32 s59, s42, 2\n s_lshl_b32 s59, s59, 1\n s_add_u32 s57, s57, s59\n s_lshl_b32 s57, s57, 10" + (f"\n s_add_u32 s57, s57, {Z1}" if Z1 else ""))
    a(f"s_lshl_b32 s59, s44, 5\n s_add_u32 s59, s59, s43\n s_lshl_b32 s59, s59, 7\n s_add_u32 s60, s59, {FLU}\n s_add_u32 s59, s59, {FLZ}")
    a(f"s_lshr_b32 s89, s85, 1\n s_lshl_b32 s89, s89, 12\n s_add_u32 s90, s89, {FLU}\n s_add_u32 s89, s89, {FLZ}")
    a(f"v_and_b32 v{vPA}, 31, v1\n v_lshlrev_b32 v{vPA}, 7, v{vPA}")
    a(f"s_waitcnt vmcnt({vm.wait('x')})")
    stg(1); dbgt(5)
    S = TMP; DV = XF
    a("s_mov_b32 s50, 0x00003f80\n s_mov_b32 s51, 0x3f800000")
    for i in range(4): a(f"v_mov_b32 v{S+i}, 0")
    for i in range(28): a(f"v_dot2_f32_bf16 v{S+(i&3)}, v{BF+i}, s54, v{S+(i&3)}")
    dma(0)
    a(f"v_add_f32 v{S}, v{S}, v{S+1}\n v_add_f32 v{S+2}, v{S+2}, v{S+3}\n v_add_f32 v{S}, v{S}, v{S+2}")
    red8(a, S)
    vM, vMB, vNM = TMP+4, TMP+5, TMP+6
    a(f"v_mul_f32 v{vM}, {hex(f32bits(1/448))}, v{S}")
    a(f"v_cvt_pk_bf16_f32 v{vMB}, 0, v{vM}\n v_sub_f32 v{vNM}, 0, v{vMB}")
    for i in range(4): a(f"v_mov_b32 v{S+i}, 0")
    for i in range(0, 28, 4):
        for u in range(4):
            d = DV+2*(i+u)
            a(f"v_dot2_f32_bf16 v{d}, v{BF+i+u}, s50, v{vNM}\n v_dot2_f32_bf16 v{d+1}, v{BF+i+u}, s51, v{vNM}")
        if i >= 4:
            for u in range(4):
                d = DV+2*(i-4+u); s_ = S+2*(u & 1)
                a(f"v_pk_fma_f32 v[{s_}:{s_+1}], v[{d}:{d+1}], v[{d}:{d+1}], v[{s_}:{s_+1}]")
        if i == 8: dma(1)
        if i == 20: dma(2)
    for u in range(4):
        d = DV+2*(24+u); s_ = S+2*(u & 1)
        a(f"v_pk_fma_f32 v[{s_}:{s_+1}], v[{d}:{d+1}], v[{d}:{d+1}], v[{s_}:{s_+1}]")
    a(f"v_add_f32 v{S}, v{S}, v{S+1}\n v_add_f32 v{S+2}, v{S+2}, v{S+3}\n v_add_f32 v{S}, v{S}, v{S+2}")
    for i in range(16): a(f"v_cvt_pk_bf16_f32 v{DV+i}, 0, v{DV+i}")
    red8(a, S)
    vRS = TMP+6; t = S+2
    a(f"v_sub_f32 v{t}, v{vM}, v{vMB}\n v_mul_f32 v{t}, v{t}, v{t}\n v_mov_b32 v{t+1}, {hex(f32bits(1.0/448))}\n v_fma_f32 v{t}, v{S}, v{t+1}, -v{t}\n v_max_f32 v{t}, 0, v{t}")
    n0 = len(a.lines); var_to_rs(a, t, vRS); a(f"v_mov_b32 v{vRS+1}, v{vRS}"); chain = a.lines[n0:]; del a.lines[n0:]
    for i in range(16, 56):
        a(f"v_cvt_pk_bf16_f32 v{DV+i}, 0, v{DV+i}")
        if chain and i % 3 == 0: a(chain.pop(0))
    for l in chain: a(l)
    dma(3)
    for i in range(0, 28, 4):
        for u in range(4):
            d = DV+2*(i+u); a(f"v_pk_mul_f32 v[{d}:{d+1}], v[{d}:{d+1}], v[{vRS}:{vRS+1}]")
        for u in range(4):
            d = DV+2*(i+u); a(f"v_cvt_pk_bf16_f32 v{BF+i+u}, v{d}, v{d+1}")
        a(f"ds_write_b128 v{vW}, v[{BF+i}:{BF+i+3}] offset:{32*i}")
    stg(2)
    dma(4); touch2()
    a("s_waitcnt lgkmcnt(0)")
    def capture(fn, *args):
        n0 = len(a.lines); fn(*args); out = a.lines[n0:]; del a.lines[n0:]; return out
    def trbase(idx, t):
        slot = (t % N1)*S1
        return (vTR+2*idx+(1 if slot >= 65536 else 0), slot-(65536 if slot >= 65536 else 0))
    def reads1(t):
        b = BF+16*(t & 1); vb, so = trbase(0, t)
        for k in range(4):
            c16 = 4*t+k
            a(f"ds_read_b128 v[{XF+4*c16}:{XF+4*c16+3}], v{vAA+(c16&3)} offset:{(c16>>2)*128}")
            for tt in range(2):
                a(f"ds_read_b64_tr_b16 v[{b+4*k+2*tt}:{b+4*k+2*tt+1}], v{vb} offset:{so+k*4096+tt*1024}")
    def mfma1(t):
        b = BF+16*(t & 1)
        for k in range(4):
            c16 = 4*t+k
            cin = "0" if c16 == 0 else f"v[{ACC}:{ACC+15}]"
            a(f"v_mfma_f32_32x32x16_bf16 v[{ACC}:{ACC+15}], v[{b+4*k}:{b+4*k+3}], v[{XF+4*c16}:{XF+4*c16+3}], {cin}")
    def body(mf, rd, issue, bgq=None, nbg=0):
        n = max(len(mf), 1); h = (len(rd)+1)//2 if n > 1 else len(rd)
        for i in range(n):
            if i < len(mf): a(mf[i])
            if i == 0:
                for l in rd[:h]: a(l)
            if i == 1:
                for l in rd[h:]: a(l)
            if i == min(2, n-1): issue()
            if bgq:
                for _ in range(nbg):
                    if bgq: a(bgq.pop(0))
    for t in range(7):
        a(f"s_waitcnt vmcnt({vm.wait(('st', t))})")
        a("s_barrier")
        stg(3+t)
        if t == 1:
            a(f"buffer_load_dword v{vPOLL}, v{vZERO}, s[{sDBG}:{sDBG+3}], 0 offen sc1"); vm.issue("nonce")
        body(capture(mfma1, t-1) if t > 0 else [], capture(reads1, t), lambda: dma(t+D))
        a("s_waitcnt lgkmcnt(0)")
    mfma1(6)
    dbgt(6)
    get_nonce("L_NON")
    gelu_pairs(a, ACC, ZP, TMP, 52, VC1)
    Sx = ACC
    for p in range(8): a(f"v_lshlrev_b32 v{Sx+2*p}, 16, v{ZP+p}\n v_and_b32 v{Sx+2*p+1}, 0xffff0000, v{ZP+p}")
    for i in range(4): a(f"v_add_f32 v{TMP+i}, v{Sx+i}, v{Sx+4+i}")
    for i in range(4): a(f"v_add_f32 v{TMP+4+i}, v{Sx+8+i}, v{Sx+12+i}")
    for i in range(4): a(f"v_add_f32 v{TMP+i}, v{TMP+i}, v{TMP+4+i}")
    a(f"v_add_f32 v{TMP}, v{TMP}, v{TMP+1}\n v_add_f32 v{TMP+2}, v{TMP+2}, v{TMP+3}\n v_add_f32 v{TMP}, v{TMP}, v{TMP+2}")
    halfsum(a, TMP, TMP+1)
    a(f"v_mul_f32 v{TMP+8}, {hex(f32bits(1/32))}, v{TMP}")
    for i in range(16): a(f"v_sub_f32 v{Sx+i}, v{Sx+i}, v{TMP+8}")
    for i in range(4): a(f"v_mul_f32 v{TMP+i}, v{Sx+i}, v{Sx+i}")
    for i in range(4, 16): a(f"v_fmac_f32 v{TMP+(i&3)}, v{Sx+i}, v{Sx+i}")
    a(f"v_add_f32 v{TMP}, v{TMP}, v{TMP+1}\n v_add_f32 v{TMP+2}, v{TMP+2}, v{TMP+3}\n v_add_f32 v{TMP+9}, v{TMP}, v{TMP+2}")
    halfsum(a, TMP+9, TMP+1)
    a(f"v_and_b32 v{TMP+10}, 31, v1\n v_lshlrev_b32 v{TMP+10}, 5, v{TMP+10}\n v_add_u32 v{TMP+10}, s56, v{TMP+10}")
    a(f"ds_write_b64 v{TMP+10}, v[{TMP+8}:{TMP+9}]")
    a(f"v_and_b32 v{TMP+21}, 31, v1\n v_lshlrev_b32 v{TMP+21}, 4, v{TMP+21}\n v_lshrrev_b32 v{TMP+20}, 5, v1\n v_mul_u32_u24 v{TMP+20}, 1536, v{TMP+20}\n v_add_u32 v{TMP+20}, v{TMP+20}, v{TMP+21}\n v_add_u32 v{TMP+21}, 3072, v{TMP+21}")
    a("s_waitcnt lgkmcnt(0)")
    G = PS; ACC3 = ACC
    def is45(label): a(f"s_and_b32 s49, s42, 6\n s_cmp_lg_u32 s49, 4\n s_cbranch_scc1 {label}")
    def gloads():
        for i in range(4):
            a(f"buffer_load_dwordx4 v[{G+4*i}:{G+4*i+3}], v{TMP+20 if i < 3 else TMP+21}, s[{sWS}:{sWS+3}], s55 offen offset:{(i % 3)*512} sc1")
    def norm_job():
        A0 = TMP; T3 = PS
        a(f"s_and_b32 s29, s42, 1\n s_lshl_b32 s29, s29, 8\n s_add_u32 s29, s29, {SX+2048}\n v_and_b32 v{A0}, 31, v1\n v_lshlrev_b32 v{A0}, 3, v{A0}\n v_add_u32 v{A0}, s29, v{A0}")
        a(f"ds_read_b64 v[{A0+2}:{A0+3}], v{A0}")
        for p in range(8): a(f"v_lshlrev_b32 v{T3+2*p}, 16, v{ZP+p}\n v_and_b32 v{T3+2*p+1}, 0xffff0000, v{ZP+p}")
        a("s_waitcnt lgkmcnt(0)")
        for i in range(16): a(f"v_add_f32 v{T3+i}, v{T3+i}, v{A0+2}")
        for i in range(16): a(f"v_cvt_pk_bf16_f32 v{T3+i}, 0, v{T3+i}")
        for i in range(16): a(f"v_mul_f32 v{T3+i}, v{T3+i}, v{A0+3}")
        for p in range(8): a(f"v_cvt_pk_bf16_f32 v{ZP+p}, v{T3+2*p}, v{T3+2*p+1}")
    a("s_cmp_ge_u32 s42, 4\n s_cbranch_scc1 L_P2Z")
    vm_save = list(vm.ops); vm_end = {}
    pend = stg.pending
    EARLY = {16: [0], 17: [1, 2], 18: [3]}
    for path in ("F", "Z"):
        vm.ops = list(vm_save); stg.pending = pend
        if path == "Z": a("L_P2Z:")
        else:
            a(f"s_lshr_b32 s49, s42, 1\n s_lshl_b32 s49, s49, 12\n v_add_u32 v{vTR+2}, s49, v{vF}\n v_add_u32 v{vTR+3}, 0x10000, v{vTR+2}")
        def reads2(t):
            b = BF+16*(t & 1)
            if path == "F":
                vb, so = trbase(1, t)
                for f in range(4): a(f"ds_read_b128 v[{b+4*f}:{b+4*f+3}], v{vb} offset:{so+8192+f*1024}")
            else:
                for k in range(2):
                    for tile in range(2):
                        vb, so = trbase(1+tile, t)
                        for tt in range(2):
                            f = tile*2+k
                            a(f"ds_read_b64_tr_b16 v[{b+4*f+2*tt}:{b+4*f+2*tt+1}], v{vb} offset:{so+k*4096+tt*1024}")
        def mfma2(t):
            b = BF+16*(t & 1); s2 = t-7
            if path == "F":
                for f in range(4):
                    c16 = 2*s2+(f >> 1)
                    cin = "0" if (s2 == 0 and f == 0) else f"v[{ACC2}:{ACC2+15}]"
                    a(f"v_mfma_f32_32x32x16_bf16 v[{ACC2}:{ACC2+15}], v[{XF+4*c16}:{XF+4*c16+3}], v[{b+4*f}:{b+4*f+3}], {cin}")
            else:
                for k in range(2):
                    for tile in range(2):
                        f = tile*2+k; c16 = 2*s2+k; ac = ACC2 if tile == 0 else ACC3
                        cin = "0" if c16 == 0 else f"v[{ac}:{ac+15}]"
                        a(f"v_mfma_f32_32x32x16_bf16 v[{ac}:{ac+15}], v[{b+4*f}:{b+4*f+3}], v[{XF+4*c16}:{XF+4*c16+3}], {cin}")
        bgq = []
        for t in range(7, 21):
            n = vm.wait(("st", t))
            if t == CHK_T and path == "Z": n = min(n, vm.wait("gl"))
            a(f"s_waitcnt vmcnt({n})")
            if t == CHK_T and path == "Z":
                is45("L_NOCHK")
                a("s_mov_b32 s50, 0\nL_CHK:")
                a(f"v_cmp_eq_u32 vcc, s63, v{G+1}")
                for i in range(1, 8): a(f"v_cmp_eq_u32 s[30:31], s63, v{G+1+2*i}\n s_and_b64 vcc, vcc, s[30:31]")
                a("s_add_u32 s50, s50, 1\n s_cmp_eq_u64 vcc, exec\n s_cbranch_scc1 L_CHKOK")
                a(f"s_cmp_ge_u32 s50, {SPIN}\n s_cbranch_scc1 L_CHKOK")
                a("s_sleep 2"); gloads()
                a("s_waitcnt vmcnt(0)\n s_branch L_CHK\nL_CHKOK:")
                B0 = TMP
                a(f"v_mul_f32 v{B0}, 0.5, v{G+12}\n v_mul_f32 v{B0+1}, 0.5, v{G+14}")
                for i in range(3): a(f"v_add_f32 v{B0}, v{B0}, v{G+4*i}\n v_add_f32 v{B0+1}, v{B0+1}, v{G+4*i+2}")
                halfsum(a, B0, B0+2); halfsum(a, B0+1, B0+2)
                a(f"v_mul_f32 v{B0}, {hex(f32bits(1/7))}, v{B0}")
                a(f"v_sub_f32 v{B0+4}, v{G+12}, v{B0}\n v_mul_f32 v{B0+3}, v{B0+4}, v{B0+4}\n v_mul_f32 v{B0+3}, 0.5, v{B0+3}")
                for i in range(3): a(f"v_sub_f32 v{B0+4}, v{G+4*i}, v{B0}\n v_fmac_f32 v{B0+3}, v{B0+4}, v{B0+4}")
                halfsum(a, B0+3, B0+2)
                a(f"v_mov_b32 v{B0+2}, 0x43000000\n v_fma_f32 v{B0+1}, v{B0+3}, v{B0+2}, v{B0+1}")
                a(f"v_mul_f32 v{B0+1}, {hex(f32bits(1/896))}, v{B0+1}")
                var_to_rs(a, B0+1, B0+5)
                a(f"v_cvt_pk_bf16_f32 v{B0+4}, 0, v{B0}\n v_sub_f32 v{B0+4}, 0, v{B0+4}")
                a(f"s_and_b32 s49, s42, 1\n s_lshl_b32 s49, s49, 8\n s_add_u32 s49, s49, {SX+2048}\n v_and_b32 v{B0+6}, 31, v1\n v_lshlrev_b32 v{B0+6}, 3, v{B0+6}\n v_add_u32 v{B0+6}, s49, v{B0+6}")
                a(f"ds_write_b64 v{B0+6}, v[{B0+4}:{B0+5}]\n s_waitcnt lgkmcnt(0)")
                a("L_NOCHK:")
            a("s_barrier")
            stg(3+t)
            if t == 7 and path == "Z":
                is45("L_NOSIG")
                B0 = TMP
                a(f"v_and_b32 v{B0+10}, 31, v1\n v_lshlrev_b32 v{B0+11}, 5, v{B0+10}\n s_sub_u32 s49, s56, 16\n v_add_u32 v{B0+11}, s49, v{B0+11}")
                a(f"ds_read_b128 v[{B0}:{B0+3}], v{B0+11}\n ds_read_b128 v[{B0+4}:{B0+7}], v{B0+11} offset:16\n s_waitcnt lgkmcnt(0)")
                a(f"v_add_f32 v{B0+8}, v{B0}, v{B0+2}\n v_add_f32 v{B0+9}, v{B0+4}, v{B0+6}\n v_add_f32 v{B0+8}, v{B0+8}, v{B0+9}\n v_mul_f32 v{B0+12}, 0.25, v{B0+8}")
                a(f"v_add_f32 v{B0+14}, v{B0+1}, v{B0+3}\n v_add_f32 v{B0+9}, v{B0+5}, v{B0+7}\n v_add_f32 v{B0+14}, v{B0+14}, v{B0+9}\n v_mov_b32 v{B0+8}, 0")
                for i in range(4): a(f"v_sub_f32 v{B0+9}, v{B0+2*i}, v{B0+12}\n v_fmac_f32 v{B0+8}, v{B0+9}, v{B0+9}")
                a(f"v_mov_b32 v{B0+9}, 0x42000000\n v_fma_f32 v{B0+14}, v{B0+8}, v{B0+9}, v{B0+14}")
                a(f"v_mov_b32 v{B0+13}, s63\n v_mov_b32 v{B0+15}, s63\n v_lshlrev_b32 v{B0+10}, 4, v{B0+10}")
                a(f"buffer_store_dwordx4 v[{B0+12}:{B0+15}], v{B0+10}, s[{sWS}:{sWS+3}], s61 offen sc1")
                a("s_nop 1\nL_NOSIG:")
            if t == LD_T:
                gloads()
                for i in range(4): vm.issue("gl")
            if t == CHK_T: bgq = capture(norm_job)
            def issue():
                if t+D < 21: dma(t+D)
                for T in EARLY.get(t, []): dmaA(T)
            body(capture(mfma2, t-1) if t > 7 else [], capture(reads2, t), issue, bgq, 20)
            if t == CHK_T:
                for l in bgq: a(l)
                del bgq[:]
                for q in range(2):
                    a(f"buffer_store_dwordx4 v[{ZP+4*q}:{ZP+4*q+3}], v{vF}, s[{sWS}:{sWS+3}], s58 offen offset:{q*1024} sc1"); vm.issue("z2n")
            a("s_waitcnt lgkmcnt(0)")
        mfma2(20)
        stg(24)
        if path == "F":
            a(f"v_and_b32 v{TMP}, 31, v1\n s_lshr_b32 s49, s42, 1\n s_lshl_b32 s49, s49, 5\n v_add_u32 v{TMP}, s49, v{TMP}")
            a(f"v_mul_u32_u24 v{TMP}, {UXP}, v{TMP}\n v_lshrrev_b32 v{TMP+1}, 5, v1\n v_lshl_add_u32 v{TMP}, v{TMP+1}, 6, v{TMP}")
            a(f"s_and_b32 s49, s42, 1\n s_lshl_b32 s49, s49, 3\n s_add_u32 s49, s49, {UX}\n v_add_u32 v{TMP}, s49, v{TMP}")
            for r in range(4):
                a(f"v_cvt_pk_f16_f32 v{TMP+2+2*r}, v{ACC2+r}, v{ACC2+4+r}\n v_cvt_pk_f16_f32 v{TMP+3+2*r}, v{ACC2+8+r}, v{ACC2+12+r}")
                a(f"ds_write_b64 v{TMP}, v[{TMP+2+2*r}:{TMP+3+2*r}] offset:{16*r}")
            a("s_mov_b32 s49, 0x20000000")
            for i in range(4):
                a(f"buffer_store_dword v{vZERO}, v{vZERO}, s[{sWS}:{sWS+3}], s49 offen"); vm.issue("fin")
            a("s_branch L_J1")
        else:
            for tile, ac in enumerate((ACC2, ACC3)):
                for p in range(8): a(f"v_cvt_pk_bf16_f32 v{BF+8*tile+p}, v{ac+2*p}, v{ac+2*p+1}")
                for q in range(2):
                    a(f"buffer_store_dwordx4 v[{BF+8*tile+4*q}:{BF+8*tile+4*q+3}], v{vF}, s[{sWS}:{sWS+3}], s57 offen offset:{(2*tile+q)*1024} sc1"); vm.issue("fin")
        vm_end[path] = list(vm.ops)
    assert vm_end["F"] == vm_end["Z"]
    a("L_J1:")
    dbgt(7)
    a(f"s_waitcnt vmcnt({vm.wait('z2n')}) lgkmcnt(0)\n s_barrier")
    set_flag("L_FZ", 59)
    a(f"v_lshrrev_b32 v{TMP+2}, 3, v0\n v_and_b32 v{TMP+3}, 7, v0")
    a(f"v_mul_u32_u24 v{TMP+4}, {UXP}, v{TMP+2}\n v_lshl_add_u32 v{TMP+4}, v{TMP+3}, 4, v{TMP+4}\n v_add_u32 v{TMP+4}, {UX}, v{TMP+4}")
    a(f"ds_read_b128 v[{TMP+8}:{TMP+11}], v{TMP+4}")
    a(f"v_lshlrev_b32 v{TMP+2}, 12, v{TMP+2}\n v_lshl_add_u32 v{TMP+2}, v{TMP+3}, 4, v{TMP+2}")
    a(f"s_lshl_b32 s49, s44, 18\n s_lshl_b32 s50, s43, 7\n s_add_u32 s49, s49, s50\n s_add_u32 s49, s49, {U}")
    a("s_waitcnt lgkmcnt(0)")
    a(f"buffer_store_dwordx4 v[{TMP+8}:{TMP+11}], v{TMP+2}, s[{sWS}:{sWS+3}], s49 offen sc1"); vm.issue("fin")
    dmaA(4)
    T = 100; ZR = 88; BS = 96; FR = 20; AC = 104; Z1F = 124; GT = 140
    vTR2 = 5; vWA = 8
    a("s_lshr_b32 s43, s42, 1\n s_and_b32 s44, s42, 1")
    a("s_lshl_b32 s45, s84, 2\n s_add_u32 s45, s45, s43\n s_mul_i32 s45, s45, 56\n s_lshl_b32 s46, s85, 2\n s_add_u32 s45, s45, s46\n s_lshl_b32 s46, s44, 1\n s_add_u32 s45, s45, s46\n s_lshl_b32 s45, s45, 10")
    a(f"v_lshrrev_b32 v{T}, 5, v1\n v_lshlrev_b32 v{T}, 10, v{T}\n v_bfe_u32 v{T+1}, v1, 4, 1\n v_lshl_add_u32 v{T}, v{T+1}, 7, v{T}")
    a(f"v_and_b32 v{T+1}, 1, v1\n v_lshl_add_u32 v{T}, v{T+1}, 6, v{T}\n v_bfe_u32 v{T+1}, v1, 2, 2\n v_lshl_add_u32 v{T}, v{T+1}, 4, v{T}")
    a(f"v_bfe_u32 v{T+1}, v1, 1, 1\n v_lshl_add_u32 v{T}, v{T+1}, 3, v{T}\n s_lshl_b32 s46, s44, 9\n v_add_u32 v{vTR2}, s46, v{T}")
    a(f"v_add_u32 v{vTR2+1}, {2*S2}, v{vTR2}\n v_add_u32 v{vTR2+2}, {4*S2}, v{vTR2}")
    a(f"v_and_b32 v{T}, 31, v1\n s_lshl_b32 s46, s43, 5\n v_add_u32 v{T}, s46, v{T}")
    a(f"v_bfe_u32 v{T+1}, v{T}, 1, 3\n v_lshrrev_b32 v{T+2}, 5, v1\n v_xor_b32 v{T+1}, v{T+1}, v{T+2}\n v_lshlrev_b32 v{T}, 7, v{T}")
    for k in range(4):
        a(f"v_xor_b32 v{T+2}, {2*k}, v{T+1}\n v_lshl_add_u32 v{vWA+k}, v{T+2}, 4, v{T}")
        a(f"v_add_u32 v{vWA+4+k}, {2*S2}, v{vWA+k}\n v_add_u32 v{vWA+8+k}, {4*S2}, v{vWA+k}")
    vB3, vY3, vO3, XR = 150, 151, 152, 156
    srd(a, sWO, 82, 896*896)
    pc_srd(a, sTT, "TAB_TT", 7*56*1024)
    a("s_lshl_b32 s51, s40, 2\n s_and_b32 s52, s41, 3\n s_add_u32 s51, s51, s52\n s_lshr_b32 s52, s41, 2")
    a("s_lshr_b32 s53, s51, 4\n s_lshl_b32 s53, s53, 4\n s_bfe_u32 s54, s51, 0x10003\n s_lshl_b32 s54, s54, 2\n s_add_u32 s53, s53, s54")
    a(f"v_lshrrev_b32 v{T}, 3, v1\n v_and_b32 v{T+1}, 7, v1\n v_bfe_u32 v{T+2}, v1, 4, 1\n v_lshlrev_b32 v{T+2}, 2, v{T+2}\n v_xor_b32 v{T+2}, v{T+1}, v{T+2}")
    a(f"v_mul_u32_u24 v{vB3}, 896, v{T}\n v_lshl_add_u32 v{vO3}, v{T+1}, 4, v{vB3}\n v_lshl_add_u32 v{vB3}, v{T+2}, 4, v{vB3}")
    a(f"v_lshrrev_b32 v{T+1}, 2, v{T+2}\n v_and_b32 v{T+3}, 3, v{T+2}\n v_lshl_add_u32 v{T+1}, v{T+1}, 3, v{T+3}\n v_lshlrev_b32 v{vY3}, 12, v{T}\n v_lshl_add_u32 v{vY3}, v{T+1}, 4, v{vY3}")
    a(f"s_lshl_b32 s54, s51, 1\n s_lshr_b32 s55, s42, 2\n s_add_u32 s54, s54, s55\n s_mul_i32 s54, s54, 56\n s_and_b32 s55, s42, 3\n s_add_u32 s54, s54, s55\n s_lshl_b32 s54, s54, 10\n s_add_u32 s54, s54, {H}")
    a("s_mul_i32 s55, s42, 7168\n s_lshl_b32 s56, s52, 7\n s_add_u32 s55, s55, s56")
    a(f"s_lshl_b32 s56, s42, 15\n s_and_b32 s57, s51, 7\n s_lshl_b32 s57, s57, 9\n s_add_u32 s56, s56, s57\n s_lshl_b32 s57, s53, 4\n s_add_u32 s56, s56, s57\n s_add_u32 s56, s56, {YT}")
    a("s_mul_i32 s57, s52, 56\n s_add_u32 s57, s57, s42\n s_lshl_b32 s57, s57, 10")
    a("s_lshr_b32 s58, s42, 2\n s_lshl_b32 s58, s58, 3\n s_add_u32 s58, s58, s53\n s_and_b32 s59, s42, 3\n s_add_u32 s58, s58, s59\n s_lshl_b32 s58, s58, 6")
    a("s_and_b32 s59, s51, 7\n s_lshl_b32 s59, s59, 3\n s_add_u32 s58, s58, s59\n s_mul_i32 s58, s58, 896\n s_lshl_b32 s59, s52, 7\n s_add_u32 s58, s58, s59")
    a(f"s_lshl_b32 s59, s84, 11\n s_lshl_b32 s61, s85, 7\n s_add_u32 s59, s59, s61\n s_add_u32 s59, s59, {FLH}")
    a(f"s_lshr_b32 s61, s51, 1\n s_lshl_b32 s61, s61, 11\n s_add_u32 s61, s61, {FLH}\n s_mov_b32 s62, {FLY}")
    def dmaI(Tg):
        if Tg < 32: dmaA(Tg)
        elif Tg < 39:
            a(f"s_add_u32 m0, s48, {slot2(Tg)+8192}\n s_add_u32 s49, s57, {(Tg-32)*8192}")
            a(f"buffer_load_dwordx4 v{vF}, s[{sTT}:{sTT+3}], s49 offen lds"); vm.issue(("g", Tg))
        elif Tg < 53:
            a(f"s_add_u32 m0, s48, {slot2(Tg)+8192}\n s_add_u32 s49, s55, {64*(Tg-39)*896}")
            a(f"buffer_load_dwordx4 v{vB3}, s[{sWO}:{sWO+3}], s49 offen lds"); vm.issue(("g", Tg))
    def dmaD(Tg):
        if Tg < 32: dmaB(Tg)
        elif Tg < 39:
            a(f"s_add_u32 m0, s48, {slot2(Tg)}\n s_add_u32 s49, s56, {(Tg-32)*64*4096}")
            a(f"buffer_load_dwordx4 v{vY3}, s[{sWS}:{sWS+3}], s49 offen sc1 lds"); vm.issue(("g", Tg))
        elif Tg < 53:
            a(f"s_add_u32 m0, s48, {slot2(Tg)}\n s_add_u32 s49, s54, {4*(Tg-39)*1024}")
            a(f"buffer_load_dwordx4 v{vF}, s[{sWS}:{sWS+3}], s49 offen sc1 lds"); vm.issue(("g", Tg))
    a(f"s_waitcnt vmcnt({vm.wait('fin')})\n s_barrier")
    set_flag("L_FU", 60)
    poll_pipe("L_CZ", 89, 240)
    a("s_barrier")
    stg(25); dbgt(8)
    for Tg in range(D): dmaB(Tg)
    def win(Tg): sl = PERM[Tg % 6]; return sl >> 1, (sl & 1)*S2
    def rd2(Tg, k):
        b = FR+32*(Tg & 1); w_, so = win(Tg)
        return [f"ds_read_b64_tr_b16 v[{b+8*k+2*tt}:{b+8*k+2*tt+1}], v{vTR2+w_} offset:{so+16384+2048*k+256*tt}" for tt in range(2)] + \
               [f"ds_read_b128 v[{b+8*k+4}:{b+8*k+7}], v{vWA+4*w_+k} offset:{so}"]
    def mf2(Tg):
        b = FR+32*(Tg & 1)
        return [f"v_mfma_f32_32x32x16_bf16 v[{AC}:{AC+15}], v[{b+8*k}:{b+8*k+3}], v[{b+8*k+4}:{b+8*k+7}], " + ("0" if (Tg == 0 and k == 0) else f"v[{AC}:{AC+15}]") for k in range(4)]
    def late_loads():
        a(f"s_add_u32 s49, s45, {Z1}" if Z1 else "s_mov_b32 s49, s45")
        for q in range(2):
            a(f"buffer_load_dwordx4 v[{ZR+4*q}:{ZR+4*q+3}], v{vF}, s[{sWS}:{sWS+3}], s49 offen offset:{q*1024} sc1"); vm.issue("z1")
        a("s_and_b32 s46, s43, 1\n s_lshl_b32 s46, s46, 3\n s_add_u32 s46, s46, s86\n s_lshl_b32 s46, s46, 6")
        a("s_and_b32 s47, s84, 3\n s_lshl_b32 s47, s47, 1\n s_lshr_b32 s49, s43, 1\n s_add_u32 s47, s47, s49\n s_lshl_b32 s47, s47, 3\n s_add_u32 s46, s46, s47\n s_lshl_b32 s46, s46, 1")
        a(f"v_bfe_u32 v{T}, v1, 3, 2\n v_and_b32 v{T+1}, 7, v1\n v_lshlrev_b32 v{T}, 7, v{T}\n v_lshl_add_u32 v{T}, v{T+1}, 1, v{T}")
        a(f"buffer_load_ushort v{BS}, v{T}, s[{sBS}:{sBS+3}], s46 offen"); vm.issue("z1")
        a(f"buffer_load_dwordx4 v[{XR}:{XR+3}], v{vO3}, s[{sX}:{sX+3}], s58 offen"); vm.issue("z1")
    n0 = len(a.lines)
    a(f"s_mov_b32 s47, {hex(f32bits(C2))}\n v_mov_b32 v{GT+8}, {hex(f32bits(C1))}")
    for q in range(0, 16, 4):
        R = [Z1F+q+i for i in range(4)]; Tt = [GT+i for i in range(4)]
        for i in range(2): a(f"v_lshlrev_b32 v{R[2*i]}, 16, v{ZR+q//2+i}\n v_and_b32 v{R[2*i+1]}, 0xffff0000, v{ZR+q//2+i}")
        for i in range(4): a(f"v_mul_f32 v{Tt[i]}, v{R[i]}, v{R[i]}")
        for i in range(4): a(f"v_fma_f32 v{Tt[i]}, v{Tt[i]}, s47, v{GT+8}")
        for i in range(4): a(f"v_mul_f32 v{Tt[i]}, v{Tt[i]}, v{R[i]}")
        for i in range(4): a(f"v_exp_f32 v{Tt[i]}, v{Tt[i]}")
        for i in range(4): a(f"v_add_f32 v{Tt[i]}, 1.0, v{Tt[i]}")
        for i in range(4): a(f"v_rcp_f32 v{Tt[i]}, v{Tt[i]}")
        for i in range(4): a(f"v_mul_f32 v{Tt[i]}, v{Tt[i]}, v{R[i]}")
        for i in range(4): a(f"v_cvt_pk_bf16_f32 v{R[i]}, 0, v{Tt[i]}")
    a(f"v_lshlrev_b32 v{BS}, 16, v{BS}")
    gl = a.lines[n0:]; del a.lines[n0:]
    PY = 160
    WM = 164
    U_T, Y_T = 7, 27
    for Tg in range(32):
        n = vm.wait(("g", Tg))
        a(f"s_waitcnt vmcnt({n})")
        if Tg == U_T: poll_check("L_CU", 90, vPOLL, covered=True)
        if Tg == Y_T: poll_check("L_CY", 62, PY, covered=True)
        a("s_barrier")
        stg(26+Tg)
        def issue():
            if Tg == U_T-D: poll_issue("L_PU", 90, vPOLL)
            if Tg == Y_T-D: poll_issue("L_PY", 62, PY)
            if Tg == U_T: late_loads()
            if Tg == Y_T:
                a(f"s_mov_b32 s49, {WMAX}")
                a(f"buffer_load_dwordx4 v[{WM}:{WM+3}], v{vF}, s[{sWS}:{sWS+3}], s49 offen sc1"); vm.issue("wm")
            dmaI(Tg+D); dmaD(Tg+D)
        rd = rd2(Tg, 0)+rd2(Tg, 1)+rd2(Tg, 2)+rd2(Tg, 3)
        body(mf2(Tg-1) if Tg > 0 else [], rd, issue, gl if Tg >= U_T+6 else None, 3)
        a("s_waitcnt lgkmcnt(0)")
    assert not gl
    dbgt(9)
    vTR3, vFR3 = 168, 171; FG = 176; AC3 = 208
    a(f"v_bfe_u32 v{T}, v1, 2, 2\n v_lshrrev_b32 v{T+1}, 5, v1")
    a(f"v_bfe_u32 v{T+2}, v1, 4, 1\n v_bfe_u32 v{T+3}, v1, 1, 1\n v_lshl_add_u32 v{T+2}, v{T+2}, 1, v{T+3}")
    a(f"v_lshrrev_b32 v{T+3}, 1, v{T}\n v_lshlrev_b32 v{T+3}, 2, v{T+3}\n v_xor_b32 v{T+2}, v{T+2}, v{T+3}")
    a(f"v_and_b32 v{T+3}, 1, v1\n v_lshlrev_b32 v{T+3}, 3, v{T+3}\n v_lshl_add_u32 v{T+3}, v{T}, 7, v{T+3}")
    a("s_and_b32 s46, s42, 1\n s_bfe_u32 s47, s42, 0x10001")
    a(f"v_and_b32 v{vPA}, 15, v1\n v_min_u32 v{vPA}, 13, v{vPA}\n v_lshlrev_b32 v{vPA}, 7, v{vPA}")
    stg2.pending = None
    a("s_cmp_ge_u32 s42, 4\n s_cbranch_scc1 L_S")
    vm_save = list(vm.ops)
    HF_T, HP_T, HC_T = 35, 37, 38
    EX = slot2(49)
    for path in ("O", "S"):
        vm.ops = list(vm_save); stg2.pending = None
        if path == "S": a("L_S:")
        if path == "O":
            a(f"s_lshl_b32 s49, s47, 2\n v_xor_b32 v{T+2}, s49, v{T+2}\n v_lshl_add_u32 v{vTR3}, v{T+2}, 4, v{T+3}\n v_lshl_add_u32 v{vTR3}, v{T+1}, 9, v{vTR3}\n v_add_u32 v{vTR3}, 8192, v{vTR3}")
            a(f"s_lshl_b32 s49, s46, 12\n v_add_u32 v{vFR3}, s49, v{vF}")
        else:
            a(f"s_lshl_b32 s49, s46, 2\n v_xor_b32 v{T+2}, s49, v{T+2}\n v_lshl_add_u32 v{vTR3}, v{T+2}, 4, v{T+3}\n v_lshl_add_u32 v{vTR3}, v{T+1}, 10, v{vTR3}")
            a(f"s_lshl_b32 s49, s47, 10\n s_add_u32 s49, s49, 8192\n v_add_u32 v{vFR3}, s49, v{vF}")
        for b in (vTR3, vFR3): a(f"v_add_u32 v{b+1}, {2*S2}, v{b}\n v_add_u32 v{b+2}, {4*S2}, v{b}")
        mine = (lambda Tg: 39 <= Tg < 53) if path == "O" else (lambda Tg: 32 <= Tg < 39)
        first = 39 if path == "O" else 32
        def fb(Tg): return (FR if (Tg & 1) == 0 else FG) if False else (FG if (Tg & 1) else FR)
        def rd3(Tg):
            if not mine(Tg): return []
            b = fb(Tg); w_, so = win(Tg); out = []
            for k in range(4):
                for tt in range(2):
                    off = k*2048+tt*(1024 if path == "O" else 512)
                    out.append(f"ds_read_b64_tr_b16 v[{b+8*k+2*tt}:{b+8*k+2*tt+1}], v{vTR3+w_} offset:{so+off}")
                out.append(f"ds_read_b128 v[{b+8*k+4}:{b+8*k+7}], v{vFR3+w_} offset:{so+k*(1024 if path == 'O' else 2048)}")
            return out
        def mf3(Tg):
            if not mine(Tg): return []
            b = fb(Tg); out = []
            for k in range(4):
                cin = "0" if (Tg == first and k == 0) else f"v[{AC3}:{AC3+15}]"
                if path == "O": out.append(f"v_mfma_f32_32x32x16_bf16 v[{AC3}:{AC3+15}], v[{b+8*k}:{b+8*k+3}], v[{b+8*k+4}:{b+8*k+7}], {cin}")
                else: out.append(f"v_mfma_f32_32x32x16_f16 v[{AC3}:{AC3+15}], v[{b+8*k+4}:{b+8*k+7}], v[{b+8*k}:{b+8*k+3}], {cin}")
            return out
        def ex_write():
            a(f"v_and_b32 v{T}, 31, v1\n s_lshl_b32 s49, s46, 5\n v_add_u32 v{T}, s49, v{T}\n v_mul_u32_u24 v{T}, {EXP}, v{T}")
            a(f"v_lshrrev_b32 v{T+1}, 5, v1\n v_lshl_add_u32 v{T}, v{T+1}, 3, v{T}\n s_lshl_b32 s49, s47, 6\n s_add_u32 s49, s49, {EX+(0 if path == 'O' else 64*EXP)}\n v_add_u32 v{T}, s49, v{T}")
            for j in range(4):
                if path == "S":
                    for i in range(4): a(f"v_mul_f32 v{AC3+4*j+i}, v{AC3+4*j+i}, v174")
                a(f"v_cvt_pk_bf16_f32 v{ZR+2*j}, v{AC3+4*j}, v{AC3+4*j+1}\n v_cvt_pk_bf16_f32 v{ZR+2*j+1}, v{AC3+4*j+2}, v{AC3+4*j+3}")
                a(f"ds_write_b64 v{T}, v[{ZR+2*j}:{ZR+2*j+1}] offset:{16*j}")
        for Tg in range(32, 53):
            n = vm.wait(("g", Tg))
            if Tg == HF_T: n = min(n, vm.wait("h"))
            a(f"s_waitcnt vmcnt({n})")
            if Tg == HC_T and path == "O": poll_pipe("L_CH", 61, 240)
            a("s_barrier")
            stg2(Tg-32)
            if Tg == HF_T and path == "O": set_flag("L_FH", 59)
            def issue():
                dmaI(Tg+D)
                if Tg+D < 39 or Tg > HC_T: dmaD(Tg+D)
                if Tg == HC_T:
                    for X in range(39, HC_T+D+1): dmaD(X)
            body(mf2(31) if Tg == 32 else mf3(Tg-1), rd3(Tg), issue)
            if Tg == 32:
                E = FR+32
                for i in range(16): a(f"v_cvt_pk_bf16_f32 v{E+i}, 0, v{AC+i}")
                for i in range(16): a(f"v_add_f32 v{E+i}, v{E+i}, v{BS}")
                for i in range(16): a(f"v_cvt_pk_bf16_f32 v{E+i}, 0, v{E+i}")
                for i in range(16): a(f"v_mul_f32 v{E+i}, v{E+i}, v{Z1F+i}")
                for p in range(8): a(f"v_cvt_pk_bf16_f32 v{E+16+p}, v{E+2*p}, v{E+2*p+1}")
                a(f"s_add_u32 s49, s45, {H}")
                for q in range(2):
                    a(f"buffer_store_dwordx4 v[{E+16+4*q}:{E+19+4*q}], v{vF}, s[{sWS}:{sWS+3}], s49 offen offset:{q*1024} sc1"); vm.issue("h")
            if Tg == 36 and path == "S":
                wmax_reduce(a, WM, 28, 29)
                a(f"s_lshl_b32 s28, s28, 23\n v_mov_b32 v174, {hex(f32bits(1/28))}\n v_mul_f32 v174, s28, v174")
            if Tg == 51 and path == "S": ex_write()
            a("s_waitcnt lgkmcnt(0)")
        if path == "O":
            for l in mf3(52): a(l)
            ex_write()
            a("s_branch L_J3")
    a("L_J3:")
    dbgt(10)
    stg2(21)
    a("s_waitcnt lgkmcnt(0)\n s_barrier")
    a(f"v_lshrrev_b32 v{T}, 3, v0\n v_and_b32 v{T+1}, 7, v0\n v_mul_u32_u24 v{T}, {EXP}, v{T}\n v_lshl_add_u32 v{T}, v{T+1}, 4, v{T}\n v_add_u32 v{T}, {EX}, v{T}")
    O_, S_ = 20, 24; A_, B_ = 32, 40
    a(f"ds_read_b128 v[{O_}:{O_+3}], v{T}\n ds_read_b128 v[{S_}:{S_+3}], v{T} offset:{64*EXP}")
    a(f"s_mov_b32 s46, {hex(f32bits(-math.log2(math.e)))}\n s_mov_b32 s47, s46")
    a("s_waitcnt lgkmcnt(0)")
    for p in range(4): a(f"v_lshlrev_b32 v{A_+2*p}, 16, v{O_+p}\n v_and_b32 v{A_+2*p+1}, 0xffff0000, v{O_+p}")
    for p in range(4): a(f"v_pk_mul_f32 v[{B_+2*p}:{B_+2*p+1}], v[{A_+2*p}:{A_+2*p+1}], s[46:47]")
    for i in range(8): a(f"v_exp_f32 v{B_+i}, v{B_+i}")
    for p in range(4): a(f"v_pk_add_f32 v[{B_+2*p}:{B_+2*p+1}], v[{B_+2*p}:{B_+2*p+1}], 1.0 op_sel_hi:[1,0]")
    for i in range(8): a(f"v_rcp_f32 v{B_+i}, v{B_+i}")
    for p in range(4): a(f"v_pk_mul_f32 v[{A_+2*p}:{A_+2*p+1}], v[{A_+2*p}:{A_+2*p+1}], v[{B_+2*p}:{B_+2*p+1}]")
    for i in range(8): a(f"v_cvt_pk_bf16_f32 v{A_+i}, 0, v{A_+i}")
    for p in range(4): a(f"v_lshlrev_b32 v{B_+2*p}, 16, v{S_+p}\n v_and_b32 v{B_+2*p+1}, 0xffff0000, v{S_+p}")
    for p in range(4): a(f"v_pk_mul_f32 v[{A_+2*p}:{A_+2*p+1}], v[{A_+2*p}:{A_+2*p+1}], v[{B_+2*p}:{B_+2*p+1}]")
    for i in range(8): a(f"v_cvt_pk_bf16_f32 v{A_+i}, 0, v{A_+i}")
    for p in range(4): a(f"v_lshlrev_b32 v{B_+2*p}, 16, v{XR+p}\n v_and_b32 v{B_+2*p+1}, 0xffff0000, v{XR+p}")
    for p in range(4): a(f"v_pk_add_f32 v[{A_+2*p}:{A_+2*p+1}], v[{A_+2*p}:{A_+2*p+1}], v[{B_+2*p}:{B_+2*p+1}]")
    for p in range(4): a(f"v_cvt_pk_bf16_f32 v{O_+p}, v{A_+2*p}, v{A_+2*p+1}")
    a(f"buffer_store_dwordx4 v[{O_}:{O_+3}], v{vO3}, s[{sOUT}:{sOUT+3}], s58 offen")
    def prof_end():
        if not PROF: return
        stg2(22); a("s_waitcnt vmcnt(0)"); stg2(23)
        a("s_memrealtime s[94:95]\n s_waitcnt lgkmcnt(0)")
        a("v_writelane_b32 v247, s100, 23\n v_writelane_b32 v247, s96, 62\n v_writelane_b32 v247, s94, 63")
        a(f"s_lshl_b32 s98, s2, 3\n s_add_u32 s98, s98, s42\n s_lshl_b32 s98, s98, 9\n s_add_u32 s98, s98, {TS}")
        a(f"v_lshlrev_b32 v251, 2, v1\n buffer_store_dword v246, v251, s[{sWS}:{sWS+3}], s98 offen\n buffer_store_dword v247, v251, s[{sWS}:{sWS+3}], s98 offen offset:256")
    prof_end()
    dbgt(11); dbgt(3, "max")
    a("s_endpgm")
    gen_aux(a, locals())
    a("L_END:\n s_endpgm")
    a.raw(kd(NAME, 256, 102))

def gen_aux(a, L):
    sWS, sDBG, sSP, sBS = L["sWS"], L["sDBG"], L["sSP"], L["sBS"]
    vZERO, vPOLL, vPA, vF = L["vZERO"], L["vPOLL"], L["vPA"], L["vF"]
    stg, stg2 = L["stg"], L["stg2"]
    get_nonce, poll_check = L["get_nonce"], L["poll_check"]
    a("L_AUX:")
    stg.pending = 0; stg2.pending = None
    sWR, sWI, sTB = 4, 8, 16
    srd(a, sWR, 28, 2048*450); srd(a, sWI, 30, 2048*450)
    pc_srd(a, sTB, "TAB_FFT", FT_BYTES)
    a("s_sub_u32 s41, s41, 28")
    a("s_lshl_b32 s43, s41, 3\n s_add_u32 s43, s43, s40")
    a("s_cmp_lg_u32 s41, 0\n s_cbranch_scc1 L_NOCODE")
    pc_srd(a, 44, NAME, "L_END-"+NAME)
    a("v_lshlrev_b32 v5, 7, v0\n buffer_load_dword v254, v5, s[44:47], 0 offen")
    a("L_NOCODE:")
    a("s_lshr_b32 s44, s43, 1\n s_lshl_b32 s44, s44, 2\n s_and_b32 s45, s42, 3\n s_add_u32 s44, s44, s45\n s_lshl_b32 s44, s44, 5")
    a("s_and_b32 s45, s43, 1\n s_lshl_b32 s45, s45, 4\n s_add_u32 s44, s44, s45\n s_mul_i32 s44, s44, 450")
    WL = 65536
    a(f"s_lshl_b32 s46, s42, 13\n s_add_u32 s46, s46, {WL}")
    a("s_cmp_ge_u32 s42, 4\n s_cbranch_scc1 L_AUXI")
    for arr, sr in (("R", sWR), ("I", sWI)):
        if arr == "I": a("L_AUXI:")
        for i in range(8):
            a(f"s_add_u32 m0, s46, {i*1024}\n s_add_u32 s47, s44, {i*1024}")
            a(f"buffer_load_dwordx4 v{vF}, s[{sr}:{sr+3}], s47 offen lds")
        if arr == "R": a("s_branch L_AUXJ")
    a("L_AUXJ:")
    a("s_mul_i32 s45, s42, 7168")
    for i in range(7):
        a(f"s_add_u32 m0, s45, {i*1024}\n s_add_u32 s46, s45, {i*1024}")
        a(f"buffer_load_dwordx4 v{vF}, s[{sTB}:{sTB+3}], s46 offen lds")
    a(f"buffer_load_dword v{vPOLL}, v{vZERO}, s[{sDBG}:{sDBG+3}], 0 offen sc1")
    a("v_and_b32 v5, 63, v0\n v_lshlrev_b32 v5, 12, v5\n v_lshrrev_b32 v6, 6, v0\n v_lshl_add_u32 v5, v6, 7, v5\n s_lshl_b32 s47, s43, 18")
    a(f"buffer_load_dword v252, v5, s[{sSP}:{sSP+3}], s47 offen")
    a("s_waitcnt vmcnt(1)\n s_barrier")
    stg(1)
    a("v_and_b32 v6, 15, v0\n v_lshrrev_b32 v7, 4, v0")
    a(f"v_mul_u32_u24 v8, 450, v6\n v_lshl_add_u32 v8, v7, 1, v8\n v_add_u32 v8, {WL}, v8")
    a("v_lshlrev_b32 v9, 13, v7\n v_lshl_add_u32 v9, v6, 4, v9")
    a(f"s_lshl_b32 s48, s43, 8\n s_add_u32 s48, s48, {WP}")
    a("v_mov_b32 v10, 0")
    for it in range(8):
        d = 16+4*it
        for r in range(4):
            a(f"ds_read_u16 v{d+r}, v8 offset:{r*8192+64*it}")
            a(f"ds_read_u16 v{d+r+96}, v8 offset:{(4+r)*8192+64*it}")
    get_nonce("L_ANON")
    a("s_waitcnt lgkmcnt(0)")
    for it in range(8):
        d = 16+4*it
        for r in range(4): a(f"v_lshl_or_b32 v{d+r}, v{d+r+96}, 16, v{d+r}")
        if it == 7:
            a("v_cmp_gt_u32 vcc, 16, v0\n s_and_saveexec_b64 s[50:51], vcc\n s_cbranch_execz L_AUXSK")
        a(f"buffer_store_dwordx4 v[{d}:{d+3}], v9, s[{sWS}:{sWS+3}], s48 offen sc1")
        for r in range(4):
            a(f"v_and_b32 v{12+(r&1)}, 0x7fff7fff, v{d+r}\n v_pk_max_u16 v10, v10, v{12+(r&1)}")
        if it < 7: a(f"s_add_u32 s48, s48, {32*8192}")
    a("L_AUXSK:\n s_mov_b64 exec, -1")
    a("v_lshrrev_b32 v11, 16, v10\n v_and_b32 v10, 0xffff, v10\n v_max_u32 v10, v10, v11")
    a("v_max_u32_dpp v10, v10, v10 quad_perm:[1,0,3,2] row_mask:0xf bank_mask:0xf")
    a("v_max_u32_dpp v10, v10, v10 quad_perm:[2,3,0,1] row_mask:0xf bank_mask:0xf")
    a("v_max_u32_dpp v10, v10, v10 row_half_mirror row_mask:0xf bank_mask:0xf")
    a("v_max_u32_dpp v10, v10, v10 row_mirror row_mask:0xf bank_mask:0xf")
    a("v_readlane_b32 s50, v10, 0\n v_readlane_b32 s51, v10, 16\n v_readlane_b32 s52, v10, 32\n v_readlane_b32 s53, v10, 48")
    a("s_max_u32 s50, s50, s51\n s_max_u32 s52, s52, s53\n s_max_u32 s50, s50, s52")
    a(f"s_lshl_b32 s49, s43, 3\n s_add_u32 s49, s49, s42\n s_lshl_b32 s49, s49, 2\n s_add_u32 s49, s49, {WMAX}")
    a("v_mov_b32 v10, s50\n s_mov_b64 exec, 1")
    a(f"buffer_store_dword v10, v{vZERO}, s[{sWS}:{sWS+3}], s49 offen sc1")
    a("s_mov_b64 exec, -1")
    a("s_waitcnt vmcnt(0)\n s_barrier")
    stg(2)
    a(f"s_lshl_b32 s49, s43, 7\n s_add_u32 s49, s49, {FLW}")
    L["set_flag"]("L_FW", 49)
    for rnd in range(1, WSP_K1//8):
        a(f"buffer_load_dword v{252+rnd}, v5, s[{sSP}:{sSP+3}], s47 offen offset:{1024*rnd}")
    a(f"v_mov_b32 v8, {SX}\n ds_write_b32 v8, v{vZERO}")
    a(f"v_and_b32 v{vPA}, 31, v1\n v_lshlrev_b32 v{vPA}, 7, v{vPA}\n s_mov_b32 s59, {FLW}")
    L["poll_issue"]("L_PW", 59, vPOLL)
    poll_check("L_CW", 59, vPOLL, sleep=16)
    a("s_barrier")
    a("s_mul_i32 s44, s43, 7\n s_add_u32 s44, s44, s42\n s_cmp_eq_u32 s42, 7\n s_cselect_b32 s44, 224, s44")
    a(f"s_mov_b32 s53, {WMAX}\n buffer_load_dwordx4 v[12:15], v{vF}, s[{sWS}:{sWS+3}], s53 offen sc1")
    a(f"s_lshl_b32 s54, s44, 13\n s_add_u32 s54, s54, {WP}\n s_add_u32 s55, s54, 4096")
    for i in range(8):
        a(f"buffer_load_dwordx4 v[{128+4*i}:{131+4*i}], v{vF}, s[{sWS}:{sWS+3}], s{54 if i < 4 else 55} offen offset:{(i&3)*1024} sc1")
    a("s_mul_i32 s51, s43, 14\n s_add_u32 s52, s51, 13\n s_lshr_b32 s51, s51, 6\n s_lshr_b32 s52, s52, 6\n s_lshl_b32 s51, s51, 12\n s_lshl_b32 s52, s52, 12")
    a(f"v_mov_b32 v8, s51\n v_mov_b32 v9, s52\n v_cmp_gt_u32 vcc, 32, v1\n v_cndmask_b32 v8, v9, v8, vcc\n v_add_u32 v{vPA}, v{vPA}, v8\n s_mov_b32 s59, {FLU}")
    L["poll_issue"]("L_PF", 59, vPOLL)
    poll_check("L_CF", 59, vPOLL, sleep=8)
    a("s_waitcnt lgkmcnt(0)\n s_barrier")
    stg(3)
    a("s_cmp_lg_u32 s42, 7\n s_cbranch_scc1 L_FFT0\n s_cmp_lg_u32 s43, 0\n s_cbranch_scc1 L_PFW\nL_FFT0:")

    vL = vF
    OPR, OPI, OPN = 16, 32, 48
    DR, DI = 64, 96
    WV = 128; C32 = 160; CF = 184; TWB = 216
    a("s_lshl_b32 s48, s44, 1\n s_add_u32 s49, s48, 1\n s_min_u32 s49, s49, 447\n s_cmp_eq_u32 s44, 224\n s_cselect_b32 s48, 1, s48")
    a("s_cmp_eq_u32 s44, 224\n s_cselect_b32 s58, 1, 0\n s_cmp_eq_u32 s44, 0\n s_cselect_b32 s58, 1, s58")
    a(f"s_lshl_b32 s48, s48, 12\n s_lshl_b32 s49, s49, 12\n s_add_u32 s51, s48, {U}\n s_add_u32 s52, s49, {U}")
    a(f"v_and_b32 v5, 31, v1\n v_lshrrev_b32 v6, 5, v1\n v_lshlrev_b32 v7, 4, v5\n v_lshl_add_u32 v7, v6, 10, v7")
    for mt in range(2):
        for c in range(2):
            f = 2*mt+c
            a(f"buffer_load_dwordx4 v[{OPR+4*f}:{OPR+4*f+3}], v7, s[{sWS}:{sWS+3}], s51 offen offset:{(32*mt+128*c)*16} sc1")
            a(f"buffer_load_dwordx4 v[{OPI+4*f}:{OPI+4*f+3}], v7, s[{sWS}:{sWS+3}], s52 offen offset:{(32*mt+128*c)*16} sc1")
    for i in range(6): a(f"ds_read_b128 v[{C32+4*i}:{C32+4*i+3}], v{vL} offset:{O_C32+i*1024}")
    CR = lambda c: f"v[{C32+4*c}:{C32+4*c+3}]"
    CI = lambda c: f"v[{C32+8+4*c}:{C32+8+4*c+3}]"
    CN = lambda c: f"v[{C32+16+4*c}:{C32+16+4*c+3}]"
    op = lambda base, f: f"v[{base+4*f}:{base+4*f+3}]"
    dd = lambda base, t: f"v[{base+16*t}:{base+16*t+15}]"
    a("s_waitcnt vmcnt(8)")
    wmax_reduce(a, 12, 53, 28)
    a("s_sub_u32 s56, 254, s53\n s_sub_u32 s56, s56, s58\n s_lshl_b32 s56, s56, 23\n s_mov_b32 s57, s56")
    a("s_waitcnt vmcnt(0)")
    a("s_cmp_eq_u32 s58, 0\n s_cbranch_scc1 L_NSP")
    for i in range(16): a(f"v_mov_b32 v{OPI+i}, 0")
    a("L_NSP:")
    a("s_waitcnt lgkmcnt(0)")
    stg(4)
    def mfma(d, x, y, first): a(f"v_mfma_f32_32x32x16_f16 {d}, {x}, {y}, {'0' if first else d}")
    for mt in range(2):
        for c in range(2):
            f = 2*mt+c
            mfma(dd(DR, mt), op(OPR, f), CR(c), c == 0); mfma(dd(DI, mt), op(OPR, f), CI(c), c == 0)
            mfma(dd(DR, mt), op(OPI, f), CN(c), False); mfma(dd(DI, mt), op(OPI, f), CR(c), False)
    def twiddle(otab, neg):
        def ld(g):
            b = TWB+8*(g % 3)
            a(f"ds_read_b128 v[{b}:{b+3}], v{vL} offset:{otab+g*2048}")
            a(f"ds_read_b128 v[{b+4}:{b+7}], v{vL} offset:{otab+g*2048+1024}")
        for g in range(2): ld(g)
        for g in range(8):
            if g+2 < 8: ld(g+2)
            a(f"s_waitcnt lgkmcnt({2*min(2, 7-g)})")
            b = TWB+8*(g % 3)
            v = 4*g
            for i in range(4): a(f"v_mul_f32 v{8+i}, v{DR+v+i}, v{b+i}\n v_mul_f32 v{12+i}, v{DR+v+i}, v{b+4+i}")
            for i in range(4): a(f"v_fma_f32 v{8+i}, -v{DI+v+i}, v{b+4+i}, v{8+i}\n v_fmac_f32 v{12+i}, v{DI+v+i}, v{b+i}")
            for pr in range(2):
                a(f"v_cvt_pk_f16_f32 v{OPR+v//2+pr}, v{8+2*pr}, v{9+2*pr}\n v_cvt_pk_f16_f32 v{OPI+v//2+pr}, v{12+2*pr}, v{13+2*pr}")
            if neg:
                for pr in range(2): a(f"v_xor_b32 v{OPN+v//2+pr}, 0x80008000, v{OPI+v//2+pr}")
    def big(step):
        def ld(i):
            b = CF+8*(i & 3)
            a(f"ds_read_b128 v[{b}:{b+3}], v{vL} offset:{O_C64R+i*1024}")
            a(f"ds_read_b128 v[{b+4}:{b+7}], v{vL} offset:{O_C64I+i*1024}")
        for i in range(3): ld(i)
        for i in range(8):
            if i+3 < 8: ld(i+3)
            a(f"s_waitcnt lgkmcnt({2*min(3, 7-i)})")
            b = CF+8*(i & 3); cr = f"v[{b}:{b+3}]"; ci = f"v[{b+4}:{b+7}]"
            t = i >> 2; c = i & 3
            if step == 3:
                mfma(dd(DR, t), cr, op(OPR, c), c == 0); mfma(dd(DI, t), ci, op(OPR, c), c == 0)
                mfma(dd(DR, t), ci, op(OPN, c), False); mfma(dd(DI, t), cr, op(OPI, c), False)
            else:
                mfma(dd(DR, t), op(OPR, c), cr, c == 0); mfma(dd(DI, t), op(OPI, c), cr, c == 0)
                mfma(dd(DR, t), op(OPI, c), ci, False); mfma(dd(DI, t), op(OPN, c), ci, False)
    twiddle(O_TW1, True)
    stg(5)
    big(3)
    stg(6)
    a("s_waitcnt vmcnt(0)")
    for v in range(0, 32, 4):
        b = TWB+8*((v >> 2) % 3)
        for i in range(4): a(f"v_lshlrev_b32 v{b+i}, 16, v{WV+v+i}\n v_and_b32 v{b+4+i}, 0xffff0000, v{WV+v+i}")
        for i in range(8): a(f"v_mul_f32 v{b+i}, s56, v{b+i}")
        for i in range(4): a(f"v_mul_f32 v{8+i}, v{DR+v+i}, v{b+i}\n v_mul_f32 v{12+i}, v{DR+v+i}, v{b+4+i}")
        for i in range(4): a(f"v_fma_f32 v{8+i}, -v{DI+v+i}, v{b+4+i}, v{8+i}\n v_fmac_f32 v{12+i}, v{DI+v+i}, v{b+i}")
        for pr in range(2):
            a(f"v_cvt_pk_f16_f32 v{OPR+v//2+pr}, v{8+2*pr}, v{9+2*pr}\n v_cvt_pk_f16_f32 v{OPI+v//2+pr}, v{12+2*pr}, v{13+2*pr}")
        for pr in range(2): a(f"v_xor_b32 v{OPN+v//2+pr}, 0x80008000, v{OPR+v//2+pr}")
    stg(7)
    big(5)
    stg(8)
    twiddle(O_TW2, False)
    stg(9)
    for nt in range(2):
        for c in range(2):
            f = 2*nt+c
            mfma(dd(DR, nt), op(OPR, f), CR(c), c == 0); mfma(dd(DI, nt), op(OPI, f), CR(c), c == 0)
            mfma(dd(DR, nt), op(OPI, f), CI(c), False); mfma(dd(DI, nt), op(OPR, f), CN(c), False)
    a("v_lshlrev_b32 v7, 4, v5\n v_lshl_add_u32 v7, v6, 9, v7")
    a(f"s_add_u32 s51, s48, {YT}\n s_add_u32 s52, s49, {YT}")
    for part, base, sreg in ((0, DR, 51), (1, DI, 52)):
        if part == 1: a("s_cmp_lg_u32 s58, 0\n s_cbranch_scc1 L_FDONE")
        for nt in range(2):
            for q in range(2):
                o = WV+16*part+8*nt+4*q; v = base+16*nt+8*q
                for i in range(4): a(f"v_cvt_pk_f16_f32 v{o+i}, v{v+2*i}, v{v+2*i+1}")
                a(f"v_permlane32_swap_b32 v{o}, v{o+2}\n v_permlane32_swap_b32 v{o+1}, v{o+3}")
                a(f"buffer_store_dwordx4 v[{o}:{o+3}], v7, s[{sWS}:{sWS+3}], s{sreg} offen offset:{(4*nt+2*q)*512} sc1")
    a("L_FDONE:")
    stg(10)
    a("s_waitcnt vmcnt(0)")
    a(f"v_mov_b32 v8, {SX}\n v_mov_b32 v9, 1\n s_mov_b64 exec, 1\n ds_add_rtn_u32 v9, v8, v9\n s_waitcnt lgkmcnt(0)\n v_readfirstlane_b32 s49, v9")
    a("s_cmp_eq_u32 s43, 0\n s_cselect_b32 s50, 7, 6\n s_cmp_lg_u32 s49, s50\n s_cbranch_scc1 L_NFY")
    a(f"s_lshl_b32 s49, s43, 7\n s_add_u32 s49, s49, {FLY}\n v_mov_b32 v{vPOLL}, s63")
    a(f"buffer_store_dword v{vPOLL}, v{vZERO}, s[{sWS}:{sWS+3}], s49 offen sc1")
    a("L_NFY:\n s_mov_b64 exec, -1")
    stg(11)
    if PROF:
        a("s_waitcnt lgkmcnt(0)\n v_writelane_b32 v246, s100, 11")
        stg2.pending = None
        L["prof_end"]()
    a("s_endpgm")
    a("L_PFW:")
    a(f"v_lshlrev_b32 v5, 7, v1\n buffer_load_dword v6, v5, s[{sBS}:{sBS+3}], 0 offen")
    a("s_sleep 8")
    NL = (32-WSP_K1)*2048
    a("s_sub_u32 s58, s43, 1\n s_lshl_b32 s58, s58, 6\n v_add_u32 v13, s58, v1")
    for it in range(-(-NL//(31*64))):
        a(f"v_and_b32 v14, 2047, v13\n v_lshrrev_b32 v15, 11, v13\n v_min_u32 v15, {31-WSP_K1}, v15\n v_lshlrev_b32 v14, 12, v14\n v_lshl_add_u32 v14, v15, 7, v14")
        a(f"buffer_load_dword v{20+it}, v14, s[{sSP}:{sSP+3}], 0 offen offset:{128*WSP_K1}")
        a(f"v_add_u32 v13, {31*64}, v13")
    pc_srd(a, 8, "TAB_TT", 7*56*1024)
    srd(a, 4, 82, 896*896)
    a("s_sub_u32 s44, s43, 1\n s_lshl_b32 s44, s44, 13\n s_mov_b32 s45, s44")
    for i in range(4): a(f"buffer_load_dword v{8+i}, v5, s[4:7], s44 offen\n s_add_u32 s44, s44, {31*8192}")
    for i in range(2): a(f"buffer_load_dword v{16+i}, v5, s[8:11], s45 offen\n s_add_u32 s45, s45, {31*8192}")
    a("s_endpgm")
```

```python
from asmlib import Asm, Vm
from common import *
from k1 import gelu_pairs, red8, halfsum, var_to_rs, C1, C2
from k2 import O_C64R, O_C64I, O_TW1, O_TW2, O_C32, FT_BYTES, wmax_reduce
import math

NAME = "recurrent_scan__spectral_gfnet__mixer_gmlp__prompt_kernel"
S1 = 16384; N1 = 6; XN = N1*S1
S2 = 24576; PERM = [4, 5, 2, 3, 0, 1]
UX = 147456; UXP = 144
SX = 156672
LDS_BYTES = SX+4096
EXP = 144
FL = 0x1310000
FLZ, FLU, FLW, FLH, FLY = FL, FL+0x8000, FL+0x10000, FL+0x18000, FL+0x20000
LD_T, CHK_T = 14, 17
WSP_K1 = int(os.environ.get("WSPK", "8"))
SPIN = 0x4000
CODE_BYTES = 40960
D = 5

XA = os.environ.get("XA", ""); XB = os.environ.get("XB", "sc1")
DBGT = bool(int(os.environ.get("DBGT", "0")))
def gen(a):
    a(f".text\n.globl {NAME}\n.p2align 8\n.type {NAME},@function\n{NAME}:")
    sX, sWIN, sWS, sFT, sDBG, sSP = 4, 8, 12, 16, 20, 24
    sWO, sTT, sOUT, sBS, sC = 8, 16, 64, 68, 72
    stg = StageStamps(a, 246); stg2 = StageStamps(a, 247)
    a("s_cmp_ge_u32 s2, 256\n s_cbranch_scc1 L_END")
    if PROF or DBGT: a("s_memrealtime s[96:97]")
    stg(0)
    a("s_load_dwordx2 s[76:77], s[0:1], 0")
    a("s_load_dwordx4 s[28:31], s[0:1], 8")
    a("s_load_dwordx4 s[32:35], s[0:1], 32")
    a("s_load_dwordx4 s[36:39], s[0:1], 72")
    a("s_load_dwordx4 s[80:83], s[0:1], 48")
    a("s_load_dwordx2 s[78:79], s[0:1], 64")
    a("s_and_b32 s40, s2, 7\n s_lshr_b32 s41, s2, 3")
    a("v_lshrrev_b32 v2, 6, v0\n v_and_b32 v1, 63, v0")
    a("v_readfirstlane_b32 s42, v2")
    pc_srd(a, sFT, "TAB_FT", 7*14*8*1024)
    vXo, vZ, vF, vW = 2, 3, 4, 5
    vTR = 6; vAA = 12
    XF = 16; BF = 128; ACC = 160; ACC2 = 176; ZP = 192; TMP = 200; VC1 = 226; PS = 228
    vA2, vB2 = 244, 245; VPF = 252; vZERO = 248; vPOLL = 249; vPA = 250
    a("s_and_b32 s62, s40, 3\n s_mul_i32 s43, s62, 28\n s_add_u32 s43, s43, s41\n s_lshr_b32 s44, s43, 4\n s_and_b32 s43, s43, 15")
    a("s_lshr_b32 s45, s40, 2\n s_lshl_b32 s45, s45, 4\n s_add_u32 s43, s43, s45")
    a("s_lshr_b32 s45, s43, 4\n s_lshl_b32 s45, s45, 4")
    a("s_lshr_b32 s46, s42, 2\n s_lshl_b32 s46, s46, 3\n s_add_u32 s45, s45, s46")
    a("s_bfe_u32 s46, s43, 0x10003\n s_lshl_b32 s46, s46, 2\n s_add_u32 s45, s45, s46")
    a("s_and_b32 s46, s42, 3\n s_add_u32 s45, s45, s46")
    a("s_lshl_b32 s45, s45, 6\n s_and_b32 s46, s43, 7\n s_lshl_b32 s46, s46, 3\n s_add_u32 s45, s45, s46")
    a("s_mul_i32 s45, s45, 896")
    a(f"v_lshrrev_b32 v{TMP}, 3, v1\n v_and_b32 v{TMP+1}, 7, v1")
    a(f"v_mul_u32_u24 v{vXo}, 896, v{TMP}\n v_lshl_add_u32 v{vXo}, v{TMP+1}, 4, v{vXo}")
    a(f"v_mov_b32 v{vZERO}, 0\n v_lshlrev_b32 v{vF}, 4, v1")
    a("s_waitcnt lgkmcnt(0)")
    srd(a, sX, 76, 2048*896)
    a("s_cmp_ge_u32 s41, 28\n s_cbranch_scc1 L_AUX0")
    vm = Vm()
    for cc in range(7):
        a(f"buffer_load_dwordx4 v[{BF+4*cc}:{BF+4*cc+3}], v{vXo}, s[{sX}:{sX+3}], s45 offen offset:{128*cc}"); vm.issue("x")
    a("L_AUX0:")
    srd(a, sWIN, 32, 448*3584); srd(a, sWS, 38, WS_BYTES); srd(a, sDBG, 36, 256); srd(a, sSP, 34, 2048*4096)
    srd(a, sOUT, 78, 2048*896); srd(a, sBS, 80, 4096)
    a("s_cmp_ge_u32 s41, 28\n s_cbranch_scc1 L_AUX")

    dlist = []
    def dbgt(idx, op=None):
        if not DBGT or op is not None: return
        a(f"s_memrealtime s[98:99]\n s_waitcnt lgkmcnt(0)\n v_writelane_b32 v247, s98, {idx}")
    def dbg_flush():
        if not DBGT: return
        a("s_cmp_lg_u32 s42, 0\n s_cbranch_scc1 L_DBGE")
        a("v_writelane_b32 v247, s96, 4")
        a("v_not_b32 v246, v247\n v_lshlrev_b32 v251, 3, v1\n v_subrev_u32 v251, 24, v251")
        a("s_mov_b64 exec, 0x7f0")
        a(f"buffer_atomic_umax v247, v251, s[{sDBG}:{sDBG+3}], 0 offen\n buffer_atomic_umax v246, v251, s[{sDBG}:{sDBG+3}], 0 offen offset:4")
        a("s_mov_b64 exec, -1\nL_DBGE:")
    def get_nonce(lbl):
        a(f"s_mov_b32 s50, 0\n{lbl}:")
        a(f"v_readfirstlane_b32 s63, v{vPOLL}")
        a(f"s_add_u32 s50, s50, 1\n s_cmp_lg_u32 s63, 0\n s_cbranch_scc1 {lbl}_OK")
        a(f"s_cmp_ge_u32 s50, {SPIN}\n s_cbranch_scc1 {lbl}_OK")
        a(f"s_sleep 4\n buffer_load_dword v{vPOLL}, v{vZERO}, s[{sDBG}:{sDBG+3}], 0 offen sc1\n s_waitcnt vmcnt(0)\n s_branch {lbl}")
        a(f"{lbl}_OK:")
    def set_flag(lbl, soff):
        a(f"s_cmp_lg_u32 s42, 0\n s_cbranch_scc1 {lbl}")
        a(f"v_mov_b32 v{vPOLL}, s63\n s_mov_b64 exec, 1")
        a(f"buffer_store_dword v{vPOLL}, v{vZERO}, s[{sWS}:{sWS+3}], s{soff} offen sc1")
        a(f"s_mov_b64 exec, -1\n{lbl}:")
    def poll_issue(lbl, soff, vdst, wide=False):
        a(f"s_cmp_lg_u32 s42, 0\n s_cbranch_scc1 {lbl}")
        if wide: a(f"buffer_load_dwordx4 v[{vdst}:{vdst+3}], v{vF}, s[{sWS}:{sWS+3}], s{soff} offen sc1")
        else: a(f"buffer_load_dword v{vdst}, v{vPA}, s[{sWS}:{sWS+3}], s{soff} offen sc1")
        a(f"{lbl}:")
    def poll_check(lbl, soff, vdst, wide=False, allwaves=False, sleep=2, covered=False):
        if not allwaves: a(f"s_cmp_lg_u32 s42, 0\n s_cbranch_scc1 {lbl}_OK")
        a("s_mov_b32 s50, 0")
        if covered: a(f"s_branch {lbl}_1")
        a(f"{lbl}:\n s_waitcnt vmcnt(0)\n{lbl}_1:")
        a(f"v_cmp_eq_u32 vcc, s63, v{vdst}")
        if wide:
            for i in range(1, 4): a(f"v_cmp_eq_u32 s[30:31], s63, v{vdst+i}\n s_and_b64 vcc, vcc, s[30:31]")
        a(f"s_add_u32 s50, s50, 1\n s_cmp_eq_u64 vcc, exec\n s_cbranch_scc1 {lbl}_OK")
        a(f"s_cmp_ge_u32 s50, {SPIN}\n s_cbranch_scc1 {lbl}_OK")
        a(f"s_sleep {sleep}")
        if wide: a(f"buffer_load_dwordx4 v[{vdst}:{vdst+3}], v{vF}, s[{sWS}:{sWS+3}], s{soff} offen sc1")
        else: a(f"buffer_load_dword v{vdst}, v{vPA}, s[{sWS}:{sWS+3}], s{soff} offen sc1")
        a(f"s_branch {lbl}\n{lbl}_OK:")

    def poll_pipe(lbl, soff, r0, gap=4):
        a(f"s_cmp_lg_u32 s42, 0\n s_cbranch_scc1 {lbl}_OK")
        a("s_mov_b32 s50, 0")
        for i in range(4):
            a(f"buffer_load_dword v{r0+i}, v{vPA}, s[{sWS}:{sWS+3}], s{soff} offen sc1")
            if i < 3: a(f"s_sleep {gap}")
        a(f"{lbl}:")
        for i in range(4):
            a("s_waitcnt vmcnt(3)")
            a(f"v_cmp_eq_u32 vcc, s63, v{r0+i}")
            a(f"s_cmp_eq_u64 vcc, exec\n s_cbranch_scc1 {lbl}_OK")
            a(f"buffer_load_dword v{r0+i}, v{vPA}, s[{sWS}:{sWS+3}], s{soff} offen sc1")
            a(f"s_sleep {gap//2}")
        a(f"s_add_u32 s50, s50, 1\n s_cmp_lt_u32 s50, {SPIN}\n s_cbranch_scc1 {lbl}")
        a(f"{lbl}_OK:")

    a("s_add_u32 s49, s2, s42\n s_cmp_lg_u32 s49, 0\n s_cbranch_scc1 L_NN")
    a("s_memrealtime s[50:51]\n s_waitcnt lgkmcnt(0)\n s_or_b32 s50, s50, 1")
    a(f"v_mov_b32 v{vPOLL}, s50\n s_mov_b64 exec, 1")
    a(f"buffer_store_dword v{vPOLL}, v{vZERO}, s[{sDBG}:{sDBG+3}], 0 offen sc1")
    a("s_mov_b64 exec, -1\nL_NN:")
    vT = TMP+8
    a("s_mul_i32 s46, s62, 28\n s_lshr_b32 s46, s46, 4")
    a("s_mul_i32 s47, s62, 28\n s_add_u32 s47, s47, 27\n s_lshr_b32 s47, s47, 4")
    a("s_lshl_b32 s48, s41, 4\n s_lshl_b32 s49, s42, 1\n s_add_u32 s48, s48, s49\n s_mul_i32 s48, s48, 3584\n s_lshl_b32 s49, s46, 8\n s_add_u32 s48, s48, s49\n s_add_u32 s48, s48, 1792")
    ZT = os.environ.get("ZT", "smem")
    if ZT == "smem":
        for rr in range(2):
            for ln in range(6):
                a(f"s_buffer_load_dword s28, s[{sWIN}:{sWIN+3}], s48 offset:{rr*3584+ln*128}")
    a(f"v_and_b32 v{vT}, 127, v0\n v_lshrrev_b32 v{vT+1}, 5, v{vT}\n v_add_u32 v{vT+1}, s46, v{vT+1}\n v_cmp_lt_u32 vcc, s47, v{vT+1}\n v_mov_b32 v{vT+5}, 0x8000\n v_cndmask_b32 v{vT+1}, v{vT+1}, v{vT+5}, vcc")
    a(f"s_lshl_b32 s48, s41, 5\n v_and_b32 v{vT+2}, 31, v0\n v_add_u32 v{vT+2}, s48, v{vT+2}")
    a(f"v_lshrrev_b32 v{VPF}, 1, v{vT+2}\n v_mul_u32_u24 v{VPF}, 3584, v{VPF}\n v_lshl_add_u32 v{VPF}, v{vT+1}, 8, v{VPF}\n v_and_b32 v{vT+3}, 1, v{vT+2}\n v_lshl_add_u32 v{VPF}, v{vT+3}, 7, v{VPF}")
    a(f"s_mov_b32 s48, 114688\n v_mul_lo_u32 v{VPF+1}, v{vT+1}, s48\n v_lshl_add_u32 v{VPF+1}, v{vT+2}, 7, v{VPF+1}")
    def touch2():
        a("s_cmp_ge_u32 s42, 2\n s_cbranch_scc1 L_PFB")
        a(f"buffer_load_dword v{VPF+2}, v{VPF}, s[{sWIN}:{sWIN+3}], 0 offen")
        a("s_branch L_PFD\nL_PFB:")
        a("s_cmp_ge_u32 s42, 4\n s_cselect_b32 s49, 0x10000000, 0")
        a(f"buffer_load_dword v{VPF+2}, v{VPF+1}, s[{sFT}:{sFT+3}], s49 offen")
        a("L_PFD:"); vm.issue("pf")
    a("s_barrier")
    if ZT == "vec":
        a("s_cmp_ge_u32 s42, 2\n s_cselect_b32 s49, 0x10000000, 0")
        a(f"buffer_load_dword v{VPF+3}, v{VPF}, s[{sWIN}:{sWIN+3}], s49 offen offset:1792"); vm.issue("pf")
    a(f"v_lshrrev_b32 v{TMP+2}, 4, v1\n v_and_b32 v{TMP+3}, 15, v1\n v_lshlrev_b32 v{TMP+4}, 2, v{TMP+2}\n v_xor_b32 v{TMP+3}, v{TMP+3}, v{TMP+4}")
    a(f"v_mul_u32_u24 v{vZ}, 3584, v{TMP+2}\n v_lshl_add_u32 v{vZ}, v{TMP+3}, 4, v{vZ}")
    a("s_mul_i32 s46, s42, 14336\n s_lshl_b32 s47, s44, 8\n s_add_u32 s46, s46, s47")
    a(f"s_mul_i32 s47, s44, {14*8192}\n s_lshl_b32 s48, s42, 10\n s_add_u32 s47, s47, s48")
    def dma(t):
        slot = (t % N1)*S1
        if t < 7:
            for u in range(2):
                a(f"s_add_u32 m0, s48, {slot+u*8192}")
                a(f"s_add_u32 s49, s46, {1792+(64*t+32*u)*3584}")
                a(f"buffer_load_dwordx4 v{vZ}, s[{sWIN}:{sWIN+3}], s49 offen lds"); vm.issue(("st", t))
        else:
            s2 = t-7
            a(f"s_add_u32 m0, s48, {slot}")
            a(f"s_add_u32 s49, s46, {32*s2*3584}")
            a(f"buffer_load_dwordx4 v{vZ}, s[{sWIN}:{sWIN+3}], s49 offen lds"); vm.issue(("st", t))
            a(f"s_add_u32 m0, s48, {slot+8192}")
            a(f"s_add_u32 s49, s47, {s2*8192}")
            a(f"buffer_load_dwordx4 v{vF}, s[{sFT}:{sFT+3}], s49 offen lds"); vm.issue(("st", t))
    a(f"s_lshl_b32 s49, s42, 3\n v_add_u32 v{TMP+2}, s49, v{TMP}")
    a(f"v_bfe_u32 v{TMP+3}, v{TMP+2}, 1, 3\n v_xor_b32 v{TMP+3}, v{TMP+3}, v{TMP+1}")
    a(f"v_mul_u32_u24 v{vW}, 896, v{TMP+2}\n v_lshl_add_u32 v{vW}, v{TMP+3}, 4, v{vW}\n v_add_u32 v{vW}, {XN}, v{vW}")
    a("s_and_b32 s84, s40, 3\n s_lshl_b32 s84, s84, 2\n s_and_b32 s85, s41, 3\n s_add_u32 s84, s84, s85")
    a("s_lshr_b32 s85, s40, 2\n s_mul_i32 s85, s85, 7\n s_lshr_b32 s86, s41, 2\n s_add_u32 s85, s85, s86")
    a("s_lshr_b32 s86, s84, 3\n s_lshl_b32 s86, s86, 4\n s_bfe_u32 s87, s84, 0x10002\n s_lshl_b32 s87, s87, 2\n s_add_u32 s86, s86, s87")
    a("s_lshr_b32 s87, s42, 2\n s_lshl_b32 s87, s87, 3\n s_add_u32 s87, s87, s86\n s_and_b32 s88, s42, 3\n s_add_u32 s87, s87, s88")
    a("s_lshl_b32 s87, s87, 6\n s_and_b32 s88, s84, 3\n s_lshl_b32 s88, s88, 4\n s_add_u32 s87, s87, s88\n s_lshl_b32 s87, s87, 12")
    a(f"v_lshrrev_b32 v{TMP+2}, 1, v{TMP}\n s_and_b32 s88, s42, 1\n s_lshl_b32 s88, s88, 2\n v_add_u32 v{TMP+2}, s88, v{TMP+2}\n v_xor_b32 v{TMP+2}, v{TMP+1}, v{TMP+2}")
    a(f"v_lshlrev_b32 v{vA2}, 12, v{TMP}\n v_lshl_add_u32 v{vA2}, v{TMP+2}, 4, v{vA2}")
    a(f"v_lshrrev_b32 v{TMP+2}, 5, v1\n v_bfe_u32 v{TMP+3}, v1, 3, 1\n v_lshl_add_u32 v{TMP+2}, v{TMP+2}, 1, v{TMP+3}\n v_lshlrev_b32 v{vB2}, 10, v{TMP+2}")
    a(f"v_bfe_u32 v{TMP+2}, v1, 2, 1\n v_lshl_add_u32 v{vB2}, v{TMP+2}, 9, v{vB2}\n v_bfe_u32 v{TMP+2}, v1, 4, 1\n v_lshl_add_u32 v{vB2}, v{TMP+2}, 6, v{vB2}")
    a(f"v_and_b32 v{TMP+2}, 3, v1\n v_lshl_add_u32 v{vB2}, v{TMP+2}, 4, v{vB2}")
    a(f"s_lshl_b32 s88, s85, 12\n s_mul_i32 s89, s42, {2*57344}\n s_add_u32 s88, s88, s89\n s_add_u32 s88, s88, {Z2N}")
    def slot2(T): return PERM[T % 6]*S2
    def dmaA(T):
        for u in range(2):
            a(f"s_add_u32 m0, s48, {slot2(T)+u*8192}\n s_add_u32 s49, s87, {T*128+u*8*4096}")
            a(f"buffer_load_dwordx4 v{vA2}, s[{sSP}:{sSP+3}], s49 offen {XA} lds"); vm.issue(("g", T))
    def dmaB(T):
        zoff = (2*(8*((T >> 2) & 1)+16*(T >> 4))+((T >> 3) & 1))*57344+(T & 3)*128
        a(f"s_add_u32 m0, s48, {slot2(T)+16384}\n s_add_u32 s49, s88, {zoff}")
        a(f"buffer_load_dwordx4 v{vB2}, s[{sWS}:{sWS+3}], s49 offen {XB} lds"); vm.issue(("g", T))
    a(f"s_and_b32 s49, s42, 1\n s_lshl_b32 s49, s49, 5\n v_and_b32 v{TMP+2}, 31, v1\n v_add_u32 v{TMP+2}, s49, v{TMP+2}")
    a(f"v_bfe_u32 v{TMP+3}, v{TMP+2}, 1, 3\n v_lshrrev_b32 v{TMP+4}, 5, v1\n v_xor_b32 v{TMP+3}, v{TMP+3}, v{TMP+4}")
    a(f"v_mul_u32_u24 v{TMP+2}, 896, v{TMP+2}\n v_add_u32 v{TMP+2}, {XN}, v{TMP+2}")
    for c in range(4):
        a(f"v_xor_b32 v{TMP+4}, {2*c}, v{TMP+3}\n v_lshl_add_u32 v{vAA+c}, v{TMP+4}, 4, v{TMP+2}")
    a(f"v_lshrrev_b32 v{TMP+2}, 5, v1\n v_bfe_u32 v{TMP+3}, v1, 2, 2")
    a(f"v_lshl_add_u32 v{TMP+2}, v{TMP+2}, 3, v{TMP+3}")
    a(f"v_and_b32 v{TMP+6}, 1, v1\n v_lshlrev_b32 v{TMP+6}, 3, v{TMP+6}")
    a(f"v_bfe_u32 v{TMP+4}, v1, 4, 1\n v_bfe_u32 v{TMP+5}, v1, 1, 1\n v_lshl_add_u32 v{TMP+4}, v{TMP+4}, 1, v{TMP+5}")
    a(f"v_lshlrev_b32 v{TMP+5}, 2, v{TMP+3}\n v_xor_b32 v{TMP+5}, v{TMP+4}, v{TMP+5}")
    a("s_lshr_b32 s51, s42, 1\n s_lshl_b32 s51, s51, 2\n s_and_b32 s49, s42, 2\n s_lshl_b32 s49, s49, 2\n s_add_u32 s50, s49, 4")
    for idx, sreg in ((0, 51), (1, 49), (2, 50)):
        a(f"v_xor_b32 v{TMP+7}, s{sreg}, v{TMP+5}\n v_lshl_add_u32 v{vTR+2*idx}, v{TMP+2}, 8, v{TMP+6}\n v_lshl_add_u32 v{vTR+2*idx}, v{TMP+7}, 4, v{vTR+2*idx}\n v_add_u32 v{vTR+2*idx+1}, 0x10000, v{vTR+2*idx}")
    a(f"s_mov_b32 s52, {hex(f32bits(C2))}\n s_mov_b32 s54, 0x3f803f80")
    a(f"v_mov_b32 v{VC1}, {hex(f32bits(C1))}")
    a(f"s_lshl_b32 s55, s43, 1\n s_and_b32 s57, s42, 1\n s_add_u32 s55, s55, s57\n s_mul_i32 s55, s55, 3584\n s_add_u32 s55, s55, {ST}")
    a("s_lshl_b32 s61, s44, 9\n s_add_u32 s61, s61, s55")
    a(f"s_lshl_b32 s56, s57, 10\n s_lshr_b32 s57, s42, 1\n s_lshl_b32 s57, s57, 3\n s_add_u32 s56, s56, s57\n s_add_u32 s56, s56, {SX}")
    a("s_and_b32 s49, s42, 6\n s_cmp_eq_u32 s49, 4\n s_cselect_b32 s55, s55, 0x20000000")
    a("s_lshl_b32 s57, s43, 1\n s_and_b32 s58, s42, 1\n s_add_u32 s57, s57, s58\n s_mul_i32 s57, s57, 56\n s_lshl_b32 s58, s44, 3\n s_add_u32 s57, s57, s58")
    a(f"s_and_b32 s58, s42, 6\n s_add_u32 s58, s58, s57\n s_lshl_b32 s58, s58, 10\n s_add_u32 s58, s58, {Z2N}")
    a(f"s_and_b32 s59, s42, 2\n s_lshl_b32 s59, s59, 1\n s_add_u32 s57, s57, s59\n s_lshl_b32 s57, s57, 10" + (f"\n s_add_u32 s57, s57, {Z1}" if Z1 else ""))
    a(f"s_lshl_b32 s59, s44, 5\n s_add_u32 s59, s59, s43\n s_lshl_b32 s59, s59, 7\n s_add_u32 s60, s59, {FLU}\n s_add_u32 s59, s59, {FLZ}")
    a(f"s_lshr_b32 s89, s85, 1\n s_lshl_b32 s89, s89, 12\n s_add_u32 s90, s89, {FLU}\n s_add_u32 s89, s89, {FLZ}")
    a(f"v_and_b32 v{vPA}, 31, v1\n v_lshlrev_b32 v{vPA}, 7, v{vPA}")
    a(f"s_waitcnt vmcnt({vm.wait('x')})")
    stg(1); dbgt(5)
    S = TMP; DV = XF
    a("s_mov_b32 s50, 0x00003f80\n s_mov_b32 s51, 0x3f800000")
    for i in range(4): a(f"v_mov_b32 v{S+i}, 0")
    for i in range(28): a(f"v_dot2_f32_bf16 v{S+(i&3)}, v{BF+i}, s54, v{S+(i&3)}")
    dma(0)
    a(f"v_add_f32 v{S}, v{S}, v{S+1}\n v_add_f32 v{S+2}, v{S+2}, v{S+3}\n v_add_f32 v{S}, v{S}, v{S+2}")
    red8(a, S)
    vM, vMB, vNM = TMP+4, TMP+5, TMP+6
    a(f"v_mul_f32 v{vM}, {hex(f32bits(1/448))}, v{S}")
    a(f"v_cvt_pk_bf16_f32 v{vMB}, 0, v{vM}\n v_sub_f32 v{vNM}, 0, v{vMB}")
    for i in range(4): a(f"v_mov_b32 v{S+i}, 0")
    for i in range(0, 28, 4):
        for u in range(4):
            d = DV+2*(i+u)
            a(f"v_dot2_f32_bf16 v{d}, v{BF+i+u}, s50, v{vNM}\n v_dot2_f32_bf16 v{d+1}, v{BF+i+u}, s51, v{vNM}")
        if i >= 4:
            for u in range(4):
                d = DV+2*(i-4+u); s_ = S+2*(u & 1)
                a(f"v_pk_fma_f32 v[{s_}:{s_+1}], v[{d}:{d+1}], v[{d}:{d+1}], v[{s_}:{s_+1}]")
        if i == 8: dma(1)
        if i == 20: dma(2)
    for u in range(4):
        d = DV+2*(24+u); s_ = S+2*(u & 1)
        a(f"v_pk_fma_f32 v[{s_}:{s_+1}], v[{d}:{d+1}], v[{d}:{d+1}], v[{s_}:{s_+1}]")
    a(f"v_add_f32 v{S}, v{S}, v{S+1}\n v_add_f32 v{S+2}, v{S+2}, v{S+3}\n v_add_f32 v{S}, v{S}, v{S+2}")
    for i in range(16): a(f"v_cvt_pk_bf16_f32 v{DV+i}, 0, v{DV+i}")
    red8(a, S)
    vRS = TMP+6; t = S+2
    a(f"v_sub_f32 v{t}, v{vM}, v{vMB}\n v_mul_f32 v{t}, v{t}, v{t}\n v_mov_b32 v{t+1}, {hex(f32bits(1.0/448))}\n v_fma_f32 v{t}, v{S}, v{t+1}, -v{t}\n v_max_f32 v{t}, 0, v{t}")
    n0 = len(a.lines); var_to_rs(a, t, vRS); a(f"v_mov_b32 v{vRS+1}, v{vRS}"); chain = a.lines[n0:]; del a.lines[n0:]
    for i in range(16, 56):
        a(f"v_cvt_pk_bf16_f32 v{DV+i}, 0, v{DV+i}")
        if chain and i % 3 == 0: a(chain.pop(0))
    for l in chain: a(l)
    dma(3)
    for i in range(0, 28, 4):
        for u in range(4):
            d = DV+2*(i+u); a(f"v_pk_mul_f32 v[{d}:{d+1}], v[{d}:{d+1}], v[{vRS}:{vRS+1}]")
        for u in range(4):
            d = DV+2*(i+u); a(f"v_cvt_pk_bf16_f32 v{BF+i+u}, v{d}, v{d+1}")
        a(f"ds_write_b128 v{vW}, v[{BF+i}:{BF+i+3}] offset:{32*i}")
    stg(2)
    dma(4); touch2()
    a("s_waitcnt lgkmcnt(0)")
    def capture(fn, *args):
        n0 = len(a.lines); fn(*args); out = a.lines[n0:]; del a.lines[n0:]; return out
    def trbase(idx, t):
        slot = (t % N1)*S1
        return (vTR+2*idx+(1 if slot >= 65536 else 0), slot-(65536 if slot >= 65536 else 0))
    def reads1(t):
        b = BF+16*(t & 1); vb, so = trbase(0, t)
        for k in range(4):
            c16 = 4*t+k
            a(f"ds_read_b128 v[{XF+4*c16}:{XF+4*c16+3}], v{vAA+(c16&3)} offset:{(c16>>2)*128}")
            for tt in range(2):
                a(f"ds_read_b64_tr_b16 v[{b+4*k+2*tt}:{b+4*k+2*tt+1}], v{vb} offset:{so+k*4096+tt*1024}")
    def mfma1(t):
        b = BF+16*(t & 1)
        for k in range(4):
            c16 = 4*t+k
            cin = "0" if c16 == 0 else f"v[{ACC}:{ACC+15}]"
            a(f"v_mfma_f32_32x32x16_bf16 v[{ACC}:{ACC+15}], v[{b+4*k}:{b+4*k+3}], v[{XF+4*c16}:{XF+4*c16+3}], {cin}")
    def body(mf, rd, issue, bgq=None, nbg=0):
        n = max(len(mf), 1); h = (len(rd)+1)//2 if n > 1 else len(rd)
        for i in range(n):
            if i < len(mf): a(mf[i])
            if i == 0:
                for l in rd[:h]: a(l)
            if i == 1:
                for l in rd[h:]: a(l)
            if i == min(2, n-1): issue()
            if bgq:
                for _ in range(nbg):
                    if bgq: a(bgq.pop(0))
    for t in range(7):
        a(f"s_waitcnt vmcnt({vm.wait(('st', t))})")
        a("s_barrier")
        stg(3+t)
        if t == 1:
            a(f"buffer_load_dword v{vPOLL}, v{vZERO}, s[{sDBG}:{sDBG+3}], 0 offen sc1"); vm.issue("nonce")
        body(capture(mfma1, t-1) if t > 0 else [], capture(reads1, t), lambda: dma(t+D))
        a("s_waitcnt lgkmcnt(0)")
    mfma1(6)
    dbgt(6)
    NLN = (32-WSP_K1)*2048; PERW = -(-NLN//224)
    a(f"s_mul_i32 s49, s40, 28\n s_add_u32 s49, s49, s41\n s_mul_i32 s49, s49, {PERW}\n v_add_u32 v{TMP}, s49, v0")
    MG = (2**32+(32-WSP_K1)-1)//(32-WSP_K1)
    a(f"s_mov_b32 s49, {MG}\n v_mul_hi_u32 v{TMP+1}, v{TMP}, s49\n v_mul_u32_u24 v{TMP+2}, {32-WSP_K1}, v{TMP+1}\n v_sub_u32 v{TMP+2}, v{TMP}, v{TMP+2}")
    a(f"v_lshlrev_b32 v{TMP+1}, 12, v{TMP+1}\n v_lshl_add_u32 v{TMP+1}, v{TMP+2}, 7, v{TMP+1}")
    a(f"v_cmp_gt_u32 vcc, {PERW}, v0\n v_mov_b32 v{TMP+2}, 0x10000000\n v_cndmask_b32 v{TMP+1}, v{TMP+2}, v{TMP+1}, vcc")
    a(f"buffer_load_dword v{VPF+2}, v{TMP+1}, s[{sSP}:{sSP+3}], 0 offen offset:{128*WSP_K1}"); vm.issue("pf")
    get_nonce("L_NON")
    gelu_pairs(a, ACC, ZP, TMP, 52, VC1)
    Sx = ACC
    for p in range(8): a(f"v_lshlrev_b32 v{Sx+2*p}, 16, v{ZP+p}\n v_and_b32 v{Sx+2*p+1}, 0xffff0000, v{ZP+p}")
    for i in range(4): a(f"v_add_f32 v{TMP+i}, v{Sx+i}, v{Sx+4+i}")
    for i in range(4): a(f"v_add_f32 v{TMP+4+i}, v{Sx+8+i}, v{Sx+12+i}")
    for i in range(4): a(f"v_add_f32 v{TMP+i}, v{TMP+i}, v{TMP+4+i}")
    a(f"v_add_f32 v{TMP}, v{TMP}, v{TMP+1}\n v_add_f32 v{TMP+2}, v{TMP+2}, v{TMP+3}\n v_add_f32 v{TMP}, v{TMP}, v{TMP+2}")
    halfsum(a, TMP, TMP+1)
    a(f"v_mul_f32 v{TMP+8}, {hex(f32bits(1/32))}, v{TMP}")
    for i in range(16): a(f"v_sub_f32 v{Sx+i}, v{Sx+i}, v{TMP+8}")
    for i in range(4): a(f"v_mul_f32 v{TMP+i}, v{Sx+i}, v{Sx+i}")
    for i in range(4, 16): a(f"v_fmac_f32 v{TMP+(i&3)}, v{Sx+i}, v{Sx+i}")
    a(f"v_add_f32 v{TMP}, v{TMP}, v{TMP+1}\n v_add_f32 v{TMP+2}, v{TMP+2}, v{TMP+3}\n v_add_f32 v{TMP+9}, v{TMP}, v{TMP+2}")
    halfsum(a, TMP+9, TMP+1)
    a(f"v_and_b32 v{TMP+10}, 31, v1\n v_lshlrev_b32 v{TMP+10}, 5, v{TMP+10}\n v_add_u32 v{TMP+10}, s56, v{TMP+10}")
    a(f"ds_write_b64 v{TMP+10}, v[{TMP+8}:{TMP+9}]")
    a(f"v_and_b32 v{TMP+21}, 31, v1\n v_lshlrev_b32 v{TMP+21}, 4, v{TMP+21}\n v_lshrrev_b32 v{TMP+20}, 5, v1\n v_mul_u32_u24 v{TMP+20}, 1536, v{TMP+20}\n v_add_u32 v{TMP+20}, v{TMP+20}, v{TMP+21}\n v_add_u32 v{TMP+21}, 3072, v{TMP+21}")
    a("s_waitcnt lgkmcnt(0)")
    G = PS; ACC3 = ACC
    def is45(label): a(f"s_and_b32 s49, s42, 6\n s_cmp_lg_u32 s49, 4\n s_cbranch_scc1 {label}")
    def gloads():
        for i in range(4):
            a(f"buffer_load_dwordx4 v[{G+4*i}:{G+4*i+3}], v{TMP+20 if i < 3 else TMP+21}, s[{sWS}:{sWS+3}], s55 offen offset:{(i % 3)*512} sc1")
    def norm_job():
        A0 = TMP; T3 = PS
        a(f"s_and_b32 s29, s42, 1\n s_lshl_b32 s29, s29, 8\n s_add_u32 s29, s29, {SX+2048}\n v_and_b32 v{A0}, 31, v1\n v_lshlrev_b32 v{A0}, 3, v{A0}\n v_add_u32 v{A0}, s29, v{A0}")
        a(f"ds_read_b64 v[{A0+2}:{A0+3}], v{A0}")
        for p in range(8): a(f"v_lshlrev_b32 v{T3+2*p}, 16, v{ZP+p}\n v_and_b32 v{T3+2*p+1}, 0xffff0000, v{ZP+p}")
        a("s_waitcnt lgkmcnt(0)")
        for i in range(16): a(f"v_add_f32 v{T3+i}, v{T3+i}, v{A0+2}")
        for i in range(16): a(f"v_cvt_pk_bf16_f32 v{T3+i}, 0, v{T3+i}")
        for i in range(16): a(f"v_mul_f32 v{T3+i}, v{T3+i}, v{A0+3}")
        for p in range(8): a(f"v_cvt_pk_bf16_f32 v{ZP+p}, v{T3+2*p}, v{T3+2*p+1}")
    a("s_cmp_ge_u32 s42, 4\n s_cbranch_scc1 L_P2Z")
    vm_save = list(vm.ops); vm_end = {}
    pend = stg.pending
    EARLY = {16: [0], 17: [1, 2], 18: [3]}
    for path in ("F", "Z"):
        vm.ops = list(vm_save); stg.pending = pend
        if path == "Z": a("L_P2Z:")
        else:
            a(f"s_lshr_b32 s49, s42, 1\n s_lshl_b32 s49, s49, 12\n v_add_u32 v{vTR+2}, s49, v{vF}\n v_add_u32 v{vTR+3}, 0x10000, v{vTR+2}")
        def reads2(t):
            b = BF+16*(t & 1)
            if path == "F":
                vb, so = trbase(1, t)
                for f in range(4): a(f"ds_read_b128 v[{b+4*f}:{b+4*f+3}], v{vb} offset:{so+8192+f*1024}")
            else:
                for k in range(2):
                    for tile in range(2):
                        vb, so = trbase(1+tile, t)
                        for tt in range(2):
                            f = tile*2+k
                            a(f"ds_read_b64_tr_b16 v[{b+4*f+2*tt}:{b+4*f+2*tt+1}], v{vb} offset:{so+k*4096+tt*1024}")
        def mfma2(t):
            b = BF+16*(t & 1); s2 = t-7
            if path == "F":
                for f in range(4):
                    c16 = 2*s2+(f >> 1)
                    cin = "0" if (s2 == 0 and f == 0) else f"v[{ACC2}:{ACC2+15}]"
                    a(f"v_mfma_f32_32x32x16_bf16 v[{ACC2}:{ACC2+15}], v[{XF+4*c16}:{XF+4*c16+3}], v[{b+4*f}:{b+4*f+3}], {cin}")
            else:
                for k in range(2):
                    for tile in range(2):
                        f = tile*2+k; c16 = 2*s2+k; ac = ACC2 if tile == 0 else ACC3
                        cin = "0" if c16 == 0 else f"v[{ac}:{ac+15}]"
                        a(f"v_mfma_f32_32x32x16_bf16 v[{ac}:{ac+15}], v[{b+4*f}:{b+4*f+3}], v[{XF+4*c16}:{XF+4*c16+3}], {cin}")
        bgq = []
        for t in range(7, 21):
            n = vm.wait(("st", t))
            if t == CHK_T and path == "Z": n = min(n, vm.wait("gl"))
            a(f"s_waitcnt vmcnt({n})")
            if t == CHK_T and path == "Z":
                is45("L_NOCHK")
                a("s_mov_b32 s50, 0\nL_CHK:")
                a(f"v_cmp_eq_u32 vcc, s63, v{G+1}")
                for i in range(1, 8): a(f"v_cmp_eq_u32 s[30:31], s63, v{G+1+2*i}\n s_and_b64 vcc, vcc, s[30:31]")
                a("s_add_u32 s50, s50, 1\n s_cmp_eq_u64 vcc, exec\n s_cbranch_scc1 L_CHKOK")
                a(f"s_cmp_ge_u32 s50, {SPIN}\n s_cbranch_scc1 L_CHKOK")
                a("s_sleep 2"); gloads()
                a("s_waitcnt vmcnt(0)\n s_branch L_CHK\nL_CHKOK:")
                B0 = TMP
                a(f"v_mul_f32 v{B0}, 0.5, v{G+12}\n v_mul_f32 v{B0+1}, 0.5, v{G+14}")
                for i in range(3): a(f"v_add_f32 v{B0}, v{B0}, v{G+4*i}\n v_add_f32 v{B0+1}, v{B0+1}, v{G+4*i+2}")
                halfsum(a, B0, B0+2); halfsum(a, B0+1, B0+2)
                a(f"v_mul_f32 v{B0}, {hex(f32bits(1/7))}, v{B0}")
                a(f"v_sub_f32 v{B0+4}, v{G+12}, v{B0}\n v_mul_f32 v{B0+3}, v{B0+4}, v{B0+4}\n v_mul_f32 v{B0+3}, 0.5, v{B0+3}")
                for i in range(3): a(f"v_sub_f32 v{B0+4}, v{G+4*i}, v{B0}\n v_fmac_f32 v{B0+3}, v{B0+4}, v{B0+4}")
                halfsum(a, B0+3, B0+2)
                a(f"v_mov_b32 v{B0+2}, 0x43000000\n v_fma_f32 v{B0+1}, v{B0+3}, v{B0+2}, v{B0+1}")
                a(f"v_mul_f32 v{B0+1}, {hex(f32bits(1/896))}, v{B0+1}")
                var_to_rs(a, B0+1, B0+5)
                a(f"v_cvt_pk_bf16_f32 v{B0+4}, 0, v{B0}\n v_sub_f32 v{B0+4}, 0, v{B0+4}")
                a(f"s_and_b32 s49, s42, 1\n s_lshl_b32 s49, s49, 8\n s_add_u32 s49, s49, {SX+2048}\n v_and_b32 v{B0+6}, 31, v1\n v_lshlrev_b32 v{B0+6}, 3, v{B0+6}\n v_add_u32 v{B0+6}, s49, v{B0+6}")
                a(f"ds_write_b64 v{B0+6}, v[{B0+4}:{B0+5}]\n s_waitcnt lgkmcnt(0)")
                a("L_NOCHK:")
            a("s_barrier")
            stg(3+t)
            if t == 7 and path == "Z":
                is45("L_NOSIG")
                B0 = TMP
                a(f"v_and_b32 v{B0+10}, 31, v1\n v_lshlrev_b32 v{B0+11}, 5, v{B0+10}\n s_sub_u32 s49, s56, 16\n v_add_u32 v{B0+11}, s49, v{B0+11}")
                a(f"ds_read_b128 v[{B0}:{B0+3}], v{B0+11}\n ds_read_b128 v[{B0+4}:{B0+7}], v{B0+11} offset:16\n s_waitcnt lgkmcnt(0)")
                a(f"v_add_f32 v{B0+8}, v{B0}, v{B0+2}\n v_add_f32 v{B0+9}, v{B0+4}, v{B0+6}\n v_add_f32 v{B0+8}, v{B0+8}, v{B0+9}\n v_mul_f32 v{B0+12}, 0.25, v{B0+8}")
                a(f"v_add_f32 v{B0+14}, v{B0+1}, v{B0+3}\n v_add_f32 v{B0+9}, v{B0+5}, v{B0+7}\n v_add_f32 v{B0+14}, v{B0+14}, v{B0+9}\n v_mov_b32 v{B0+8}, 0")
                for i in range(4): a(f"v_sub_f32 v{B0+9}, v{B0+2*i}, v{B0+12}\n v_fmac_f32 v{B0+8}, v{B0+9}, v{B0+9}")
                a(f"v_mov_b32 v{B0+9}, 0x42000000\n v_fma_f32 v{B0+14}, v{B0+8}, v{B0+9}, v{B0+14}")
                a(f"v_mov_b32 v{B0+13}, s63\n v_mov_b32 v{B0+15}, s63\n v_lshlrev_b32 v{B0+10}, 4, v{B0+10}")
                a(f"buffer_store_dwordx4 v[{B0+12}:{B0+15}], v{B0+10}, s[{sWS}:{sWS+3}], s61 offen sc1")
                a("s_nop 1\nL_NOSIG:")
            if t == LD_T:
                gloads()
                for i in range(4): vm.issue("gl")
            if t == CHK_T: bgq = capture(norm_job)
            def issue():
                if t+D < 21: dma(t+D)
                for T in EARLY.get(t, []): dmaA(T)
            body(capture(mfma2, t-1) if t > 7 else [], capture(reads2, t), issue, bgq, 20)
            if t == CHK_T:
                for l in bgq: a(l)
                del bgq[:]
                for q in range(2):
                    a(f"buffer_store_dwordx4 v[{ZP+4*q}:{ZP+4*q+3}], v{vF}, s[{sWS}:{sWS+3}], s58 offen offset:{q*1024} sc1"); vm.issue("z2n")
            a("s_waitcnt lgkmcnt(0)")
        mfma2(20)
        stg(24)
        if path == "F":
            a(f"v_and_b32 v{TMP}, 31, v1\n s_lshr_b32 s49, s42, 1\n s_lshl_b32 s49, s49, 5\n v_add_u32 v{TMP}, s49, v{TMP}")
            a(f"v_mul_u32_u24 v{TMP}, {UXP}, v{TMP}\n v_lshrrev_b32 v{TMP+1}, 5, v1\n v_lshl_add_u32 v{TMP}, v{TMP+1}, 6, v{TMP}")
            a(f"s_and_b32 s49, s42, 1\n s_lshl_b32 s49, s49, 3\n s_add_u32 s49, s49, {UX}\n v_add_u32 v{TMP}, s49, v{TMP}")
            for r in range(4):
                a(f"v_cvt_pk_f16_f32 v{TMP+2+2*r}, v{ACC2+r}, v{ACC2+4+r}\n v_cvt_pk_f16_f32 v{TMP+3+2*r}, v{ACC2+8+r}, v{ACC2+12+r}")
                a(f"ds_write_b64 v{TMP}, v[{TMP+2+2*r}:{TMP+3+2*r}] offset:{16*r}")
            a("s_mov_b32 s49, 0x20000000")
            for i in range(4):
                a(f"buffer_store_dword v{vZERO}, v{vZERO}, s[{sWS}:{sWS+3}], s49 offen"); vm.issue("fin")
            a("s_branch L_J1")
        else:
            for tile, ac in enumerate((ACC2, ACC3)):
                for p in range(8): a(f"v_cvt_pk_bf16_f32 v{BF+8*tile+p}, v{ac+2*p}, v{ac+2*p+1}")
                for q in range(2):
                    a(f"buffer_store_dwordx4 v[{BF+8*tile+4*q}:{BF+8*tile+4*q+3}], v{vF}, s[{sWS}:{sWS+3}], s57 offen offset:{(2*tile+q)*1024} sc1"); vm.issue("fin")
        vm_end[path] = list(vm.ops)
    assert vm_end["F"] == vm_end["Z"]
    a("L_J1:")
    dbgt(7)
    a(f"s_waitcnt vmcnt({vm.wait('z2n')}) lgkmcnt(0)\n s_barrier")
    set_flag("L_FZ", 59)
    a(f"v_lshrrev_b32 v{TMP+2}, 3, v0\n v_and_b32 v{TMP+3}, 7, v0")
    a(f"v_mul_u32_u24 v{TMP+4}, {UXP}, v{TMP+2}\n v_lshl_add_u32 v{TMP+4}, v{TMP+3}, 4, v{TMP+4}\n v_add_u32 v{TMP+4}, {UX}, v{TMP+4}")
    a(f"ds_read_b128 v[{TMP+8}:{TMP+11}], v{TMP+4}")
    a(f"v_lshlrev_b32 v{TMP+2}, 12, v{TMP+2}\n v_lshl_add_u32 v{TMP+2}, v{TMP+3}, 4, v{TMP+2}")
    a(f"s_lshl_b32 s49, s44, 18\n s_lshl_b32 s50, s43, 7\n s_add_u32 s49, s49, s50\n s_add_u32 s49, s49, {U}")
    a("s_waitcnt lgkmcnt(0)")
    a(f"buffer_store_dwordx4 v[{TMP+8}:{TMP+11}], v{TMP+2}, s[{sWS}:{sWS+3}], s49 offen sc1"); vm.issue("fin")
    dmaA(4)
    T = 100; ZR = 88; BS = 96; FR = 20; AC = 104; Z1F = 124; GT = 140
    vTR2 = 5; vWA = 8
    a("s_lshr_b32 s43, s42, 1\n s_and_b32 s44, s42, 1")
    a("s_lshl_b32 s45, s84, 2\n s_add_u32 s45, s45, s43\n s_mul_i32 s45, s45, 56\n s_lshl_b32 s46, s85, 2\n s_add_u32 s45, s45, s46\n s_lshl_b32 s46, s44, 1\n s_add_u32 s45, s45, s46\n s_lshl_b32 s45, s45, 10")
    a(f"v_lshrrev_b32 v{T}, 5, v1\n v_lshlrev_b32 v{T}, 10, v{T}\n v_bfe_u32 v{T+1}, v1, 4, 1\n v_lshl_add_u32 v{T}, v{T+1}, 7, v{T}")
    a(f"v_and_b32 v{T+1}, 1, v1\n v_lshl_add_u32 v{T}, v{T+1}, 6, v{T}\n v_bfe_u32 v{T+1}, v1, 2, 2\n v_lshl_add_u32 v{T}, v{T+1}, 4, v{T}")
    a(f"v_bfe_u32 v{T+1}, v1, 1, 1\n v_lshl_add_u32 v{T}, v{T+1}, 3, v{T}\n s_lshl_b32 s46, s44, 9\n v_add_u32 v{vTR2}, s46, v{T}")
    a(f"v_add_u32 v{vTR2+1}, {2*S2}, v{vTR2}\n v_add_u32 v{vTR2+2}, {4*S2}, v{vTR2}")
    a(f"v_and_b32 v{T}, 31, v1\n s_lshl_b32 s46, s43, 5\n v_add_u32 v{T}, s46, v{T}")
    a(f"v_bfe_u32 v{T+1}, v{T}, 1, 3\n v_lshrrev_b32 v{T+2}, 5, v1\n v_xor_b32 v{T+1}, v{T+1}, v{T+2}\n v_lshlrev_b32 v{T}, 7, v{T}")
    for k in range(4):
        a(f"v_xor_b32 v{T+2}, {2*k}, v{T+1}\n v_lshl_add_u32 v{vWA+k}, v{T+2}, 4, v{T}")
        a(f"v_add_u32 v{vWA+4+k}, {2*S2}, v{vWA+k}\n v_add_u32 v{vWA+8+k}, {4*S2}, v{vWA+k}")
    vB3, vY3, vO3, XR = 150, 151, 152, 156
    srd(a, sWO, 82, 896*896)
    pc_srd(a, sTT, "TAB_TT", 7*56*1024)
    a("s_lshl_b32 s51, s40, 2\n s_and_b32 s52, s41, 3\n s_add_u32 s51, s51, s52\n s_lshr_b32 s52, s41, 2")
    a("s_lshr_b32 s53, s51, 4\n s_lshl_b32 s53, s53, 4\n s_bfe_u32 s54, s51, 0x10003\n s_lshl_b32 s54, s54, 2\n s_add_u32 s53, s53, s54")
    a(f"v_lshrrev_b32 v{T}, 3, v1\n v_and_b32 v{T+1}, 7, v1\n v_bfe_u32 v{T+2}, v1, 4, 1\n v_lshlrev_b32 v{T+2}, 2, v{T+2}\n v_xor_b32 v{T+2}, v{T+1}, v{T+2}")
    a(f"v_mul_u32_u24 v{vB3}, 896, v{T}\n v_lshl_add_u32 v{vO3}, v{T+1}, 4, v{vB3}\n v_lshl_add_u32 v{vB3}, v{T+2}, 4, v{vB3}")
    a(f"v_lshrrev_b32 v{T+1}, 2, v{T+2}\n v_and_b32 v{T+3}, 3, v{T+2}\n v_lshl_add_u32 v{T+1}, v{T+1}, 3, v{T+3}\n v_lshlrev_b32 v{vY3}, 12, v{T}\n v_lshl_add_u32 v{vY3}, v{T+1}, 4, v{vY3}")
    a(f"s_lshl_b32 s54, s51, 1\n s_lshr_b32 s55, s42, 2\n s_add_u32 s54, s54, s55\n s_mul_i32 s54, s54, 56\n s_and_b32 s55, s42, 3\n s_add_u32 s54, s54, s55\n s_lshl_b32 s54, s54, 10\n s_add_u32 s54, s54, {H}")
    a("s_mul_i32 s55, s42, 7168\n s_lshl_b32 s56, s52, 7\n s_add_u32 s55, s55, s56")
    a(f"s_lshl_b32 s56, s42, 15\n s_and_b32 s57, s51, 7\n s_lshl_b32 s57, s57, 9\n s_add_u32 s56, s56, s57\n s_lshl_b32 s57, s53, 4\n s_add_u32 s56, s56, s57\n s_add_u32 s56, s56, {YT}")
    a("s_mul_i32 s57, s52, 56\n s_add_u32 s57, s57, s42\n s_lshl_b32 s57, s57, 10")
    a("s_lshr_b32 s58, s42, 2\n s_lshl_b32 s58, s58, 3\n s_add_u32 s58, s58, s53\n s_and_b32 s59, s42, 3\n s_add_u32 s58, s58, s59\n s_lshl_b32 s58, s58, 6")
    a("s_and_b32 s59, s51, 7\n s_lshl_b32 s59, s59, 3\n s_add_u32 s58, s58, s59\n s_mul_i32 s58, s58, 896\n s_lshl_b32 s59, s52, 7\n s_add_u32 s58, s58, s59")
    a(f"s_lshl_b32 s59, s84, 11\n s_lshl_b32 s61, s85, 7\n s_add_u32 s59, s59, s61\n s_add_u32 s59, s59, {FLH}")
    a(f"s_lshr_b32 s61, s51, 1\n s_lshl_b32 s61, s61, 11\n s_add_u32 s61, s61, {FLH}\n s_mov_b32 s62, {FLY}")
    blk = {}
    free = []
    def unit(kind, i):
        b = free.pop(0); blk[(kind, i)] = b
        a(f"s_add_u32 m0, s48, {b*8192}")
        if kind == "T":
            a(f"s_add_u32 s49, s57, {i*8192}\n buffer_load_dwordx4 v{vF}, s[{sTT}:{sTT+3}], s49 offen lds")
        elif kind == "W":
            a(f"s_add_u32 s49, s55, {64*i*896}\n buffer_load_dwordx4 v{vB3}, s[{sWO}:{sWO+3}], s49 offen lds")
        elif kind == "Y":
            a(f"s_add_u32 s49, s56, {i*64*4096}\n buffer_load_dwordx4 v{vY3}, s[{sWS}:{sWS+3}], s49 offen sc1 lds")
        else:
            a(f"s_add_u32 s49, s54, {4*i*1024}\n buffer_load_dwordx4 v{vF}, s[{sWS}:{sWS+3}], s49 offen sc1 lds")
        vm.issue((kind, i))
    PRE = {27: [("T", 0), ("T", 1), ("T", 2)], 28: [("T", 3), ("T", 4), ("T", 5)], 29: [("T", 6), ("W", 0), ("W", 1)],
           30: [("W", 2), ("W", 3)], 31: [], 32: []}
    a(f"s_waitcnt vmcnt({vm.wait('fin')})\n s_barrier")
    set_flag("L_FU", 60)
    poll_pipe("L_CZ", 89, 240)
    a("s_barrier")
    stg(25); dbgt(8)
    for Tg in range(D): dmaB(Tg)
    def win(Tg): sl = PERM[Tg % 6]; return sl >> 1, (sl & 1)*S2
    def rd2(Tg, k):
        b = FR+32*(Tg & 1); w_, so = win(Tg)
        return [f"ds_read_b64_tr_b16 v[{b+8*k+2*tt}:{b+8*k+2*tt+1}], v{vTR2+w_} offset:{so+16384+2048*k+256*tt}" for tt in range(2)] + \
               [f"ds_read_b128 v[{b+8*k+4}:{b+8*k+7}], v{vWA+4*w_+k} offset:{so}"]
    def mf2(Tg):
        b = FR+32*(Tg & 1)
        return [f"v_mfma_f32_32x32x16_bf16 v[{AC}:{AC+15}], v[{b+8*k}:{b+8*k+3}], v[{b+8*k+4}:{b+8*k+7}], " + ("0" if (Tg == 0 and k == 0) else f"v[{AC}:{AC+15}]") for k in range(4)]
    def late_loads():
        a(f"s_add_u32 s49, s45, {Z1}" if Z1 else "s_mov_b32 s49, s45")
        for q in range(2):
            a(f"buffer_load_dwordx4 v[{ZR+4*q}:{ZR+4*q+3}], v{vF}, s[{sWS}:{sWS+3}], s49 offen offset:{q*1024} sc1"); vm.issue("z1")
        a("s_and_b32 s46, s43, 1\n s_lshl_b32 s46, s46, 3\n s_add_u32 s46, s46, s86\n s_lshl_b32 s46, s46, 6")
        a("s_and_b32 s47, s84, 3\n s_lshl_b32 s47, s47, 1\n s_lshr_b32 s49, s43, 1\n s_add_u32 s47, s47, s49\n s_lshl_b32 s47, s47, 3\n s_add_u32 s46, s46, s47\n s_lshl_b32 s46, s46, 1")
        a(f"v_bfe_u32 v{T}, v1, 3, 2\n v_and_b32 v{T+1}, 7, v1\n v_lshlrev_b32 v{T}, 7, v{T}\n v_lshl_add_u32 v{T}, v{T+1}, 1, v{T}")
        a(f"buffer_load_ushort v{BS}, v{T}, s[{sBS}:{sBS+3}], s46 offen"); vm.issue("z1")
        a(f"buffer_load_dwordx4 v[{XR}:{XR+3}], v{vO3}, s[{sX}:{sX+3}], s58 offen"); vm.issue("z1")
    n0 = len(a.lines)
    a(f"s_mov_b32 s47, {hex(f32bits(C2))}\n v_mov_b32 v{GT+8}, {hex(f32bits(C1))}")
    for q in range(0, 16, 4):
        R = [Z1F+q+i for i in range(4)]; Tt = [GT+i for i in range(4)]
        for i in range(2): a(f"v_lshlrev_b32 v{R[2*i]}, 16, v{ZR+q//2+i}\n v_and_b32 v{R[2*i+1]}, 0xffff0000, v{ZR+q//2+i}")
        for i in range(4): a(f"v_mul_f32 v{Tt[i]}, v{R[i]}, v{R[i]}")
        for i in range(4): a(f"v_fma_f32 v{Tt[i]}, v{Tt[i]}, s47, v{GT+8}")
        for i in range(4): a(f"v_mul_f32 v{Tt[i]}, v{Tt[i]}, v{R[i]}")
        for i in range(4): a(f"v_exp_f32 v{Tt[i]}, v{Tt[i]}")
        for i in range(4): a(f"v_add_f32 v{Tt[i]}, 1.0, v{Tt[i]}")
        for i in range(4): a(f"v_rcp_f32 v{Tt[i]}, v{Tt[i]}")
        for i in range(4): a(f"v_mul_f32 v{Tt[i]}, v{Tt[i]}, v{R[i]}")
        for i in range(4): a(f"v_cvt_pk_bf16_f32 v{R[i]}, 0, v{Tt[i]}")
    a(f"v_lshlrev_b32 v{BS}, 16, v{BS}")
    gl = a.lines[n0:]; del a.lines[n0:]
    PY = 160
    WM = 164
    U_T, Y_T = 7, 31
    for Tg in range(32):
        n = vm.wait(("g", Tg))
        a(f"s_waitcnt vmcnt({n})")
        if Tg == U_T: poll_check("L_CU", 90, vPOLL, covered=True)
        a("s_barrier")
        stg(26+Tg)
        def issue():
            if Tg == U_T-D: poll_issue("L_PU", 90, vPOLL)
            if Tg == 31: poll_issue("L_PY", 62, PY)
            if Tg == U_T: late_loads()
            if Tg+D < 32:
                dmaA(Tg+D); dmaB(Tg+D)
            else:
                free.extend(3*PERM[(Tg-1) % 6]+i for i in range(3))
                for u_ in PRE[Tg]: unit(*u_)
        rd = rd2(Tg, 0)+rd2(Tg, 1)+rd2(Tg, 2)+rd2(Tg, 3)
        body(mf2(Tg-1) if Tg > 0 else [], rd, issue, gl if Tg >= U_T+6 else None, 3)
        a("s_waitcnt lgkmcnt(0)")
    assert not gl
    dbgt(9)
    vTRo, vFRo, vTRs, vFRs = 168, 171, 224, 227; FG = 176; AC3 = 208; ACO = AC
    W3 = 49152
    a(f"v_bfe_u32 v{T}, v1, 2, 2\n v_lshrrev_b32 v{T+1}, 5, v1")
    a(f"v_bfe_u32 v{T+2}, v1, 4, 1\n v_bfe_u32 v{T+3}, v1, 1, 1\n v_lshl_add_u32 v{T+2}, v{T+2}, 1, v{T+3}")
    a(f"v_lshrrev_b32 v{T+3}, 1, v{T}\n v_lshlrev_b32 v{T+3}, 2, v{T+3}\n v_xor_b32 v{T+2}, v{T+2}, v{T+3}")
    a(f"v_and_b32 v{T+3}, 1, v1\n v_lshlrev_b32 v{T+3}, 3, v{T+3}\n v_lshl_add_u32 v{T+3}, v{T}, 7, v{T+3}")
    a("s_and_b32 s46, s42, 1\n s_bfe_u32 s47, s42, 0x10001")
    a(f"s_lshl_b32 s49, s47, 2\n v_xor_b32 v{T}, s49, v{T+2}\n v_lshl_add_u32 v{vTRo}, v{T}, 4, v{T+3}\n v_lshl_add_u32 v{vTRo}, v{T+1}, 9, v{vTRo}")
    a(f"s_lshl_b32 s49, s46, 12\n v_add_u32 v{vFRo}, s49, v{vF}")
    a(f"s_lshl_b32 s49, s46, 2\n v_xor_b32 v{T}, s49, v{T+2}\n v_lshl_add_u32 v{vTRs}, v{T}, 4, v{T+3}\n v_lshl_add_u32 v{vTRs}, v{T+1}, 10, v{vTRs}")
    a(f"s_lshl_b32 s49, s47, 10\n v_add_u32 v{vFRs}, s49, v{vF}")
    for b in (vTRo, vFRo, vTRs, vFRs): a(f"v_add_u32 v{b+1}, {W3}, v{b}\n v_add_u32 v{b+2}, {2*W3}, v{b}")
    a("s_cmp_ge_u32 s42, 4\n s_cbranch_scc1 L_S")
    vm_save = list(vm.ops); free_save = list(free); blk_save = dict(blk)
    HF_T, HC_T, NWPRE = 34, 41, 11; SS = 34; OS = 42
    EXO = 272; EXA, EXB, EXS = 0, 64*EXO, 128*EXO
    LAST = OS+7
    for path in ("O", "S"):
        vm.ops = list(vm_save); stg2.pending = None; free[:] = free_save; blk.clear(); blk.update(blk_save)
        if path == "S": a("L_S:")
        grp = 0 if path == "O" else 1
        def work(it):
            if SS <= it < SS+7: return ("S", it-SS) if path == "S" else None
            if OS <= it < OS+7: return ("O", 2*(it-OS)+grp)
            return None
        def fb(it): return FG if (it & 1) else FR
        def rd3(it):
            wk = work(it)
            if wk is None: return []
            b = fb(it); out = []
            if wk[0] == "S": b1, b2, vt, vf, ts, ks = blk[("Y", wk[1])], blk[("T", wk[1])], vTRs, vFRs, 512, 2048
            else: b1, b2, vt, vf, ts, ks = blk[("W", wk[1])], blk[("H", wk[1])], vTRo, vFRo, 1024, 1024
            for k in range(4):
                for tt in range(2):
                    out.append(f"ds_read_b64_tr_b16 v[{b+8*k+2*tt}:{b+8*k+2*tt+1}], v{vt+b1//6} offset:{(b1 % 6)*8192+k*2048+tt*ts}")
                out.append(f"ds_read_b128 v[{b+8*k+4}:{b+8*k+7}], v{vf+b2//6} offset:{(b2 % 6)*8192+k*ks}")
            return out
        def mf3(it):
            wk = work(it)
            if wk is None: return []
            b = fb(it); out = []
            for k in range(4):
                if wk[0] == "O":
                    cin = "0" if (it == OS and k == 0) else f"v[{ACO}:{ACO+15}]"
                    out.append(f"v_mfma_f32_32x32x16_bf16 v[{ACO}:{ACO+15}], v[{b+8*k}:{b+8*k+3}], v[{b+8*k+4}:{b+8*k+7}], {cin}")
                else:
                    cin = "0" if (it == SS and k == 0) else f"v[{AC3}:{AC3+15}]"
                    out.append(f"v_mfma_f32_32x32x16_f16 v[{AC3}:{AC3+15}], v[{b+8*k+4}:{b+8*k+7}], v[{b+8*k}:{b+8*k+3}], {cin}")
            return out
        nextW, nextH = [4], [0]
        for it in range(32, LAST):
            need = []
            if SS <= it < SS+7: need = [("Y", it-SS), ("T", it-SS)]
            if OS <= it < OS+7: need = [(k_, 2*(it-OS)+g_) for k_ in "WH" for g_ in range(2)]
            if it == HF_T: need.append("h")
            if need: a(f"s_waitcnt vmcnt({min(vm.wait(x) for x in need)})")
            if it == 33 and path == "O":
                a(f"s_waitcnt vmcnt(2)")
                poll_check("L_CY", 62, PY, covered=True)
                a(f"v_and_b32 v{vPA}, 15, v1\n v_min_u32 v{vPA}, 13, v{vPA}\n v_lshlrev_b32 v{vPA}, 7, v{vPA}")
            if it == HC_T and path == "O": poll_pipe("L_CH", 61, 240)
            a("s_barrier")
            stg2(it-32)
            if it == HF_T and path == "O": set_flag("L_FH", 59)
            def issue():
                if it == 32:
                    free.extend(3*PERM[31 % 6]+i for i in range(3))
                    for u_ in PRE[32]: unit(*u_)
                if it == 33:
                    for i_ in range(7): unit("Y", i_)
                    a(f"s_mov_b32 s49, {WMAX}")
                    a(f"buffer_load_dwordx4 v[{WM}:{WM+3}], v{vF}, s[{sWS}:{sWS+3}], s49 offen sc1"); vm.issue("wm")
                if SS+1 <= it < SS+8: free.extend([blk[("Y", it-SS-1)], blk[("T", it-SS-1)]])
                if OS+1 <= it < OS+7: free.extend(blk[(k_, 2*(it-OS-1)+g_)] for k_ in "WH" for g_ in range(2))
                while free and it > 33:
                    if it < HC_T:
                        if nextW[0] < NWPRE: unit("W", nextW[0]); nextW[0] += 1
                        else: break
                    else:
                        if nextH[0] < 14 and (nextH[0] < nextW[0] or nextW[0] >= 14): unit("H", nextH[0]); nextH[0] += 1
                        elif nextW[0] < 14: unit("W", nextW[0]); nextW[0] += 1
                        else: break
            body(mf2(31) if it == 32 else mf3(it-1), rd3(it), issue)
            if it == 32:
                E = FR+32
                for i in range(16): a(f"v_cvt_pk_bf16_f32 v{E+i}, 0, v{AC+i}")
                for i in range(16): a(f"v_add_f32 v{E+i}, v{E+i}, v{BS}")
                for i in range(16): a(f"v_cvt_pk_bf16_f32 v{E+i}, 0, v{E+i}")
                for i in range(16): a(f"v_mul_f32 v{E+i}, v{E+i}, v{Z1F+i}")
                for p in range(8): a(f"v_cvt_pk_bf16_f32 v{E+16+p}, v{E+2*p}, v{E+2*p+1}")
                a(f"s_add_u32 s49, s45, {H}")
                for q in range(2):
                    a(f"buffer_store_dwordx4 v[{E+16+4*q}:{E+19+4*q}], v{vF}, s[{sWS}:{sWS+3}], s49 offen offset:{q*1024} sc1"); vm.issue("h")
            if it == OS and path == "S":
                wmax_reduce(a, WM, 28, 29)
                a(f"s_lshl_b32 s28, s28, 23\n v_mov_b32 v174, {hex(f32bits(1/28))}\n v_mul_f32 v174, s28, v174")
            if it == OS+1 and path == "S":
                for i in range(16): a(f"v_mul_f32 v{AC3+i}, v{AC3+i}, v174")
                for p in range(8): a(f"v_cvt_pk_bf16_f32 v{ZR+p}, v{AC3+2*p}, v{AC3+2*p+1}")
            a("s_waitcnt lgkmcnt(0)")
        a("s_barrier")
        for l in mf3(LAST-1): a(l)
        a(f"v_and_b32 v{T}, 31, v1\n s_lshl_b32 s49, s46, 5\n v_add_u32 v{T}, s49, v{T}\n v_lshrrev_b32 v{T+1}, 5, v1")
        if path == "S":
            a(f"v_mul_u32_u24 v{T+2}, {EXP}, v{T}\n v_lshl_add_u32 v{T+2}, v{T+1}, 3, v{T+2}\n s_lshl_b32 s49, s47, 6\n s_add_u32 s49, s49, {EXS}\n v_add_u32 v{T+2}, s49, v{T+2}")
            for j in range(4): a(f"ds_write_b64 v{T+2}, v[{ZR+2*j}:{ZR+2*j+1}] offset:{16*j}")
        a(f"v_mul_u32_u24 v{T}, {EXO}, v{T}\n v_lshl_add_u32 v{T}, v{T+1}, 4, v{T}\n s_lshl_b32 s49, s47, 7\n s_add_u32 s49, s49, {EXA if path == 'O' else EXB}\n v_add_u32 v{T}, s49, v{T}")
        for j in range(4): a(f"ds_write_b128 v{T}, v[{ACO+4*j}:{ACO+4*j+3}] offset:{32*j}")
        if path == "O": a("s_branch L_J3")
    a("L_J3:")
    stg2(21)
    a("s_waitcnt lgkmcnt(0)\n s_barrier")
    a(f"v_lshrrev_b32 v{T}, 3, v0\n v_and_b32 v{T+1}, 7, v0\n v_mul_u32_u24 v{T+2}, {EXP}, v{T}\n v_lshl_add_u32 v{T+2}, v{T+1}, 4, v{T+2}")
    a(f"v_mul_u32_u24 v{T}, {EXO}, v{T}\n v_lshl_add_u32 v{T}, v{T+1}, 5, v{T}")
    O_, S_ = 20, 24; A_, B_ = 32, 40
    a(f"ds_read_b128 v[{A_}:{A_+3}], v{T}\n ds_read_b128 v[{A_+4}:{A_+7}], v{T} offset:16")
    a(f"ds_read_b128 v[{B_}:{B_+3}], v{T} offset:{EXB}\n ds_read_b128 v[{B_+4}:{B_+7}], v{T} offset:{EXB+16}")
    a(f"ds_read_b128 v[{S_}:{S_+3}], v{T+2} offset:{EXS}")
    a(f"s_mov_b32 s46, {hex(f32bits(-math.log2(math.e)))}\n s_mov_b32 s47, s46")
    a("s_waitcnt lgkmcnt(0)")
    for p in range(4): a(f"v_pk_add_f32 v[{A_+2*p}:{A_+2*p+1}], v[{A_+2*p}:{A_+2*p+1}], v[{B_+2*p}:{B_+2*p+1}]")
    for i in range(8): a(f"v_cvt_pk_bf16_f32 v{A_+i}, 0, v{A_+i}")
    for p in range(4): a(f"v_pk_mul_f32 v[{B_+2*p}:{B_+2*p+1}], v[{A_+2*p}:{A_+2*p+1}], s[46:47]")
    for i in range(8): a(f"v_exp_f32 v{B_+i}, v{B_+i}")
    for p in range(4): a(f"v_pk_add_f32 v[{B_+2*p}:{B_+2*p+1}], v[{B_+2*p}:{B_+2*p+1}], 1.0 op_sel_hi:[1,0]")
    for i in range(8): a(f"v_rcp_f32 v{B_+i}, v{B_+i}")
    for p in range(4): a(f"v_pk_mul_f32 v[{A_+2*p}:{A_+2*p+1}], v[{A_+2*p}:{A_+2*p+1}], v[{B_+2*p}:{B_+2*p+1}]")
    for i in range(8): a(f"v_cvt_pk_bf16_f32 v{A_+i}, 0, v{A_+i}")
    for p in range(4): a(f"v_lshlrev_b32 v{B_+2*p}, 16, v{S_+p}\n v_and_b32 v{B_+2*p+1}, 0xffff0000, v{S_+p}")
    for p in range(4): a(f"v_pk_mul_f32 v[{A_+2*p}:{A_+2*p+1}], v[{A_+2*p}:{A_+2*p+1}], v[{B_+2*p}:{B_+2*p+1}]")
    for i in range(8): a(f"v_cvt_pk_bf16_f32 v{A_+i}, 0, v{A_+i}")
    for p in range(4): a(f"v_lshlrev_b32 v{B_+2*p}, 16, v{XR+p}\n v_and_b32 v{B_+2*p+1}, 0xffff0000, v{XR+p}")
    for p in range(4): a(f"v_pk_add_f32 v[{A_+2*p}:{A_+2*p+1}], v[{A_+2*p}:{A_+2*p+1}], v[{B_+2*p}:{B_+2*p+1}]")
    for p in range(4): a(f"v_cvt_pk_bf16_f32 v{O_+p}, v{A_+2*p}, v{A_+2*p+1}")
    a(f"buffer_store_dwordx4 v[{O_}:{O_+3}], v{vO3}, s[{sOUT}:{sOUT+3}], s58 offen")
    def prof_end():
        if not PROF: return
        stg2(22); a("s_waitcnt vmcnt(0)"); stg2(23)
        a("s_memrealtime s[94:95]\n s_waitcnt lgkmcnt(0)")
        a("v_writelane_b32 v247, s100, 23\n v_writelane_b32 v247, s96, 62\n v_writelane_b32 v247, s94, 63")
        a(f"s_lshl_b32 s98, s2, 3\n s_add_u32 s98, s98, s42\n s_lshl_b32 s98, s98, 9\n s_add_u32 s98, s98, {TS}")
        a(f"v_lshlrev_b32 v251, 2, v1\n buffer_store_dword v246, v251, s[{sWS}:{sWS+3}], s98 offen\n buffer_store_dword v247, v251, s[{sWS}:{sWS+3}], s98 offen offset:256")
    prof_end()
    dbgt(10); dbg_flush()
    a("s_endpgm")
    gen_aux(a, locals())
    a("L_END:\n s_endpgm")
    a.raw(kd(NAME, 256, 102))

def gen_aux(a, L):
    sWS, sDBG, sSP, sBS = L["sWS"], L["sDBG"], L["sSP"], L["sBS"]
    vZERO, vPOLL, vPA, vF = L["vZERO"], L["vPOLL"], L["vPA"], L["vF"]
    stg, stg2 = L["stg"], L["stg2"]
    get_nonce, poll_check = L["get_nonce"], L["poll_check"]
    a("L_AUX:")
    stg.pending = 0; stg2.pending = None
    sWR, sWI, sTB = 4, 8, 16
    srd(a, sWR, 28, 2048*450); srd(a, sWI, 30, 2048*450)
    pc_srd(a, sTB, "TAB_FFT", FT_BYTES)
    a("s_sub_u32 s41, s41, 28")
    a("s_lshl_b32 s43, s41, 3\n s_add_u32 s43, s43, s40")
    a("s_cmp_lg_u32 s41, 0\n s_cbranch_scc1 L_NOCODE")
    pc_srd(a, 44, NAME, "L_END-"+NAME)
    a("v_lshlrev_b32 v5, 7, v0\n buffer_load_dword v254, v5, s[44:47], 0 offen")
    a("L_NOCODE:")
    a("s_lshr_b32 s44, s43, 1\n s_lshl_b32 s44, s44, 2\n s_and_b32 s45, s42, 3\n s_add_u32 s44, s44, s45\n s_lshl_b32 s44, s44, 5")
    a("s_and_b32 s45, s43, 1\n s_lshl_b32 s45, s45, 4\n s_add_u32 s44, s44, s45\n s_mul_i32 s44, s44, 450")
    WL = 65536
    a(f"s_lshl_b32 s46, s42, 13\n s_add_u32 s46, s46, {WL}")
    a("s_cmp_ge_u32 s42, 4\n s_cbranch_scc1 L_AUXI")
    for arr, sr in (("R", sWR), ("I", sWI)):
        if arr == "I": a("L_AUXI:")
        for i in range(8):
            a(f"s_add_u32 m0, s46, {i*1024}\n s_add_u32 s47, s44, {i*1024}")
            a(f"buffer_load_dwordx4 v{vF}, s[{sr}:{sr+3}], s47 offen lds")
        if arr == "R": a("s_branch L_AUXJ")
    a("L_AUXJ:")
    a("s_mul_i32 s45, s42, 7168")
    for i in range(7):
        a(f"s_add_u32 m0, s45, {i*1024}\n s_add_u32 s46, s45, {i*1024}")
        a(f"buffer_load_dwordx4 v{vF}, s[{sTB}:{sTB+3}], s46 offen lds")
    a(f"buffer_load_dword v{vPOLL}, v{vZERO}, s[{sDBG}:{sDBG+3}], 0 offen sc1")
    a("v_and_b32 v5, 63, v0\n v_lshlrev_b32 v5, 12, v5\n v_lshrrev_b32 v6, 6, v0\n v_lshl_add_u32 v5, v6, 7, v5\n s_lshl_b32 s47, s43, 18")
    a(f"buffer_load_dword v252, v5, s[{sSP}:{sSP+3}], s47 offen")
    a("s_waitcnt vmcnt(1)\n s_barrier")
    stg(1)
    a("v_and_b32 v6, 15, v0\n v_lshrrev_b32 v7, 4, v0")
    a(f"v_mul_u32_u24 v8, 450, v6\n v_lshl_add_u32 v8, v7, 1, v8\n v_add_u32 v8, {WL}, v8")
    a("v_lshlrev_b32 v9, 13, v7\n v_lshl_add_u32 v9, v6, 4, v9")
    a(f"s_lshl_b32 s48, s43, 8\n s_add_u32 s48, s48, {WP}")
    a("v_mov_b32 v10, 0")
    for it in range(8):
        d = 16+4*it
        for r in range(4):
            a(f"ds_read_u16 v{d+r}, v8 offset:{r*8192+64*it}")
            a(f"ds_read_u16 v{d+r+96}, v8 offset:{(4+r)*8192+64*it}")
    get_nonce("L_ANON")
    a("s_waitcnt lgkmcnt(0)")
    for it in range(8):
        d = 16+4*it
        for r in range(4): a(f"v_lshl_or_b32 v{d+r}, v{d+r+96}, 16, v{d+r}")
        if it == 7:
            a("v_cmp_gt_u32 vcc, 16, v0\n s_and_saveexec_b64 s[50:51], vcc\n s_cbranch_execz L_AUXSK")
        a(f"buffer_store_dwordx4 v[{d}:{d+3}], v9, s[{sWS}:{sWS+3}], s48 offen sc1")
        for r in range(4):
            a(f"v_and_b32 v{12+(r&1)}, 0x7fff7fff, v{d+r}\n v_pk_max_u16 v10, v10, v{12+(r&1)}")
        if it < 7: a(f"s_add_u32 s48, s48, {32*8192}")
    a("L_AUXSK:\n s_mov_b64 exec, -1")
    a("v_lshrrev_b32 v11, 16, v10\n v_and_b32 v10, 0xffff, v10\n v_max_u32 v10, v10, v11")
    a("v_max_u32_dpp v10, v10, v10 quad_perm:[1,0,3,2] row_mask:0xf bank_mask:0xf")
    a("v_max_u32_dpp v10, v10, v10 quad_perm:[2,3,0,1] row_mask:0xf bank_mask:0xf")
    a("v_max_u32_dpp v10, v10, v10 row_half_mirror row_mask:0xf bank_mask:0xf")
    a("v_max_u32_dpp v10, v10, v10 row_mirror row_mask:0xf bank_mask:0xf")
    a("v_readlane_b32 s50, v10, 0\n v_readlane_b32 s51, v10, 16\n v_readlane_b32 s52, v10, 32\n v_readlane_b32 s53, v10, 48")
    a("s_max_u32 s50, s50, s51\n s_max_u32 s52, s52, s53\n s_max_u32 s50, s50, s52")
    a(f"s_lshl_b32 s49, s43, 3\n s_add_u32 s49, s49, s42\n s_lshl_b32 s49, s49, 2\n s_add_u32 s49, s49, {WMAX}")
    a("v_mov_b32 v10, s50\n s_mov_b64 exec, 1")
    a(f"buffer_store_dword v10, v{vZERO}, s[{sWS}:{sWS+3}], s49 offen sc1")
    a("s_mov_b64 exec, -1")
    a("s_waitcnt vmcnt(0)\n s_barrier")
    stg(2)
    a(f"s_lshl_b32 s49, s43, 7\n s_add_u32 s49, s49, {FLW}")
    L["set_flag"]("L_FW", 49)
    for rnd in range(1, -(-WSP_K1//8)):
        if 8*rnd+8 > WSP_K1: a(f"s_cmp_ge_u32 s42, {WSP_K1-8*rnd}\n s_cselect_b32 s47, 0x10000000, s47")
        a(f"buffer_load_dword v{252+rnd}, v5, s[{sSP}:{sSP+3}], s47 offen offset:{1024*rnd}")
    pc_srd(a, 8, "TAB_TT", 7*56*1024)
    srd(a, 4, 82, 896*896)
    a("v_lshlrev_b32 v5, 7, v0\n s_mul_i32 s44, s43, 25088\n s_mul_i32 s45, s43, 12544")
    a("v_mov_b32 v6, 0x10000000\n v_cmp_gt_u32 vcc, 196, v0\n v_cndmask_b32 v7, v6, v5, vcc\n buffer_load_dword v253, v7, s[4:7], s44 offen")
    a("v_cmp_gt_u32 vcc, 98, v0\n v_cndmask_b32 v7, v6, v5, vcc\n buffer_load_dword v254, v7, s[8:11], s45 offen")
    a(f"buffer_load_dword v255, v5, s[{sBS}:{sBS+3}], 0 offen")
    a(f"v_mov_b32 v8, {SX}\n ds_write_b32 v8, v{vZERO}")
    a("s_cmp_lg_u32 s42, 7\n s_cbranch_scc1 L_FFT0\n s_cmp_lg_u32 s43, 0\n s_cbranch_scc1 L_END\nL_FFT0:")
    a(f"v_and_b32 v{vPA}, 31, v1\n v_lshlrev_b32 v{vPA}, 7, v{vPA}\n s_mov_b32 s59, {FLW}")
    L["poll_issue"]("L_PW", 59, vPOLL)
    poll_check("L_CW", 59, vPOLL, sleep=16)
    a("s_barrier")
    a("s_mul_i32 s44, s43, 7\n s_add_u32 s44, s44, s42\n s_cmp_eq_u32 s42, 7\n s_cselect_b32 s44, 224, s44")
    a(f"s_mov_b32 s53, {WMAX}\n buffer_load_dwordx4 v[12:15], v{vF}, s[{sWS}:{sWS+3}], s53 offen sc1")
    a(f"s_lshl_b32 s54, s44, 13\n s_add_u32 s54, s54, {WP}\n s_add_u32 s55, s54, 4096")
    for i in range(8):
        a(f"buffer_load_dwordx4 v[{128+4*i}:{131+4*i}], v{vF}, s[{sWS}:{sWS+3}], s{54 if i < 4 else 55} offen offset:{(i&3)*1024} sc1")
    a("s_mul_i32 s51, s43, 14\n s_add_u32 s52, s51, 13\n s_lshr_b32 s51, s51, 6\n s_lshr_b32 s52, s52, 6\n s_lshl_b32 s51, s51, 12\n s_lshl_b32 s52, s52, 12")
    a(f"v_mov_b32 v8, s51\n v_mov_b32 v9, s52\n v_cmp_gt_u32 vcc, 32, v1\n v_cndmask_b32 v8, v9, v8, vcc\n v_add_u32 v{vPA}, v{vPA}, v8\n s_mov_b32 s59, {FLU}")
    L["poll_issue"]("L_PF", 59, vPOLL)
    poll_check("L_CF", 59, vPOLL, sleep=8)
    a("s_waitcnt lgkmcnt(0)\n s_barrier")
    stg(3)

    vL = vF
    OPR, OPI, OPN = 16, 32, 48
    DR, DI = 64, 96
    WV = 128; C32 = 160; CF = 184; TWB = 216
    a("s_lshl_b32 s48, s44, 1\n s_add_u32 s49, s48, 1\n s_min_u32 s49, s49, 447\n s_cmp_eq_u32 s44, 224\n s_cselect_b32 s48, 1, s48")
    a("s_cmp_eq_u32 s44, 224\n s_cselect_b32 s58, 1, 0\n s_cmp_eq_u32 s44, 0\n s_cselect_b32 s58, 1, s58")
    a(f"s_lshl_b32 s48, s48, 12\n s_lshl_b32 s49, s49, 12\n s_add_u32 s51, s48, {U}\n s_add_u32 s52, s49, {U}")
    a(f"v_and_b32 v5, 31, v1\n v_lshrrev_b32 v6, 5, v1\n v_lshlrev_b32 v7, 4, v5\n v_lshl_add_u32 v7, v6, 10, v7")
    for mt in range(2):
        for c in range(2):
            f = 2*mt+c
            a(f"buffer_load_dwordx4 v[{OPR+4*f}:{OPR+4*f+3}], v7, s[{sWS}:{sWS+3}], s51 offen offset:{(32*mt+128*c)*16} sc1")
            a(f"buffer_load_dwordx4 v[{OPI+4*f}:{OPI+4*f+3}], v7, s[{sWS}:{sWS+3}], s52 offen offset:{(32*mt+128*c)*16} sc1")
    for i in range(6): a(f"ds_read_b128 v[{C32+4*i}:{C32+4*i+3}], v{vL} offset:{O_C32+i*1024}")
    CR = lambda c: f"v[{C32+4*c}:{C32+4*c+3}]"
    CI = lambda c: f"v[{C32+8+4*c}:{C32+8+4*c+3}]"
    CN = lambda c: f"v[{C32+16+4*c}:{C32+16+4*c+3}]"
    op = lambda base, f: f"v[{base+4*f}:{base+4*f+3}]"
    dd = lambda base, t: f"v[{base+16*t}:{base+16*t+15}]"
    a("s_waitcnt vmcnt(8)")
    wmax_reduce(a, 12, 53, 28)
    a("s_sub_u32 s56, 254, s53\n s_sub_u32 s56, s56, s58\n s_lshl_b32 s56, s56, 23\n s_mov_b32 s57, s56")
    a("s_waitcnt vmcnt(0)")
    a("s_cmp_eq_u32 s58, 0\n s_cbranch_scc1 L_NSP")
    for i in range(16): a(f"v_mov_b32 v{OPI+i}, 0")
    a("L_NSP:")
    a("s_waitcnt lgkmcnt(0)")
    stg(4)
    def mfma(d, x, y, first): a(f"v_mfma_f32_32x32x16_f16 {d}, {x}, {y}, {'0' if first else d}")
    for mt in range(2):
        for c in range(2):
            f = 2*mt+c
            mfma(dd(DR, mt), op(OPR, f), CR(c), c == 0); mfma(dd(DI, mt), op(OPR, f), CI(c), c == 0)
            mfma(dd(DR, mt), op(OPI, f), CN(c), False); mfma(dd(DI, mt), op(OPI, f), CR(c), False)
    def twiddle(otab, neg):
        def ld(g):
            b = TWB+8*(g % 3)
            a(f"ds_read_b128 v[{b}:{b+3}], v{vL} offset:{otab+g*2048}")
            a(f"ds_read_b128 v[{b+4}:{b+7}], v{vL} offset:{otab+g*2048+1024}")
        for g in range(2): ld(g)
        for g in range(8):
            if g+2 < 8: ld(g+2)
            a(f"s_waitcnt lgkmcnt({2*min(2, 7-g)})")
            b = TWB+8*(g % 3)
            v = 4*g
            for i in range(4): a(f"v_mul_f32 v{8+i}, v{DR+v+i}, v{b+i}\n v_mul_f32 v{12+i}, v{DR+v+i}, v{b+4+i}")
            for i in range(4): a(f"v_fma_f32 v{8+i}, -v{DI+v+i}, v{b+4+i}, v{8+i}\n v_fmac_f32 v{12+i}, v{DI+v+i}, v{b+i}")
            for pr in range(2):
                a(f"v_cvt_pk_f16_f32 v{OPR+v//2+pr}, v{8+2*pr}, v{9+2*pr}\n v_cvt_pk_f16_f32 v{OPI+v//2+pr}, v{12+2*pr}, v{13+2*pr}")
            if neg:
                for pr in range(2): a(f"v_xor_b32 v{OPN+v//2+pr}, 0x80008000, v{OPI+v//2+pr}")
    def big(step):
        def ld(i):
            b = CF+8*(i & 3)
            a(f"ds_read_b128 v[{b}:{b+3}], v{vL} offset:{O_C64R+i*1024}")
            a(f"ds_read_b128 v[{b+4}:{b+7}], v{vL} offset:{O_C64I+i*1024}")
        for i in range(3): ld(i)
        for i in range(8):
            if i+3 < 8: ld(i+3)
            a(f"s_waitcnt lgkmcnt({2*min(3, 7-i)})")
            b = CF+8*(i & 3); cr = f"v[{b}:{b+3}]"; ci = f"v[{b+4}:{b+7}]"
            t = i >> 2; c = i & 3
            if step == 3:
                mfma(dd(DR, t), cr, op(OPR, c), c == 0); mfma(dd(DI, t), ci, op(OPR, c), c == 0)
                mfma(dd(DR, t), ci, op(OPN, c), False); mfma(dd(DI, t), cr, op(OPI, c), False)
            else:
                mfma(dd(DR, t), op(OPR, c), cr, c == 0); mfma(dd(DI, t), op(OPI, c), cr, c == 0)
                mfma(dd(DR, t), op(OPI, c), ci, False); mfma(dd(DI, t), op(OPN, c), ci, False)
    twiddle(O_TW1, True)
    stg(5)
    big(3)
    stg(6)
    a("s_waitcnt vmcnt(0)")
    for v in range(0, 32, 4):
        b = TWB+8*((v >> 2) % 3)
        for i in range(4): a(f"v_lshlrev_b32 v{b+i}, 16, v{WV+v+i}\n v_and_b32 v{b+4+i}, 0xffff0000, v{WV+v+i}")
        for i in range(8): a(f"v_mul_f32 v{b+i}, s56, v{b+i}")
        for i in range(4): a(f"v_mul_f32 v{8+i}, v{DR+v+i}, v{b+i}\n v_mul_f32 v{12+i}, v{DR+v+i}, v{b+4+i}")
        for i in range(4): a(f"v_fma_f32 v{8+i}, -v{DI+v+i}, v{b+4+i}, v{8+i}\n v_fmac_f32 v{12+i}, v{DI+v+i}, v{b+i}")
        for pr in range(2):
            a(f"v_cvt_pk_f16_f32 v{OPR+v//2+pr}, v{8+2*pr}, v{9+2*pr}\n v_cvt_pk_f16_f32 v{OPI+v//2+pr}, v{12+2*pr}, v{13+2*pr}")
        for pr in range(2): a(f"v_xor_b32 v{OPN+v//2+pr}, 0x80008000, v{OPR+v//2+pr}")
    stg(7)
    big(5)
    stg(8)
    twiddle(O_TW2, False)
    stg(9)
    for nt in range(2):
        for c in range(2):
            f = 2*nt+c
            mfma(dd(DR, nt), op(OPR, f), CR(c), c == 0); mfma(dd(DI, nt), op(OPI, f), CR(c), c == 0)
            mfma(dd(DR, nt), op(OPI, f), CI(c), False); mfma(dd(DI, nt), op(OPR, f), CN(c), False)
    a("v_lshlrev_b32 v7, 4, v5\n v_lshl_add_u32 v7, v6, 9, v7")
    a(f"s_add_u32 s51, s48, {YT}\n s_add_u32 s52, s49, {YT}")
    for part, base, sreg in ((0, DR, 51), (1, DI, 52)):
        if part == 1: a("s_cmp_lg_u32 s58, 0\n s_cbranch_scc1 L_FDONE")
        for nt in range(2):
            for q in range(2):
                o = WV+16*part+8*nt+4*q; v = base+16*nt+8*q
                for i in range(4): a(f"v_cvt_pk_f16_f32 v{o+i}, v{v+2*i}, v{v+2*i+1}")
                a(f"v_permlane32_swap_b32 v{o}, v{o+2}\n v_permlane32_swap_b32 v{o+1}, v{o+3}")
                a(f"buffer_store_dwordx4 v[{o}:{o+3}], v7, s[{sWS}:{sWS+3}], s{sreg} offen offset:{(4*nt+2*q)*512} sc1")
    a("L_FDONE:")
    stg(10)
    a("s_waitcnt vmcnt(0)")
    a(f"v_mov_b32 v8, {SX}\n v_mov_b32 v9, 1\n s_mov_b64 exec, 1\n ds_add_rtn_u32 v9, v8, v9\n s_waitcnt lgkmcnt(0)\n v_readfirstlane_b32 s49, v9")
    a("s_cmp_eq_u32 s43, 0\n s_cselect_b32 s50, 7, 6\n s_cmp_lg_u32 s49, s50\n s_cbranch_scc1 L_NFY")
    a(f"s_lshl_b32 s49, s43, 7\n s_add_u32 s49, s49, {FLY}\n v_mov_b32 v{vPOLL}, s63")
    a(f"buffer_store_dword v{vPOLL}, v{vZERO}, s[{sWS}:{sWS+3}], s49 offen sc1")
    a("L_NFY:\n s_mov_b64 exec, -1")
    stg(11)
    if PROF:
        a("s_waitcnt lgkmcnt(0)\n v_writelane_b32 v246, s100, 11")
        stg2.pending = None
        L["prof_end"]()
    a("s_endpgm")
```

```python
from asmlib import Asm, Vm
from common import *
from k1 import gelu_pairs, red8, halfsum, var_to_rs, C1, C2
from k2 import O_C64R, O_C64I, O_TW1, O_TW2, O_C32, FT_BYTES, wmax_reduce
import math

NAME = "recurrent_scan__spectral_gfnet__mixer_gmlp__prompt_kernel"
S1 = 16384; N1 = 6; XN = N1*S1
S2 = 24576; PERM = [4, 5, 2, 3, 0, 1]
UX = 147456; UXP = 144
SX = 156672
LDS_BYTES = SX+4096
EXP = 144
FL = 0x1310000
FLZ, FLU, FLW, FLH, FLY, FL1 = FL, FL+0x8000, FL+0x10000, FL+0x18000, FL+0x20000, FL+0x28000
LD_T, CHK_T = int(os.environ.get("LDT", "14")), int(os.environ.get("CHKT", "17"))
FZ_T = int(os.environ.get("FZT", "99"))
WSP_K1 = int(os.environ.get("WSPK", "8"))
WSP_K2 = int(os.environ.get("WSPK2", "22"))
SPIN = 0x4000
CODE_BYTES = 40960
D = 5

XA = os.environ.get("XA", ""); XB = os.environ.get("XB", "sc1")
DBGT = bool(int(os.environ.get("DBGT", "0")))
def gen(a):
    a(f".text\n.globl {NAME}\n.p2align 8\n.type {NAME},@function\n{NAME}:")
    sX, sWIN, sWS, sFT, sDBG, sSP = 4, 8, 12, 16, 20, 24
    sWO, sTT, sOUT, sBS, sC = 8, 16, 64, 68, 72
    stg = StageStamps(a, 246); stg2 = StageStamps(a, 247)
    a("s_cmp_ge_u32 s2, 256\n s_cbranch_scc1 L_END")
    if PROF or DBGT: a("s_memrealtime s[96:97]")
    stg(0)
    a("s_load_dwordx2 s[76:77], s[0:1], 0")
    a("s_load_dwordx4 s[28:31], s[0:1], 8")
    a("s_load_dwordx4 s[32:35], s[0:1], 32")
    a("s_load_dwordx4 s[36:39], s[0:1], 72")
    a("s_load_dwordx4 s[80:83], s[0:1], 48")
    a("s_load_dwordx2 s[78:79], s[0:1], 64")
    a("s_and_b32 s40, s2, 7\n s_lshr_b32 s41, s2, 3")
    a("v_lshrrev_b32 v2, 6, v0\n v_and_b32 v1, 63, v0")
    a("v_readfirstlane_b32 s42, v2")
    pc_srd(a, sFT, "TAB_FT", 7*14*8*1024)
    vXo, vZ, vF, vW = 2, 3, 4, 5
    vTR = 6; vAA = 12
    XF = 16; BF = 128; ACC = 160; ACC2 = 176; ZP = 192; TMP = 200; VC1 = 226; PS = 228
    vA2, vB2 = 244, 245; VPF = 252; vZERO = 248; vPOLL = 249; vPA = 250
    a("s_and_b32 s62, s40, 3\n s_mul_i32 s43, s62, 28\n s_add_u32 s43, s43, s41\n s_lshr_b32 s44, s43, 4\n s_and_b32 s43, s43, 15")
    a("s_lshr_b32 s45, s40, 2\n s_lshl_b32 s45, s45, 4\n s_add_u32 s43, s43, s45")
    a("s_lshr_b32 s45, s43, 4\n s_lshl_b32 s45, s45, 4")
    a("s_lshr_b32 s46, s42, 2\n s_lshl_b32 s46, s46, 3\n s_add_u32 s45, s45, s46")
    a("s_bfe_u32 s46, s43, 0x10003\n s_lshl_b32 s46, s46, 2\n s_add_u32 s45, s45, s46")
    a("s_and_b32 s46, s42, 3\n s_add_u32 s45, s45, s46")
    a("s_lshl_b32 s45, s45, 6\n s_and_b32 s46, s43, 7\n s_lshl_b32 s46, s46, 3\n s_add_u32 s45, s45, s46")
    a("s_mul_i32 s45, s45, 896")
    a(f"v_lshrrev_b32 v{TMP}, 3, v1\n v_and_b32 v{TMP+1}, 7, v1")
    a(f"v_mul_u32_u24 v{vXo}, 896, v{TMP}\n v_lshl_add_u32 v{vXo}, v{TMP+1}, 4, v{vXo}")
    a(f"v_mov_b32 v{vZERO}, 0\n v_lshlrev_b32 v{vF}, 4, v1")
    a("s_waitcnt lgkmcnt(0)")
    srd(a, sX, 76, 2048*896)
    a("s_cmp_ge_u32 s41, 28\n s_cbranch_scc1 L_AUX0")
    vm = Vm()
    for cc in range(7):
        a(f"buffer_load_dwordx4 v[{BF+4*cc}:{BF+4*cc+3}], v{vXo}, s[{sX}:{sX+3}], s45 offen offset:{128*cc}"); vm.issue("x")
    a("L_AUX0:")
    srd(a, sWIN, 32, 448*3584); srd(a, sWS, 38, WS_BYTES); srd(a, sDBG, 36, 256); srd(a, sSP, 34, 2048*4096)
    srd(a, sOUT, 78, 2048*896); srd(a, sBS, 80, 4096)
    a("s_cmp_ge_u32 s41, 28\n s_cbranch_scc1 L_AUX")

    dlist = []
    def dbgt(idx, op=None):
        if not DBGT or op is not None: return
        a(f"s_memrealtime s[98:99]\n s_waitcnt lgkmcnt(0)\n v_writelane_b32 v247, s98, {idx}")
    def dbg_flush():
        if not DBGT: return
        a("s_cmp_lg_u32 s42, 0\n s_cbranch_scc1 L_DBGE")
        a("v_writelane_b32 v247, s96, 4")
        a("v_not_b32 v246, v247\n v_lshlrev_b32 v251, 3, v1\n v_subrev_u32 v251, 24, v251")
        a("s_mov_b64 exec, 0x7f0")
        a(f"buffer_atomic_umax v247, v251, s[{sDBG}:{sDBG+3}], 0 offen\n buffer_atomic_umax v246, v251, s[{sDBG}:{sDBG+3}], 0 offen offset:4")
        a("s_mov_b64 exec, -1\nL_DBGE:")
    def get_nonce(lbl):
        a(f"s_mov_b32 s50, 0\n{lbl}:")
        a(f"v_readfirstlane_b32 s63, v{vPOLL}")
        a(f"s_add_u32 s50, s50, 1\n s_cmp_lg_u32 s63, 0\n s_cbranch_scc1 {lbl}_OK")
        a(f"s_cmp_ge_u32 s50, {SPIN}\n s_cbranch_scc1 {lbl}_OK")
        a(f"s_sleep 4\n buffer_load_dword v{vPOLL}, v{vZERO}, s[{sDBG}:{sDBG+3}], 0 offen sc1\n s_waitcnt vmcnt(0)\n s_branch {lbl}")
        a(f"{lbl}_OK:")
    def set_flag(lbl, soff):
        a(f"s_cmp_lg_u32 s42, 0\n s_cbranch_scc1 {lbl}")
        a(f"v_mov_b32 v{vPOLL}, s63\n s_mov_b64 exec, 1")
        a(f"buffer_store_dword v{vPOLL}, v{vZERO}, s[{sWS}:{sWS+3}], s{soff} offen sc1")
        a(f"s_mov_b64 exec, -1\n{lbl}:")
    def poll_issue(lbl, soff, vdst, wide=False):
        a(f"s_cmp_lg_u32 s42, 0\n s_cbranch_scc1 {lbl}")
        if wide: a(f"buffer_load_dwordx4 v[{vdst}:{vdst+3}], v{vF}, s[{sWS}:{sWS+3}], s{soff} offen sc1")
        else: a(f"buffer_load_dword v{vdst}, v{vPA}, s[{sWS}:{sWS+3}], s{soff} offen sc1")
        a(f"{lbl}:")
    def poll_check(lbl, soff, vdst, wide=False, allwaves=False, sleep=2, covered=False):
        if not allwaves: a(f"s_cmp_lg_u32 s42, 0\n s_cbranch_scc1 {lbl}_OK")
        a("s_mov_b32 s50, 0")
        if covered: a(f"s_branch {lbl}_1")
        a(f"{lbl}:\n s_waitcnt vmcnt(0)\n{lbl}_1:")
        a(f"v_cmp_eq_u32 vcc, s63, v{vdst}")
        if wide:
            for i in range(1, 4): a(f"v_cmp_eq_u32 s[30:31], s63, v{vdst+i}\n s_and_b64 vcc, vcc, s[30:31]")
        a(f"s_add_u32 s50, s50, 1\n s_cmp_eq_u64 vcc, exec\n s_cbranch_scc1 {lbl}_OK")
        a(f"s_cmp_ge_u32 s50, {SPIN}\n s_cbranch_scc1 {lbl}_OK")
        a(f"s_sleep {sleep}")
        if wide: a(f"buffer_load_dwordx4 v[{vdst}:{vdst+3}], v{vF}, s[{sWS}:{sWS+3}], s{soff} offen sc1")
        else: a(f"buffer_load_dword v{vdst}, v{vPA}, s[{sWS}:{sWS+3}], s{soff} offen sc1")
        a(f"s_branch {lbl}\n{lbl}_OK:")

    def poll_pipe(lbl, soff, r0, gap=4):
        a(f"s_cmp_lg_u32 s42, 0\n s_cbranch_scc1 {lbl}_OK")
        a("s_mov_b32 s50, 0")
        for i in range(4):
            a(f"buffer_load_dword v{r0+i}, v{vPA}, s[{sWS}:{sWS+3}], s{soff} offen sc1")
            if i < 3: a(f"s_sleep {gap}")
        a(f"{lbl}:")
        for i in range(4):
            a("s_waitcnt vmcnt(3)")
            a(f"v_cmp_eq_u32 vcc, s63, v{r0+i}")
            a(f"s_cmp_eq_u64 vcc, exec\n s_cbranch_scc1 {lbl}_OK")
            a(f"buffer_load_dword v{r0+i}, v{vPA}, s[{sWS}:{sWS+3}], s{soff} offen sc1")
            a(f"s_sleep {gap//2}")
        a(f"s_add_u32 s50, s50, 1\n s_cmp_lt_u32 s50, {SPIN}\n s_cbranch_scc1 {lbl}")
        a(f"{lbl}_OK:")

    a("s_add_u32 s49, s2, s42\n s_cmp_lg_u32 s49, 0\n s_cbranch_scc1 L_NN")
    a("s_memrealtime s[50:51]\n s_waitcnt lgkmcnt(0)\n s_or_b32 s50, s50, 1")
    a(f"v_mov_b32 v{vPOLL}, s50\n s_mov_b64 exec, 1")
    a(f"buffer_store_dword v{vPOLL}, v{vZERO}, s[{sDBG}:{sDBG+3}], 0 offen sc1")
    a("s_mov_b64 exec, -1\nL_NN:")
    vT = TMP+8
    a("s_mul_i32 s46, s62, 28\n s_lshr_b32 s46, s46, 4")
    a("s_mul_i32 s47, s62, 28\n s_add_u32 s47, s47, 27\n s_lshr_b32 s47, s47, 4")
    a("s_lshl_b32 s48, s41, 4\n s_lshl_b32 s49, s42, 1\n s_add_u32 s48, s48, s49\n s_mul_i32 s48, s48, 3584\n s_lshl_b32 s49, s46, 8\n s_add_u32 s48, s48, s49\n s_add_u32 s48, s48, 1792")
    ZT = os.environ.get("ZT", "vec")
    if ZT == "smem":
        for rr in range(2):
            for ln in range(6):
                a(f"s_buffer_load_dword s28, s[{sWIN}:{sWIN+3}], s48 offset:{rr*3584+ln*128}")
    a(f"v_and_b32 v{vT}, 127, v0\n v_lshrrev_b32 v{vT+1}, 5, v{vT}\n v_add_u32 v{vT+1}, s46, v{vT+1}\n v_cmp_lt_u32 vcc, s47, v{vT+1}\n v_mov_b32 v{vT+5}, 0x8000\n v_cndmask_b32 v{vT+1}, v{vT+1}, v{vT+5}, vcc")
    a(f"s_lshl_b32 s48, s41, 5\n v_and_b32 v{vT+2}, 31, v0\n v_add_u32 v{vT+2}, s48, v{vT+2}")
    a(f"v_lshrrev_b32 v{VPF}, 1, v{vT+2}\n v_mul_u32_u24 v{VPF}, 3584, v{VPF}\n v_lshl_add_u32 v{VPF}, v{vT+1}, 8, v{VPF}\n v_and_b32 v{vT+3}, 1, v{vT+2}\n v_lshl_add_u32 v{VPF}, v{vT+3}, 7, v{VPF}")
    a(f"s_mov_b32 s48, 114688\n v_mul_lo_u32 v{VPF+1}, v{vT+1}, s48\n v_lshl_add_u32 v{VPF+1}, v{vT+2}, 7, v{VPF+1}")
    def touch2():
        a("s_cmp_ge_u32 s42, 2\n s_cbranch_scc1 L_PFB")
        a(f"buffer_load_dword v{VPF+2}, v{VPF}, s[{sWIN}:{sWIN+3}], 0 offen")
        a("s_branch L_PFD\nL_PFB:")
        a("s_cmp_ge_u32 s42, 4\n s_cselect_b32 s49, 0x10000000, 0")
        a(f"buffer_load_dword v{VPF+2}, v{VPF+1}, s[{sFT}:{sFT+3}], s49 offen")
        a("L_PFD:"); vm.issue("pf")
    a("s_barrier")
    if ZT == "vec":
        a("s_cmp_ge_u32 s42, 2\n s_cselect_b32 s49, 0x10000000, 0")
        a(f"buffer_load_dword v{VPF+3}, v{VPF}, s[{sWIN}:{sWIN+3}], s49 offen offset:1792"); vm.issue("pf")
    a(f"v_lshrrev_b32 v{TMP+2}, 4, v1\n v_and_b32 v{TMP+3}, 15, v1\n v_lshlrev_b32 v{TMP+4}, 2, v{TMP+2}\n v_xor_b32 v{TMP+3}, v{TMP+3}, v{TMP+4}")
    a(f"v_mul_u32_u24 v{vZ}, 3584, v{TMP+2}\n v_lshl_add_u32 v{vZ}, v{TMP+3}, 4, v{vZ}")
    a("s_mul_i32 s46, s42, 14336\n s_lshl_b32 s47, s44, 8\n s_add_u32 s46, s46, s47")
    a(f"s_mul_i32 s47, s44, {14*8192}\n s_lshl_b32 s48, s42, 10\n s_add_u32 s47, s47, s48")
    def dma(t):
        slot = (t % N1)*S1
        if t < 7:
            for u in range(2):
                a(f"s_add_u32 m0, s48, {slot+u*8192}")
                a(f"s_add_u32 s49, s46, {1792+(64*t+32*u)*3584}")
                a(f"buffer_load_dwordx4 v{vZ}, s[{sWIN}:{sWIN+3}], s49 offen lds"); vm.issue(("st", t))
        else:
            s2 = t-7
            a(f"s_add_u32 m0, s48, {slot}")
            a(f"s_add_u32 s49, s46, {32*s2*3584}")
            a(f"buffer_load_dwordx4 v{vZ}, s[{sWIN}:{sWIN+3}], s49 offen lds"); vm.issue(("st", t))
            a(f"s_add_u32 m0, s48, {slot+8192}")
            a(f"s_add_u32 s49, s47, {s2*8192}")
            a(f"buffer_load_dwordx4 v{vF}, s[{sFT}:{sFT+3}], s49 offen lds"); vm.issue(("st", t))
    a(f"s_lshl_b32 s49, s42, 3\n v_add_u32 v{TMP+2}, s49, v{TMP}")
    a(f"v_bfe_u32 v{TMP+3}, v{TMP+2}, 1, 3\n v_xor_b32 v{TMP+3}, v{TMP+3}, v{TMP+1}")
    a(f"v_mul_u32_u24 v{vW}, 896, v{TMP+2}\n v_lshl_add_u32 v{vW}, v{TMP+3}, 4, v{vW}\n v_add_u32 v{vW}, {XN}, v{vW}")
    a("s_and_b32 s84, s40, 3\n s_lshl_b32 s84, s84, 2\n s_and_b32 s85, s41, 3\n s_add_u32 s84, s84, s85")
    a("s_lshr_b32 s85, s40, 2\n s_mul_i32 s85, s85, 7\n s_lshr_b32 s86, s41, 2\n s_add_u32 s85, s85, s86")
    a("s_lshr_b32 s86, s84, 3\n s_lshl_b32 s86, s86, 4\n s_bfe_u32 s87, s84, 0x10002\n s_lshl_b32 s87, s87, 2\n s_add_u32 s86, s86, s87")
    a("s_lshr_b32 s87, s42, 2\n s_lshl_b32 s87, s87, 3\n s_add_u32 s87, s87, s86\n s_and_b32 s88, s42, 3\n s_add_u32 s87, s87, s88")
    a("s_lshl_b32 s87, s87, 6\n s_and_b32 s88, s84, 3\n s_lshl_b32 s88, s88, 4\n s_add_u32 s87, s87, s88\n s_lshl_b32 s87, s87, 12")
    a(f"v_lshrrev_b32 v{TMP+2}, 1, v{TMP}\n s_and_b32 s88, s42, 1\n s_lshl_b32 s88, s88, 2\n v_add_u32 v{TMP+2}, s88, v{TMP+2}\n v_xor_b32 v{TMP+2}, v{TMP+1}, v{TMP+2}")
    a(f"v_lshlrev_b32 v{vA2}, 12, v{TMP}\n v_lshl_add_u32 v{vA2}, v{TMP+2}, 4, v{vA2}")
    a(f"v_lshrrev_b32 v{TMP+2}, 5, v1\n v_lshlrev_b32 v{vB2}, 13, v{TMP+2}\n v_and_b32 v{TMP+2}, 31, v1\n v_lshl_add_u32 v{vB2}, v{TMP+2}, 4, v{vB2}")
    a(f"s_lshl_b32 s88, s85, 18\n s_add_u32 s88, s88, s48\n s_add_u32 s88, s88, {Z2N}")
    def slot2(T): return PERM[T % 6]*S2
    def dmaA(T):
        for u in range(2):
            a(f"s_add_u32 m0, s48, {slot2(T)+u*8192}\n s_add_u32 s49, s87, {T*128+u*8*4096}")
            a(f"buffer_load_dwordx4 v{vA2}, s[{sSP}:{sSP+3}], s49 offen {XA} lds"); vm.issue(("g", T))
    def dmaB(T):
        a(f"s_add_u32 m0, s48, {slot2(T)+16384}\n s_add_u32 s49, s88, {T*8192}")
        a(f"buffer_load_dwordx4 v{vF}, s[{sWS}:{sWS+3}], s49 offen {XB} lds"); vm.issue(("g", T))
    a(f"s_and_b32 s49, s42, 1\n s_lshl_b32 s49, s49, 5\n v_and_b32 v{TMP+2}, 31, v1\n v_add_u32 v{TMP+2}, s49, v{TMP+2}")
    a(f"v_bfe_u32 v{TMP+3}, v{TMP+2}, 1, 3\n v_lshrrev_b32 v{TMP+4}, 5, v1\n v_xor_b32 v{TMP+3}, v{TMP+3}, v{TMP+4}")
    a(f"v_mul_u32_u24 v{TMP+2}, 896, v{TMP+2}\n v_add_u32 v{TMP+2}, {XN}, v{TMP+2}")
    for c in range(4):
        a(f"v_xor_b32 v{TMP+4}, {2*c}, v{TMP+3}\n v_lshl_add_u32 v{vAA+c}, v{TMP+4}, 4, v{TMP+2}")
    a(f"v_lshrrev_b32 v{TMP+2}, 5, v1\n v_bfe_u32 v{TMP+3}, v1, 2, 2")
    a(f"v_lshl_add_u32 v{TMP+2}, v{TMP+2}, 3, v{TMP+3}")
    a(f"v_and_b32 v{TMP+6}, 1, v1\n v_lshlrev_b32 v{TMP+6}, 3, v{TMP+6}")
    a(f"v_bfe_u32 v{TMP+4}, v1, 4, 1\n v_bfe_u32 v{TMP+5}, v1, 1, 1\n v_lshl_add_u32 v{TMP+4}, v{TMP+4}, 1, v{TMP+5}")
    a(f"v_lshlrev_b32 v{TMP+5}, 2, v{TMP+3}\n v_xor_b32 v{TMP+5}, v{TMP+4}, v{TMP+5}")
    a("s_lshr_b32 s51, s42, 1\n s_lshl_b32 s51, s51, 2\n s_and_b32 s49, s42, 2\n s_lshl_b32 s49, s49, 2\n s_add_u32 s50, s49, 4")
    for idx, sreg in ((0, 51), (1, 49), (2, 50)):
        a(f"v_xor_b32 v{TMP+7}, s{sreg}, v{TMP+5}\n v_lshl_add_u32 v{vTR+2*idx}, v{TMP+2}, 8, v{TMP+6}\n v_lshl_add_u32 v{vTR+2*idx}, v{TMP+7}, 4, v{vTR+2*idx}\n v_add_u32 v{vTR+2*idx+1}, 0x10000, v{vTR+2*idx}")
    a(f"s_mov_b32 s52, {hex(f32bits(C2))}\n s_mov_b32 s54, 0x3f803f80")
    a(f"v_mov_b32 v{VC1}, {hex(f32bits(C1))}")
    a(f"s_lshl_b32 s55, s43, 1\n s_and_b32 s57, s42, 1\n s_add_u32 s55, s55, s57\n s_mul_i32 s55, s55, 3584\n s_add_u32 s55, s55, {ST}")
    a("s_lshl_b32 s61, s44, 9\n s_add_u32 s61, s61, s55")
    a(f"s_lshl_b32 s56, s57, 10\n s_lshr_b32 s57, s42, 1\n s_lshl_b32 s57, s57, 3\n s_add_u32 s56, s56, s57\n s_add_u32 s56, s56, {SX}")
    a("s_and_b32 s49, s42, 6\n s_cmp_eq_u32 s49, 4\n s_cselect_b32 s55, s55, 0x20000000")
    a("s_lshl_b32 s57, s43, 1\n s_and_b32 s58, s42, 1\n s_add_u32 s57, s57, s58\n s_mul_i32 s57, s57, 56\n s_lshl_b32 s58, s44, 3\n s_add_u32 s57, s57, s58")
    a("s_lshl_b32 s58, s44, 1\n s_lshr_b32 s49, s42, 2\n s_add_u32 s58, s58, s49\n s_lshl_b32 s58, s58, 5")
    a("s_lshr_b32 s49, s43, 4\n s_lshl_b32 s49, s49, 4\n s_add_u32 s58, s58, s49\n s_bfe_u32 s49, s43, 0x10003\n s_lshl_b32 s49, s49, 2\n s_add_u32 s58, s58, s49")
    a("s_and_b32 s49, s42, 1\n s_lshl_b32 s49, s49, 3\n s_add_u32 s58, s58, s49\n s_lshl_b32 s58, s58, 13")
    a("s_bfe_u32 s49, s43, 0x20001\n s_lshl_b32 s49, s49, 11\n s_add_u32 s58, s58, s49\n s_and_b32 s49, s43, 1\n s_lshl_b32 s49, s49, 9\n s_add_u32 s58, s58, s49")
    a(f"s_bfe_u32 s49, s42, 0x10001\n s_lshl_b32 s49, s49, 10\n s_add_u32 s58, s58, s49\n s_add_u32 s58, s58, {Z2N}")
    a(f"s_and_b32 s59, s42, 2\n s_lshl_b32 s59, s59, 1\n s_add_u32 s57, s57, s59\n s_lshl_b32 s57, s57, 10" + (f"\n s_add_u32 s57, s57, {Z1}" if Z1 else ""))
    a(f"s_lshl_b32 s59, s44, 5\n s_add_u32 s59, s59, s43\n s_lshl_b32 s59, s59, 7\n s_add_u32 s60, s59, {FLU}\n s_add_u32 s59, s59, {FLZ}")
    a(f"s_lshr_b32 s89, s85, 1\n s_lshl_b32 s89, s89, 12\n s_add_u32 s90, s89, {FL1}\n s_add_u32 s89, s89, {FLZ}")
    a(f"v_and_b32 v{vPA}, 31, v1\n v_lshlrev_b32 v{vPA}, 7, v{vPA}")
    a(f"s_waitcnt vmcnt({vm.wait('x')})")
    stg(1); dbgt(5)
    S = TMP; DV = XF
    a("s_mov_b32 s50, 0x00003f80\n s_mov_b32 s51, 0x3f800000")
    for i in range(4): a(f"v_mov_b32 v{S+i}, 0")
    for i in range(28): a(f"v_dot2_f32_bf16 v{S+(i&3)}, v{BF+i}, s54, v{S+(i&3)}")
    dma(0)
    a(f"v_add_f32 v{S}, v{S}, v{S+1}\n v_add_f32 v{S+2}, v{S+2}, v{S+3}\n v_add_f32 v{S}, v{S}, v{S+2}")
    red8(a, S)
    vM, vMB, vNM = TMP+4, TMP+5, TMP+6
    a(f"v_mul_f32 v{vM}, {hex(f32bits(1/448))}, v{S}")
    a(f"v_cvt_pk_bf16_f32 v{vMB}, 0, v{vM}\n v_sub_f32 v{vNM}, 0, v{vMB}")
    for i in range(4): a(f"v_mov_b32 v{S+i}, 0")
    for i in range(0, 28, 4):
        for u in range(4):
            d = DV+2*(i+u)
            a(f"v_dot2_f32_bf16 v{d}, v{BF+i+u}, s50, v{vNM}\n v_dot2_f32_bf16 v{d+1}, v{BF+i+u}, s51, v{vNM}")
        if i >= 4:
            for u in range(4):
                d = DV+2*(i-4+u); s_ = S+2*(u & 1)
                a(f"v_pk_fma_f32 v[{s_}:{s_+1}], v[{d}:{d+1}], v[{d}:{d+1}], v[{s_}:{s_+1}]")
        if i == 8: dma(1)
        if i == 20: dma(2)
    for u in range(4):
        d = DV+2*(24+u); s_ = S+2*(u & 1)
        a(f"v_pk_fma_f32 v[{s_}:{s_+1}], v[{d}:{d+1}], v[{d}:{d+1}], v[{s_}:{s_+1}]")
    a(f"v_add_f32 v{S}, v{S}, v{S+1}\n v_add_f32 v{S+2}, v{S+2}, v{S+3}\n v_add_f32 v{S}, v{S}, v{S+2}")
    for i in range(16): a(f"v_cvt_pk_bf16_f32 v{DV+i}, 0, v{DV+i}")
    red8(a, S)
    vRS = TMP+6; t = S+2
    a(f"v_sub_f32 v{t}, v{vM}, v{vMB}\n v_mul_f32 v{t}, v{t}, v{t}\n v_mov_b32 v{t+1}, {hex(f32bits(1.0/448))}\n v_fma_f32 v{t}, v{S}, v{t+1}, -v{t}\n v_max_f32 v{t}, 0, v{t}")
    n0 = len(a.lines); var_to_rs(a, t, vRS); a(f"v_mov_b32 v{vRS+1}, v{vRS}"); chain = a.lines[n0:]; del a.lines[n0:]
    for i in range(16, 56):
        a(f"v_cvt_pk_bf16_f32 v{DV+i}, 0, v{DV+i}")
        if chain and i % 3 == 0: a(chain.pop(0))
    for l in chain: a(l)
    dma(3)
    for i in range(0, 28, 4):
        for u in range(4):
            d = DV+2*(i+u); a(f"v_pk_mul_f32 v[{d}:{d+1}], v[{d}:{d+1}], v[{vRS}:{vRS+1}]")
        for u in range(4):
            d = DV+2*(i+u); a(f"v_cvt_pk_bf16_f32 v{BF+i+u}, v{d}, v{d+1}")
        a(f"ds_write_b128 v{vW}, v[{BF+i}:{BF+i+3}] offset:{32*i}")
    stg(2)
    dma(4); touch2()
    a("s_waitcnt lgkmcnt(0)")
    def capture(fn, *args):
        n0 = len(a.lines); fn(*args); out = a.lines[n0:]; del a.lines[n0:]; return out
    def trbase(idx, t):
        slot = (t % N1)*S1
        return (vTR+2*idx+(1 if slot >= 65536 else 0), slot-(65536 if slot >= 65536 else 0))
    def reads1(t):
        b = BF+16*(t & 1); vb, so = trbase(0, t)
        for k in range(4):
            c16 = 4*t+k
            a(f"ds_read_b128 v[{XF+4*c16}:{XF+4*c16+3}], v{vAA+(c16&3)} offset:{(c16>>2)*128}")
            for tt in range(2):
                a(f"ds_read_b64_tr_b16 v[{b+4*k+2*tt}:{b+4*k+2*tt+1}], v{vb} offset:{so+k*4096+tt*1024}")
    def mfma1(t):
        b = BF+16*(t & 1)
        for k in range(4):
            c16 = 4*t+k
            cin = "0" if c16 == 0 else f"v[{ACC}:{ACC+15}]"
            a(f"v_mfma_f32_32x32x16_bf16 v[{ACC}:{ACC+15}], v[{b+4*k}:{b+4*k+3}], v[{XF+4*c16}:{XF+4*c16+3}], {cin}")
    def body(mf, rd, issue, bgq=None, nbg=0):
        n = max(len(mf), 1); h = (len(rd)+1)//2 if n > 1 else len(rd)
        for i in range(n):
            if i < len(mf): a(mf[i])
            if i == 0:
                for l in rd[:h]: a(l)
            if i == 1:
                for l in rd[h:]: a(l)
            if i == min(2, n-1): issue()
            if bgq:
                for _ in range(nbg):
                    if bgq: a(bgq.pop(0))
    for t in range(7):
        a(f"s_waitcnt vmcnt({vm.wait(('st', t))})")
        a("s_barrier")
        stg(3+t)
        if t == 1:
            a(f"buffer_load_dword v{vPOLL}, v{vZERO}, s[{sDBG}:{sDBG+3}], 0 offen sc1"); vm.issue("nonce")
        body(capture(mfma1, t-1) if t > 0 else [], capture(reads1, t), lambda: dma(t+D))
        a("s_waitcnt lgkmcnt(0)")
    mfma1(6)
    dbgt(6)
    NS_ = WSP_K2-WSP_K1; NLN = NS_*2048; PERW = -(-NLN//224)
    MATCH = int(os.environ.get("MATCH", "2"))
    if MATCH:
        a("s_bfe_u32 s49, s40, 0x10001\n s_lshl_b32 s49, s49, 2\n s_lshr_b32 s50, s40, 2\n s_lshl_b32 s50, s50, 1\n s_add_u32 s49, s49, s50\n s_and_b32 s50, s40, 1\n s_add_u32 s49, s49, s50")
        if MATCH == 2: a("s_bfe_u32 s50, s42, 0x10001\n s_lshl_b32 s50, s50, 1\n s_xor_b32 s49, s49, s50")
    else: a("s_mov_b32 s49, s40")
    a(f"s_mul_i32 s49, s49, 28\n s_add_u32 s49, s49, s41\n s_mul_i32 s49, s49, {PERW}\n v_and_b32 v{TMP}, 127, v0\n v_add_u32 v{TMP}, s49, v{TMP}")
    assert PERW == 128
    if MATCH == 2: PERW = 256
    MG = (2**32+NS_-1)//NS_
    a(f"s_mov_b32 s49, {MG}\n v_mul_hi_u32 v{TMP+1}, v{TMP}, s49\n v_mul_u32_u24 v{TMP+2}, {NS_}, v{TMP+1}\n v_sub_u32 v{TMP+2}, v{TMP}, v{TMP+2}")
    a(f"v_lshlrev_b32 v{TMP+1}, 12, v{TMP+1}\n v_lshl_add_u32 v{TMP+1}, v{TMP+2}, 7, v{TMP+1}")
    a(f"v_cmp_gt_u32 vcc, {PERW}, v0\n v_mov_b32 v{TMP+2}, 0x10000000\n v_cndmask_b32 v{TMP+1}, v{TMP+2}, v{TMP+1}, vcc")
    a(f"buffer_load_dword v{VPF+2}, v{TMP+1}, s[{sSP}:{sSP+3}], 0 offen offset:{128*WSP_K1}"); vm.issue("pf")
    srd(a, 92, 82, 896*896)
    a("s_cmp_lg_u32 s42, 7\n s_cbranch_scc1 L_WO1")
    pc_srd(a, 92, "TAB_TT", 7*56*1024)
    a("L_WO1:")
    a("s_mul_i32 s49, s40, 28\n s_add_u32 s49, s49, s41\n s_cmp_eq_u32 s42, 7\n s_cselect_b32 s50, 14, 28\n s_mul_i32 s49, s49, s50\n s_lshl_b32 s49, s49, 7\n s_cmp_lt_u32 s42, 6\n s_cselect_b32 s50, 0, s50")
    a(f"v_lshlrev_b32 v{TMP+1}, 7, v1\n v_cmp_gt_u32 vcc, s50, v1\n v_cndmask_b32 v{TMP+1}, v{TMP+2}, v{TMP+1}, vcc")
    a(f"buffer_load_dword v{VPF+3}, v{TMP+1}, s[92:95], s49 offen"); vm.issue("pf")
    get_nonce("L_NON")
    gelu_pairs(a, ACC, ZP, TMP, 52, VC1)
    Sx = ACC
    for p in range(8): a(f"v_lshlrev_b32 v{Sx+2*p}, 16, v{ZP+p}\n v_and_b32 v{Sx+2*p+1}, 0xffff0000, v{ZP+p}")
    for i in range(4): a(f"v_add_f32 v{TMP+i}, v{Sx+i}, v{Sx+4+i}")
    for i in range(4): a(f"v_add_f32 v{TMP+4+i}, v{Sx+8+i}, v{Sx+12+i}")
    for i in range(4): a(f"v_add_f32 v{TMP+i}, v{TMP+i}, v{TMP+4+i}")
    a(f"v_add_f32 v{TMP}, v{TMP}, v{TMP+1}\n v_add_f32 v{TMP+2}, v{TMP+2}, v{TMP+3}\n v_add_f32 v{TMP}, v{TMP}, v{TMP+2}")
    halfsum(a, TMP, TMP+1)
    a(f"v_mul_f32 v{TMP+8}, {hex(f32bits(1/32))}, v{TMP}")
    for i in range(16): a(f"v_sub_f32 v{Sx+i}, v{Sx+i}, v{TMP+8}")
    for i in range(4): a(f"v_mul_f32 v{TMP+i}, v{Sx+i}, v{Sx+i}")
    for i in range(4, 16): a(f"v_fmac_f32 v{TMP+(i&3)}, v{Sx+i}, v{Sx+i}")
    a(f"v_add_f32 v{TMP}, v{TMP}, v{TMP+1}\n v_add_f32 v{TMP+2}, v{TMP+2}, v{TMP+3}\n v_add_f32 v{TMP+9}, v{TMP}, v{TMP+2}")
    halfsum(a, TMP+9, TMP+1)
    a(f"v_and_b32 v{TMP+10}, 31, v1\n v_lshlrev_b32 v{TMP+10}, 5, v{TMP+10}\n v_add_u32 v{TMP+10}, s56, v{TMP+10}")
    a(f"ds_write_b64 v{TMP+10}, v[{TMP+8}:{TMP+9}]")
    a(f"v_and_b32 v{TMP+21}, 31, v1\n v_lshlrev_b32 v{TMP+21}, 4, v{TMP+21}\n v_lshrrev_b32 v{TMP+20}, 5, v1\n v_mul_u32_u24 v{TMP+20}, 1536, v{TMP+20}\n v_add_u32 v{TMP+20}, v{TMP+20}, v{TMP+21}\n v_add_u32 v{TMP+21}, 3072, v{TMP+21}")
    a("s_waitcnt lgkmcnt(0)")
    G = PS; ACC3 = ACC
    def is45(label): a(f"s_and_b32 s49, s42, 6\n s_cmp_lg_u32 s49, 4\n s_cbranch_scc1 {label}")
    def gloads():
        for i in range(4):
            a(f"buffer_load_dwordx4 v[{G+4*i}:{G+4*i+3}], v{TMP+20 if i < 3 else TMP+21}, s[{sWS}:{sWS+3}], s55 offen offset:{(i % 3)*512} sc1")
    def norm_job():
        A0 = TMP; T3 = PS
        a(f"s_and_b32 s29, s42, 1\n s_lshl_b32 s29, s29, 8\n s_add_u32 s29, s29, {SX+2048}\n v_and_b32 v{A0}, 31, v1\n v_lshlrev_b32 v{A0}, 3, v{A0}\n v_add_u32 v{A0}, s29, v{A0}")
        a(f"ds_read_b64 v[{A0+2}:{A0+3}], v{A0}")
        for p in range(8): a(f"v_lshlrev_b32 v{T3+2*p}, 16, v{ZP+p}\n v_and_b32 v{T3+2*p+1}, 0xffff0000, v{ZP+p}")
        a("s_waitcnt lgkmcnt(0)")
        for i in range(16): a(f"v_add_f32 v{T3+i}, v{T3+i}, v{A0+2}")
        for i in range(16): a(f"v_cvt_pk_bf16_f32 v{T3+i}, 0, v{T3+i}")
        for i in range(16): a(f"v_mul_f32 v{T3+i}, v{T3+i}, v{A0+3}")
        for p in range(8): a(f"v_cvt_pk_bf16_f32 v{ZP+p}, v{T3+2*p}, v{T3+2*p+1}")
        a(f"s_and_b32 s29, s42, 3\n s_lshl_b32 s29, s29, 11\n s_lshr_b32 s28, s42, 2\n s_mul_i32 s28, s28, {S2}\n s_add_u32 s29, s29, s28\n s_add_u32 s29, s29, {4*S2+16384}")
        a(f"v_and_b32 v{A0}, 31, v1\n v_lshlrev_b32 v{A0}, 6, v{A0}\n v_lshrrev_b32 v{A0+1}, 5, v1\n v_lshl_add_u32 v{A0}, v{A0+1}, 3, v{A0}\n v_add_u32 v{A0}, s29, v{A0}")
        a(f"v_bfe_u32 v{A0+2}, v1, 1, 2\n v_lshlrev_b32 v{A0+2}, 4, v{A0+2}")
        for j in range(4):
            a(f"v_xor_b32 v{A0+4+j}, {16*j}, v{A0+2}\n v_add_u32 v{A0+4+j}, v{A0+4+j}, v{A0}")
        for j in range(4): a(f"ds_write_b64 v{A0+4+j}, v[{ZP+2*j}:{ZP+2*j+1}]")
        a(f"v_bfe_u32 v{A0+2}, v1, 2, 2\n v_lshl_add_u32 v{A0+1}, v{A0+1}, 3, v{A0+2}\n v_lshlrev_b32 v{A0+1}, 6, v{A0+1}\n v_and_b32 v{A0+3}, 1, v1\n v_lshl_add_u32 v{A0+1}, v{A0+3}, 3, v{A0+1}\n v_add_u32 v{A0+1}, s29, v{A0+1}")
        a(f"v_bfe_u32 v{A0+3}, v1, 4, 1\n v_bfe_u32 v{A0+8}, v1, 1, 1\n v_lshl_add_u32 v{A0+3}, v{A0+3}, 1, v{A0+8}\n v_lshrrev_b32 v{A0+2}, 1, v{A0+2}\n v_xor_b32 v{A0+3}, v{A0+3}, v{A0+2}")
        a(f"v_lshl_add_u32 v{A0+8}, v{A0+3}, 4, v{A0+1}\n v_xor_b32 v{A0+3}, 2, v{A0+3}\n v_lshl_add_u32 v{A0+9}, v{A0+3}, 4, v{A0+1}")
        for c in range(2):
            for tt in range(2): a(f"ds_read_b64_tr_b16 v[{T3+4*c+2*tt}:{T3+4*c+2*tt+1}], v{A0+8+tt} offset:{c*1024+tt*256}")
        a("s_add_u32 s28, s58, 16384\n s_waitcnt lgkmcnt(0)")
    a("s_cmp_ge_u32 s42, 4\n s_cbranch_scc1 L_P2Z")
    vm_save = list(vm.ops); vm_end = {}
    pend = stg.pending
    EARLY = {16: [0], 17: [1, 2], 18: [3]}
    for path in ("F", "Z"):
        vm.ops = list(vm_save); stg.pending = pend
        if path == "Z": a("L_P2Z:")
        else:
            a(f"s_lshr_b32 s49, s42, 1\n s_lshl_b32 s49, s49, 12\n v_add_u32 v{vTR+2}, s49, v{vF}\n v_add_u32 v{vTR+3}, 0x10000, v{vTR+2}")
        def reads2(t):
            b = BF+16*(t & 1)
            if path == "F":
                vb, so = trbase(1, t)
                for f in range(4): a(f"ds_read_b128 v[{b+4*f}:{b+4*f+3}], v{vb} offset:{so+8192+f*1024}")
            else:
                for k in range(2):
                    for tile in range(2):
                        vb, so = trbase(1+tile, t)
                        for tt in range(2):
                            f = tile*2+k
                            a(f"ds_read_b64_tr_b16 v[{b+4*f+2*tt}:{b+4*f+2*tt+1}], v{vb} offset:{so+k*4096+tt*1024}")
        def mfma2(t):
            b = BF+16*(t & 1); s2 = t-7
            if path == "F":
                for f in range(4):
                    c16 = 2*s2+(f >> 1)
                    cin = "0" if (s2 == 0 and f == 0) else f"v[{ACC2}:{ACC2+15}]"
                    a(f"v_mfma_f32_32x32x16_bf16 v[{ACC2}:{ACC2+15}], v[{XF+4*c16}:{XF+4*c16+3}], v[{b+4*f}:{b+4*f+3}], {cin}")
            else:
                for k in range(2):
                    for tile in range(2):
                        f = tile*2+k; c16 = 2*s2+k; ac = ACC2 if tile == 0 else ACC3
                        cin = "0" if c16 == 0 else f"v[{ac}:{ac+15}]"
                        a(f"v_mfma_f32_32x32x16_bf16 v[{ac}:{ac+15}], v[{b+4*f}:{b+4*f+3}], v[{XF+4*c16}:{XF+4*c16+3}], {cin}")
        bgq = []
        for t in range(7, 21):
            n = vm.wait(("st", t))
            if t == CHK_T and path == "Z": n = min(n, vm.wait("gl"))
            if t == FZ_T: n = min(n, vm.wait("z2n"))
            a(f"s_waitcnt vmcnt({n})")
            if t == CHK_T and path == "Z":
                is45("L_NOCHK")
                a("s_mov_b32 s50, 0\nL_CHK:")
                a(f"v_cmp_eq_u32 vcc, s63, v{G+1}")
                for i in range(1, 8): a(f"v_cmp_eq_u32 s[30:31], s63, v{G+1+2*i}\n s_and_b64 vcc, vcc, s[30:31]")
                a("s_add_u32 s50, s50, 1\n s_cmp_eq_u64 vcc, exec\n s_cbranch_scc1 L_CHKOK")
                a(f"s_cmp_ge_u32 s50, {SPIN}\n s_cbranch_scc1 L_CHKOK")
                a("s_sleep 2"); gloads()
                a("s_waitcnt vmcnt(0)\n s_branch L_CHK\nL_CHKOK:")
                B0 = TMP
                a(f"v_mul_f32 v{B0}, 0.5, v{G+12}\n v_mul_f32 v{B0+1}, 0.5, v{G+14}")
                for i in range(3): a(f"v_add_f32 v{B0}, v{B0}, v{G+4*i}\n v_add_f32 v{B0+1}, v{B0+1}, v{G+4*i+2}")
                halfsum(a, B0, B0+2); halfsum(a, B0+1, B0+2)
                a(f"v_mul_f32 v{B0}, {hex(f32bits(1/7))}, v{B0}")
                a(f"v_sub_f32 v{B0+4}, v{G+12}, v{B0}\n v_mul_f32 v{B0+3}, v{B0+4}, v{B0+4}\n v_mul_f32 v{B0+3}, 0.5, v{B0+3}")
                for i in range(3): a(f"v_sub_f32 v{B0+4}, v{G+4*i}, v{B0}\n v_fmac_f32 v{B0+3}, v{B0+4}, v{B0+4}")
                halfsum(a, B0+3, B0+2)
                a(f"v_mov_b32 v{B0+2}, 0x43000000\n v_fma_f32 v{B0+1}, v{B0+3}, v{B0+2}, v{B0+1}")
                a(f"v_mul_f32 v{B0+1}, {hex(f32bits(1/896))}, v{B0+1}")
                var_to_rs(a, B0+1, B0+5)
                a(f"v_cvt_pk_bf16_f32 v{B0+4}, 0, v{B0}\n v_sub_f32 v{B0+4}, 0, v{B0+4}")
                a(f"s_and_b32 s49, s42, 1\n s_lshl_b32 s49, s49, 8\n s_add_u32 s49, s49, {SX+2048}\n v_and_b32 v{B0+6}, 31, v1\n v_lshlrev_b32 v{B0+6}, 3, v{B0+6}\n v_add_u32 v{B0+6}, s49, v{B0+6}")
                a(f"ds_write_b64 v{B0+6}, v[{B0+4}:{B0+5}]\n s_waitcnt lgkmcnt(0)")
                a("L_NOCHK:")
            a("s_barrier")
            stg(3+t)
            if t == FZ_T and path == "F": set_flag("L_FZ", 59)
            if t == 7 and path == "Z":
                is45("L_NOSIG")
                B0 = TMP
                a(f"v_and_b32 v{B0+10}, 31, v1\n v_lshlrev_b32 v{B0+11}, 5, v{B0+10}\n s_sub_u32 s49, s56, 16\n v_add_u32 v{B0+11}, s49, v{B0+11}")
                a(f"ds_read_b128 v[{B0}:{B0+3}], v{B0+11}\n ds_read_b128 v[{B0+4}:{B0+7}], v{B0+11} offset:16\n s_waitcnt lgkmcnt(0)")
                a(f"v_add_f32 v{B0+8}, v{B0}, v{B0+2}\n v_add_f32 v{B0+9}, v{B0+4}, v{B0+6}\n v_add_f32 v{B0+8}, v{B0+8}, v{B0+9}\n v_mul_f32 v{B0+12}, 0.25, v{B0+8}")
                a(f"v_add_f32 v{B0+14}, v{B0+1}, v{B0+3}\n v_add_f32 v{B0+9}, v{B0+5}, v{B0+7}\n v_add_f32 v{B0+14}, v{B0+14}, v{B0+9}\n v_mov_b32 v{B0+8}, 0")
                for i in range(4): a(f"v_sub_f32 v{B0+9}, v{B0+2*i}, v{B0+12}\n v_fmac_f32 v{B0+8}, v{B0+9}, v{B0+9}")
                a(f"v_mov_b32 v{B0+9}, 0x42000000\n v_fma_f32 v{B0+14}, v{B0+8}, v{B0+9}, v{B0+14}")
                a(f"v_mov_b32 v{B0+13}, s63\n v_mov_b32 v{B0+15}, s63\n v_lshlrev_b32 v{B0+10}, 4, v{B0+10}")
                a(f"buffer_store_dwordx4 v[{B0+12}:{B0+15}], v{B0+10}, s[{sWS}:{sWS+3}], s61 offen sc1")
                a("s_nop 1\nL_NOSIG:")
            if t == LD_T:
                gloads()
                for i in range(4): vm.issue("gl")
            if t == CHK_T: bgq = capture(norm_job)
            def issue():
                if t+D < 21: dma(t+D)
                for T in EARLY.get(t, []): dmaA(T)
            body(capture(mfma2, t-1) if t > 7 else [], capture(reads2, t), issue, bgq, 20)
            if t == CHK_T:
                for l in bgq: a(l)
                del bgq[:]
                for q in range(2):
                    a(f"buffer_store_dwordx4 v[{PS+4*q}:{PS+4*q+3}], v{vB2}, s[{sWS}:{sWS+3}], s{58 if q == 0 else 28} offen sc1"); vm.issue("z2n")
            a("s_waitcnt lgkmcnt(0)")
        mfma2(20)
        stg(24)
        if path == "F":
            a(f"v_and_b32 v{TMP}, 31, v1\n s_lshr_b32 s49, s42, 1\n s_lshl_b32 s49, s49, 5\n v_add_u32 v{TMP}, s49, v{TMP}")
            a(f"v_mul_u32_u24 v{TMP}, {UXP}, v{TMP}\n v_lshrrev_b32 v{TMP+1}, 5, v1\n v_lshl_add_u32 v{TMP}, v{TMP+1}, 6, v{TMP}")
            a(f"s_and_b32 s49, s42, 1\n s_lshl_b32 s49, s49, 3\n s_add_u32 s49, s49, {UX}\n v_add_u32 v{TMP}, s49, v{TMP}")
            for r in range(4):
                a(f"v_cvt_pk_f16_f32 v{TMP+2+2*r}, v{ACC2+r}, v{ACC2+4+r}\n v_cvt_pk_f16_f32 v{TMP+3+2*r}, v{ACC2+8+r}, v{ACC2+12+r}")
                a(f"ds_write_b64 v{TMP}, v[{TMP+2+2*r}:{TMP+3+2*r}] offset:{16*r}")
            a("s_branch L_J1")
        else:
            pass
        vm_end[path] = list(vm.ops)
    assert vm_end["F"] == vm_end["Z"]
    a("L_J1:")
    dbgt(7)
    a(f"s_waitcnt vmcnt({vm.wait('z2n')}) lgkmcnt(0)\n s_barrier")
    if FZ_T > 20: set_flag("L_FZ", 59)
    a(f"v_lshrrev_b32 v{TMP+2}, 3, v0\n v_and_b32 v{TMP+3}, 7, v0")
    a(f"v_mul_u32_u24 v{TMP+4}, {UXP}, v{TMP+2}\n v_lshl_add_u32 v{TMP+4}, v{TMP+3}, 4, v{TMP+4}\n v_add_u32 v{TMP+4}, {UX}, v{TMP+4}")
    a(f"ds_read_b128 v[{TMP+8}:{TMP+11}], v{TMP+4}")
    a(f"v_lshlrev_b32 v{TMP+2}, 12, v{TMP+2}\n v_lshl_add_u32 v{TMP+2}, v{TMP+3}, 4, v{TMP+2}")
    a(f"s_lshl_b32 s49, s44, 18\n s_lshl_b32 s50, s43, 7\n s_add_u32 s49, s49, s50\n s_add_u32 s49, s49, {U}")
    a("s_waitcnt lgkmcnt(0)")
    a(f"buffer_store_dwordx4 v[{TMP+8}:{TMP+11}], v{TMP+2}, s[{sWS}:{sWS+3}], s49 offen sc1"); vm.issue("fin")
    dmaA(4)
    a("s_mov_b32 s91, s57\n s_cmp_lt_u32 s42, 4\n s_cselect_b32 s91, 0x20000000, s91\n s_cbranch_scc1 L_NOG")
    for tile, ac in enumerate((ACC2, ACC3)): gelu_pairs(a, ac, BF+8*tile, TMP+12, 52, VC1)
    a("L_NOG:")
    T = 100; ZR = 88; BS = 96; FR = 20; AC = 104; Z1F = 124; GT = 140
    vTR2 = 5; vWA = 8
    a("s_lshr_b32 s43, s42, 1\n s_and_b32 s44, s42, 1")
    a("s_lshl_b32 s45, s84, 2\n s_add_u32 s45, s45, s43\n s_mul_i32 s45, s45, 56\n s_lshl_b32 s46, s85, 2\n s_add_u32 s45, s45, s46\n s_lshl_b32 s46, s44, 1\n s_add_u32 s45, s45, s46\n s_lshl_b32 s45, s45, 10")
    a(f"s_lshl_b32 s46, s44, 10\n v_add_u32 v{vTR2}, s46, v{vF}")
    a(f"v_add_u32 v{vTR2+1}, {2*S2}, v{vTR2}\n v_add_u32 v{vTR2+2}, {4*S2}, v{vTR2}")
    a(f"v_and_b32 v{T}, 31, v1\n s_lshl_b32 s46, s43, 5\n v_add_u32 v{T}, s46, v{T}")
    a(f"v_bfe_u32 v{T+1}, v{T}, 1, 3\n v_lshrrev_b32 v{T+2}, 5, v1\n v_xor_b32 v{T+1}, v{T+1}, v{T+2}\n v_lshlrev_b32 v{T}, 7, v{T}")
    for k in range(4):
        a(f"v_xor_b32 v{T+2}, {2*k}, v{T+1}\n v_lshl_add_u32 v{vWA+k}, v{T+2}, 4, v{T}")
        a(f"v_add_u32 v{vWA+4+k}, {2*S2}, v{vWA+k}\n v_add_u32 v{vWA+8+k}, {4*S2}, v{vWA+k}")
    vB3, vY3, vO3, XR = 150, 151, 152, 156
    srd(a, sWO, 82, 896*896)
    pc_srd(a, sTT, "TAB_TT", 7*56*1024)
    a("s_lshl_b32 s51, s40, 2\n s_and_b32 s52, s41, 3\n s_add_u32 s51, s51, s52\n s_lshr_b32 s52, s41, 2")
    a("s_lshr_b32 s53, s51, 4\n s_lshl_b32 s53, s53, 4\n s_bfe_u32 s54, s51, 0x10003\n s_lshl_b32 s54, s54, 2\n s_add_u32 s53, s53, s54")
    a(f"v_lshrrev_b32 v{T}, 3, v1\n v_and_b32 v{T+1}, 7, v1\n v_bfe_u32 v{T+2}, v1, 4, 1\n v_lshlrev_b32 v{T+2}, 2, v{T+2}\n v_xor_b32 v{T+2}, v{T+1}, v{T+2}")
    a(f"v_mul_u32_u24 v{vB3}, 896, v{T}\n v_lshl_add_u32 v{vO3}, v{T+1}, 4, v{vB3}\n v_lshl_add_u32 v{vB3}, v{T+2}, 4, v{vB3}")
    a(f"v_lshrrev_b32 v{T+1}, 2, v{T+2}\n v_and_b32 v{T+3}, 3, v{T+2}\n v_lshl_add_u32 v{T+1}, v{T+1}, 3, v{T+3}\n v_lshlrev_b32 v{vY3}, 12, v{T}\n v_lshl_add_u32 v{vY3}, v{T+1}, 4, v{vY3}")
    a(f"s_lshl_b32 s54, s51, 1\n s_lshr_b32 s55, s42, 2\n s_add_u32 s54, s54, s55\n s_mul_i32 s54, s54, 56\n s_and_b32 s55, s42, 3\n s_add_u32 s54, s54, s55\n s_lshl_b32 s54, s54, 10\n s_add_u32 s54, s54, {H}")
    a("s_mul_i32 s55, s42, 7168\n s_lshl_b32 s56, s52, 7\n s_add_u32 s55, s55, s56")
    a(f"s_lshl_b32 s56, s42, 15\n s_and_b32 s57, s51, 7\n s_lshl_b32 s57, s57, 9\n s_add_u32 s56, s56, s57\n s_lshl_b32 s57, s53, 4\n s_add_u32 s56, s56, s57\n s_add_u32 s56, s56, {YT}")
    a("s_mul_i32 s57, s52, 56\n s_add_u32 s57, s57, s42\n s_lshl_b32 s57, s57, 10")
    a("s_lshr_b32 s58, s42, 2\n s_lshl_b32 s58, s58, 3\n s_add_u32 s58, s58, s53\n s_and_b32 s59, s42, 3\n s_add_u32 s58, s58, s59\n s_lshl_b32 s58, s58, 6")
    a("s_and_b32 s59, s51, 7\n s_lshl_b32 s59, s59, 3\n s_add_u32 s58, s58, s59\n s_mul_i32 s58, s58, 896\n s_lshl_b32 s59, s52, 7\n s_add_u32 s58, s58, s59")
    a(f"s_lshl_b32 s59, s84, 11\n s_lshl_b32 s61, s85, 7\n s_add_u32 s59, s59, s61\n s_add_u32 s59, s59, {FLH}")
    a(f"s_lshr_b32 s61, s51, 1\n s_lshl_b32 s61, s61, 11\n s_add_u32 s61, s61, {FLH}\n s_mov_b32 s62, {FLY}")
    blk = {}
    free = []
    def unit(kind, i):
        b = free.pop(0); blk[(kind, i)] = b
        a(f"s_add_u32 m0, s48, {b*8192}")
        if kind == "T":
            a(f"s_add_u32 s49, s57, {i*8192}\n buffer_load_dwordx4 v{vF}, s[{sTT}:{sTT+3}], s49 offen lds")
        elif kind == "W":
            a(f"s_add_u32 s49, s55, {64*i*896}\n buffer_load_dwordx4 v{vB3}, s[{sWO}:{sWO+3}], s49 offen lds")
        elif kind == "Y":
            a(f"s_add_u32 s49, s56, {i*64*4096}\n buffer_load_dwordx4 v{vY3}, s[{sWS}:{sWS+3}], s49 offen sc1 lds")
        else:
            a(f"s_add_u32 s49, s54, {4*i*1024}\n buffer_load_dwordx4 v{vF}, s[{sWS}:{sWS+3}], s49 offen sc1 lds")
        vm.issue((kind, i))
    PRE = {27: [("T", 0), ("T", 1), ("T", 2)], 28: [("T", 3), ("T", 4), ("T", 5)], 29: [("T", 6), ("W", 0), ("W", 1)],
           30: [("W", 2), ("W", 3)], 31: [("Y", 0), ("Y", 1), ("Y", 2), ("Y", 3)], 32: [("Y", 4), ("Y", 5), ("Y", 6)]}
    POST = []
    a(f"s_waitcnt vmcnt({vm.wait('fin')})\n s_barrier")
    set_flag("L_FU", 60)
    poll_pipe("L_CZ", 89, 240, gap=2)
    a("s_barrier")
    stg(25); dbgt(8)
    for Tg in range(D): dmaB(Tg)
    for q in range(4):
        a(f"buffer_store_dwordx4 v[{BF+4*q}:{BF+4*q+3}], v{vF}, s[{sWS}:{sWS+3}], s91 offen offset:{q*1024} sc1"); vm.issue("z1s")
    a(f"s_add_u32 s60, s60, {FL1-FLU}")
    def win(Tg): sl = PERM[Tg % 6]; return sl >> 1, (sl & 1)*S2
    def rd2(Tg, k):
        b = FR+32*(Tg & 1); w_, so = win(Tg)
        return [f"ds_read_b128 v[{b+8*k}:{b+8*k+3}], v{vTR2+w_} offset:{so+16384+2048*k}"] + \
               [f"ds_read_b128 v[{b+8*k+4}:{b+8*k+7}], v{vWA+4*w_+k} offset:{so}"]
    def mf2(Tg):
        b = FR+32*(Tg & 1)
        return [f"v_mfma_f32_32x32x16_bf16 v[{AC}:{AC+15}], v[{b+8*k}:{b+8*k+3}], v[{b+8*k+4}:{b+8*k+7}], " + ("0" if (Tg == 0 and k == 0) else f"v[{AC}:{AC+15}]") for k in range(4)]
    def late_loads():
        SK = os.environ.get("SKIP", "")
        a(f"s_add_u32 s49, s45, {Z1}" if Z1 else "s_mov_b32 s49, s45")
        if "z" in SK: a("s_mov_b32 s49, 0x20000000")
        for q in range(2):
            a(f"buffer_load_dwordx4 v[{ZR+4*q}:{ZR+4*q+3}], v{vF}, s[{sWS}:{sWS+3}], s49 offen offset:{q*1024} sc1"); vm.issue("z1")
        a("s_and_b32 s46, s43, 1\n s_lshl_b32 s46, s46, 3\n s_add_u32 s46, s46, s86\n s_lshl_b32 s46, s46, 6")
        a("s_and_b32 s47, s84, 3\n s_lshl_b32 s47, s47, 1\n s_lshr_b32 s49, s43, 1\n s_add_u32 s47, s47, s49\n s_lshl_b32 s47, s47, 3\n s_add_u32 s46, s46, s47\n s_lshl_b32 s46, s46, 1")
        a(f"v_bfe_u32 v{T}, v1, 3, 2\n v_and_b32 v{T+1}, 7, v1\n v_lshlrev_b32 v{T}, 7, v{T}\n v_lshl_add_u32 v{T}, v{T+1}, 1, v{T}")
        if "b" in SK: a("s_mov_b32 s46, 0x20000000")
        a(f"buffer_load_ushort v{BS}, v{T}, s[{sBS}:{sBS+3}], s46 offen"); vm.issue("z1")
        a("s_mov_b32 s49, s58" if "x" not in SK else "s_mov_b32 s49, 0x20000000")
        a(f"buffer_load_dwordx4 v[{XR}:{XR+3}], v{vO3}, s[{sX}:{sX+3}], s49 offen"); vm.issue("z1")
    gl = []
    PY = 160
    WM = 164
    U_T, Y_T = int(os.environ.get("UT", "27")), 31
    for Tg in range(32):
        n = vm.wait(("g", Tg))
        a(f"s_waitcnt vmcnt({n})")
        if Tg == U_T: poll_check("L_CU", 90, vPOLL, covered=True)
        if Tg == 31:
            a(f"s_waitcnt vmcnt({vm.wait(('T', 2))})")
            poll_check("L_CY", 62, PY, covered=True)
            a(f"v_and_b32 v{vPA}, 15, v1\n v_min_u32 v{vPA}, 13, v{vPA}\n v_lshlrev_b32 v{vPA}, 7, v{vPA}")
        a("s_barrier")
        stg(26+Tg)
        if Tg == 6: set_flag("L_F1", 60)
        def issue():
            if Tg == U_T-D: poll_issue("L_PU", 90, vPOLL)
            if Tg == 28: poll_issue("L_PY", 62, PY)
            if Tg == 31:
                a(f"s_mov_b32 s49, {WMAX}")
                a(f"buffer_load_dwordx4 v[{WM}:{WM+3}], v{vF}, s[{sWS}:{sWS+3}], s49 offen sc1"); vm.issue("wm")
            if Tg == U_T: late_loads()
            if Tg+D < 32:
                dmaA(Tg+D); dmaB(Tg+D)
            else:
                free.extend(3*PERM[(Tg-1) % 6]+i for i in range(3))
                for u_ in PRE[Tg]: unit(*u_)
        rd = rd2(Tg, 0)+rd2(Tg, 1)+rd2(Tg, 2)+rd2(Tg, 3)
        body(mf2(Tg-1) if Tg > 0 else [], rd, issue, gl if Tg >= U_T+6 else None, 3 if Tg < 30 else 99)
        a("s_waitcnt lgkmcnt(0)")
    assert not gl
    dbgt(9)
    vTRo, vFRo, vTRs, vFRs = 168, 171, 224, 227; FG = 176; AC3 = 208; ACO = AC
    W3 = 49152
    a(f"v_bfe_u32 v{T}, v1, 2, 2\n v_lshrrev_b32 v{T+1}, 5, v1")
    a(f"v_bfe_u32 v{T+2}, v1, 4, 1\n v_bfe_u32 v{T+3}, v1, 1, 1\n v_lshl_add_u32 v{T+2}, v{T+2}, 1, v{T+3}")
    a(f"v_lshrrev_b32 v{T+3}, 1, v{T}\n v_lshlrev_b32 v{T+3}, 2, v{T+3}\n v_xor_b32 v{T+2}, v{T+2}, v{T+3}")
    a(f"v_and_b32 v{T+3}, 1, v1\n v_lshlrev_b32 v{T+3}, 3, v{T+3}\n v_lshl_add_u32 v{T+3}, v{T}, 7, v{T+3}")
    a("s_and_b32 s46, s42, 1\n s_bfe_u32 s47, s42, 0x10001")
    a(f"s_lshl_b32 s49, s47, 2\n v_xor_b32 v{T}, s49, v{T+2}\n v_lshl_add_u32 v{vTRo}, v{T}, 4, v{T+3}\n v_lshl_add_u32 v{vTRo}, v{T+1}, 9, v{vTRo}")
    a(f"s_lshl_b32 s49, s46, 12\n v_add_u32 v{vFRo}, s49, v{vF}")
    a(f"s_lshl_b32 s49, s46, 2\n v_xor_b32 v{T}, s49, v{T+2}\n v_lshl_add_u32 v{vTRs}, v{T}, 4, v{T+3}\n v_lshl_add_u32 v{vTRs}, v{T+1}, 10, v{vTRs}")
    a(f"s_lshl_b32 s49, s47, 10\n v_add_u32 v{vFRs}, s49, v{vF}")
    for b in (vTRo, vFRo, vTRs, vFRs): a(f"v_add_u32 v{b+1}, {W3}, v{b}\n v_add_u32 v{b+2}, {2*W3}, v{b}")
    a("s_cmp_ge_u32 s42, 4\n s_cbranch_scc1 L_S")
    vm_save = list(vm.ops); free_save = list(free); blk_save = dict(blk)
    HF_T, HC_T, NWPRE = 36, 40, 11; SS = 33; OS = 41
    EXO = 272; EXA, EXB, EXS = 0, 64*EXO, 128*EXO
    LAST = OS+7
    for path in ("O", "S"):
        vm.ops = list(vm_save); stg2.pending = None; free[:] = free_save; blk.clear(); blk.update(blk_save)
        if path == "S": a("L_S:")
        grp = 0 if path == "O" else 1
        def work(it):
            if SS <= it < SS+7: return ("S", it-SS) if path == "S" else None
            if OS <= it < OS+7: return ("O", 2*(it-OS)+grp)
            return None
        def fb(it): return FG if (it & 1) else FR
        def rd3(it):
            wk = work(it)
            if wk is None: return []
            b = fb(it); out = []
            if wk[0] == "S": b1, b2, vt, vf, ts, ks = blk[("Y", wk[1])], blk[("T", wk[1])], vTRs, vFRs, 512, 2048
            else: b1, b2, vt, vf, ts, ks = blk[("W", wk[1])], blk[("H", wk[1])], vTRo, vFRo, 1024, 1024
            for k in range(4):
                for tt in range(2):
                    out.append(f"ds_read_b64_tr_b16 v[{b+8*k+2*tt}:{b+8*k+2*tt+1}], v{vt+b1//6} offset:{(b1 % 6)*8192+k*2048+tt*ts}")
                out.append(f"ds_read_b128 v[{b+8*k+4}:{b+8*k+7}], v{vf+b2//6} offset:{(b2 % 6)*8192+k*ks}")
            return out
        def mf3(it):
            wk = work(it)
            if wk is None: return []
            b = fb(it); out = []
            for k in range(4):
                if wk[0] == "O":
                    cin = "0" if (it == OS and k == 0) else f"v[{ACO}:{ACO+15}]"
                    out.append(f"v_mfma_f32_32x32x16_bf16 v[{ACO}:{ACO+15}], v[{b+8*k}:{b+8*k+3}], v[{b+8*k+4}:{b+8*k+7}], {cin}")
                else:
                    cin = "0" if (it == SS and k == 0) else f"v[{AC3}:{AC3+15}]"
                    out.append(f"v_mfma_f32_32x32x16_f16 v[{AC3}:{AC3+15}], v[{b+8*k+4}:{b+8*k+7}], v[{b+8*k}:{b+8*k+3}], {cin}")
            return out
        nextW, nextH = [4], [0]; post = list(POST); CAP = int(os.environ.get("CAP", "9"))
        for it in range(32, LAST):
            need = []
            if SS <= it < SS+7: need = [("Y", it-SS), ("T", it-SS)]
            if OS <= it < OS+7: need = [(k_, 2*(it-OS)+g_) for k_ in "WH" for g_ in range(2)]
            if it == HF_T: need.append("h")
            if need: a(f"s_waitcnt vmcnt({min(vm.wait(x) for x in need)})")
            if it == HC_T and path == "O": poll_pipe("L_CH", 61, 240)
            a("s_barrier")
            stg2(it-32)
            if it == HF_T and path == "O": set_flag("L_FH", 59)
            def issue():
                if it == 32:
                    free.extend(3*PERM[31 % 6]+i for i in range(3))
                    for u_ in PRE[32]: unit(*u_)
                if SS+1 <= it < SS+8: free.extend([blk[("Y", it-SS-1)], blk[("T", it-SS-1)]])
                if OS+1 <= it < OS+7: free.extend(blk[(k_, 2*(it-OS-1)+g_)] for k_ in "WH" for g_ in range(2))
                cap = CAP
                while free and it > 32:
                    if it < HC_T:
                        if cap == 0: break
                        cap -= 1
                        if post: unit(*post.pop(0))
                        elif nextW[0] < NWPRE: unit("W", nextW[0]); nextW[0] += 1
                        else: break
                    else:
                        if nextH[0] < 14 and (nextH[0] < nextW[0] or nextW[0] >= 14): unit("H", nextH[0]); nextH[0] += 1
                        elif nextW[0] < 14: unit("W", nextW[0]); nextW[0] += 1
                        else: break
            body(mf2(31) if it == 32 else mf3(it-1), rd3(it), issue)
            if it == 32:
                E = FR+32
                a(f"s_waitcnt vmcnt({vm.wait('z1')})")
                a(f"v_lshlrev_b32 v{BS}, 16, v{BS}")
                for p in range(8): a(f"v_lshlrev_b32 v{Z1F+2*p}, 16, v{ZR+p}\n v_and_b32 v{Z1F+2*p+1}, 0xffff0000, v{ZR+p}")
                for i in range(16): a(f"v_cvt_pk_bf16_f32 v{E+i}, 0, v{AC+i}")
                for i in range(16): a(f"v_add_f32 v{E+i}, v{E+i}, v{BS}")
                for i in range(16): a(f"v_cvt_pk_bf16_f32 v{E+i}, 0, v{E+i}")
                for i in range(16): a(f"v_mul_f32 v{E+i}, v{E+i}, v{Z1F+i}")
                for p in range(8): a(f"v_cvt_pk_bf16_f32 v{E+16+p}, v{E+2*p}, v{E+2*p+1}")
                a(f"s_add_u32 s49, s45, {H}")
                for q in range(2):
                    a(f"buffer_store_dwordx4 v[{E+16+4*q}:{E+19+4*q}], v{vF}, s[{sWS}:{sWS+3}], s49 offen offset:{q*1024} sc1"); vm.issue("h")
            if it == OS and path == "S":
                wmax_reduce(a, WM, 28, 29)
                a(f"s_lshl_b32 s28, s28, 23\n v_mov_b32 v174, {hex(f32bits(1/28))}\n v_mul_f32 v174, s28, v174")
            if it == OS+1 and path == "S":
                for i in range(16): a(f"v_mul_f32 v{AC3+i}, v{AC3+i}, v174")
                for p in range(8): a(f"v_cvt_pk_bf16_f32 v{ZR+p}, v{AC3+2*p}, v{AC3+2*p+1}")
            a("s_waitcnt lgkmcnt(0)")
        a("s_barrier")
        for l in mf3(LAST-1): a(l)
        a(f"v_and_b32 v{T}, 31, v1\n s_lshl_b32 s49, s46, 5\n v_add_u32 v{T}, s49, v{T}\n v_lshrrev_b32 v{T+1}, 5, v1")
        if path == "S":
            a(f"v_mul_u32_u24 v{T+2}, {EXP}, v{T}\n v_lshl_add_u32 v{T+2}, v{T+1}, 3, v{T+2}\n s_lshl_b32 s49, s47, 6\n s_add_u32 s49, s49, {EXS}\n v_add_u32 v{T+2}, s49, v{T+2}")
            for j in range(4): a(f"ds_write_b64 v{T+2}, v[{ZR+2*j}:{ZR+2*j+1}] offset:{16*j}")
        a(f"v_mul_u32_u24 v{T}, {EXO}, v{T}\n v_lshl_add_u32 v{T}, v{T+1}, 4, v{T}\n s_lshl_b32 s49, s47, 7\n s_add_u32 s49, s49, {EXA if path == 'O' else EXB}\n v_add_u32 v{T}, s49, v{T}")
        for j in range(4): a(f"ds_write_b128 v{T}, v[{ACO+4*j}:{ACO+4*j+3}] offset:{32*j}")
        if path == "O": a("s_branch L_J3")
    a("L_J3:")
    stg2(21)
    a("s_waitcnt lgkmcnt(0)\n s_barrier")
    a(f"v_lshrrev_b32 v{T}, 3, v0\n v_and_b32 v{T+1}, 7, v0\n v_mul_u32_u24 v{T+2}, {EXP}, v{T}\n v_lshl_add_u32 v{T+2}, v{T+1}, 4, v{T+2}")
    a(f"v_mul_u32_u24 v{T}, {EXO}, v{T}\n v_lshl_add_u32 v{T}, v{T+1}, 5, v{T}")
    O_, S_ = 20, 24; A_, B_ = 32, 40
    a(f"ds_read_b128 v[{A_}:{A_+3}], v{T}\n ds_read_b128 v[{A_+4}:{A_+7}], v{T} offset:16")
    a(f"ds_read_b128 v[{B_}:{B_+3}], v{T} offset:{EXB}\n ds_read_b128 v[{B_+4}:{B_+7}], v{T} offset:{EXB+16}")
    a(f"ds_read_b128 v[{S_}:{S_+3}], v{T+2} offset:{EXS}")
    a(f"s_mov_b32 s46, {hex(f32bits(-math.log2(math.e)))}\n s_mov_b32 s47, s46")
    a("s_waitcnt lgkmcnt(0)")
    for p in range(4): a(f"v_pk_add_f32 v[{A_+2*p}:{A_+2*p+1}], v[{A_+2*p}:{A_+2*p+1}], v[{B_+2*p}:{B_+2*p+1}]")
    for i in range(8): a(f"v_cvt_pk_bf16_f32 v{A_+i}, 0, v{A_+i}")
    for p in range(4): a(f"v_pk_mul_f32 v[{B_+2*p}:{B_+2*p+1}], v[{A_+2*p}:{A_+2*p+1}], s[46:47]")
    for i in range(8): a(f"v_exp_f32 v{B_+i}, v{B_+i}")
    for p in range(4): a(f"v_pk_add_f32 v[{B_+2*p}:{B_+2*p+1}], v[{B_+2*p}:{B_+2*p+1}], 1.0 op_sel_hi:[1,0]")
    for i in range(8): a(f"v_rcp_f32 v{B_+i}, v{B_+i}")
    for p in range(4): a(f"v_pk_mul_f32 v[{A_+2*p}:{A_+2*p+1}], v[{A_+2*p}:{A_+2*p+1}], v[{B_+2*p}:{B_+2*p+1}]")
    for i in range(8): a(f"v_cvt_pk_bf16_f32 v{A_+i}, 0, v{A_+i}")
    for p in range(4): a(f"v_lshlrev_b32 v{B_+2*p}, 16, v{S_+p}\n v_and_b32 v{B_+2*p+1}, 0xffff0000, v{S_+p}")
    for p in range(4): a(f"v_pk_mul_f32 v[{A_+2*p}:{A_+2*p+1}], v[{A_+2*p}:{A_+2*p+1}], v[{B_+2*p}:{B_+2*p+1}]")
    for i in range(8): a(f"v_cvt_pk_bf16_f32 v{A_+i}, 0, v{A_+i}")
    for p in range(4): a(f"v_lshlrev_b32 v{B_+2*p}, 16, v{XR+p}\n v_and_b32 v{B_+2*p+1}, 0xffff0000, v{XR+p}")
    for p in range(4): a(f"v_pk_add_f32 v[{A_+2*p}:{A_+2*p+1}], v[{A_+2*p}:{A_+2*p+1}], v[{B_+2*p}:{B_+2*p+1}]")
    for p in range(4): a(f"v_cvt_pk_bf16_f32 v{O_+p}, v{A_+2*p}, v{A_+2*p+1}")
    a(f"buffer_store_dwordx4 v[{O_}:{O_+3}], v{vO3}, s[{sOUT}:{sOUT+3}], s58 offen")
    def prof_end():
        if not PROF: return
        stg2(22); a("s_waitcnt vmcnt(0)"); stg2(23)
        a("s_memrealtime s[94:95]\n s_waitcnt lgkmcnt(0)")
        a("v_writelane_b32 v247, s100, 23\n v_writelane_b32 v247, s96, 62\n v_writelane_b32 v247, s94, 63")
        a(f"s_lshl_b32 s98, s2, 3\n s_add_u32 s98, s98, s42\n s_lshl_b32 s98, s98, 9\n s_add_u32 s98, s98, {TS}")
        a(f"v_lshlrev_b32 v251, 2, v1\n buffer_store_dword v246, v251, s[{sWS}:{sWS+3}], s98 offen\n buffer_store_dword v247, v251, s[{sWS}:{sWS+3}], s98 offen offset:256")
    prof_end()
    dbgt(10); dbg_flush()
    a("s_endpgm")
    gen_aux(a, locals())
    a("L_END:\n s_endpgm")
    a.raw(kd(NAME, 256, 102))

def gen_aux(a, L):
    sWS, sDBG, sSP, sBS = L["sWS"], L["sDBG"], L["sSP"], L["sBS"]
    vZERO, vPOLL, vPA, vF = L["vZERO"], L["vPOLL"], L["vPA"], L["vF"]
    stg, stg2 = L["stg"], L["stg2"]
    get_nonce, poll_check = L["get_nonce"], L["poll_check"]
    a("L_AUX:")
    stg.pending = 0; stg2.pending = None
    sWR, sWI, sTB = 4, 8, 16
    srd(a, sWR, 28, 2048*450); srd(a, sWI, 30, 2048*450)
    pc_srd(a, sTB, "TAB_FFT", FT_BYTES)
    a("s_sub_u32 s41, s41, 28")
    a("s_lshl_b32 s43, s41, 3\n s_add_u32 s43, s43, s40")
    a("s_cmp_lg_u32 s41, 0\n s_cbranch_scc1 L_NOCODE")
    pc_srd(a, 44, NAME, "L_END-"+NAME)
    a("v_lshlrev_b32 v5, 7, v0\n buffer_load_dword v254, v5, s[44:47], 0 offen")
    a("L_NOCODE:")
    a("s_lshr_b32 s44, s43, 1\n s_lshl_b32 s44, s44, 2\n s_and_b32 s45, s42, 3\n s_add_u32 s44, s44, s45\n s_lshl_b32 s44, s44, 5")
    a("s_and_b32 s45, s43, 1\n s_lshl_b32 s45, s45, 4\n s_add_u32 s44, s44, s45\n s_mul_i32 s44, s44, 450")
    WL = 65536
    a(f"s_lshl_b32 s46, s42, 13\n s_add_u32 s46, s46, {WL}")
    a("s_cmp_ge_u32 s42, 4\n s_cbranch_scc1 L_AUXI")
    for arr, sr in (("R", sWR), ("I", sWI)):
        if arr == "I": a("L_AUXI:")
        for i in range(8):
            a(f"s_add_u32 m0, s46, {i*1024}\n s_add_u32 s47, s44, {i*1024}")
            a(f"buffer_load_dwordx4 v{vF}, s[{sr}:{sr+3}], s47 offen lds")
        if arr == "R": a("s_branch L_AUXJ")
    a("L_AUXJ:")
    a("s_mul_i32 s45, s42, 7168")
    for i in range(7):
        a(f"s_add_u32 m0, s45, {i*1024}\n s_add_u32 s46, s45, {i*1024}")
        a(f"buffer_load_dwordx4 v{vF}, s[{sTB}:{sTB+3}], s46 offen lds")
    a(f"buffer_load_dword v{vPOLL}, v{vZERO}, s[{sDBG}:{sDBG+3}], 0 offen sc1")
    a("v_and_b32 v5, 63, v0\n v_lshlrev_b32 v5, 12, v5\n v_lshrrev_b32 v6, 6, v0\n v_lshl_add_u32 v5, v6, 7, v5\n s_lshl_b32 s47, s43, 18")
    if int(os.environ.get("MATCH", "2")):
        a("s_bfe_u32 s47, s40, 0x10001\n s_lshl_b32 s47, s47, 2\n s_lshr_b32 s50, s40, 2\n s_lshl_b32 s50, s50, 1\n s_add_u32 s47, s47, s50\n s_and_b32 s50, s40, 1\n s_add_u32 s47, s47, s50")
        a("s_lshl_b32 s47, s47, 2\n s_add_u32 s47, s47, s41\n s_lshl_b32 s47, s47, 18")
    a(f"buffer_load_dword v252, v5, s[{sSP}:{sSP+3}], s47 offen")
    a("s_waitcnt vmcnt(1)\n s_barrier")
    stg(1)
    a("v_and_b32 v6, 15, v0\n v_lshrrev_b32 v7, 4, v0")
    a(f"v_mul_u32_u24 v8, 450, v6\n v_lshl_add_u32 v8, v7, 1, v8\n v_add_u32 v8, {WL}, v8")
    a("v_lshlrev_b32 v9, 13, v7\n v_lshl_add_u32 v9, v6, 4, v9")
    a(f"s_lshl_b32 s48, s43, 8\n s_add_u32 s48, s48, {WP}")
    a("v_mov_b32 v10, 0")
    for it in range(8):
        d = 16+4*it
        for r in range(4):
            a(f"ds_read_u16 v{d+r}, v8 offset:{r*8192+64*it}")
            a(f"ds_read_u16 v{d+r+96}, v8 offset:{(4+r)*8192+64*it}")
    get_nonce("L_ANON")
    a("s_waitcnt lgkmcnt(0)")
    for it in range(8):
        d = 16+4*it
        for r in range(4): a(f"v_lshl_or_b32 v{d+r}, v{d+r+96}, 16, v{d+r}")
        if it == 7:
            a("v_cmp_gt_u32 vcc, 16, v0\n s_and_saveexec_b64 s[50:51], vcc\n s_cbranch_execz L_AUXSK")
        a(f"buffer_store_dwordx4 v[{d}:{d+3}], v9, s[{sWS}:{sWS+3}], s48 offen sc1")
        for r in range(4):
            a(f"v_and_b32 v{12+(r&1)}, 0x7fff7fff, v{d+r}\n v_pk_max_u16 v10, v10, v{12+(r&1)}")
        if it < 7: a(f"s_add_u32 s48, s48, {32*8192}")
    a("L_AUXSK:\n s_mov_b64 exec, -1")
    a("v_lshrrev_b32 v11, 16, v10\n v_and_b32 v10, 0xffff, v10\n v_max_u32 v10, v10, v11")
    a("v_max_u32_dpp v10, v10, v10 quad_perm:[1,0,3,2] row_mask:0xf bank_mask:0xf")
    a("v_max_u32_dpp v10, v10, v10 quad_perm:[2,3,0,1] row_mask:0xf bank_mask:0xf")
    a("v_max_u32_dpp v10, v10, v10 row_half_mirror row_mask:0xf bank_mask:0xf")
    a("v_max_u32_dpp v10, v10, v10 row_mirror row_mask:0xf bank_mask:0xf")
    a("v_readlane_b32 s50, v10, 0\n v_readlane_b32 s51, v10, 16\n v_readlane_b32 s52, v10, 32\n v_readlane_b32 s53, v10, 48")
    a("s_max_u32 s50, s50, s51\n s_max_u32 s52, s52, s53\n s_max_u32 s50, s50, s52")
    a(f"s_lshl_b32 s49, s43, 3\n s_add_u32 s49, s49, s42\n s_lshl_b32 s49, s49, 2\n s_add_u32 s49, s49, {WMAX}")
    a("v_mov_b32 v10, s50\n s_mov_b64 exec, 1")
    a(f"buffer_store_dword v10, v{vZERO}, s[{sWS}:{sWS+3}], s49 offen sc1")
    a("s_mov_b64 exec, -1")
    a("s_waitcnt vmcnt(0)\n s_barrier")
    stg(2)
    a(f"s_lshl_b32 s49, s43, 7\n s_add_u32 s49, s49, {FLW}")
    L["set_flag"]("L_FW", 49)
    for rnd in range(1, -(-WSP_K1//8)):
        if 8*rnd+8 > WSP_K1: a(f"s_cmp_ge_u32 s42, {WSP_K1-8*rnd}\n s_cselect_b32 s47, 0x10000000, s47")
        a(f"buffer_load_dword v{252+rnd}, v5, s[{sSP}:{sSP+3}], s47 offen offset:{1024*rnd}")
    a("v_lshlrev_b32 v5, 7, v0")
    a(f"buffer_load_dword v255, v5, s[{sBS}:{sBS+3}], 0 offen")
    a(f"v_mov_b32 v8, {SX}\n ds_write_b32 v8, v{vZERO}")
    a(f"v_and_b32 v{vPA}, 31, v1\n v_lshlrev_b32 v{vPA}, 7, v{vPA}\n s_mov_b32 s59, {FLW}")
    L["poll_issue"]("L_PW", 59, vPOLL)
    poll_check("L_CW", 59, vPOLL, sleep=16)
    a("s_barrier")
    a("s_mul_i32 s44, s43, 7\n s_add_u32 s44, s44, s42\n s_cmp_eq_u32 s42, 7\n s_cselect_b32 s44, 224, s44")
    a(f"s_mov_b32 s53, {WMAX}\n buffer_load_dwordx4 v[12:15], v{vF}, s[{sWS}:{sWS+3}], s53 offen sc1")
    a(f"s_lshl_b32 s54, s44, 13\n s_add_u32 s54, s54, {WP}")
    a("s_cmp_eq_u32 s42, 7\n s_cselect_b32 s55, s43, 0\n s_cmp_lg_u32 s55, 0\n s_cselect_b32 s54, 0x20000000, s54\n s_add_u32 s55, s54, 4096")
    for i in range(8):
        a(f"buffer_load_dwordx4 v[{128+4*i}:{131+4*i}], v{vF}, s[{sWS}:{sWS+3}], s{54 if i < 4 else 55} offen offset:{(i&3)*1024} sc1")
    a("s_mul_i32 s51, s43, 14\n s_add_u32 s52, s51, 13\n s_lshr_b32 s51, s51, 6\n s_lshr_b32 s52, s52, 6\n s_lshl_b32 s51, s51, 12\n s_lshl_b32 s52, s52, 12")
    a(f"v_mov_b32 v8, s51\n v_mov_b32 v9, s52\n v_cmp_gt_u32 vcc, 32, v1\n v_cndmask_b32 v8, v9, v8, vcc\n v_add_u32 v{vPA}, v{vPA}, v8\n s_mov_b32 s59, {FLU}")
    L["poll_pipe"]("L_CF", 59, 240, gap=8)
    a("s_waitcnt lgkmcnt(0)\n s_barrier")
    stg(3)
    a("s_cmp_lg_u32 s42, 7\n s_cbranch_scc1 L_FFT0\n s_cmp_lg_u32 s43, 0\n s_cbranch_scc1 L_PFW\nL_FFT0:")

    vL = vF
    OPR, OPI, OPN = 16, 32, 48
    DR, DI = 64, 96
    WV = 128; C32 = 160; CF = 184; TWB = 216
    a("s_lshl_b32 s48, s44, 1\n s_add_u32 s49, s48, 1\n s_min_u32 s49, s49, 447\n s_cmp_eq_u32 s44, 224\n s_cselect_b32 s48, 1, s48")
    a("s_cmp_eq_u32 s44, 224\n s_cselect_b32 s58, 1, 0\n s_cmp_eq_u32 s44, 0\n s_cselect_b32 s58, 1, s58")
    a(f"s_lshl_b32 s48, s48, 12\n s_lshl_b32 s49, s49, 12\n s_add_u32 s51, s48, {U}\n s_add_u32 s52, s49, {U}")
    a(f"v_and_b32 v5, 31, v1\n v_lshrrev_b32 v6, 5, v1\n v_lshlrev_b32 v7, 4, v5\n v_lshl_add_u32 v7, v6, 10, v7")
    for mt in range(2):
        for c in range(2):
            f = 2*mt+c
            a(f"buffer_load_dwordx4 v[{OPR+4*f}:{OPR+4*f+3}], v7, s[{sWS}:{sWS+3}], s51 offen offset:{(32*mt+128*c)*16} sc1")
            a(f"buffer_load_dwordx4 v[{OPI+4*f}:{OPI+4*f+3}], v7, s[{sWS}:{sWS+3}], s52 offen offset:{(32*mt+128*c)*16} sc1")
    for i in range(6): a(f"ds_read_b128 v[{C32+4*i}:{C32+4*i+3}], v{vL} offset:{O_C32+i*1024}")
    CR = lambda c: f"v[{C32+4*c}:{C32+4*c+3}]"
    CI = lambda c: f"v[{C32+8+4*c}:{C32+8+4*c+3}]"
    CN = lambda c: f"v[{C32+16+4*c}:{C32+16+4*c+3}]"
    op = lambda base, f: f"v[{base+4*f}:{base+4*f+3}]"
    dd = lambda base, t: f"v[{base+16*t}:{base+16*t+15}]"
    a("s_waitcnt vmcnt(8)")
    wmax_reduce(a, 12, 53, 28)
    a("s_sub_u32 s56, 254, s53\n s_sub_u32 s56, s56, s58\n s_lshl_b32 s56, s56, 23\n s_mov_b32 s57, s56")
    a("s_waitcnt vmcnt(0)")
    a("s_cmp_eq_u32 s58, 0\n s_cbranch_scc1 L_NSP")
    for i in range(16): a(f"v_mov_b32 v{OPI+i}, 0")
    a("L_NSP:")
    a("s_waitcnt lgkmcnt(0)")
    stg(4)
    def mfma(d, x, y, first): a(f"v_mfma_f32_32x32x16_f16 {d}, {x}, {y}, {'0' if first else d}")
    for mt in range(2):
        for c in range(2):
            f = 2*mt+c
            mfma(dd(DR, mt), op(OPR, f), CR(c), c == 0); mfma(dd(DI, mt), op(OPR, f), CI(c), c == 0)
            mfma(dd(DR, mt), op(OPI, f), CN(c), False); mfma(dd(DI, mt), op(OPI, f), CR(c), False)
    def twiddle(otab, neg):
        def ld(g):
            b = TWB+8*(g % 3)
            a(f"ds_read_b128 v[{b}:{b+3}], v{vL} offset:{otab+g*2048}")
            a(f"ds_read_b128 v[{b+4}:{b+7}], v{vL} offset:{otab+g*2048+1024}")
        for g in range(2): ld(g)
        for g in range(8):
            if g+2 < 8: ld(g+2)
            a(f"s_waitcnt lgkmcnt({2*min(2, 7-g)})")
            b = TWB+8*(g % 3)
            v = 4*g
            for i in range(4): a(f"v_mul_f32 v{8+i}, v{DR+v+i}, v{b+i}\n v_mul_f32 v{12+i}, v{DR+v+i}, v{b+4+i}")
            for i in range(4): a(f"v_fma_f32 v{8+i}, -v{DI+v+i}, v{b+4+i}, v{8+i}\n v_fmac_f32 v{12+i}, v{DI+v+i}, v{b+i}")
            for pr in range(2):
                a(f"v_cvt_pk_f16_f32 v{OPR+v//2+pr}, v{8+2*pr}, v{9+2*pr}\n v_cvt_pk_f16_f32 v{OPI+v//2+pr}, v{12+2*pr}, v{13+2*pr}")
            if neg:
                for pr in range(2): a(f"v_xor_b32 v{OPN+v//2+pr}, 0x80008000, v{OPI+v//2+pr}")
    def big(step):
        def ld(i):
            b = CF+8*(i & 3)
            a(f"ds_read_b128 v[{b}:{b+3}], v{vL} offset:{O_C64R+i*1024}")
            a(f"ds_read_b128 v[{b+4}:{b+7}], v{vL} offset:{O_C64I+i*1024}")
        for i in range(3): ld(i)
        for i in range(8):
            if i+3 < 8: ld(i+3)
            a(f"s_waitcnt lgkmcnt({2*min(3, 7-i)})")
            b = CF+8*(i & 3); cr = f"v[{b}:{b+3}]"; ci = f"v[{b+4}:{b+7}]"
            t = i >> 2; c = i & 3
            if step == 3:
                mfma(dd(DR, t), cr, op(OPR, c), c == 0); mfma(dd(DI, t), ci, op(OPR, c), c == 0)
                mfma(dd(DR, t), ci, op(OPN, c), False); mfma(dd(DI, t), cr, op(OPI, c), False)
            else:
                mfma(dd(DR, t), op(OPR, c), cr, c == 0); mfma(dd(DI, t), op(OPI, c), cr, c == 0)
                mfma(dd(DR, t), op(OPI, c), ci, False); mfma(dd(DI, t), op(OPN, c), ci, False)
    twiddle(O_TW1, True)
    stg(5)
    big(3)
    stg(6)
    a("s_waitcnt vmcnt(0)")
    for v in range(0, 32, 4):
        b = TWB+8*((v >> 2) % 3)
        for i in range(4): a(f"v_lshlrev_b32 v{b+i}, 16, v{WV+v+i}\n v_and_b32 v{b+4+i}, 0xffff0000, v{WV+v+i}")
        for i in range(8): a(f"v_mul_f32 v{b+i}, s56, v{b+i}")
        for i in range(4): a(f"v_mul_f32 v{8+i}, v{DR+v+i}, v{b+i}\n v_mul_f32 v{12+i}, v{DR+v+i}, v{b+4+i}")
        for i in range(4): a(f"v_fma_f32 v{8+i}, -v{DI+v+i}, v{b+4+i}, v{8+i}\n v_fmac_f32 v{12+i}, v{DI+v+i}, v{b+i}")
        for pr in range(2):
            a(f"v_cvt_pk_f16_f32 v{OPR+v//2+pr}, v{8+2*pr}, v{9+2*pr}\n v_cvt_pk_f16_f32 v{OPI+v//2+pr}, v{12+2*pr}, v{13+2*pr}")
        for pr in range(2): a(f"v_xor_b32 v{OPN+v//2+pr}, 0x80008000, v{OPR+v//2+pr}")
    stg(7)
    big(5)
    stg(8)
    twiddle(O_TW2, False)
    stg(9)
    for nt in range(2):
        for c in range(2):
            f = 2*nt+c
            mfma(dd(DR, nt), op(OPR, f), CR(c), c == 0); mfma(dd(DI, nt), op(OPI, f), CR(c), c == 0)
            mfma(dd(DR, nt), op(OPI, f), CI(c), False); mfma(dd(DI, nt), op(OPR, f), CN(c), False)
    a("v_lshlrev_b32 v7, 4, v5\n v_lshl_add_u32 v7, v6, 9, v7")
    a(f"s_add_u32 s51, s48, {YT}\n s_add_u32 s52, s49, {YT}")
    for part, base, sreg in ((0, DR, 51), (1, DI, 52)):
        if part == 1: a("s_cmp_lg_u32 s58, 0\n s_cbranch_scc1 L_FDONE")
        for nt in range(2):
            for q in range(2):
                o = WV+16*part+8*nt+4*q; v = base+16*nt+8*q
                for i in range(4): a(f"v_cvt_pk_f16_f32 v{o+i}, v{v+2*i}, v{v+2*i+1}")
                a(f"v_permlane32_swap_b32 v{o}, v{o+2}\n v_permlane32_swap_b32 v{o+1}, v{o+3}")
                a(f"buffer_store_dwordx4 v[{o}:{o+3}], v7, s[{sWS}:{sWS+3}], s{sreg} offen offset:{(4*nt+2*q)*512} sc1")
    a("L_FDONE:")
    stg(10)
    a("s_waitcnt vmcnt(0)")
    a(f"v_mov_b32 v8, {SX}\n v_mov_b32 v9, 1\n s_mov_b64 exec, 1\n ds_add_rtn_u32 v9, v8, v9\n s_waitcnt lgkmcnt(0)\n v_readfirstlane_b32 s49, v9")
    a("s_cmp_eq_u32 s43, 0\n s_cselect_b32 s50, 7, 6\n s_cmp_lg_u32 s49, s50\n s_cbranch_scc1 L_NFY")
    a(f"s_lshl_b32 s49, s43, 7\n s_add_u32 s49, s49, {FLY}\n v_mov_b32 v{vPOLL}, s63")
    a(f"buffer_store_dword v{vPOLL}, v{vZERO}, s[{sWS}:{sWS+3}], s49 offen sc1")
    a("L_NFY:\n s_mov_b64 exec, -1")
    stg(11)
    if PROF:
        a("s_waitcnt lgkmcnt(0)\n v_writelane_b32 v246, s100, 11")
        stg2.pending = None
        L["prof_end"]()
    a("s_endpgm")
    a("L_PFW:")
    a("s_sleep 8")
    NL = (32-WSP_K2)*2048
    a("s_sub_u32 s58, s43, 1\n s_lshl_b32 s58, s58, 6\n v_add_u32 v13, s58, v1")
    for it in range(-(-NL//(31*64))):
        a(f"v_and_b32 v14, 2047, v13\n v_lshrrev_b32 v15, 11, v13\n v_min_u32 v15, {31-WSP_K2}, v15\n v_lshlrev_b32 v14, 12, v14\n v_lshl_add_u32 v14, v15, 7, v14")
        a(f"buffer_load_dword v{20+it}, v14, s[{sSP}:{sSP+3}], 0 offen offset:{128*WSP_K2}")
        a(f"v_add_u32 v13, {31*64}, v13")
    a("s_endpgm")
```

```python
import re

TRANS = ("v_exp_f32", "v_log_f32", "v_rcp_f32", "v_rsq_f32", "v_sqrt_f32", "v_sin_f32", "v_cos_f32", "v_rcp_iflag_f32")

def _regs(tok):
    tok = tok.strip()
    tok = re.sub(r"^-", "", tok)
    m = re.match(r"^abs\((.*)\)$", tok)
    if m: tok = m.group(1)
    tok = tok.strip("|")
    m = re.match(r"^([vsa])(\d+)$", tok)
    if m: return [(m.group(1), int(m.group(2)))]
    m = re.match(r"^([vsa])\[(\d+):(\d+)\]$", tok)
    if m: return [(m.group(1), i) for i in range(int(m.group(2)), int(m.group(3))+1)]
    if tok == "vcc": return [("s", 106), ("s", 107)]
    if tok == "vcc_lo": return [("s", 106)]
    if tok == "exec": return [("s", 126), ("s", 127)]
    if tok == "m0": return [("s", 124)]
    return []

class Ins:
    __slots__ = ("text", "op", "dst", "src", "kind", "passes", "srcC", "srcAB", "dpp", "lds_dma", "wide_store_data", "states")
    def __init__(self, text):
        self.text = text
        t = text.split(";")[0].strip()
        parts = t.split(None, 1)
        self.op = parts[0]
        rest = parts[1] if len(parts) > 1 else ""
        ops = []; depth = 0; cur = ""
        for ch in rest:
            if ch == "[": depth += 1
            if ch == "]": depth -= 1
            if ch == "," and depth == 0: ops.append(cur); cur = ""
            else: cur += ch
        if cur.strip(): ops.append(cur)
        toks = []
        mods = ""
        for o in ops:
            o = o.strip()
            sp = o.split(None, 1)
            toks.append(sp[0]);
            if len(sp) > 1: mods += " " + sp[1]
        op = self.op
        self.dst = []; self.src = []; self.passes = 0; self.srcC = []; self.srcAB = []
        self.dpp = ("_dpp" in op) or ("quad_perm" in mods) or ("row_" in mods)
        self.lds_dma = False; self.wide_store_data = []
        self.states = 1
        R = [_regs(x) for x in toks]
        allr = [r for x in R for r in x]
        if op == "s_nop":
            self.kind = "nop"; self.states = int(toks[0], 0)+1
        elif op.startswith("v_mfma"):
            self.kind = "mfma"; self.dst = R[0]; self.srcAB = R[1]+R[2]; self.srcC = R[3] if len(R) > 3 else []
            self.src = self.srcAB+self.srcC
            self.passes = 8 if "32x32x16" in op else 4 if "16x16x32" in op else 16
        elif op.startswith("v_cmp"):
            self.kind = "valu"; self.dst = R[0]; self.src = [r for x in R[1:] for r in x]
        elif op.startswith("v_permlane"):
            self.kind = "valu"; self.dst = R[0]+R[1]; self.src = R[0]+R[1]
        elif op.startswith("v_"):
            self.kind = "valu"; self.dst = R[0]; self.src = [r for x in R[1:] for r in x]
            if op.startswith(("v_fmac", "v_dot2c", "v_pk_fmac")) or self.dpp: self.src = self.src+R[0]
            if op.startswith(("v_add_co", "v_addc_co", "v_sub_co", "v_subb_co")): self.dst = R[0]+R[1]; self.src = [r for x in R[2:] for r in x]
            if op.startswith("v_cndmask") and len(R) == 3: self.src += _regs("vcc")
        elif op.startswith(("buffer_load", "global_load")):
            self.kind = "vmem"
            if " lds" in (" "+mods) or "_lds_" in op:
                self.lds_dma = True; self.src = allr+_regs("m0")
            else:
                self.dst = R[0]; self.src = [r for x in R[1:] for r in x]
                if "d16" in op: self.src += R[0]
        elif op.startswith(("buffer_store", "global_store", "buffer_atomic", "global_atomic")):
            self.kind = "vmem"; self.src = allr
            if "x4" in op or "x3" in op:
                self.wide_store_data = R[0] if op.startswith("buffer") else R[1]
            if "atomic" in op and "sc0" in mods: self.dst = R[0]
        elif op.startswith("ds_read") or op.startswith("ds_bpermute") or op.startswith("ds_swizzle") or "_rtn" in op:
            self.kind = "ds"; self.dst = R[0]; self.src = [r for x in R[1:] for r in x]
            if "d16" in op: self.src += R[0]
        elif op.startswith("ds_"):
            self.kind = "ds"; self.src = allr
        elif op.startswith("s_"):
            self.kind = "salu"
            if op.startswith(("s_cmp", "s_cbranch", "s_branch", "s_waitcnt", "s_barrier", "s_endpgm", "s_sleep", "s_setprio", "s_bitcmp")):
                self.src = allr
            else:
                self.dst = R[0] if R else []; self.src = [r for x in R[1:] for r in x]
                if "saveexec" in op: self.dst = self.dst+_regs("exec")
        else:
            self.kind = "other"

def need_states(p, c):
    n = 0
    pd = set(p.dst); cs = set(c.src); cd = set(c.dst)
    if p.kind == "valu":
        vd = {r for r in pd if r[0] in "va"}; sd = {r for r in pd if r[0] == "s"}
        if c.kind == "mfma" and vd & cs: n = max(n, 2)
        if c.kind == "valu":
            if p.op in TRANS or p.op.replace("_e32", "").replace("_e64", "") in TRANS:
                if vd & (cs | cd): n = max(n, 1)
            if c.dpp and vd & cs: n = max(n, 2)
            if c.op.startswith("v_permlane") and vd & cs: n = max(n, 2)
            if c.op.startswith(("v_readlane", "v_readfirstlane")) and vd & cs: n = max(n, 1)
            if sd & cs: n = max(n, 4 if c.op.startswith(("v_readlane", "v_writelane")) else 2)
            if p.op.startswith("v_dot") and vd & (cs | cd):
                if not (c.op == p.op and vd & set(c.src[-len(vd):]) and not vd & set(c.src[:-len(vd)])): n = max(n, 3)
            if "sdwa" in p.op and vd & (cs | cd): n = max(n, 1)
        if p.op.startswith("v_dot") and c.kind != "valu" and vd & cs: n = max(n, 3)
        if (p.op in TRANS) and c.kind in ("mfma",) and vd & cs: n = max(n, 2)
        if c.kind == "vmem" and sd & cs: n = max(n, 5)
        if c.kind == "salu" and sd & cs: n = max(n, 1)
    if p.kind == "mfma":
        tab = {4: (6, 8, 8, 3), 8: (10, 12, 12, 7), 16: (18, 20, 20, 15)}[p.passes]
        if c.kind == "mfma":
            if pd & set(c.srcAB): n = max(n, tab[1])
            if pd & set(c.srcC) and not (list(c.srcC) == list(p.dst) and c.passes == p.passes): n = max(n, tab[0])
            if pd & cd and not (list(c.dst) == list(p.dst)): n = max(n, tab[0])
        elif c.kind in ("valu", "vmem", "ds"):
            if pd & (cs | cd): n = max(n, tab[2])
            if c.kind == "valu" and set(p.srcC) & cd: n = max(n, tab[3])
    if p.kind == "salu" and ("s", 124) in pd and c.lds_dma: n = max(n, 1)
    if p.wide_store_data and set(p.wide_store_data) & cd: n = max(n, 2)
    return n

class Asm:
    def __init__(self):
        self.lines = []
    def __call__(self, s):
        for l in s.split("\n"):
            l = l.strip()
            if l: self.lines.append(l)
    def raw(self, s):
        self.lines.append(("raw", s))
    def finish(self):
        out = []; hist = []
        nins = 0
        for l in self.lines:
            if isinstance(l, tuple):
                out.append(l[1]); continue
            if l.startswith((".", ";")) or l.endswith(":"):
                out.append(l); continue
            m = re.search(r"offset:(\d+)", l)
            if m and l.startswith("buffer_"): assert int(m.group(1)) < 4096, l
            if m and l.startswith("ds_"): assert int(m.group(1)) < 65536, l
            c = Ins(l)
            need = 0; dist = 0
            for p in reversed(hist[-24:]):
                n = need_states(p, c)
                if n > dist: need = max(need, n-dist)
                dist += p.states
                if dist >= 20: break
            while need > 0:
                k = min(need, 16)
                out.append(f"  s_nop {k-1}"); hist.append(Ins(f"s_nop {k-1}")); need -= k; nins += 1
            out.append("  "+l); hist.append(c)
        return "\n".join(out)+"\n"

class Vm:
    def __init__(self): self.ops = []; self.alt = None
    def issue(self, tag):
        self.ops.append(tag)
    def fork(self, l1, l2):
        self.ops = list(l1); self.alt = (len(l1), list(l2))
    def _w(self, ops, tag):
        idx = [i for i, t in enumerate(ops) if t == tag]
        return len(ops)-1-max(idx) if idx else None
    def wait(self, tag):
        c = [self._w(self.ops, tag)]
        if self.alt: c.append(self._w(self.alt[1]+self.ops[self.alt[0]:], tag))
        n = min(x for x in c if x is not None)
        assert n <= 63, n
        return n
```

```python
from asmlib import Asm, Vm
from common import *
from k1 import gelu_pairs, red8, halfsum, var_to_rs, C1, C2
from k2 import O_C64R, O_C64I, O_TW1, O_TW2, O_C32, FT_BYTES, wmax_reduce
import math

NAME = "recurrent_scan__spectral_gfnet__mixer_gmlp__prompt_kernel"
S1 = 16384; N1 = 6; XN = N1*S1
S2 = 24576; PERM = [4, 5, 2, 3, 0, 1]
UX = 147456; UXP = 144
SX = 156672
LDS_BYTES = 163840
TSC = 32768
EXP = 144
FL = 0x1310000
FLZ, FLU, FLW, FLH, FLY, FL1 = FL, FL+0x8000, FL+0x10000, FL+0x18000, FL+0x20000, FL+0x28000
LD_T = int(os.environ.get("LDT", "10")); CHK_T = int(os.environ.get("CHKT", "13")); FZ_G = int(os.environ.get("FZG", "3")); CX_T = int(os.environ.get("CXT", "9"))
WSP_K1 = int(os.environ.get("WSPK", "8"))
WSP_K2 = int(os.environ.get("WSPK2", "22"))
SPIN = 0x4000
CODE_BYTES = 40960
D = 5

XA = os.environ.get("XA", ""); XB = os.environ.get("XB", "sc1")
DBGT = bool(int(os.environ.get("DBGT", "0")))
def gen(a):
    a(f".text\n.globl {NAME}\n.p2align 8\n.type {NAME},@function\n{NAME}:")
    sX, sWIN, sWS, sFT, sDBG, sSP = 4, 8, 12, 16, 20, 24
    sWO, sTT, sOUT, sBS, sC = 8, 16, 64, 68, 72
    stg = StageStamps(a, 246); stg2 = StageStamps(a, 247)
    a("s_cmp_ge_u32 s2, 256\n s_cbranch_scc1 L_END")
    if PROF or DBGT: a("s_memrealtime s[96:97]")
    stg(0)
    a("s_load_dwordx2 s[76:77], s[0:1], 0")
    a("s_load_dwordx4 s[28:31], s[0:1], 8")
    a("s_load_dwordx4 s[32:35], s[0:1], 32")
    a("s_load_dwordx4 s[36:39], s[0:1], 72")
    a("s_load_dwordx4 s[80:83], s[0:1], 48")
    a("s_load_dwordx2 s[78:79], s[0:1], 64")
    a("s_and_b32 s40, s2, 7\n s_lshr_b32 s41, s2, 3")
    a("v_lshrrev_b32 v2, 6, v0\n v_and_b32 v1, 63, v0")
    a("v_readfirstlane_b32 s42, v2")
    pc_srd(a, sFT, "TAB_FT", 7*14*8*1024)
    vXo, vZ, vF, vW = 2, 3, 4, 5
    vTR = 6; vAA = 12
    XF = 16; BF = 128; ACC = 160; ACC2 = 176; ZP = 192; TMP = 200; VC1 = 226; PS = 228
    vA2, vB2 = 244, 245; VPF = 252; vZERO = 248; vPOLL = 249; vPA = 250
    a("s_and_b32 s62, s40, 3\n s_mul_i32 s43, s62, 28\n s_add_u32 s43, s43, s41\n s_lshr_b32 s44, s43, 4\n s_and_b32 s43, s43, 15")
    a("s_lshr_b32 s45, s40, 2\n s_lshl_b32 s45, s45, 4\n s_add_u32 s43, s43, s45")
    a("s_lshr_b32 s45, s43, 4\n s_lshl_b32 s45, s45, 4")
    a("s_lshr_b32 s46, s42, 2\n s_lshl_b32 s46, s46, 3\n s_add_u32 s45, s45, s46")
    a("s_bfe_u32 s46, s43, 0x10003\n s_lshl_b32 s46, s46, 2\n s_add_u32 s45, s45, s46")
    a("s_and_b32 s46, s42, 3\n s_add_u32 s45, s45, s46")
    a("s_lshl_b32 s45, s45, 6\n s_and_b32 s46, s43, 7\n s_lshl_b32 s46, s46, 3\n s_add_u32 s45, s45, s46")
    a("s_mul_i32 s45, s45, 896")
    a(f"v_lshrrev_b32 v{TMP}, 3, v1\n v_and_b32 v{TMP+1}, 7, v1")
    a(f"v_mul_u32_u24 v{vXo}, 896, v{TMP}\n v_lshl_add_u32 v{vXo}, v{TMP+1}, 4, v{vXo}")
    a(f"v_mov_b32 v{vZERO}, 0\n v_lshlrev_b32 v{vF}, 4, v1")
    a("s_waitcnt lgkmcnt(0)")
    srd(a, sX, 76, 2048*896)
    a("s_cmp_ge_u32 s41, 28\n s_cbranch_scc1 L_AUX0")
    vm = Vm()
    for cc in range(7):
        a(f"buffer_load_dwordx4 v[{BF+4*cc}:{BF+4*cc+3}], v{vXo}, s[{sX}:{sX+3}], s45 offen offset:{128*cc}"); vm.issue("x")
    a("L_AUX0:")
    srd(a, sWIN, 32, 448*3584); srd(a, sWS, 38, WS_BYTES); srd(a, sDBG, 36, 256); srd(a, sSP, 34, 2048*4096)
    srd(a, sOUT, 78, 2048*896); srd(a, sBS, 80, 4096)
    a("s_cmp_ge_u32 s41, 28\n s_cbranch_scc1 L_AUX")

    dlist = []
    def dbgt(idx, op=None):
        if not DBGT or op is not None: return
        a(f"s_memrealtime s[98:99]\n s_waitcnt lgkmcnt(0)\n v_writelane_b32 v247, s98, {idx}")
    def dbg_flush():
        if not DBGT: return
        a("s_cmp_lg_u32 s42, 0\n s_cbranch_scc1 L_DBGE")
        a("v_writelane_b32 v247, s96, 4")
        a("v_not_b32 v246, v247\n v_lshlrev_b32 v251, 3, v1\n v_subrev_u32 v251, 24, v251")
        a("s_mov_b64 exec, 0x7f0")
        a(f"buffer_atomic_umax v247, v251, s[{sDBG}:{sDBG+3}], 0 offen\n buffer_atomic_umax v246, v251, s[{sDBG}:{sDBG+3}], 0 offen offset:4")
        a("s_mov_b64 exec, -1\nL_DBGE:")
    def get_nonce(lbl):
        a(f"s_mov_b32 s50, 0\n{lbl}:")
        a(f"v_readfirstlane_b32 s63, v{vPOLL}")
        a(f"s_add_u32 s50, s50, 1\n s_cmp_lg_u32 s63, 0\n s_cbranch_scc1 {lbl}_OK")
        a(f"s_cmp_ge_u32 s50, {SPIN}\n s_cbranch_scc1 {lbl}_OK")
        a(f"s_sleep 4\n buffer_load_dword v{vPOLL}, v{vZERO}, s[{sDBG}:{sDBG+3}], 0 offen sc1\n s_waitcnt vmcnt(0)\n s_branch {lbl}")
        a(f"{lbl}_OK:")
    def set_flag(lbl, soff):
        a(f"s_cmp_lg_u32 s42, 0\n s_cbranch_scc1 {lbl}")
        a(f"v_mov_b32 v{vPOLL}, s63\n s_mov_b64 exec, 1")
        a(f"buffer_store_dword v{vPOLL}, v{vZERO}, s[{sWS}:{sWS+3}], s{soff} offen sc1")
        a(f"s_mov_b64 exec, -1\n{lbl}:")
    def poll_issue(lbl, soff, vdst, wide=False):
        a(f"s_cmp_lg_u32 s42, 0\n s_cbranch_scc1 {lbl}")
        if wide: a(f"buffer_load_dwordx4 v[{vdst}:{vdst+3}], v{vF}, s[{sWS}:{sWS+3}], s{soff} offen sc1")
        else: a(f"buffer_load_dword v{vdst}, v{vPA}, s[{sWS}:{sWS+3}], s{soff} offen sc1")
        a(f"{lbl}:")
    def poll_check(lbl, soff, vdst, wide=False, allwaves=False, sleep=2, covered=False):
        if not allwaves: a(f"s_cmp_lg_u32 s42, 0\n s_cbranch_scc1 {lbl}_OK")
        a("s_mov_b32 s50, 0")
        if covered: a(f"s_branch {lbl}_1")
        a(f"{lbl}:\n s_waitcnt vmcnt(0)\n{lbl}_1:")
        a(f"v_cmp_eq_u32 vcc, s63, v{vdst}")
        if wide:
            for i in range(1, 4): a(f"v_cmp_eq_u32 s[30:31], s63, v{vdst+i}\n s_and_b64 vcc, vcc, s[30:31]")
        a(f"s_add_u32 s50, s50, 1\n s_cmp_eq_u64 vcc, exec\n s_cbranch_scc1 {lbl}_OK")
        a(f"s_cmp_ge_u32 s50, {SPIN}\n s_cbranch_scc1 {lbl}_OK")
        a(f"s_sleep {sleep}")
        if wide: a(f"buffer_load_dwordx4 v[{vdst}:{vdst+3}], v{vF}, s[{sWS}:{sWS+3}], s{soff} offen sc1")
        else: a(f"buffer_load_dword v{vdst}, v{vPA}, s[{sWS}:{sWS+3}], s{soff} offen sc1")
        a(f"s_branch {lbl}\n{lbl}_OK:")

    def poll_pipe(lbl, soff, r0, gap=4):
        a(f"s_cmp_lg_u32 s42, 0\n s_cbranch_scc1 {lbl}_OK")
        a("s_mov_b32 s50, 0")
        for i in range(4):
            a(f"buffer_load_dword v{r0+i}, v{vPA}, s[{sWS}:{sWS+3}], s{soff} offen sc1")
            if i < 3: a(f"s_sleep {gap}")
        a(f"{lbl}:")
        for i in range(4):
            a("s_waitcnt vmcnt(3)")
            a(f"v_cmp_eq_u32 vcc, s63, v{r0+i}")
            a(f"s_cmp_eq_u64 vcc, exec\n s_cbranch_scc1 {lbl}_OK")
            a(f"buffer_load_dword v{r0+i}, v{vPA}, s[{sWS}:{sWS+3}], s{soff} offen sc1")
            a(f"s_sleep {gap//2}")
        a(f"s_add_u32 s50, s50, 1\n s_cmp_lt_u32 s50, {SPIN}\n s_cbranch_scc1 {lbl}")
        a(f"{lbl}_OK:")

    a("s_add_u32 s49, s2, s42\n s_cmp_lg_u32 s49, 0\n s_cbranch_scc1 L_NN")
    a("s_memrealtime s[50:51]\n s_waitcnt lgkmcnt(0)\n s_or_b32 s50, s50, 1")
    a(f"v_mov_b32 v{vPOLL}, s50\n s_mov_b64 exec, 1")
    a(f"buffer_store_dword v{vPOLL}, v{vZERO}, s[{sDBG}:{sDBG+3}], 0 offen sc1")
    a("s_mov_b64 exec, -1\nL_NN:")
    vT = TMP+8
    a("s_mul_i32 s46, s62, 28\n s_lshr_b32 s46, s46, 4")
    a("s_mul_i32 s47, s62, 28\n s_add_u32 s47, s47, 27\n s_lshr_b32 s47, s47, 4")
    a("s_lshl_b32 s48, s41, 4\n s_lshl_b32 s49, s42, 1\n s_add_u32 s48, s48, s49\n s_mul_i32 s48, s48, 3584\n s_lshl_b32 s49, s46, 8\n s_add_u32 s48, s48, s49\n s_add_u32 s48, s48, 1792")
    ZT = os.environ.get("ZT", "vec")
    if ZT == "smem":
        for rr in range(2):
            for ln in range(6):
                a(f"s_buffer_load_dword s28, s[{sWIN}:{sWIN+3}], s48 offset:{rr*3584+ln*128}")
    a(f"v_and_b32 v{vT}, 127, v0\n v_lshrrev_b32 v{vT+1}, 5, v{vT}\n v_add_u32 v{vT+1}, s46, v{vT+1}\n v_cmp_lt_u32 vcc, s47, v{vT+1}\n v_mov_b32 v{vT+5}, 0x8000\n v_cndmask_b32 v{vT+1}, v{vT+1}, v{vT+5}, vcc")
    a(f"s_lshl_b32 s48, s41, 5\n v_and_b32 v{vT+2}, 31, v0\n v_add_u32 v{vT+2}, s48, v{vT+2}")
    a(f"v_lshrrev_b32 v{VPF}, 1, v{vT+2}\n v_mul_u32_u24 v{VPF}, 3584, v{VPF}\n v_lshl_add_u32 v{VPF}, v{vT+1}, 8, v{VPF}\n v_and_b32 v{vT+3}, 1, v{vT+2}\n v_lshl_add_u32 v{VPF}, v{vT+3}, 7, v{VPF}")
    a(f"s_mov_b32 s48, 114688\n v_mul_lo_u32 v{VPF+1}, v{vT+1}, s48\n v_lshl_add_u32 v{VPF+1}, v{vT+2}, 7, v{VPF+1}")
    def touch2():
        a("s_cmp_ge_u32 s42, 2\n s_cbranch_scc1 L_PFB")
        a(f"buffer_load_dword v{VPF+2}, v{VPF}, s[{sWIN}:{sWIN+3}], 0 offen")
        a("s_branch L_PFD\nL_PFB:")
        a("s_cmp_ge_u32 s42, 4\n s_cselect_b32 s49, 0x10000000, 0")
        a(f"buffer_load_dword v{VPF+2}, v{VPF+1}, s[{sFT}:{sFT+3}], s49 offen")
        a("L_PFD:"); vm.issue("pf")
    a("s_barrier")
    if ZT == "vec":
        a("s_cmp_ge_u32 s42, 2\n s_cselect_b32 s49, 0x10000000, 0")
        a(f"buffer_load_dword v{VPF+3}, v{VPF}, s[{sWIN}:{sWIN+3}], s49 offen offset:1792"); vm.issue("pf")
    a(f"v_lshrrev_b32 v{TMP+2}, 4, v1\n v_and_b32 v{TMP+3}, 15, v1\n v_lshlrev_b32 v{TMP+4}, 2, v{TMP+2}\n v_xor_b32 v{TMP+3}, v{TMP+3}, v{TMP+4}")
    a(f"v_mul_u32_u24 v{vZ}, 3584, v{TMP+2}\n v_lshl_add_u32 v{vZ}, v{TMP+3}, 4, v{vZ}")
    a("s_mul_i32 s46, s42, 14336\n s_lshl_b32 s47, s44, 8\n s_add_u32 s46, s46, s47")
    a(f"s_mul_i32 s47, s44, {14*8192}\n s_lshl_b32 s48, s42, 10\n s_add_u32 s47, s47, s48")
    def dma(t):
        if t >= 14: return
        slot = (t % N1)*S1
        for u in range(2):
            a(f"s_add_u32 m0, s48, {slot+u*8192}")
            if t < 7:
                a(f"s_add_u32 s49, s46, {1792+(64*t+32*u)*3584}")
                a(f"buffer_load_dwordx4 v{vZ}, s[{sWIN}:{sWIN+3}], s49 offen lds"); vm.issue(("st", t))
            else:
                a(f"s_add_u32 s49, s47, {(2*(t-7)+u)*8192}")
                a(f"buffer_load_dwordx4 v{vF}, s[{sFT}:{sFT+3}], s49 offen lds"); vm.issue(("st", t))
    a(f"s_lshl_b32 s49, s42, 3\n v_add_u32 v{TMP+2}, s49, v{TMP}")
    a(f"v_bfe_u32 v{TMP+3}, v{TMP+2}, 1, 3\n v_xor_b32 v{TMP+3}, v{TMP+3}, v{TMP+1}")
    a(f"v_mul_u32_u24 v{vW}, 896, v{TMP+2}\n v_lshl_add_u32 v{vW}, v{TMP+3}, 4, v{vW}\n v_add_u32 v{vW}, {XN}, v{vW}")
    a("s_and_b32 s84, s40, 3\n s_lshl_b32 s84, s84, 2\n s_and_b32 s85, s41, 3\n s_add_u32 s84, s84, s85")
    a("s_lshr_b32 s85, s40, 2\n s_mul_i32 s85, s85, 7\n s_lshr_b32 s86, s41, 2\n s_add_u32 s85, s85, s86")
    a("s_lshr_b32 s86, s84, 3\n s_lshl_b32 s86, s86, 4\n s_bfe_u32 s87, s84, 0x10002\n s_lshl_b32 s87, s87, 2\n s_add_u32 s86, s86, s87")
    a("s_lshr_b32 s87, s42, 2\n s_lshl_b32 s87, s87, 3\n s_add_u32 s87, s87, s86\n s_and_b32 s88, s42, 3\n s_add_u32 s87, s87, s88")
    a("s_lshl_b32 s87, s87, 6\n s_and_b32 s88, s84, 3\n s_lshl_b32 s88, s88, 4\n s_add_u32 s87, s87, s88\n s_lshl_b32 s87, s87, 12")
    a(f"v_lshrrev_b32 v{TMP+2}, 1, v{TMP}\n s_and_b32 s88, s42, 1\n s_lshl_b32 s88, s88, 2\n v_add_u32 v{TMP+2}, s88, v{TMP+2}\n v_xor_b32 v{TMP+2}, v{TMP+1}, v{TMP+2}")
    a(f"v_lshlrev_b32 v{vA2}, 12, v{TMP}\n v_lshl_add_u32 v{vA2}, v{TMP+2}, 4, v{vA2}")
    a(f"v_lshrrev_b32 v{TMP+2}, 5, v1\n v_lshlrev_b32 v{vB2}, 13, v{TMP+2}\n v_and_b32 v{TMP+2}, 31, v1\n v_lshl_add_u32 v{vB2}, v{TMP+2}, 4, v{vB2}")
    a(f"s_lshl_b32 s88, s85, 18\n s_add_u32 s88, s88, s48\n s_add_u32 s88, s88, {Z2N}")
    def pslot(T): return PERM[(T+7) % 6]
    def slot2(T): return pslot(T)*S2
    vZW = 251; vXP = 11
    a(f"v_bfe_u32 v{TMP+2}, v1, 4, 1\n v_lshlrev_b32 v{TMP+2}, 2, v{TMP+2}\n v_xor_b32 v{TMP+2}, v{TMP+2}, v{TMP+1}\n v_mul_u32_u24 v{vZW}, 3584, v{TMP}\n v_lshl_add_u32 v{vZW}, v{TMP+2}, 4, v{vZW}")
    a("s_mul_i32 s72, s42, 28672\n s_lshl_b32 s73, s85, 7\n s_add_u32 s72, s72, s73")
    a("s_lshl_b32 s73, s84, 2\n s_lshr_b32 s74, s42, 2\n s_add_u32 s73, s73, s74\n s_mul_i32 s73, s73, 28\n s_and_b32 s74, s42, 3\n s_add_u32 s73, s73, s74\n s_lshl_b32 s73, s73, 10" + (f"\n s_add_u32 s73, s73, {Z1}" if Z1 else ""))
    def dmaZ(T, other=False):
        z = T+7; o1, o2, o3 = (-4096, -28*1024, -32*3584) if other else (0, 0, 0)
        M = 0xffffffff
        for u in range(2):
            a(f"s_add_u32 m0, s48, {(slot2(T)+u*8192+o1) & M}\n s_add_u32 s49, s73, {((4*z+56*u)*1024+o2) & M}")
            a(f"buffer_load_dwordx4 v{vF}, s[{sWS}:{sWS+3}], s49 offen sc1 lds"); vm.issue(("g", T))
        a(f"s_add_u32 m0, s48, {(slot2(T)+16384+o1) & M}\n s_add_u32 s49, s72, {(64*z*3584+o3) & M}")
        a(f"buffer_load_dwordx4 v{vZW}, s[{sWIN}:{sWIN+3}], s49 offen lds"); vm.issue(("g", T))
    def dmaA(T):
        for u in range(2):
            a(f"s_add_u32 m0, s48, {slot2(T)+u*8192}\n s_add_u32 s49, s87, {T*128+u*8*4096}")
            a(f"buffer_load_dwordx4 v{vA2}, s[{sSP}:{sSP+3}], s49 offen {XA} lds"); vm.issue(("g", T))
    def dmaB(T):
        a(f"s_add_u32 m0, s48, {slot2(T)+16384}\n s_add_u32 s49, s88, {T*8192}")
        a(f"buffer_load_dwordx4 v{vF}, s[{sWS}:{sWS+3}], s49 offen {XB} lds"); vm.issue(("g", T))
    a(f"s_and_b32 s49, s42, 1\n s_lshl_b32 s49, s49, 5\n v_and_b32 v{TMP+2}, 31, v1\n v_add_u32 v{TMP+2}, s49, v{TMP+2}")
    a(f"v_bfe_u32 v{TMP+3}, v{TMP+2}, 1, 3\n v_lshrrev_b32 v{TMP+4}, 5, v1\n v_xor_b32 v{TMP+3}, v{TMP+3}, v{TMP+4}")
    a(f"v_mul_u32_u24 v{TMP+2}, 896, v{TMP+2}\n v_add_u32 v{TMP+2}, {XN}, v{TMP+2}")
    for c in range(4):
        a(f"v_xor_b32 v{TMP+4}, {2*c}, v{TMP+3}\n v_lshl_add_u32 v{vAA+c}, v{TMP+4}, 4, v{TMP+2}")
    a(f"s_and_b32 s49, s42, 6\n v_xor_b32 v{TMP+4}, s49, v{TMP+3}\n v_lshl_add_u32 v{TMP+8}, v{TMP+4}, 4, v{TMP+2}\n s_lshl_b32 s49, s44, 7\n v_add_u32 v{TMP+8}, s49, v{TMP+8}")
    a(f"v_lshrrev_b32 v{TMP+2}, 5, v1\n v_bfe_u32 v{TMP+3}, v1, 2, 2")
    a(f"v_lshl_add_u32 v{TMP+2}, v{TMP+2}, 3, v{TMP+3}")
    a(f"v_and_b32 v{TMP+6}, 1, v1\n v_lshlrev_b32 v{TMP+6}, 3, v{TMP+6}")
    a(f"v_bfe_u32 v{TMP+4}, v1, 4, 1\n v_bfe_u32 v{TMP+5}, v1, 1, 1\n v_lshl_add_u32 v{TMP+4}, v{TMP+4}, 1, v{TMP+5}")
    a(f"v_lshlrev_b32 v{TMP+5}, 2, v{TMP+3}\n v_xor_b32 v{TMP+5}, v{TMP+4}, v{TMP+5}")
    a("s_lshr_b32 s51, s42, 1\n s_lshl_b32 s51, s51, 2\n s_and_b32 s49, s42, 2\n s_lshl_b32 s49, s49, 2\n s_add_u32 s50, s49, 4")
    a(f"v_mov_b32 v{vXP}, v{TMP+8}")
    for idx, sreg in ((0, 51),):
        a(f"v_xor_b32 v{TMP+7}, s{sreg}, v{TMP+5}\n v_lshl_add_u32 v{vTR+2*idx}, v{TMP+2}, 8, v{TMP+6}\n v_lshl_add_u32 v{vTR+2*idx}, v{TMP+7}, 4, v{vTR+2*idx}\n v_add_u32 v{vTR+2*idx+1}, 0x10000, v{vTR+2*idx}")
    a(f"s_mov_b32 s52, {hex(f32bits(C2))}\n s_mov_b32 s54, 0x3f803f80")
    a(f"v_mov_b32 v{VC1}, {hex(f32bits(C1))}")
    a(f"s_lshl_b32 s55, s43, 1\n s_and_b32 s57, s42, 1\n s_add_u32 s55, s55, s57\n s_mul_i32 s55, s55, 3584\n s_add_u32 s55, s55, {ST}")
    a("s_lshl_b32 s61, s44, 9\n s_add_u32 s61, s61, s55")
    a(f"s_lshl_b32 s56, s57, 10\n s_lshr_b32 s57, s42, 1\n s_lshl_b32 s57, s57, 3\n s_add_u32 s56, s56, s57\n s_add_u32 s56, s56, {SX}")
    a("s_and_b32 s49, s42, 6\n s_cmp_eq_u32 s49, 4\n s_cselect_b32 s55, s55, 0x20000000")
    a("s_lshl_b32 s57, s43, 1\n s_and_b32 s58, s42, 1\n s_add_u32 s57, s57, s58\n s_mul_i32 s57, s57, 28\n s_lshl_b32 s58, s44, 2\n s_add_u32 s57, s57, s58\n s_lshr_b32 s58, s42, 1\n s_add_u32 s57, s57, s58\n s_lshl_b32 s57, s57, 10" + (f"\n s_add_u32 s57, s57, {Z1}" if Z1 else ""))
    a(f"s_lshl_b32 s74, s43, 3\n s_add_u32 s74, s74, s44\n s_lshl_b32 s74, s74, 7\n s_add_u32 s74, s74, {FL1}")
    a(f"s_lshl_b32 s75, s44, 18\n s_lshl_b32 s49, s43, 7\n s_add_u32 s75, s75, s49\n s_add_u32 s75, s75, {U}")
    a("s_lshl_b32 s58, s44, 1\n s_lshr_b32 s49, s42, 2\n s_add_u32 s58, s58, s49\n s_lshl_b32 s58, s58, 5")
    a("s_lshr_b32 s49, s43, 4\n s_lshl_b32 s49, s49, 4\n s_add_u32 s58, s58, s49\n s_bfe_u32 s49, s43, 0x10003\n s_lshl_b32 s49, s49, 2\n s_add_u32 s58, s58, s49")
    a("s_and_b32 s49, s42, 1\n s_lshl_b32 s49, s49, 3\n s_add_u32 s58, s58, s49\n s_lshl_b32 s58, s58, 13")
    a("s_bfe_u32 s49, s43, 0x20001\n s_lshl_b32 s49, s49, 11\n s_add_u32 s58, s58, s49\n s_and_b32 s49, s43, 1\n s_lshl_b32 s49, s49, 9\n s_add_u32 s58, s58, s49")
    a(f"s_bfe_u32 s49, s42, 0x10001\n s_lshl_b32 s49, s49, 10\n s_add_u32 s58, s58, s49\n s_add_u32 s58, s58, {Z2N}")
    a(f"s_lshl_b32 s59, s44, 5\n s_add_u32 s59, s59, s43\n s_lshl_b32 s59, s59, 7\n s_add_u32 s60, s59, {FLU}\n s_add_u32 s59, s59, {FLZ}")
    a(f"s_lshr_b32 s89, s85, 1\n s_lshl_b32 s89, s89, 12\n s_add_u32 s89, s89, {FLZ}\n s_lshl_b32 s90, s84, 11\n s_add_u32 s90, s90, {FL1}")
    a(f"v_and_b32 v{vPA}, 31, v1\n v_lshlrev_b32 v{vPA}, 7, v{vPA}")
    a(f"s_waitcnt vmcnt({vm.wait('x')})")
    stg(1); dbgt(5)
    S = TMP; DV = XF
    a("s_mov_b32 s50, 0x00003f80\n s_mov_b32 s51, 0x3f800000")
    for i in range(4): a(f"v_mov_b32 v{S+i}, 0")
    for i in range(28): a(f"v_dot2_f32_bf16 v{S+(i&3)}, v{BF+i}, s54, v{S+(i&3)}")
    dma(0)
    a(f"v_add_f32 v{S}, v{S}, v{S+1}\n v_add_f32 v{S+2}, v{S+2}, v{S+3}\n v_add_f32 v{S}, v{S}, v{S+2}")
    red8(a, S)
    vM, vMB, vNM = TMP+4, TMP+5, TMP+6
    a(f"v_mul_f32 v{vM}, {hex(f32bits(1/448))}, v{S}")
    a(f"v_cvt_pk_bf16_f32 v{vMB}, 0, v{vM}\n v_sub_f32 v{vNM}, 0, v{vMB}")
    for i in range(4): a(f"v_mov_b32 v{S+i}, 0")
    for i in range(0, 28, 4):
        for u in range(4):
            d = DV+2*(i+u)
            a(f"v_dot2_f32_bf16 v{d}, v{BF+i+u}, s50, v{vNM}\n v_dot2_f32_bf16 v{d+1}, v{BF+i+u}, s51, v{vNM}")
        if i >= 4:
            for u in range(4):
                d = DV+2*(i-4+u); s_ = S+2*(u & 1)
                a(f"v_pk_fma_f32 v[{s_}:{s_+1}], v[{d}:{d+1}], v[{d}:{d+1}], v[{s_}:{s_+1}]")
        if i == 8: dma(1)
        if i == 20: dma(2)
    for u in range(4):
        d = DV+2*(24+u); s_ = S+2*(u & 1)
        a(f"v_pk_fma_f32 v[{s_}:{s_+1}], v[{d}:{d+1}], v[{d}:{d+1}], v[{s_}:{s_+1}]")
    a(f"v_add_f32 v{S}, v{S}, v{S+1}\n v_add_f32 v{S+2}, v{S+2}, v{S+3}\n v_add_f32 v{S}, v{S}, v{S+2}")
    for i in range(16): a(f"v_cvt_pk_bf16_f32 v{DV+i}, 0, v{DV+i}")
    red8(a, S)
    vRS = TMP+6; t = S+2
    a(f"v_sub_f32 v{t}, v{vM}, v{vMB}\n v_mul_f32 v{t}, v{t}, v{t}\n v_mov_b32 v{t+1}, {hex(f32bits(1.0/448))}\n v_fma_f32 v{t}, v{S}, v{t+1}, -v{t}\n v_max_f32 v{t}, 0, v{t}")
    n0 = len(a.lines); var_to_rs(a, t, vRS); a(f"v_mov_b32 v{vRS+1}, v{vRS}"); chain = a.lines[n0:]; del a.lines[n0:]
    for i in range(16, 56):
        a(f"v_cvt_pk_bf16_f32 v{DV+i}, 0, v{DV+i}")
        if chain and i % 3 == 0: a(chain.pop(0))
    for l in chain: a(l)
    dma(3)
    for i in range(0, 28, 4):
        for u in range(4):
            d = DV+2*(i+u); a(f"v_pk_mul_f32 v[{d}:{d+1}], v[{d}:{d+1}], v[{vRS}:{vRS+1}]")
        for u in range(4):
            d = DV+2*(i+u); a(f"v_cvt_pk_bf16_f32 v{BF+i+u}, v{d}, v{d+1}")
        a(f"ds_write_b128 v{vW}, v[{BF+i}:{BF+i+3}] offset:{32*i}")
    stg(2)
    dma(4); touch2()
    a("s_waitcnt lgkmcnt(0)")
    def capture(fn, *args):
        n0 = len(a.lines); fn(*args); out = a.lines[n0:]; del a.lines[n0:]; return out
    def trbase(idx, t):
        slot = (t % N1)*S1
        return (vTR+2*idx+(1 if slot >= 65536 else 0), slot-(65536 if slot >= 65536 else 0))
    def reads1(t):
        b = BF+16*(t & 1); vb, so = trbase(0, t)
        for k in range(4):
            c16 = 4*t+k
            a(f"ds_read_b128 v[{XF+4*c16}:{XF+4*c16+3}], v{vAA+(c16&3)} offset:{(c16>>2)*128}")
            for tt in range(2):
                a(f"ds_read_b64_tr_b16 v[{b+4*k+2*tt}:{b+4*k+2*tt+1}], v{vb} offset:{so+k*4096+tt*1024}")
    def mfma1(t):
        b = BF+16*(t & 1)
        for k in range(4):
            c16 = 4*t+k
            cin = "0" if c16 == 0 else f"v[{ACC}:{ACC+15}]"
            a(f"v_mfma_f32_32x32x16_bf16 v[{ACC}:{ACC+15}], v[{b+4*k}:{b+4*k+3}], v[{XF+4*c16}:{XF+4*c16+3}], {cin}")
    def body(mf, rd, issue, bgq=None, nbg=0):
        n = max(len(mf), 1); h = (len(rd)+1)//2 if n > 1 else len(rd)
        for i in range(n):
            if i < len(mf): a(mf[i])
            if i == 0:
                for l in rd[:h]: a(l)
            if i == 1:
                for l in rd[h:]: a(l)
            if i == min(2, n-1): issue()
            if bgq:
                for _ in range(nbg):
                    if bgq: a(bgq.pop(0))
    for t in range(7):
        n = vm.wait(('st', t))
        if t == 4: n = min(n, vm.wait("xn"))
        a(f"s_waitcnt vmcnt({n})")
        a("s_barrier")
        stg(3+t)
        if t == 0:
            a(f"ds_read_b128 v[{TMP}:{TMP+3}], v{vXP}")
            a(f"buffer_load_dword v{vPOLL}, v{vZERO}, s[{sDBG}:{sDBG+3}], 0 offen sc1"); vm.issue("nonce")
        if t == 4:
            get_nonce("L_NON"); set_flag("L_FX", 74)
        if t == 1:
            a(f"buffer_store_dwordx4 v[{TMP}:{TMP+3}], v{vF}, s[{sWS}:{sWS+3}], s57 offen sc1"); vm.issue("xn")
        body(capture(mfma1, t-1) if t > 0 else [], capture(reads1, t), lambda: dma(t+D))
        a("s_waitcnt lgkmcnt(0)")
    mfma1(6)
    dbgt(6)
    vPX = TMP+22
    a(f"v_and_b32 v{vPX}, 7, v1\n v_min_u32 v{vPX}, 6, v{vPX}\n v_and_b32 v{vPX+1}, 8, v1\n v_add_u32 v{vPX}, v{vPX}, v{vPX+1}\n v_lshlrev_b32 v{vPX}, 7, v{vPX}")
    NS_ = WSP_K2-WSP_K1; NLN = NS_*2048; PERW = -(-NLN//224)
    MATCH = int(os.environ.get("MATCH", "1"))
    if MATCH:
        a("s_bfe_u32 s49, s40, 0x10001\n s_lshl_b32 s49, s49, 2\n s_lshr_b32 s50, s40, 2\n s_lshl_b32 s50, s50, 1\n s_add_u32 s49, s49, s50\n s_and_b32 s50, s40, 1\n s_add_u32 s49, s49, s50")
        if MATCH == 2: a("s_bfe_u32 s50, s42, 0x10001\n s_lshl_b32 s50, s50, 1\n s_xor_b32 s49, s49, s50")
    else: a("s_mov_b32 s49, s40")
    a(f"s_mul_i32 s49, s49, 28\n s_add_u32 s49, s49, s41\n s_mul_i32 s49, s49, {PERW}\n v_and_b32 v{TMP}, 127, v0\n v_add_u32 v{TMP}, s49, v{TMP}")
    assert PERW == 128
    if MATCH == 2: PERW = 256
    MG = (2**32+NS_-1)//NS_
    a(f"s_mov_b32 s49, {MG}\n v_mul_hi_u32 v{TMP+1}, v{TMP}, s49\n v_mul_u32_u24 v{TMP+2}, {NS_}, v{TMP+1}\n v_sub_u32 v{TMP+2}, v{TMP}, v{TMP+2}")
    a(f"v_lshlrev_b32 v{TMP+1}, 12, v{TMP+1}\n v_lshl_add_u32 v{TMP+1}, v{TMP+2}, 7, v{TMP+1}")
    a(f"v_cmp_gt_u32 vcc, {PERW}, v0\n v_mov_b32 v{TMP+2}, 0x10000000\n v_cndmask_b32 v{TMP+1}, v{TMP+2}, v{TMP+1}, vcc")
    a(f"buffer_load_dword v{VPF+2}, v{TMP+1}, s[{sSP}:{sSP+3}], 0 offen offset:{128*WSP_K1}"); vm.issue("pf")
    srd(a, 92, 82, 896*896)
    a("s_cmp_lg_u32 s42, 7\n s_cbranch_scc1 L_WO1")
    pc_srd(a, 92, "TAB_TT", 7*56*1024)
    a("L_WO1:")
    a("s_mul_i32 s49, s40, 28\n s_add_u32 s49, s49, s41\n s_cmp_eq_u32 s42, 7\n s_cselect_b32 s50, 14, 28\n s_mul_i32 s49, s49, s50\n s_lshl_b32 s49, s49, 7\n s_cmp_lt_u32 s42, 6\n s_cselect_b32 s50, 0, s50")
    a(f"v_lshlrev_b32 v{TMP+1}, 7, v1\n v_cmp_gt_u32 vcc, s50, v1\n v_cndmask_b32 v{TMP+1}, v{TMP+2}, v{TMP+1}, vcc")
    a(f"buffer_load_dword v{VPF+3}, v{TMP+1}, s[92:95], s49 offen"); vm.issue("pf")
    gelu_pairs(a, ACC, ZP, TMP, 52, VC1)
    Sx = ACC
    for p in range(8): a(f"v_lshlrev_b32 v{Sx+2*p}, 16, v{ZP+p}\n v_and_b32 v{Sx+2*p+1}, 0xffff0000, v{ZP+p}")
    for i in range(4): a(f"v_add_f32 v{TMP+i}, v{Sx+i}, v{Sx+4+i}")
    for i in range(4): a(f"v_add_f32 v{TMP+4+i}, v{Sx+8+i}, v{Sx+12+i}")
    for i in range(4): a(f"v_add_f32 v{TMP+i}, v{TMP+i}, v{TMP+4+i}")
    a(f"v_add_f32 v{TMP}, v{TMP}, v{TMP+1}\n v_add_f32 v{TMP+2}, v{TMP+2}, v{TMP+3}\n v_add_f32 v{TMP}, v{TMP}, v{TMP+2}")
    halfsum(a, TMP, TMP+1)
    a(f"v_mul_f32 v{TMP+8}, {hex(f32bits(1/32))}, v{TMP}")
    for i in range(16): a(f"v_sub_f32 v{Sx+i}, v{Sx+i}, v{TMP+8}")
    for i in range(4): a(f"v_mul_f32 v{TMP+i}, v{Sx+i}, v{Sx+i}")
    for i in range(4, 16): a(f"v_fmac_f32 v{TMP+(i&3)}, v{Sx+i}, v{Sx+i}")
    a(f"v_add_f32 v{TMP}, v{TMP}, v{TMP+1}\n v_add_f32 v{TMP+2}, v{TMP+2}, v{TMP+3}\n v_add_f32 v{TMP+9}, v{TMP}, v{TMP+2}")
    halfsum(a, TMP+9, TMP+1)
    a(f"v_and_b32 v{TMP+10}, 31, v1\n v_lshlrev_b32 v{TMP+10}, 5, v{TMP+10}\n v_add_u32 v{TMP+10}, s56, v{TMP+10}")
    a(f"ds_write_b64 v{TMP+10}, v[{TMP+8}:{TMP+9}]")
    a(f"s_cmp_lg_u32 s42, 6\n s_cbranch_scc1 L_PX\n buffer_load_dword v{vPOLL}, v{vPX}, s[{sWS}:{sWS+3}], s90 offen sc1\nL_PX:")
    npx = len(vm.ops)
    a(f"v_and_b32 v{TMP+21}, 31, v1\n v_lshlrev_b32 v{TMP+21}, 4, v{TMP+21}\n v_lshrrev_b32 v{TMP+20}, 5, v1\n v_mul_u32_u24 v{TMP+20}, 1536, v{TMP+20}\n v_add_u32 v{TMP+20}, v{TMP+20}, v{TMP+21}\n v_add_u32 v{TMP+21}, 3072, v{TMP+21}")
    a("s_waitcnt lgkmcnt(0)")
    G = PS; ACC3 = ACC
    def is45(label): a(f"s_and_b32 s49, s42, 6\n s_cmp_lg_u32 s49, 4\n s_cbranch_scc1 {label}")
    def gloads():
        for i in range(4):
            a(f"buffer_load_dwordx4 v[{G+4*i}:{G+4*i+3}], v{TMP+20 if i < 3 else TMP+21}, s[{sWS}:{sWS+3}], s55 offen offset:{(i % 3)*512} sc1")
    def norm_job():
        A0 = TMP; T3 = PS
        a(f"s_and_b32 s29, s42, 1\n s_lshl_b32 s29, s29, 8\n s_add_u32 s29, s29, {SX+2048}\n v_and_b32 v{A0}, 31, v1\n v_lshlrev_b32 v{A0}, 3, v{A0}\n v_add_u32 v{A0}, s29, v{A0}")
        a(f"ds_read_b64 v[{A0+2}:{A0+3}], v{A0}")
        for p in range(8): a(f"v_lshlrev_b32 v{T3+2*p}, 16, v{ZP+p}\n v_and_b32 v{T3+2*p+1}, 0xffff0000, v{ZP+p}")
        a("s_waitcnt lgkmcnt(0)")
        for i in range(16): a(f"v_add_f32 v{T3+i}, v{T3+i}, v{A0+2}")
        for i in range(16): a(f"v_cvt_pk_bf16_f32 v{T3+i}, 0, v{T3+i}")
        for i in range(16): a(f"v_mul_f32 v{T3+i}, v{T3+i}, v{A0+3}")
        for p in range(8): a(f"v_cvt_pk_bf16_f32 v{ZP+p}, v{T3+2*p}, v{T3+2*p+1}")
    def norm_job2():
        A0 = TMP; T3 = PS
        a(f"s_lshl_b32 s29, s42, 11\n s_add_u32 s29, s29, {TSC}")
        a(f"v_and_b32 v{A0}, 31, v1\n v_lshlrev_b32 v{A0}, 6, v{A0}\n v_lshrrev_b32 v{A0+1}, 5, v1\n v_lshl_add_u32 v{A0}, v{A0+1}, 3, v{A0}\n v_add_u32 v{A0}, s29, v{A0}")
        a(f"v_bfe_u32 v{A0+2}, v1, 1, 2\n v_lshlrev_b32 v{A0+2}, 4, v{A0+2}")
        for j in range(4):
            a(f"v_xor_b32 v{A0+4+j}, {16*j}, v{A0+2}\n v_add_u32 v{A0+4+j}, v{A0+4+j}, v{A0}")
        for j in range(4): a(f"ds_write_b64 v{A0+4+j}, v[{ZP+2*j}:{ZP+2*j+1}]")
        a(f"v_bfe_u32 v{A0+2}, v1, 2, 2\n v_lshl_add_u32 v{A0+1}, v{A0+1}, 3, v{A0+2}\n v_lshlrev_b32 v{A0+1}, 6, v{A0+1}\n v_and_b32 v{A0+3}, 1, v1\n v_lshl_add_u32 v{A0+1}, v{A0+3}, 3, v{A0+1}\n v_add_u32 v{A0+1}, s29, v{A0+1}")
        a(f"v_bfe_u32 v{A0+3}, v1, 4, 1\n v_bfe_u32 v{A0+8}, v1, 1, 1\n v_lshl_add_u32 v{A0+3}, v{A0+3}, 1, v{A0+8}\n v_lshrrev_b32 v{A0+2}, 1, v{A0+2}\n v_xor_b32 v{A0+3}, v{A0+3}, v{A0+2}")
        a(f"v_lshl_add_u32 v{A0+8}, v{A0+3}, 4, v{A0+1}\n v_xor_b32 v{A0+3}, 2, v{A0+3}\n v_lshl_add_u32 v{A0+9}, v{A0+3}, 4, v{A0+1}")
        for c in range(2):
            for tt in range(2): a(f"ds_read_b64_tr_b16 v[{T3+4*c+2*tt}:{T3+4*c+2*tt+1}], v{A0+8+tt} offset:{c*1024+tt*256}")
        a("s_add_u32 s28, s58, 16384\n s_waitcnt lgkmcnt(0)")
    def check_stats():
        is45("L_NOCHK")
        a("s_mov_b32 s50, 0\nL_CHK:")
        a(f"v_cmp_eq_u32 vcc, s63, v{G+1}")
        for i in range(1, 8): a(f"v_cmp_eq_u32 s[30:31], s63, v{G+1+2*i}\n s_and_b64 vcc, vcc, s[30:31]")
        a("s_add_u32 s50, s50, 1\n s_cmp_eq_u64 vcc, exec\n s_cbranch_scc1 L_CHKOK")
        a(f"s_cmp_ge_u32 s50, {SPIN}\n s_cbranch_scc1 L_CHKOK")
        a("s_sleep 2"); gloads()
        a("s_waitcnt vmcnt(0)\n s_branch L_CHK\nL_CHKOK:")
        B0 = TMP
        a(f"v_mul_f32 v{B0}, 0.5, v{G+12}\n v_mul_f32 v{B0+1}, 0.5, v{G+14}")
        for i in range(3): a(f"v_add_f32 v{B0}, v{B0}, v{G+4*i}\n v_add_f32 v{B0+1}, v{B0+1}, v{G+4*i+2}")
        halfsum(a, B0, B0+2); halfsum(a, B0+1, B0+2)
        a(f"v_mul_f32 v{B0}, {hex(f32bits(1/7))}, v{B0}")
        a(f"v_sub_f32 v{B0+4}, v{G+12}, v{B0}\n v_mul_f32 v{B0+3}, v{B0+4}, v{B0+4}\n v_mul_f32 v{B0+3}, 0.5, v{B0+3}")
        for i in range(3): a(f"v_sub_f32 v{B0+4}, v{G+4*i}, v{B0}\n v_fmac_f32 v{B0+3}, v{B0+4}, v{B0+4}")
        halfsum(a, B0+3, B0+2)
        a(f"v_mov_b32 v{B0+2}, 0x43000000\n v_fma_f32 v{B0+1}, v{B0+3}, v{B0+2}, v{B0+1}")
        a(f"v_mul_f32 v{B0+1}, {hex(f32bits(1/896))}, v{B0+1}")
        var_to_rs(a, B0+1, B0+5)
        a(f"v_cvt_pk_bf16_f32 v{B0+4}, 0, v{B0}\n v_sub_f32 v{B0+4}, 0, v{B0+4}")
        a(f"s_and_b32 s49, s42, 1\n s_lshl_b32 s49, s49, 8\n s_add_u32 s49, s49, {SX+2048}\n v_and_b32 v{B0+6}, 31, v1\n v_lshlrev_b32 v{B0+6}, 3, v{B0+6}\n v_add_u32 v{B0+6}, s49, v{B0+6}")
        a(f"ds_write_b64 v{B0+6}, v[{B0+4}:{B0+5}]\n s_waitcnt lgkmcnt(0)")
        a("L_NOCHK:")
    a("s_cmp_ge_u32 s42, 4\n s_cbranch_scc1 L_P2Z")
    vm_save = list(vm.ops); vm_end = {}
    pend = stg.pending
    EARLY = {CX_T: [-7, -6], 11: [-5], 12: [-4]}; assert CX_T < 11
    HB = [BF, BF+16, ACC2]
    for path in ("F", "Z"):
        vm.ops = list(vm_save); stg.pending = pend
        if path == "Z": a("L_P2Z:")
        else:
            a(f"s_lshr_b32 s49, s42, 1\n s_lshl_b32 s49, s49, 12\n v_add_u32 v{vTR+2}, s49, v{vF}\n v_add_u32 v{vTR+3}, 0x10000, v{vTR+2}")
        def readsF(hh):
            b = HB[hh % 3]; vb, so = trbase(1, 7+(hh >> 1))
            return [f"ds_read_b128 v[{b+4*f}:{b+4*f+3}], v{vb} offset:{so+(hh & 1)*8192+f*1024}" for f in range(4)]
        def mfmaF(hh):
            if hh < 0: return []
            b = HB[hh % 3]; out = []
            for f in range(4):
                c16 = 2*hh+(f >> 1)
                cin = "0" if (hh == 0 and f == 0) else f"v[{ACC}:{ACC+15}]"
                out.append(f"v_mfma_f32_32x32x16_bf16 v[{ACC}:{ACC+15}], v[{XF+4*c16}:{XF+4*c16+3}], v[{b+4*f}:{b+4*f+3}], {cin}")
            return out
        for t in range(7, 14):
            n = vm.wait(("st", t))
            if t == CHK_T and path == "Z": n = min(n, vm.wait("gl"))
            a(f"s_waitcnt vmcnt({n})")
            if t == CHK_T and path == "Z": check_stats()
            if t == CX_T and path == "Z":
                a(f"s_cmp_lg_u32 s42, 6\n s_cbranch_scc1 L_CX_OK\n s_waitcnt vmcnt({len(vm.ops)-npx})\n v_mov_b32 v{vPA}, v{vPX}")
                poll_check("L_CX", 90, vPOLL, covered=True, allwaves=True)
            a("s_barrier")
            stg(3+t)
            if t == 7 and path == "Z":
                is45("L_NOSIG")
                B0 = TMP
                a(f"v_and_b32 v{B0+10}, 31, v1\n v_lshlrev_b32 v{B0+11}, 5, v{B0+10}\n s_sub_u32 s49, s56, 16\n v_add_u32 v{B0+11}, s49, v{B0+11}")
                a(f"ds_read_b128 v[{B0}:{B0+3}], v{B0+11}\n ds_read_b128 v[{B0+4}:{B0+7}], v{B0+11} offset:16\n s_waitcnt lgkmcnt(0)")
                a(f"v_add_f32 v{B0+8}, v{B0}, v{B0+2}\n v_add_f32 v{B0+9}, v{B0+4}, v{B0+6}\n v_add_f32 v{B0+8}, v{B0+8}, v{B0+9}\n v_mul_f32 v{B0+12}, 0.25, v{B0+8}")
                a(f"v_add_f32 v{B0+14}, v{B0+1}, v{B0+3}\n v_add_f32 v{B0+9}, v{B0+5}, v{B0+7}\n v_add_f32 v{B0+14}, v{B0+14}, v{B0+9}\n v_mov_b32 v{B0+8}, 0")
                for i in range(4): a(f"v_sub_f32 v{B0+9}, v{B0+2*i}, v{B0+12}\n v_fmac_f32 v{B0+8}, v{B0+9}, v{B0+9}")
                a(f"v_mov_b32 v{B0+9}, 0x42000000\n v_fma_f32 v{B0+14}, v{B0+8}, v{B0+9}, v{B0+14}")
                a(f"v_mov_b32 v{B0+13}, s63\n v_mov_b32 v{B0+15}, s63\n v_lshlrev_b32 v{B0+10}, 4, v{B0+10}")
                a(f"buffer_store_dwordx4 v[{B0+12}:{B0+15}], v{B0+10}, s[{sWS}:{sWS+3}], s61 offen sc1")
                a("s_nop 1\nL_NOSIG:")
            def issue():
                if t == LD_T:
                    gloads()
                    for i in range(4): vm.issue("gl")
                dma(t+D)
                if path == "Z":
                    for T_ in EARLY.get(t, []): dmaZ(T_); dmaZ(T_, True)
            nj = (capture(norm_job)+capture(norm_job2)) if t == CHK_T else []
            if path == "Z":
                issue()
                for l in nj: a(l)
            else:
                hh = 2*(t-7)
                body(mfmaF(hh-1), readsF(hh)+readsF(hh+1), issue, nj, 12)
                a("s_waitcnt lgkmcnt(4)" if not (t == CHK_T) else "s_waitcnt lgkmcnt(0)")
                body(mfmaF(hh), [], lambda: None, nj, 12)
                for l in nj: a(l)
                a("s_waitcnt lgkmcnt(0)")
            if t == CHK_T:
                for q in range(2):
                    a(f"buffer_store_dwordx4 v[{PS+4*q}:{PS+4*q+3}], v{vB2}, s[{sWS}:{sWS+3}], s{58 if q == 0 else 28} offen sc1"); vm.issue("z2n")
        if path == "F":
            for l in mfmaF(13): a(l)
            a(f"v_and_b32 v{TMP}, 31, v1\n s_lshr_b32 s49, s42, 1\n s_lshl_b32 s49, s49, 5\n v_add_u32 v{TMP}, s49, v{TMP}")
            a(f"v_mul_u32_u24 v{TMP}, {UXP}, v{TMP}\n v_lshrrev_b32 v{TMP+1}, 5, v1\n v_lshl_add_u32 v{TMP}, v{TMP+1}, 6, v{TMP}")
            a(f"s_and_b32 s49, s42, 1\n s_lshl_b32 s49, s49, 3\n s_add_u32 s49, s49, {UX}\n v_add_u32 v{TMP}, s49, v{TMP}")
            a("s_branch L_J1")
        vm_end[path] = list(vm.ops)
    vm.fork(vm_end["F"], vm_end["Z"])
    a("L_J1:")
    dbgt(7)
    T = 100; ZR = 88; BS = 96; FR = 20; AC = 104; Z1F = 124; GT = 140; ACZ = 176
    vTR2 = 5; vWA = 8; vZA, vZB = 84, 92
    a("s_lshr_b32 s43, s42, 1\n s_and_b32 s44, s42, 1")
    a(f"v_bfe_u32 v{T}, v1, 2, 2\n v_lshrrev_b32 v{T+1}, 5, v1\n v_bfe_u32 v{T+2}, v1, 4, 1\n v_bfe_u32 v{T+3}, v1, 1, 1\n v_lshl_add_u32 v{T+2}, v{T+2}, 1, v{T+3}")
    a(f"v_lshrrev_b32 v{T+3}, 1, v{T}\n v_lshlrev_b32 v{T+3}, 2, v{T+3}\n v_xor_b32 v{T+2}, v{T+2}, v{T+3}\n s_lshl_b32 s46, s44, 2\n v_xor_b32 v{T+2}, s46, v{T+2}")
    a(f"v_and_b32 v{T+3}, 1, v1\n v_lshlrev_b32 v{T+3}, 3, v{T+3}\n v_lshl_add_u32 v{T+3}, v{T}, 7, v{T+3}\n v_lshl_add_u32 v{vZA}, v{T+2}, 4, v{T+3}\n v_lshl_add_u32 v{vZA}, v{T+1}, 10, v{vZA}")
    a(f"s_lshl_b32 s46, s43, 12\n v_add_u32 v{vZB}, s46, v{vF}")
    for b in (vZA, vZB): a(f"v_add_u32 v{b+1}, {2*S2}, v{b}\n v_add_u32 v{b+2}, {4*S2}, v{b}")
    a("s_cmp_ge_u32 s42, 4\n s_cbranch_scc1 L_NOUX")
    for r in range(4):
        a(f"v_cvt_pk_f16_f32 v{TMP+2+2*r}, v{ACC+r}, v{ACC+4+r}\n v_cvt_pk_f16_f32 v{TMP+3+2*r}, v{ACC+8+r}, v{ACC+12+r}")
        a(f"ds_write_b64 v{TMP}, v[{TMP+2+2*r}:{TMP+3+2*r}] offset:{16*r}")
    a("s_waitcnt lgkmcnt(0)\nL_NOUX:")
    def win(Tg): sl = pslot(Tg); return sl >> 1, (sl & 1)*S2
    def rdZ(Tg):
        b = FR+32*(Tg & 1); w_, so = win(Tg); out = []
        for k in range(4):
            out += [f"ds_read_b64_tr_b16 v[{b+8*k+2*tt}:{b+8*k+2*tt+1}], v{vZA+w_} offset:{so+16384+k*2048+tt*512}" for tt in range(2)]
            out.append(f"ds_read_b128 v[{b+8*k+4}:{b+8*k+7}], v{vZB+w_} offset:{so+k*1024}")
        return out
    def mfZ(Tg):
        b = FR+32*(Tg & 1)
        return [f"v_mfma_f32_32x32x16_bf16 v[{ACZ}:{ACZ+15}], v[{b+8*k}:{b+8*k+3}], v[{b+8*k+4}:{b+8*k+7}], " + ("0" if (Tg == -7 and k == 0) else f"v[{ACZ}:{ACZ+15}]") for k in range(4)]
    def p2_setup():
        a("s_lshl_b32 s45, s84, 2\n s_add_u32 s45, s45, s43\n s_mul_i32 s45, s45, 56\n s_lshl_b32 s46, s85, 2\n s_add_u32 s45, s45, s46\n s_lshl_b32 s46, s44, 1\n s_add_u32 s45, s45, s46\n s_lshl_b32 s45, s45, 10")
        a(f"s_lshl_b32 s46, s44, 10\n v_add_u32 v{vTR2}, s46, v{vF}")
        a(f"v_add_u32 v{vTR2+1}, {2*S2}, v{vTR2}\n v_add_u32 v{vTR2+2}, {4*S2}, v{vTR2}")
        a(f"v_and_b32 v{T}, 31, v1\n s_lshl_b32 s46, s43, 5\n v_add_u32 v{T}, s46, v{T}")
        a(f"v_bfe_u32 v{T+1}, v{T}, 1, 3\n v_lshrrev_b32 v{T+2}, 5, v1\n v_xor_b32 v{T+1}, v{T+1}, v{T+2}\n v_lshlrev_b32 v{T}, 7, v{T}")
        for k in range(4):
            a(f"v_xor_b32 v{T+2}, {2*k}, v{T+1}\n v_lshl_add_u32 v{vWA+k}, v{T+2}, 4, v{T}")
            a(f"v_add_u32 v{vWA+4+k}, {2*S2}, v{vWA+k}\n v_add_u32 v{vWA+8+k}, {4*S2}, v{vWA+k}")
    for gi in range(7):
        Tg = gi-7
        n = vm.wait(("g", Tg))
        if gi == 4: n = min(n, vm.wait("u"))
        if gi == FZ_G: n = min(n, vm.wait("z2n"))
        a(f"s_waitcnt vmcnt({n})")
        a("s_barrier")
        stg(17+gi)
        if gi == 4: set_flag("L_FU", 60)
        if gi == FZ_G: set_flag("L_FZ", 59)
        if gi == 0:
            a(f"v_lshrrev_b32 v{TMP+12}, 3, v0\n v_and_b32 v{TMP+13}, 7, v0")
            a(f"v_mul_u32_u24 v{TMP+14}, {UXP}, v{TMP+12}\n v_lshl_add_u32 v{TMP+14}, v{TMP+13}, 4, v{TMP+14}\n v_add_u32 v{TMP+14}, {UX}, v{TMP+14}")
            a(f"ds_read_b128 v[{TMP+16}:{TMP+19}], v{TMP+14}")
            a(f"v_lshlrev_b32 v{TMP+12}, 12, v{TMP+12}\n v_lshl_add_u32 v{TMP+12}, v{TMP+13}, 4, v{TMP+12}")
        bgq = []
        if gi == 5: bgq = bgq+capture(p2_setup)
        def issue():
            if gi == 0: dmaZ(-3)
            Tn = Tg+D
            if Tn < 0: dmaZ(Tn)
            else: dmaA(Tn)
        body(mfZ(Tg-1) if gi > 0 else [], rdZ(Tg), issue, bgq, 20)
        for l in bgq: a(l)
        a("s_waitcnt lgkmcnt(0)")
        if gi == 0:
            a(f"buffer_store_dwordx4 v[{TMP+16}:{TMP+19}], v{TMP+12}, s[{sWS}:{sWS+3}], s75 offen sc1"); vm.issue("u")
    for l in mfZ(-1): a(l)
    stg(24)
    def gelu_z1():
        for q in range(0, 16, 8):
            R = [Z1F+q+i for i in range(8)]; Tt = [GT+i for i in range(8)]
            for i in range(8): a(f"v_cvt_pk_bf16_f32 v{R[i]}, 0, v{ACZ+q+i}")
            for i in range(8): a(f"v_mul_f32 v{Tt[i]}, v{R[i]}, v{R[i]}")
            for i in range(8): a(f"v_fma_f32 v{Tt[i]}, v{Tt[i]}, s52, v{VC1}")
            for i in range(8): a(f"v_mul_f32 v{Tt[i]}, v{Tt[i]}, v{R[i]}")
            for i in range(8): a(f"v_exp_f32 v{Tt[i]}, v{Tt[i]}")
            for i in range(8): a(f"v_add_f32 v{Tt[i]}, 1.0, v{Tt[i]}")
            for i in range(8): a(f"v_rcp_f32 v{Tt[i]}, v{Tt[i]}")
            for i in range(8): a(f"v_mul_f32 v{Tt[i]}, v{Tt[i]}, v{R[i]}")
            for i in range(8): a(f"v_cvt_pk_bf16_f32 v{R[i]}, 0, v{Tt[i]}")
    a("s_cmp_eq_u32 s42, 0\n s_cbranch_scc1 L_G0")
    gelu_z1()
    a("L_G0:")
    poll_pipe("L_CZ", 89, 240, gap=2)
    a("s_barrier")
    stg(25); dbgt(8)
    for Tg in range(D): dmaB(Tg)
    a("s_cmp_lg_u32 s42, 0\n s_cbranch_scc1 L_G1")
    gelu_z1()
    a("L_G1:")
    n_p3 = len(a.lines)
    vB3, vY3, vO3, XR = 150, 151, 152, 156
    srd(a, sWO, 82, 896*896)
    pc_srd(a, sTT, "TAB_TT", 7*56*1024)
    a("s_lshl_b32 s51, s40, 2\n s_and_b32 s52, s41, 3\n s_add_u32 s51, s51, s52\n s_lshr_b32 s52, s41, 2")
    a("s_lshr_b32 s53, s51, 4\n s_lshl_b32 s53, s53, 4\n s_bfe_u32 s54, s51, 0x10003\n s_lshl_b32 s54, s54, 2\n s_add_u32 s53, s53, s54")
    a(f"v_lshrrev_b32 v{T}, 3, v1\n v_and_b32 v{T+1}, 7, v1\n v_bfe_u32 v{T+2}, v1, 4, 1\n v_lshlrev_b32 v{T+2}, 2, v{T+2}\n v_xor_b32 v{T+2}, v{T+1}, v{T+2}")
    a(f"v_mul_u32_u24 v{vB3}, 896, v{T}\n v_lshl_add_u32 v{vO3}, v{T+1}, 4, v{vB3}\n v_lshl_add_u32 v{vB3}, v{T+2}, 4, v{vB3}")
    a(f"v_lshrrev_b32 v{T+1}, 2, v{T+2}\n v_and_b32 v{T+3}, 3, v{T+2}\n v_lshl_add_u32 v{T+1}, v{T+1}, 3, v{T+3}\n v_lshlrev_b32 v{vY3}, 12, v{T}\n v_lshl_add_u32 v{vY3}, v{T+1}, 4, v{vY3}")
    a(f"s_lshl_b32 s54, s51, 1\n s_lshr_b32 s55, s42, 2\n s_add_u32 s54, s54, s55\n s_mul_i32 s54, s54, 56\n s_and_b32 s55, s42, 3\n s_add_u32 s54, s54, s55\n s_lshl_b32 s54, s54, 10\n s_add_u32 s54, s54, {H}")
    a("s_mul_i32 s55, s42, 7168\n s_lshl_b32 s56, s52, 7\n s_add_u32 s55, s55, s56")
    a(f"s_lshl_b32 s56, s42, 15\n s_and_b32 s57, s51, 7\n s_lshl_b32 s57, s57, 9\n s_add_u32 s56, s56, s57\n s_lshl_b32 s57, s53, 4\n s_add_u32 s56, s56, s57\n s_add_u32 s56, s56, {YT}")
    a("s_mul_i32 s57, s52, 56\n s_add_u32 s57, s57, s42\n s_lshl_b32 s57, s57, 10")
    a("s_lshr_b32 s58, s42, 2\n s_lshl_b32 s58, s58, 3\n s_add_u32 s58, s58, s53\n s_and_b32 s59, s42, 3\n s_add_u32 s58, s58, s59\n s_lshl_b32 s58, s58, 6")
    a("s_and_b32 s59, s51, 7\n s_lshl_b32 s59, s59, 3\n s_add_u32 s58, s58, s59\n s_mul_i32 s58, s58, 896\n s_lshl_b32 s59, s52, 7\n s_add_u32 s58, s58, s59")
    a(f"s_lshl_b32 s59, s84, 11\n s_lshl_b32 s61, s85, 7\n s_add_u32 s59, s59, s61\n s_add_u32 s59, s59, {FLH}")
    a(f"s_lshr_b32 s61, s51, 1\n s_lshl_b32 s61, s61, 11\n s_add_u32 s61, s61, {FLH}\n s_mov_b32 s62, {FLY}")
    p3_setup = a.lines[n_p3:]; del a.lines[n_p3:]
    blk = {}
    free = []
    def unit(kind, i):
        b = free.pop(0); blk[(kind, i)] = b
        a(f"s_add_u32 m0, s48, {b*8192}")
        if kind == "T":
            a(f"s_add_u32 s49, s57, {i*8192}\n buffer_load_dwordx4 v{vF}, s[{sTT}:{sTT+3}], s49 offen lds")
        elif kind == "W":
            a(f"s_add_u32 s49, s55, {64*i*896}\n buffer_load_dwordx4 v{vB3}, s[{sWO}:{sWO+3}], s49 offen lds")
        elif kind == "Y":
            a(f"s_add_u32 s49, s56, {i*64*4096}\n buffer_load_dwordx4 v{vY3}, s[{sWS}:{sWS+3}], s49 offen sc1 lds")
        else:
            a(f"s_add_u32 s49, s54, {4*i*1024}\n buffer_load_dwordx4 v{vF}, s[{sWS}:{sWS+3}], s49 offen sc1 lds")
        vm.issue((kind, i))
    PRE = {27: [("T", 0), ("T", 1), ("T", 2)], 28: [("T", 3), ("T", 4), ("T", 5)], 29: [("T", 6), ("W", 0), ("W", 1)],
           30: [("W", 2), ("W", 3)], 31: [("Y", 0), ("Y", 1), ("Y", 2), ("Y", 3)], 32: [("Y", 4), ("Y", 5), ("Y", 6)]}
    POST = []
    def rd2(Tg, k):
        b = FR+32*(Tg & 1); w_, so = win(Tg)
        return [f"ds_read_b128 v[{b+8*k}:{b+8*k+3}], v{vTR2+w_} offset:{so+16384+2048*k}"] + \
               [f"ds_read_b128 v[{b+8*k+4}:{b+8*k+7}], v{vWA+4*w_+k} offset:{so}"]
    def mf2(Tg):
        b = FR+32*(Tg & 1)
        return [f"v_mfma_f32_32x32x16_bf16 v[{AC}:{AC+15}], v[{b+8*k}:{b+8*k+3}], v[{b+8*k+4}:{b+8*k+7}], " + ("0" if (Tg == 0 and k == 0) else f"v[{AC}:{AC+15}]") for k in range(4)]
    def late_loads():
        SK = os.environ.get("SKIP", "")
        a("s_and_b32 s46, s43, 1\n s_lshl_b32 s46, s46, 3\n s_add_u32 s46, s46, s86\n s_lshl_b32 s46, s46, 6")
        a("s_and_b32 s47, s84, 3\n s_lshl_b32 s47, s47, 1\n s_lshr_b32 s49, s43, 1\n s_add_u32 s47, s47, s49\n s_lshl_b32 s47, s47, 3\n s_add_u32 s46, s46, s47\n s_lshl_b32 s46, s46, 1")
        a(f"v_bfe_u32 v{T}, v1, 3, 2\n v_and_b32 v{T+1}, 7, v1\n v_lshlrev_b32 v{T}, 7, v{T}\n v_lshl_add_u32 v{T}, v{T+1}, 1, v{T}")
        if "b" in SK: a("s_mov_b32 s46, 0x20000000")
        a(f"buffer_load_ushort v{BS}, v{T}, s[{sBS}:{sBS+3}], s46 offen"); vm.issue("z1")
        a("s_mov_b32 s49, s58" if "x" not in SK else "s_mov_b32 s49, 0x20000000")
        a(f"buffer_load_dwordx4 v[{XR}:{XR+3}], v{vO3}, s[{sX}:{sX+3}], s49 offen"); vm.issue("z1")
    gl = []
    PY = 160
    WM = 164
    U_T, Y_T = int(os.environ.get("UT", "27")), 31
    for Tg in range(32):
        n = vm.wait(("g", Tg))
        a(f"s_waitcnt vmcnt({n})")
        if Tg == 31:
            a(f"s_waitcnt vmcnt({vm.wait(('T', 2))})")
            poll_check("L_CY", 62, PY, covered=True)
            a(f"v_and_b32 v{vPA}, 15, v1\n v_min_u32 v{vPA}, 13, v{vPA}\n v_lshlrev_b32 v{vPA}, 7, v{vPA}")
        a("s_barrier")
        stg(26+Tg)
        def issue():
            if Tg == 28: poll_issue("L_PY", 62, PY)
            if Tg == 31:
                a(f"s_mov_b32 s49, {WMAX}")
                a(f"buffer_load_dwordx4 v[{WM}:{WM+3}], v{vF}, s[{sWS}:{sWS+3}], s49 offen sc1"); vm.issue("wm")
            if Tg == U_T: late_loads()
            if Tg+D < 32:
                dmaA(Tg+D); dmaB(Tg+D)
            else:
                free.extend(3*pslot(Tg-1)+i for i in range(3))
                for u_ in PRE[Tg]: unit(*u_)
        rd = rd2(Tg, 0)+rd2(Tg, 1)+rd2(Tg, 2)+rd2(Tg, 3)
        body(mf2(Tg-1) if Tg > 0 else [], rd, issue)
        if Tg == 3:
            for l in p3_setup: a(l)
        a("s_waitcnt lgkmcnt(0)")
    assert not gl
    dbgt(9)
    vTRo, vFRo, vTRs, vFRs = 168, 171, 224, 227; FG = 176; AC3 = 208; ACO = AC
    W3 = 49152
    a(f"v_bfe_u32 v{T}, v1, 2, 2\n v_lshrrev_b32 v{T+1}, 5, v1")
    a(f"v_bfe_u32 v{T+2}, v1, 4, 1\n v_bfe_u32 v{T+3}, v1, 1, 1\n v_lshl_add_u32 v{T+2}, v{T+2}, 1, v{T+3}")
    a(f"v_lshrrev_b32 v{T+3}, 1, v{T}\n v_lshlrev_b32 v{T+3}, 2, v{T+3}\n v_xor_b32 v{T+2}, v{T+2}, v{T+3}")
    a(f"v_and_b32 v{T+3}, 1, v1\n v_lshlrev_b32 v{T+3}, 3, v{T+3}\n v_lshl_add_u32 v{T+3}, v{T}, 7, v{T+3}")
    a("s_and_b32 s46, s42, 1\n s_bfe_u32 s47, s42, 0x10001")
    a(f"s_lshl_b32 s49, s47, 2\n v_xor_b32 v{T}, s49, v{T+2}\n v_lshl_add_u32 v{vTRo}, v{T}, 4, v{T+3}\n v_lshl_add_u32 v{vTRo}, v{T+1}, 9, v{vTRo}")
    a(f"s_lshl_b32 s49, s46, 12\n v_add_u32 v{vFRo}, s49, v{vF}")
    a(f"s_lshl_b32 s49, s46, 2\n v_xor_b32 v{T}, s49, v{T+2}\n v_lshl_add_u32 v{vTRs}, v{T}, 4, v{T+3}\n v_lshl_add_u32 v{vTRs}, v{T+1}, 10, v{vTRs}")
    a(f"s_lshl_b32 s49, s47, 10\n v_add_u32 v{vFRs}, s49, v{vF}")
    for b in (vTRo, vFRo, vTRs, vFRs): a(f"v_add_u32 v{b+1}, {W3}, v{b}\n v_add_u32 v{b+2}, {2*W3}, v{b}")
    a("s_cmp_ge_u32 s42, 4\n s_cbranch_scc1 L_S")
    vm_save = list(vm.ops); free_save = list(free); blk_save = dict(blk)
    HF_T, HC_T, NWPRE = 36, 40, 11; SS = 33; OS = 41
    EXO = 272; EXA, EXB, EXS = 0, 64*EXO, 128*EXO
    LAST = OS+7
    for path in ("O", "S"):
        vm.ops = list(vm_save); stg2.pending = None; free[:] = free_save; blk.clear(); blk.update(blk_save)
        if path == "S": a("L_S:")
        grp = 0 if path == "O" else 1
        def work(it):
            if SS <= it < SS+7: return ("S", it-SS) if path == "S" else None
            if OS <= it < OS+7: return ("O", 2*(it-OS)+grp)
            return None
        def fb(it): return FG if (it & 1) else FR
        def rd3(it):
            wk = work(it)
            if wk is None: return []
            b = fb(it); out = []
            if wk[0] == "S": b1, b2, vt, vf, ts, ks = blk[("Y", wk[1])], blk[("T", wk[1])], vTRs, vFRs, 512, 2048
            else: b1, b2, vt, vf, ts, ks = blk[("W", wk[1])], blk[("H", wk[1])], vTRo, vFRo, 1024, 1024
            for k in range(4):
                for tt in range(2):
                    out.append(f"ds_read_b64_tr_b16 v[{b+8*k+2*tt}:{b+8*k+2*tt+1}], v{vt+b1//6} offset:{(b1 % 6)*8192+k*2048+tt*ts}")
                out.append(f"ds_read_b128 v[{b+8*k+4}:{b+8*k+7}], v{vf+b2//6} offset:{(b2 % 6)*8192+k*ks}")
            return out
        def mf3(it):
            wk = work(it)
            if wk is None: return []
            b = fb(it); out = []
            for k in range(4):
                if wk[0] == "O":
                    cin = "0" if (it == OS and k == 0) else f"v[{ACO}:{ACO+15}]"
                    out.append(f"v_mfma_f32_32x32x16_bf16 v[{ACO}:{ACO+15}], v[{b+8*k}:{b+8*k+3}], v[{b+8*k+4}:{b+8*k+7}], {cin}")
                else:
                    cin = "0" if (it == SS and k == 0) else f"v[{AC3}:{AC3+15}]"
                    out.append(f"v_mfma_f32_32x32x16_f16 v[{AC3}:{AC3+15}], v[{b+8*k+4}:{b+8*k+7}], v[{b+8*k}:{b+8*k+3}], {cin}")
            return out
        nextW, nextH = [4], [0]; post = list(POST); CAP = int(os.environ.get("CAP", "9"))
        for it in range(32, LAST):
            need = []
            if SS <= it < SS+7: need = [("Y", it-SS), ("T", it-SS)]
            if OS <= it < OS+7: need = [(k_, 2*(it-OS)+g_) for k_ in "WH" for g_ in range(2)]
            if it == HF_T: need.append("h")
            if need: a(f"s_waitcnt vmcnt({min(vm.wait(x) for x in need)})")
            if it == HC_T and path == "O": poll_pipe("L_CH", 61, 240)
            a("s_barrier")
            stg2(it-32)
            if it == HF_T and path == "O": set_flag("L_FH", 59)
            def issue():
                if it == 32:
                    free.extend(3*pslot(31)+i for i in range(3))
                    for u_ in PRE[32]: unit(*u_)
                if SS+1 <= it < SS+8: free.extend([blk[("Y", it-SS-1)], blk[("T", it-SS-1)]])
                if OS+1 <= it < OS+7: free.extend(blk[(k_, 2*(it-OS-1)+g_)] for k_ in "WH" for g_ in range(2))
                cap = CAP
                while free and it > 32:
                    if it < HC_T:
                        if cap == 0: break
                        cap -= 1
                        if post: unit(*post.pop(0))
                        elif nextW[0] < NWPRE: unit("W", nextW[0]); nextW[0] += 1
                        else: break
                    else:
                        if nextH[0] < 14 and (nextH[0] < nextW[0] or nextW[0] >= 14): unit("H", nextH[0]); nextH[0] += 1
                        elif nextW[0] < 14: unit("W", nextW[0]); nextW[0] += 1
                        else: break
            body(mf2(31) if it == 32 else mf3(it-1), rd3(it), issue)
            if it == 32:
                E = FR+32
                a(f"s_waitcnt vmcnt({vm.wait('z1')})")
                a(f"v_lshlrev_b32 v{BS}, 16, v{BS}")
                for i in range(16): a(f"v_cvt_pk_bf16_f32 v{E+i}, 0, v{AC+i}")
                for i in range(16): a(f"v_add_f32 v{E+i}, v{E+i}, v{BS}")
                for i in range(16): a(f"v_cvt_pk_bf16_f32 v{E+i}, 0, v{E+i}")
                for i in range(16): a(f"v_mul_f32 v{E+i}, v{E+i}, v{Z1F+i}")
                for p in range(8): a(f"v_cvt_pk_bf16_f32 v{E+16+p}, v{E+2*p}, v{E+2*p+1}")
                a(f"s_add_u32 s49, s45, {H}")
                for q in range(2):
                    a(f"buffer_store_dwordx4 v[{E+16+4*q}:{E+19+4*q}], v{vF}, s[{sWS}:{sWS+3}], s49 offen offset:{q*1024} sc1"); vm.issue("h")
            if it == OS and path == "S":
                wmax_reduce(a, WM, 28, 29)
                a(f"s_lshl_b32 s28, s28, 23\n v_mov_b32 v174, {hex(f32bits(1/28))}\n v_mul_f32 v174, s28, v174")
            if it == OS+1 and path == "S":
                for i in range(16): a(f"v_mul_f32 v{AC3+i}, v{AC3+i}, v174")
                for p in range(8): a(f"v_cvt_pk_bf16_f32 v{ZR+p}, v{AC3+2*p}, v{AC3+2*p+1}")
            a("s_waitcnt lgkmcnt(0)")
        a("s_barrier")
        for l in mf3(LAST-1): a(l)
        a(f"v_and_b32 v{T}, 31, v1\n s_lshl_b32 s49, s46, 5\n v_add_u32 v{T}, s49, v{T}\n v_lshrrev_b32 v{T+1}, 5, v1")
        if path == "S":
            a(f"v_mul_u32_u24 v{T+2}, {EXP}, v{T}\n v_lshl_add_u32 v{T+2}, v{T+1}, 3, v{T+2}\n s_lshl_b32 s49, s47, 6\n s_add_u32 s49, s49, {EXS}\n v_add_u32 v{T+2}, s49, v{T+2}")
            for j in range(4): a(f"ds_write_b64 v{T+2}, v[{ZR+2*j}:{ZR+2*j+1}] offset:{16*j}")
        a(f"v_mul_u32_u24 v{T}, {EXO}, v{T}\n v_lshl_add_u32 v{T}, v{T+1}, 4, v{T}\n s_lshl_b32 s49, s47, 7\n s_add_u32 s49, s49, {EXA if path == 'O' else EXB}\n v_add_u32 v{T}, s49, v{T}")
        for j in range(4): a(f"ds_write_b128 v{T}, v[{ACO+4*j}:{ACO+4*j+3}] offset:{32*j}")
        if path == "O": a("s_branch L_J3")
    a("L_J3:")
    stg2(21)
    a("s_waitcnt lgkmcnt(0)\n s_barrier")
    a(f"v_lshrrev_b32 v{T}, 3, v0\n v_and_b32 v{T+1}, 7, v0\n v_mul_u32_u24 v{T+2}, {EXP}, v{T}\n v_lshl_add_u32 v{T+2}, v{T+1}, 4, v{T+2}")
    a(f"v_mul_u32_u24 v{T}, {EXO}, v{T}\n v_lshl_add_u32 v{T}, v{T+1}, 5, v{T}")
    O_, S_ = 20, 24; A_, B_ = 32, 40
    a(f"ds_read_b128 v[{A_}:{A_+3}], v{T}\n ds_read_b128 v[{A_+4}:{A_+7}], v{T} offset:16")
    a(f"ds_read_b128 v[{B_}:{B_+3}], v{T} offset:{EXB}\n ds_read_b128 v[{B_+4}:{B_+7}], v{T} offset:{EXB+16}")
    a(f"ds_read_b128 v[{S_}:{S_+3}], v{T+2} offset:{EXS}")
    a(f"s_mov_b32 s46, {hex(f32bits(-math.log2(math.e)))}\n s_mov_b32 s47, s46")
    a("s_waitcnt lgkmcnt(0)")
    for p in range(4): a(f"v_pk_add_f32 v[{A_+2*p}:{A_+2*p+1}], v[{A_+2*p}:{A_+2*p+1}], v[{B_+2*p}:{B_+2*p+1}]")
    for i in range(8): a(f"v_cvt_pk_bf16_f32 v{A_+i}, 0, v{A_+i}")
    for p in range(4): a(f"v_pk_mul_f32 v[{B_+2*p}:{B_+2*p+1}], v[{A_+2*p}:{A_+2*p+1}], s[46:47]")
    for i in range(8): a(f"v_exp_f32 v{B_+i}, v{B_+i}")
    for p in range(4): a(f"v_pk_add_f32 v[{B_+2*p}:{B_+2*p+1}], v[{B_+2*p}:{B_+2*p+1}], 1.0 op_sel_hi:[1,0]")
    for i in range(8): a(f"v_rcp_f32 v{B_+i}, v{B_+i}")
    for p in range(4): a(f"v_pk_mul_f32 v[{A_+2*p}:{A_+2*p+1}], v[{A_+2*p}:{A_+2*p+1}], v[{B_+2*p}:{B_+2*p+1}]")
    for i in range(8): a(f"v_cvt_pk_bf16_f32 v{A_+i}, 0, v{A_+i}")
    for p in range(4): a(f"v_lshlrev_b32 v{B_+2*p}, 16, v{S_+p}\n v_and_b32 v{B_+2*p+1}, 0xffff0000, v{S_+p}")
    for p in range(4): a(f"v_pk_mul_f32 v[{A_+2*p}:{A_+2*p+1}], v[{A_+2*p}:{A_+2*p+1}], v[{B_+2*p}:{B_+2*p+1}]")
    for i in range(8): a(f"v_cvt_pk_bf16_f32 v{A_+i}, 0, v{A_+i}")
    for p in range(4): a(f"v_lshlrev_b32 v{B_+2*p}, 16, v{XR+p}\n v_and_b32 v{B_+2*p+1}, 0xffff0000, v{XR+p}")
    for p in range(4): a(f"v_pk_add_f32 v[{A_+2*p}:{A_+2*p+1}], v[{A_+2*p}:{A_+2*p+1}], v[{B_+2*p}:{B_+2*p+1}]")
    for p in range(4): a(f"v_cvt_pk_bf16_f32 v{O_+p}, v{A_+2*p}, v{A_+2*p+1}")
    a(f"buffer_store_dwordx4 v[{O_}:{O_+3}], v{vO3}, s[{sOUT}:{sOUT+3}], s58 offen")
    def prof_end():
        if not PROF: return
        stg2(22); a("s_waitcnt vmcnt(0)"); stg2(23)
        a("s_memrealtime s[94:95]\n s_waitcnt lgkmcnt(0)")
        a("v_writelane_b32 v247, s100, 23\n v_writelane_b32 v247, s96, 62\n v_writelane_b32 v247, s94, 63")
        a(f"s_lshl_b32 s98, s2, 3\n s_add_u32 s98, s98, s42\n s_lshl_b32 s98, s98, 9\n s_add_u32 s98, s98, {TS}")
        a(f"v_lshlrev_b32 v251, 2, v1\n buffer_store_dword v246, v251, s[{sWS}:{sWS+3}], s98 offen\n buffer_store_dword v247, v251, s[{sWS}:{sWS+3}], s98 offen offset:256")
    prof_end()
    dbgt(10); dbg_flush()
    a("s_endpgm")
    gen_aux(a, locals())
    a("L_END:\n s_endpgm")
    a.raw(kd(NAME, 256, 102))

def gen_aux(a, L):
    sWS, sDBG, sSP, sBS = L["sWS"], L["sDBG"], L["sSP"], L["sBS"]
    vZERO, vPOLL, vPA, vF = L["vZERO"], L["vPOLL"], L["vPA"], L["vF"]
    stg, stg2 = L["stg"], L["stg2"]
    get_nonce, poll_check = L["get_nonce"], L["poll_check"]
    a("L_AUX:")
    stg.pending = 0; stg2.pending = None
    sWR, sWI, sTB = 4, 8, 16
    srd(a, sWR, 28, 2048*450); srd(a, sWI, 30, 2048*450)
    pc_srd(a, sTB, "TAB_FFT", FT_BYTES)
    a("s_sub_u32 s41, s41, 28")
    a("s_lshl_b32 s43, s41, 3\n s_add_u32 s43, s43, s40")
    a("s_cmp_lg_u32 s41, 0\n s_cbranch_scc1 L_NOCODE")
    pc_srd(a, 44, NAME, "L_END-"+NAME)
    a("v_lshlrev_b32 v5, 7, v0\n buffer_load_dword v254, v5, s[44:47], 0 offen")
    a("L_NOCODE:")
    a("s_lshr_b32 s44, s43, 1\n s_lshl_b32 s44, s44, 2\n s_and_b32 s45, s42, 3\n s_add_u32 s44, s44, s45\n s_lshl_b32 s44, s44, 5")
    a("s_and_b32 s45, s43, 1\n s_lshl_b32 s45, s45, 4\n s_add_u32 s44, s44, s45\n s_mul_i32 s44, s44, 450")
    WL = 65536
    a(f"s_lshl_b32 s46, s42, 13\n s_add_u32 s46, s46, {WL}")
    a("s_cmp_ge_u32 s42, 4\n s_cbranch_scc1 L_AUXI")
    for arr, sr in (("R", sWR), ("I", sWI)):
        if arr == "I": a("L_AUXI:")
        for i in range(8):
            a(f"s_add_u32 m0, s46, {i*1024}\n s_add_u32 s47, s44, {i*1024}")
            a(f"buffer_load_dwordx4 v{vF}, s[{sr}:{sr+3}], s47 offen lds")
        if arr == "R": a("s_branch L_AUXJ")
    a("L_AUXJ:")
    a("s_mul_i32 s45, s42, 7168")
    for i in range(7):
        a(f"s_add_u32 m0, s45, {i*1024}\n s_add_u32 s46, s45, {i*1024}")
        a(f"buffer_load_dwordx4 v{vF}, s[{sTB}:{sTB+3}], s46 offen lds")
    a(f"buffer_load_dword v{vPOLL}, v{vZERO}, s[{sDBG}:{sDBG+3}], 0 offen sc1")
    a("v_and_b32 v5, 63, v0\n v_lshlrev_b32 v5, 12, v5\n v_lshrrev_b32 v6, 6, v0\n v_lshl_add_u32 v5, v6, 7, v5\n s_lshl_b32 s47, s43, 18")
    if int(os.environ.get("MATCH", "1")):
        a("s_bfe_u32 s47, s40, 0x10001\n s_lshl_b32 s47, s47, 2\n s_lshr_b32 s50, s40, 2\n s_lshl_b32 s50, s50, 1\n s_add_u32 s47, s47, s50\n s_and_b32 s50, s40, 1\n s_add_u32 s47, s47, s50")
        a("s_lshl_b32 s47, s47, 2\n s_add_u32 s47, s47, s41\n s_lshl_b32 s47, s47, 18")
    a(f"buffer_load_dword v252, v5, s[{sSP}:{sSP+3}], s47 offen")
    a("s_waitcnt vmcnt(1)\n s_barrier")
    stg(1)
    a("v_and_b32 v6, 15, v0\n v_lshrrev_b32 v7, 4, v0")
    a(f"v_mul_u32_u24 v8, 450, v6\n v_lshl_add_u32 v8, v7, 1, v8\n v_add_u32 v8, {WL}, v8")
    a("v_lshlrev_b32 v9, 13, v7\n v_lshl_add_u32 v9, v6, 4, v9")
    a(f"s_lshl_b32 s48, s43, 8\n s_add_u32 s48, s48, {WP}")
    a("v_mov_b32 v10, 0")
    for it in range(8):
        d = 16+4*it
        for r in range(4):
            a(f"ds_read_u16 v{d+r}, v8 offset:{r*8192+64*it}")
            a(f"ds_read_u16 v{d+r+96}, v8 offset:{(4+r)*8192+64*it}")
    get_nonce("L_ANON")
    a("s_waitcnt lgkmcnt(0)")
    for it in range(8):
        d = 16+4*it
        for r in range(4): a(f"v_lshl_or_b32 v{d+r}, v{d+r+96}, 16, v{d+r}")
        if it == 7:
            a("v_cmp_gt_u32 vcc, 16, v0\n s_and_saveexec_b64 s[50:51], vcc\n s_cbranch_execz L_AUXSK")
        a(f"buffer_store_dwordx4 v[{d}:{d+3}], v9, s[{sWS}:{sWS+3}], s48 offen sc1")
        for r in range(4):
            a(f"v_and_b32 v{12+(r&1)}, 0x7fff7fff, v{d+r}\n v_pk_max_u16 v10, v10, v{12+(r&1)}")
        if it < 7: a(f"s_add_u32 s48, s48, {32*8192}")
    a("L_AUXSK:\n s_mov_b64 exec, -1")
    a("v_lshrrev_b32 v11, 16, v10\n v_and_b32 v10, 0xffff, v10\n v_max_u32 v10, v10, v11")
    a("v_max_u32_dpp v10, v10, v10 quad_perm:[1,0,3,2] row_mask:0xf bank_mask:0xf")
    a("v_max_u32_dpp v10, v10, v10 quad_perm:[2,3,0,1] row_mask:0xf bank_mask:0xf")
    a("v_max_u32_dpp v10, v10, v10 row_half_mirror row_mask:0xf bank_mask:0xf")
    a("v_max_u32_dpp v10, v10, v10 row_mirror row_mask:0xf bank_mask:0xf")
    a("v_readlane_b32 s50, v10, 0\n v_readlane_b32 s51, v10, 16\n v_readlane_b32 s52, v10, 32\n v_readlane_b32 s53, v10, 48")
    a("s_max_u32 s50, s50, s51\n s_max_u32 s52, s52, s53\n s_max_u32 s50, s50, s52")
    a(f"s_lshl_b32 s49, s43, 3\n s_add_u32 s49, s49, s42\n s_lshl_b32 s49, s49, 2\n s_add_u32 s49, s49, {WMAX}")
    a("v_mov_b32 v10, s50\n s_mov_b64 exec, 1")
    a(f"buffer_store_dword v10, v{vZERO}, s[{sWS}:{sWS+3}], s49 offen sc1")
    a("s_mov_b64 exec, -1")
    a("s_waitcnt vmcnt(0)\n s_barrier")
    stg(2)
    a(f"s_lshl_b32 s49, s43, 7\n s_add_u32 s49, s49, {FLW}")
    L["set_flag"]("L_FW", 49)
    for rnd in range(1, -(-WSP_K1//8)):
        if 8*rnd+8 > WSP_K1: a(f"s_cmp_ge_u32 s42, {WSP_K1-8*rnd}\n s_cselect_b32 s47, 0x10000000, s47")
        a(f"buffer_load_dword v{252+rnd}, v5, s[{sSP}:{sSP+3}], s47 offen offset:{1024*rnd}")
    a("v_lshlrev_b32 v5, 7, v0")
    a(f"buffer_load_dword v255, v5, s[{sBS}:{sBS+3}], 0 offen")
    a(f"v_mov_b32 v8, {SX}\n ds_write_b32 v8, v{vZERO}")
    a(f"v_and_b32 v{vPA}, 31, v1\n v_lshlrev_b32 v{vPA}, 7, v{vPA}\n s_mov_b32 s59, {FLW}")
    L["poll_issue"]("L_PW", 59, vPOLL)
    poll_check("L_CW", 59, vPOLL, sleep=16)
    a("s_barrier")
    a("s_mul_i32 s44, s43, 7\n s_add_u32 s44, s44, s42\n s_cmp_eq_u32 s42, 7\n s_cselect_b32 s44, 224, s44")
    a(f"s_mov_b32 s53, {WMAX}\n buffer_load_dwordx4 v[12:15], v{vF}, s[{sWS}:{sWS+3}], s53 offen sc1")
    a(f"s_lshl_b32 s54, s44, 13\n s_add_u32 s54, s54, {WP}")
    a("s_cmp_eq_u32 s42, 7\n s_cselect_b32 s55, s43, 0\n s_cmp_lg_u32 s55, 0\n s_cselect_b32 s54, 0x20000000, s54\n s_add_u32 s55, s54, 4096")
    for i in range(8):
        a(f"buffer_load_dwordx4 v[{128+4*i}:{131+4*i}], v{vF}, s[{sWS}:{sWS+3}], s{54 if i < 4 else 55} offen offset:{(i&3)*1024} sc1")
    a("s_mul_i32 s51, s43, 14\n s_add_u32 s52, s51, 13\n s_lshr_b32 s51, s51, 6\n s_lshr_b32 s52, s52, 6\n s_lshl_b32 s51, s51, 12\n s_lshl_b32 s52, s52, 12")
    a(f"v_mov_b32 v8, s51\n v_mov_b32 v9, s52\n v_cmp_gt_u32 vcc, 32, v1\n v_cndmask_b32 v8, v9, v8, vcc\n v_add_u32 v{vPA}, v{vPA}, v8\n s_mov_b32 s59, {FLU}")
    L["poll_pipe"]("L_CF", 59, 240, gap=8)
    a("s_waitcnt lgkmcnt(0)\n s_barrier")
    stg(3)
    a("s_cmp_lg_u32 s42, 7\n s_cbranch_scc1 L_FFT0\n s_cmp_lg_u32 s43, 0\n s_cbranch_scc1 L_PFW\nL_FFT0:")

    vL = vF
    OPR, OPI, OPN = 16, 32, 48
    DR, DI = 64, 96
    WV = 128; C32 = 160; CF = 184; TWB = 216
    a("s_lshl_b32 s48, s44, 1\n s_add_u32 s49, s48, 1\n s_min_u32 s49, s49, 447\n s_cmp_eq_u32 s44, 224\n s_cselect_b32 s48, 1, s48")
    a("s_cmp_eq_u32 s44, 224\n s_cselect_b32 s58, 1, 0\n s_cmp_eq_u32 s44, 0\n s_cselect_b32 s58, 1, s58")
    a(f"s_lshl_b32 s48, s48, 12\n s_lshl_b32 s49, s49, 12\n s_add_u32 s51, s48, {U}\n s_add_u32 s52, s49, {U}")
    a(f"v_and_b32 v5, 31, v1\n v_lshrrev_b32 v6, 5, v1\n v_lshlrev_b32 v7, 4, v5\n v_lshl_add_u32 v7, v6, 10, v7")
    for mt in range(2):
        for c in range(2):
            f = 2*mt+c
            a(f"buffer_load_dwordx4 v[{OPR+4*f}:{OPR+4*f+3}], v7, s[{sWS}:{sWS+3}], s51 offen offset:{(32*mt+128*c)*16} sc1")
            a(f"buffer_load_dwordx4 v[{OPI+4*f}:{OPI+4*f+3}], v7, s[{sWS}:{sWS+3}], s52 offen offset:{(32*mt+128*c)*16} sc1")
    for i in range(6): a(f"ds_read_b128 v[{C32+4*i}:{C32+4*i+3}], v{vL} offset:{O_C32+i*1024}")
    CR = lambda c: f"v[{C32+4*c}:{C32+4*c+3}]"
    CI = lambda c: f"v[{C32+8+4*c}:{C32+8+4*c+3}]"
    CN = lambda c: f"v[{C32+16+4*c}:{C32+16+4*c+3}]"
    op = lambda base, f: f"v[{base+4*f}:{base+4*f+3}]"
    dd = lambda base, t: f"v[{base+16*t}:{base+16*t+15}]"
    a("s_waitcnt vmcnt(8)")
    wmax_reduce(a, 12, 53, 28)
    a("s_sub_u32 s56, 254, s53\n s_sub_u32 s56, s56, s58\n s_lshl_b32 s56, s56, 23\n s_mov_b32 s57, s56")
    a("s_waitcnt vmcnt(0)")
    a("s_cmp_eq_u32 s58, 0\n s_cbranch_scc1 L_NSP")
    for i in range(16): a(f"v_mov_b32 v{OPI+i}, 0")
    a("L_NSP:")
    a("s_waitcnt lgkmcnt(0)")
    stg(4)
    def mfma(d, x, y, first): a(f"v_mfma_f32_32x32x16_f16 {d}, {x}, {y}, {'0' if first else d}")
    for mt in range(2):
        for c in range(2):
            f = 2*mt+c
            mfma(dd(DR, mt), op(OPR, f), CR(c), c == 0); mfma(dd(DI, mt), op(OPR, f), CI(c), c == 0)
            mfma(dd(DR, mt), op(OPI, f), CN(c), False); mfma(dd(DI, mt), op(OPI, f), CR(c), False)
    def twiddle(otab, neg):
        def ld(g):
            b = TWB+8*(g % 3)
            a(f"ds_read_b128 v[{b}:{b+3}], v{vL} offset:{otab+g*2048}")
            a(f"ds_read_b128 v[{b+4}:{b+7}], v{vL} offset:{otab+g*2048+1024}")
        for g in range(2): ld(g)
        for g in range(8):
            if g+2 < 8: ld(g+2)
            a(f"s_waitcnt lgkmcnt({2*min(2, 7-g)})")
            b = TWB+8*(g % 3)
            v = 4*g
            for i in range(4): a(f"v_mul_f32 v{8+i}, v{DR+v+i}, v{b+i}\n v_mul_f32 v{12+i}, v{DR+v+i}, v{b+4+i}")
            for i in range(4): a(f"v_fma_f32 v{8+i}, -v{DI+v+i}, v{b+4+i}, v{8+i}\n v_fmac_f32 v{12+i}, v{DI+v+i}, v{b+i}")
            for pr in range(2):
                a(f"v_cvt_pk_f16_f32 v{OPR+v//2+pr}, v{8+2*pr}, v{9+2*pr}\n v_cvt_pk_f16_f32 v{OPI+v//2+pr}, v{12+2*pr}, v{13+2*pr}")
            if neg:
                for pr in range(2): a(f"v_xor_b32 v{OPN+v//2+pr}, 0x80008000, v{OPI+v//2+pr}")
    def big(step):
        def ld(i):
            b = CF+8*(i & 3)
            a(f"ds_read_b128 v[{b}:{b+3}], v{vL} offset:{O_C64R+i*1024}")
            a(f"ds_read_b128 v[{b+4}:{b+7}], v{vL} offset:{O_C64I+i*1024}")
        for i in range(3): ld(i)
        for i in range(8):
            if i+3 < 8: ld(i+3)
            a(f"s_waitcnt lgkmcnt({2*min(3, 7-i)})")
            b = CF+8*(i & 3); cr = f"v[{b}:{b+3}]"; ci = f"v[{b+4}:{b+7}]"
            t = i >> 2; c = i & 3
            if step == 3:
                mfma(dd(DR, t), cr, op(OPR, c), c == 0); mfma(dd(DI, t), ci, op(OPR, c), c == 0)
                mfma(dd(DR, t), ci, op(OPN, c), False); mfma(dd(DI, t), cr, op(OPI, c), False)
            else:
                mfma(dd(DR, t), op(OPR, c), cr, c == 0); mfma(dd(DI, t), op(OPI, c), cr, c == 0)
                mfma(dd(DR, t), op(OPI, c), ci, False); mfma(dd(DI, t), op(OPN, c), ci, False)
    twiddle(O_TW1, True)
    stg(5)
    big(3)
    stg(6)
    a("s_waitcnt vmcnt(0)")
    for v in range(0, 32, 4):
        b = TWB+8*((v >> 2) % 3)
        for i in range(4): a(f"v_lshlrev_b32 v{b+i}, 16, v{WV+v+i}\n v_and_b32 v{b+4+i}, 0xffff0000, v{WV+v+i}")
        for i in range(8): a(f"v_mul_f32 v{b+i}, s56, v{b+i}")
        for i in range(4): a(f"v_mul_f32 v{8+i}, v{DR+v+i}, v{b+i}\n v_mul_f32 v{12+i}, v{DR+v+i}, v{b+4+i}")
        for i in range(4): a(f"v_fma_f32 v{8+i}, -v{DI+v+i}, v{b+4+i}, v{8+i}\n v_fmac_f32 v{12+i}, v{DI+v+i}, v{b+i}")
        for pr in range(2):
            a(f"v_cvt_pk_f16_f32 v{OPR+v//2+pr}, v{8+2*pr}, v{9+2*pr}\n v_cvt_pk_f16_f32 v{OPI+v//2+pr}, v{12+2*pr}, v{13+2*pr}")
        for pr in range(2): a(f"v_xor_b32 v{OPN+v//2+pr}, 0x80008000, v{OPR+v//2+pr}")
    stg(7)
    big(5)
    stg(8)
    twiddle(O_TW2, False)
    stg(9)
    for nt in range(2):
        for c in range(2):
            f = 2*nt+c
            mfma(dd(DR, nt), op(OPR, f), CR(c), c == 0); mfma(dd(DI, nt), op(OPI, f), CR(c), c == 0)
            mfma(dd(DR, nt), op(OPI, f), CI(c), False); mfma(dd(DI, nt), op(OPR, f), CN(c), False)
    a("v_lshlrev_b32 v7, 4, v5\n v_lshl_add_u32 v7, v6, 9, v7")
    a(f"s_add_u32 s51, s48, {YT}\n s_add_u32 s52, s49, {YT}")
    for part, base, sreg in ((0, DR, 51), (1, DI, 52)):
        if part == 1: a("s_cmp_lg_u32 s58, 0\n s_cbranch_scc1 L_FDONE")
        for nt in range(2):
            for q in range(2):
                o = WV+16*part+8*nt+4*q; v = base+16*nt+8*q
                for i in range(4): a(f"v_cvt_pk_f16_f32 v{o+i}, v{v+2*i}, v{v+2*i+1}")
                a(f"v_permlane32_swap_b32 v{o}, v{o+2}\n v_permlane32_swap_b32 v{o+1}, v{o+3}")
                a(f"buffer_store_dwordx4 v[{o}:{o+3}], v7, s[{sWS}:{sWS+3}], s{sreg} offen offset:{(4*nt+2*q)*512} sc1")
    a("L_FDONE:")
    stg(10)
    a("s_waitcnt vmcnt(0)")
    a(f"v_mov_b32 v8, {SX}\n v_mov_b32 v9, 1\n s_mov_b64 exec, 1\n ds_add_rtn_u32 v9, v8, v9\n s_waitcnt lgkmcnt(0)\n v_readfirstlane_b32 s49, v9")
    a("s_cmp_eq_u32 s43, 0\n s_cselect_b32 s50, 7, 6\n s_cmp_lg_u32 s49, s50\n s_cbranch_scc1 L_NFY")
    a(f"s_lshl_b32 s49, s43, 7\n s_add_u32 s49, s49, {FLY}\n v_mov_b32 v{vPOLL}, s63")
    a(f"buffer_store_dword v{vPOLL}, v{vZERO}, s[{sWS}:{sWS+3}], s49 offen sc1")
    a("L_NFY:\n s_mov_b64 exec, -1")
    stg(11)
    if PROF:
        a("s_waitcnt lgkmcnt(0)\n v_writelane_b32 v246, s100, 11")
        stg2.pending = None
        L["prof_end"]()
    a("s_endpgm")
    a("L_PFW:")
    a("s_sleep 8")
    NL = (32-WSP_K2)*2048
    a("s_sub_u32 s58, s43, 1\n s_lshl_b32 s58, s58, 6\n v_add_u32 v13, s58, v1")
    for it in range(-(-NL//(31*64))):
        a(f"v_and_b32 v14, 2047, v13\n v_lshrrev_b32 v15, 11, v13\n v_min_u32 v15, {31-WSP_K2}, v15\n v_lshlrev_b32 v14, 12, v14\n v_lshl_add_u32 v14, v15, 7, v14")
        a(f"buffer_load_dword v{20+it}, v14, s[{sSP}:{sSP+3}], 0 offen offset:{128*WSP_K2}")
        a(f"v_add_u32 v13, {31*64}, v13")
    a("s_endpgm")
```

```python
from asmlib import Asm, Vm
from common import *
from k1 import gelu_pairs, red8, halfsum, var_to_rs, C1, C2
from k2 import O_C64R, O_C64I, O_TW1, O_TW2, O_C32, FT_BYTES, wmax_reduce
import math

NAME = "recurrent_scan__spectral_gfnet__mixer_gmlp__prompt_kernel"
S1 = 16384; N1 = 6; XN = N1*S1
S2 = 24576; PERM = [4, 5, 2, 3, 0, 1]
UX = 147456; UXP = 144
SX = 156672
LDS_BYTES = 163840
TSC = 32768
EXP = 144
FL = 0x1310000
FLZ, FLU, FLW, FLH, FLY, FL1 = FL, FL+0x8000, FL+0x10000, FL+0x18000, FL+0x20000, FL+0x28000
LD_T = int(os.environ.get("LDT", "11")); CHK_T = int(os.environ.get("CHKT", "13")); FZ_G = int(os.environ.get("FZG", "3")); CX_T = int(os.environ.get("CXT", "11"))
WSP_K1 = int(os.environ.get("WSPK", "8"))
WSP_K2 = int(os.environ.get("WSPK2", "22"))
SPIN = 0x4000
CODE_BYTES = 40960
D = 5

XA = os.environ.get("XA", ""); XB = os.environ.get("XB", "sc1")
DBGT = bool(int(os.environ.get("DBGT", "0")))
def gen(a):
    a(f".text\n.globl {NAME}\n.p2align 8\n.type {NAME},@function\n{NAME}:")
    sX, sWIN, sWS, sFT, sDBG, sSP = 4, 8, 12, 16, 20, 24
    sWO, sTT, sOUT, sBS = 8, 92, 64, 68
    stg = StageStamps(a, 246); stg2 = StageStamps(a, 247)
    a("s_cmp_ge_u32 s2, 256\n s_cbranch_scc1 L_END")
    if PROF or DBGT: a("s_memrealtime s[96:97]")
    stg(0)
    a("s_load_dwordx2 s[76:77], s[0:1], 0")
    a("s_load_dwordx4 s[28:31], s[0:1], 8")
    a("s_load_dwordx4 s[32:35], s[0:1], 32")
    a("s_load_dwordx4 s[36:39], s[0:1], 72")
    a("s_load_dwordx4 s[80:83], s[0:1], 48")
    a("s_load_dwordx2 s[78:79], s[0:1], 64")
    a("s_and_b32 s40, s2, 7\n s_lshr_b32 s41, s2, 3")
    a("v_lshrrev_b32 v2, 6, v0\n v_and_b32 v1, 63, v0")
    a("v_readfirstlane_b32 s42, v2")
    pc_srd(a, sFT, "TAB_FT", 7*14*8*1024)
    vXo, vZ, vF, vW = 2, 3, 4, 5
    vTR = 6; vAA = 12
    XF = 16; BF = 128; ACC = 160; ACC2 = 176; ZP = 192; TMP = 200; VC1 = 226; PS = 228
    vA2, vB2 = 244, 245; VPF = 252; vZERO = 248; vPOLL = 249; vPA = 250
    a("s_and_b32 s62, s40, 3\n s_mul_i32 s43, s62, 28\n s_add_u32 s43, s43, s41\n s_lshr_b32 s44, s43, 4\n s_and_b32 s43, s43, 15")
    a("s_lshr_b32 s45, s40, 2\n s_lshl_b32 s45, s45, 4\n s_add_u32 s43, s43, s45")
    a("s_lshr_b32 s45, s43, 4\n s_lshl_b32 s45, s45, 4")
    a("s_lshr_b32 s46, s42, 2\n s_lshl_b32 s46, s46, 3\n s_add_u32 s45, s45, s46")
    a("s_bfe_u32 s46, s43, 0x10003\n s_lshl_b32 s46, s46, 2\n s_add_u32 s45, s45, s46")
    a("s_and_b32 s46, s42, 3\n s_add_u32 s45, s45, s46")
    a("s_lshl_b32 s45, s45, 6\n s_and_b32 s46, s43, 7\n s_lshl_b32 s46, s46, 3\n s_add_u32 s45, s45, s46")
    a("s_mul_i32 s45, s45, 896")
    a(f"v_lshrrev_b32 v{TMP}, 3, v1\n v_and_b32 v{TMP+1}, 7, v1")
    a(f"v_mul_u32_u24 v{vXo}, 896, v{TMP}\n v_lshl_add_u32 v{vXo}, v{TMP+1}, 4, v{vXo}")
    a(f"v_mov_b32 v{vZERO}, 0\n v_lshlrev_b32 v{vF}, 4, v1")
    a("s_waitcnt lgkmcnt(0)")
    srd(a, sX, 76, 2048*896)
    a("s_cmp_ge_u32 s41, 28\n s_cbranch_scc1 L_AUX0")
    vm = Vm()
    for cc in range(7):
        a(f"buffer_load_dwordx4 v[{BF+4*cc}:{BF+4*cc+3}], v{vXo}, s[{sX}:{sX+3}], s45 offen offset:{128*cc}"); vm.issue("x")
    a("L_AUX0:")
    srd(a, sWIN, 32, 448*3584); srd(a, sWS, 38, WS_BYTES); srd(a, sDBG, 36, 256); srd(a, sSP, 34, 2048*4096)
    srd(a, sOUT, 78, 2048*896); srd(a, sBS, 80, 4096)
    a("s_cmp_ge_u32 s41, 28\n s_cbranch_scc1 L_AUX")

    dlist = []
    def dbgt(idx, op=None):
        if not DBGT or op is not None: return
        a(f"s_memrealtime s[98:99]\n s_waitcnt lgkmcnt(0)\n v_writelane_b32 v247, s98, {idx}")
    def dbg_flush():
        if not DBGT: return
        a("s_cmp_lg_u32 s42, 0\n s_cbranch_scc1 L_DBGE")
        a("v_writelane_b32 v247, s96, 4")
        a("v_not_b32 v246, v247\n v_lshlrev_b32 v251, 3, v1\n v_subrev_u32 v251, 24, v251")
        a("s_mov_b64 exec, 0x7f0")
        a(f"buffer_atomic_umax v247, v251, s[{sDBG}:{sDBG+3}], 0 offen\n buffer_atomic_umax v246, v251, s[{sDBG}:{sDBG+3}], 0 offen offset:4")
        a("s_mov_b64 exec, -1\nL_DBGE:")
    def get_nonce(lbl):
        a(f"s_mov_b32 s50, 0\n{lbl}:")
        a(f"v_readfirstlane_b32 s63, v{vPOLL}")
        a(f"s_add_u32 s50, s50, 1\n s_cmp_lg_u32 s63, 0\n s_cbranch_scc1 {lbl}_OK")
        a(f"s_cmp_ge_u32 s50, {SPIN}\n s_cbranch_scc1 {lbl}_OK")
        a(f"s_sleep 4\n buffer_load_dword v{vPOLL}, v{vZERO}, s[{sDBG}:{sDBG+3}], 0 offen sc1\n s_waitcnt vmcnt(0)\n s_branch {lbl}")
        a(f"{lbl}_OK:")
    def set_flag(lbl, soff):
        a(f"s_cmp_lg_u32 s42, 0\n s_cbranch_scc1 {lbl}")
        a(f"v_mov_b32 v{vPOLL}, s63\n s_mov_b64 exec, 1")
        a(f"buffer_store_dword v{vPOLL}, v{vZERO}, s[{sWS}:{sWS+3}], s{soff} offen sc1")
        a(f"s_mov_b64 exec, -1\n{lbl}:")
    def poll_issue(lbl, soff, vdst, wide=False):
        a(f"s_cmp_lg_u32 s42, 0\n s_cbranch_scc1 {lbl}")
        if wide: a(f"buffer_load_dwordx4 v[{vdst}:{vdst+3}], v{vF}, s[{sWS}:{sWS+3}], s{soff} offen sc1")
        else: a(f"buffer_load_dword v{vdst}, v{vPA}, s[{sWS}:{sWS+3}], s{soff} offen sc1")
        a(f"{lbl}:")
    def poll_check(lbl, soff, vdst, wide=False, allwaves=False, sleep=2, covered=False):
        if not allwaves: a(f"s_cmp_lg_u32 s42, 0\n s_cbranch_scc1 {lbl}_OK")
        a("s_mov_b32 s50, 0")
        if covered: a(f"s_branch {lbl}_1")
        a(f"{lbl}:\n s_waitcnt vmcnt(0)\n{lbl}_1:")
        a(f"v_cmp_eq_u32 vcc, s63, v{vdst}")
        if wide:
            for i in range(1, 4): a(f"v_cmp_eq_u32 s[30:31], s63, v{vdst+i}\n s_and_b64 vcc, vcc, s[30:31]")
        a(f"s_add_u32 s50, s50, 1\n s_cmp_eq_u64 vcc, exec\n s_cbranch_scc1 {lbl}_OK")
        a(f"s_cmp_ge_u32 s50, {SPIN}\n s_cbranch_scc1 {lbl}_OK")
        a(f"s_sleep {sleep}")
        if wide: a(f"buffer_load_dwordx4 v[{vdst}:{vdst+3}], v{vF}, s[{sWS}:{sWS+3}], s{soff} offen sc1")
        else: a(f"buffer_load_dword v{vdst}, v{vPA}, s[{sWS}:{sWS+3}], s{soff} offen sc1")
        a(f"s_branch {lbl}\n{lbl}_OK:")

    def poll_pipe(lbl, soff, r0, gap=4):
        a(f"s_cmp_lg_u32 s42, 0\n s_cbranch_scc1 {lbl}_OK")
        a("s_mov_b32 s50, 0")
        for i in range(4):
            a(f"buffer_load_dword v{r0+i}, v{vPA}, s[{sWS}:{sWS+3}], s{soff} offen sc1")
            if i < 3: a(f"s_sleep {gap}")
        a(f"{lbl}:")
        for i in range(4):
            a("s_waitcnt vmcnt(3)")
            a(f"v_cmp_eq_u32 vcc, s63, v{r0+i}")
            a(f"s_cmp_eq_u64 vcc, exec\n s_cbranch_scc1 {lbl}_OK")
            a(f"buffer_load_dword v{r0+i}, v{vPA}, s[{sWS}:{sWS+3}], s{soff} offen sc1")
            a(f"s_sleep {gap//2}")
        a(f"s_add_u32 s50, s50, 1\n s_cmp_lt_u32 s50, {SPIN}\n s_cbranch_scc1 {lbl}")
        a(f"{lbl}_OK:")

    a("s_add_u32 s49, s2, s42\n s_cmp_lg_u32 s49, 0\n s_cbranch_scc1 L_NN")
    a("s_memrealtime s[50:51]\n s_waitcnt lgkmcnt(0)\n s_or_b32 s50, s50, 1")
    a(f"v_mov_b32 v{vPOLL}, s50\n s_mov_b64 exec, 1")
    a(f"buffer_store_dword v{vPOLL}, v{vZERO}, s[{sDBG}:{sDBG+3}], 0 offen sc1")
    a("s_mov_b64 exec, -1\nL_NN:")
    vT = TMP+8
    a("s_mul_i32 s46, s62, 28\n s_lshr_b32 s46, s46, 4")
    a("s_mul_i32 s47, s62, 28\n s_add_u32 s47, s47, 27\n s_lshr_b32 s47, s47, 4")
    a("s_lshl_b32 s48, s41, 4\n s_lshl_b32 s49, s42, 1\n s_add_u32 s48, s48, s49\n s_mul_i32 s48, s48, 3584\n s_lshl_b32 s49, s46, 8\n s_add_u32 s48, s48, s49\n s_add_u32 s48, s48, 1792")
    ZT = os.environ.get("ZT", "vec")
    if ZT == "smem":
        for rr in range(2):
            for ln in range(6):
                a(f"s_buffer_load_dword s28, s[{sWIN}:{sWIN+3}], s48 offset:{rr*3584+ln*128}")
    a(f"v_and_b32 v{vT}, 127, v0\n v_lshrrev_b32 v{vT+1}, 5, v{vT}\n v_add_u32 v{vT+1}, s46, v{vT+1}\n v_cmp_lt_u32 vcc, s47, v{vT+1}\n v_mov_b32 v{vT+5}, 0x8000\n v_cndmask_b32 v{vT+1}, v{vT+1}, v{vT+5}, vcc")
    a(f"s_lshl_b32 s48, s41, 5\n v_and_b32 v{vT+2}, 31, v0\n v_add_u32 v{vT+2}, s48, v{vT+2}")
    a(f"v_lshrrev_b32 v{VPF}, 1, v{vT+2}\n v_mul_u32_u24 v{VPF}, 3584, v{VPF}\n v_lshl_add_u32 v{VPF}, v{vT+1}, 8, v{VPF}\n v_and_b32 v{vT+3}, 1, v{vT+2}\n v_lshl_add_u32 v{VPF}, v{vT+3}, 7, v{VPF}")
    a(f"s_mov_b32 s48, 114688\n v_mul_lo_u32 v{VPF+1}, v{vT+1}, s48\n v_lshl_add_u32 v{VPF+1}, v{vT+2}, 7, v{VPF+1}")
    def touch2():
        a("s_cmp_ge_u32 s42, 2\n s_cbranch_scc1 L_PFB")
        a(f"buffer_load_dword v{VPF+2}, v{VPF}, s[{sWIN}:{sWIN+3}], 0 offen")
        a("s_branch L_PFD\nL_PFB:")
        a("s_cmp_ge_u32 s42, 4\n s_cselect_b32 s49, 0x10000000, 0")
        a(f"buffer_load_dword v{VPF+2}, v{VPF+1}, s[{sFT}:{sFT+3}], s49 offen")
        a("L_PFD:"); vm.issue("pf")
    a("s_barrier")
    if ZT == "vec":
        a("s_cmp_ge_u32 s42, 2\n s_cselect_b32 s49, 0x10000000, 0")
        a(f"buffer_load_dword v{VPF+3}, v{VPF}, s[{sWIN}:{sWIN+3}], s49 offen offset:1792"); vm.issue("pf")
    a(f"v_lshrrev_b32 v{TMP+2}, 4, v1\n v_and_b32 v{TMP+3}, 15, v1\n v_lshlrev_b32 v{TMP+4}, 2, v{TMP+2}\n v_xor_b32 v{TMP+3}, v{TMP+3}, v{TMP+4}")
    a(f"v_mul_u32_u24 v{vZ}, 3584, v{TMP+2}\n v_lshl_add_u32 v{vZ}, v{TMP+3}, 4, v{vZ}")
    a("s_mul_i32 s46, s42, 14336\n s_lshl_b32 s47, s44, 8\n s_add_u32 s46, s46, s47")
    a(f"s_mul_i32 s47, s44, {14*8192}\n s_lshl_b32 s48, s42, 10\n s_add_u32 s47, s47, s48")
    def dma(t):
        if t >= 14: return
        slot = (t % N1)*S1
        for u in range(2):
            a(f"s_add_u32 m0, s48, {slot+u*8192}")
            if t < 7:
                a(f"s_add_u32 s49, s46, {1792+(64*t+32*u)*3584}")
                a(f"buffer_load_dwordx4 v{vZ}, s[{sWIN}:{sWIN+3}], s49 offen lds"); vm.issue(("st", t))
            else:
                a(f"s_add_u32 s49, s47, {(2*(t-7)+u)*8192}")
                a(f"buffer_load_dwordx4 v{vF}, s[{sFT}:{sFT+3}], s49 offen lds"); vm.issue(("st", t))
    a(f"s_lshl_b32 s49, s42, 3\n v_add_u32 v{TMP+2}, s49, v{TMP}")
    a(f"v_bfe_u32 v{TMP+3}, v{TMP+2}, 1, 3\n v_xor_b32 v{TMP+3}, v{TMP+3}, v{TMP+1}")
    a(f"v_mul_u32_u24 v{vW}, 896, v{TMP+2}\n v_lshl_add_u32 v{vW}, v{TMP+3}, 4, v{vW}\n v_add_u32 v{vW}, {XN}, v{vW}")
    a("s_and_b32 s84, s40, 3\n s_lshl_b32 s84, s84, 2\n s_and_b32 s85, s41, 3\n s_add_u32 s84, s84, s85")
    a("s_lshr_b32 s85, s40, 2\n s_mul_i32 s85, s85, 7\n s_lshr_b32 s86, s41, 2\n s_add_u32 s85, s85, s86")
    a("s_lshr_b32 s86, s84, 3\n s_lshl_b32 s86, s86, 4\n s_bfe_u32 s87, s84, 0x10002\n s_lshl_b32 s87, s87, 2\n s_add_u32 s86, s86, s87")
    a("s_lshr_b32 s87, s42, 2\n s_lshl_b32 s87, s87, 3\n s_add_u32 s87, s87, s86\n s_and_b32 s88, s42, 3\n s_add_u32 s87, s87, s88")
    a("s_lshl_b32 s87, s87, 6\n s_and_b32 s88, s84, 3\n s_lshl_b32 s88, s88, 4\n s_add_u32 s87, s87, s88\n s_lshl_b32 s87, s87, 12")
    a(f"v_lshrrev_b32 v{TMP+2}, 1, v{TMP}\n s_and_b32 s88, s42, 1\n s_lshl_b32 s88, s88, 2\n v_add_u32 v{TMP+2}, s88, v{TMP+2}\n v_xor_b32 v{TMP+2}, v{TMP+1}, v{TMP+2}")
    a(f"v_lshlrev_b32 v{vA2}, 12, v{TMP}\n v_lshl_add_u32 v{vA2}, v{TMP+2}, 4, v{vA2}")
    a(f"v_lshrrev_b32 v{TMP+2}, 5, v1\n v_lshlrev_b32 v{vB2}, 13, v{TMP+2}\n v_and_b32 v{TMP+2}, 31, v1\n v_lshl_add_u32 v{vB2}, v{TMP+2}, 4, v{vB2}")
    a(f"s_lshl_b32 s88, s85, 18\n s_add_u32 s88, s88, s48\n s_add_u32 s88, s88, {Z2N}")
    def pslot(T): return PERM[(T+7) % 6]
    def slot2(T): return pslot(T)*S2
    vZW = 251; vXP = 11
    a(f"v_bfe_u32 v{TMP+2}, v1, 4, 1\n v_lshlrev_b32 v{TMP+2}, 2, v{TMP+2}\n v_xor_b32 v{TMP+2}, v{TMP+2}, v{TMP+1}\n v_mul_u32_u24 v{vZW}, 3584, v{TMP}\n v_lshl_add_u32 v{vZW}, v{TMP+2}, 4, v{vZW}")
    a("s_mul_i32 s72, s42, 28672\n s_lshl_b32 s73, s85, 7\n s_add_u32 s72, s72, s73")
    a("s_lshl_b32 s73, s84, 2\n s_lshr_b32 s74, s42, 2\n s_add_u32 s73, s73, s74\n s_mul_i32 s73, s73, 28\n s_and_b32 s74, s42, 3\n s_add_u32 s73, s73, s74\n s_lshl_b32 s73, s73, 10" + (f"\n s_add_u32 s73, s73, {Z1}" if Z1 else ""))
    def dmaZ(T, other=False):
        z = T+7; o1, o2, o3 = (-4096, -28*1024, -32*3584) if other else (0, 0, 0)
        M = 0xffffffff
        for u in range(2):
            a(f"s_add_u32 m0, s48, {(slot2(T)+u*8192+o1) & M}\n s_add_u32 s49, s73, {((4*z+56*u)*1024+o2) & M}")
            a(f"buffer_load_dwordx4 v{vF}, s[{sWS}:{sWS+3}], s49 offen sc1 lds"); vm.issue(("g", T))
        a(f"s_add_u32 m0, s48, {(slot2(T)+16384+o1) & M}\n s_add_u32 s49, s72, {(64*z*3584+o3) & M}")
        a(f"buffer_load_dwordx4 v{vZW}, s[{sWIN}:{sWIN+3}], s49 offen lds"); vm.issue(("g", T))
    def dmaA(T):
        for u in range(2):
            a(f"s_add_u32 m0, s48, {slot2(T)+u*8192}\n s_add_u32 s49, s87, {T*128+u*8*4096}")
            a(f"buffer_load_dwordx4 v{vA2}, s[{sSP}:{sSP+3}], s49 offen {XA} lds"); vm.issue(("g", T))
    def dmaB(T):
        a(f"s_add_u32 m0, s48, {slot2(T)+16384}\n s_add_u32 s49, s88, {T*8192}")
        a(f"buffer_load_dwordx4 v{vF}, s[{sWS}:{sWS+3}], s49 offen {XB} lds"); vm.issue(("g", T))
    a(f"s_and_b32 s49, s42, 1\n s_lshl_b32 s49, s49, 5\n v_and_b32 v{TMP+2}, 31, v1\n v_add_u32 v{TMP+2}, s49, v{TMP+2}")
    a(f"v_bfe_u32 v{TMP+3}, v{TMP+2}, 1, 3\n v_lshrrev_b32 v{TMP+4}, 5, v1\n v_xor_b32 v{TMP+3}, v{TMP+3}, v{TMP+4}")
    a(f"v_mul_u32_u24 v{TMP+2}, 896, v{TMP+2}\n v_add_u32 v{TMP+2}, {XN}, v{TMP+2}")
    for c in range(4):
        a(f"v_xor_b32 v{TMP+4}, {2*c}, v{TMP+3}\n v_lshl_add_u32 v{vAA+c}, v{TMP+4}, 4, v{TMP+2}")
    a(f"s_and_b32 s49, s42, 6\n v_xor_b32 v{TMP+4}, s49, v{TMP+3}\n v_lshl_add_u32 v{TMP+8}, v{TMP+4}, 4, v{TMP+2}\n s_lshl_b32 s49, s44, 7\n v_add_u32 v{TMP+8}, s49, v{TMP+8}")
    a(f"v_lshrrev_b32 v{TMP+2}, 5, v1\n v_bfe_u32 v{TMP+3}, v1, 2, 2")
    a(f"v_lshl_add_u32 v{TMP+2}, v{TMP+2}, 3, v{TMP+3}")
    a(f"v_and_b32 v{TMP+6}, 1, v1\n v_lshlrev_b32 v{TMP+6}, 3, v{TMP+6}")
    a(f"v_bfe_u32 v{TMP+4}, v1, 4, 1\n v_bfe_u32 v{TMP+5}, v1, 1, 1\n v_lshl_add_u32 v{TMP+4}, v{TMP+4}, 1, v{TMP+5}")
    a(f"v_lshlrev_b32 v{TMP+5}, 2, v{TMP+3}\n v_xor_b32 v{TMP+5}, v{TMP+4}, v{TMP+5}")
    a("s_lshr_b32 s51, s42, 1\n s_lshl_b32 s51, s51, 2\n s_and_b32 s49, s42, 2\n s_lshl_b32 s49, s49, 2\n s_add_u32 s50, s49, 4")
    a(f"v_mov_b32 v{vXP}, v{TMP+8}")
    for idx, sreg in ((0, 51),):
        a(f"v_xor_b32 v{TMP+7}, s{sreg}, v{TMP+5}\n v_lshl_add_u32 v{vTR+2*idx}, v{TMP+2}, 8, v{TMP+6}\n v_lshl_add_u32 v{vTR+2*idx}, v{TMP+7}, 4, v{vTR+2*idx}\n v_add_u32 v{vTR+2*idx+1}, 0x10000, v{vTR+2*idx}")
    a(f"s_mov_b32 s52, {hex(f32bits(C2))}\n s_mov_b32 s54, 0x3f803f80")
    a(f"v_mov_b32 v{VC1}, {hex(f32bits(C1))}")
    a(f"s_lshl_b32 s55, s43, 1\n s_and_b32 s57, s42, 1\n s_add_u32 s55, s55, s57\n s_mul_i32 s55, s55, 3584\n s_add_u32 s55, s55, {ST}")
    a("s_lshl_b32 s61, s44, 9\n s_add_u32 s61, s61, s55")
    a(f"s_lshl_b32 s56, s57, 10\n s_lshr_b32 s57, s42, 1\n s_lshl_b32 s57, s57, 3\n s_add_u32 s56, s56, s57\n s_add_u32 s56, s56, {SX}")
    a("s_and_b32 s49, s42, 6\n s_cmp_eq_u32 s49, 4\n s_cselect_b32 s55, s55, 0x20000000")
    a("s_lshl_b32 s57, s43, 1\n s_and_b32 s58, s42, 1\n s_add_u32 s57, s57, s58\n s_mul_i32 s57, s57, 28\n s_lshl_b32 s58, s44, 2\n s_add_u32 s57, s57, s58\n s_lshr_b32 s58, s42, 1\n s_add_u32 s57, s57, s58\n s_lshl_b32 s57, s57, 10" + (f"\n s_add_u32 s57, s57, {Z1}" if Z1 else ""))
    a(f"s_lshl_b32 s74, s43, 3\n s_add_u32 s74, s74, s44\n s_lshl_b32 s74, s74, 7\n s_add_u32 s74, s74, {FL1}")
    a(f"s_lshl_b32 s75, s44, 18\n s_lshl_b32 s49, s43, 7\n s_add_u32 s75, s75, s49\n s_add_u32 s75, s75, {U}")
    a("s_lshl_b32 s58, s44, 1\n s_lshr_b32 s49, s42, 2\n s_add_u32 s58, s58, s49\n s_lshl_b32 s58, s58, 5")
    a("s_lshr_b32 s49, s43, 4\n s_lshl_b32 s49, s49, 4\n s_add_u32 s58, s58, s49\n s_bfe_u32 s49, s43, 0x10003\n s_lshl_b32 s49, s49, 2\n s_add_u32 s58, s58, s49")
    a("s_and_b32 s49, s42, 1\n s_lshl_b32 s49, s49, 3\n s_add_u32 s58, s58, s49\n s_lshl_b32 s58, s58, 13")
    a("s_bfe_u32 s49, s43, 0x20001\n s_lshl_b32 s49, s49, 11\n s_add_u32 s58, s58, s49\n s_and_b32 s49, s43, 1\n s_lshl_b32 s49, s49, 9\n s_add_u32 s58, s58, s49")
    a(f"s_bfe_u32 s49, s42, 0x10001\n s_lshl_b32 s49, s49, 10\n s_add_u32 s58, s58, s49\n s_add_u32 s58, s58, {Z2N}")
    a(f"s_lshl_b32 s59, s44, 5\n s_add_u32 s59, s59, s43\n s_lshl_b32 s59, s59, 7\n s_add_u32 s60, s59, {FLU}\n s_add_u32 s59, s59, {FLZ}")
    a(f"s_lshr_b32 s89, s85, 1\n s_lshl_b32 s89, s89, 12\n s_add_u32 s89, s89, {FLZ}\n s_lshl_b32 s90, s84, 11\n s_add_u32 s90, s90, {FL1}")
    a(f"v_and_b32 v{vPA}, 31, v1\n v_lshlrev_b32 v{vPA}, 7, v{vPA}")
    a(f"s_waitcnt vmcnt({vm.wait('x')})")
    stg(1); dbgt(5)
    S = TMP; DV = XF
    a("s_mov_b32 s50, 0x00003f80\n s_mov_b32 s51, 0x3f800000")
    for i in range(4): a(f"v_mov_b32 v{S+i}, 0")
    for i in range(28): a(f"v_dot2_f32_bf16 v{S+(i&3)}, v{BF+i}, s54, v{S+(i&3)}")
    dma(0)
    a(f"v_add_f32 v{S}, v{S}, v{S+1}\n v_add_f32 v{S+2}, v{S+2}, v{S+3}\n v_add_f32 v{S}, v{S}, v{S+2}")
    red8(a, S)
    vM, vMB, vNM = TMP+4, TMP+5, TMP+6
    a(f"v_mul_f32 v{vM}, {hex(f32bits(1/448))}, v{S}")
    a(f"v_cvt_pk_bf16_f32 v{vMB}, 0, v{vM}\n v_sub_f32 v{vNM}, 0, v{vMB}")
    for i in range(4): a(f"v_mov_b32 v{S+i}, 0")
    for i in range(0, 28, 4):
        for u in range(4):
            d = DV+2*(i+u)
            a(f"v_dot2_f32_bf16 v{d}, v{BF+i+u}, s50, v{vNM}\n v_dot2_f32_bf16 v{d+1}, v{BF+i+u}, s51, v{vNM}")
        if i >= 4:
            for u in range(4):
                d = DV+2*(i-4+u); s_ = S+2*(u & 1)
                a(f"v_pk_fma_f32 v[{s_}:{s_+1}], v[{d}:{d+1}], v[{d}:{d+1}], v[{s_}:{s_+1}]")
        if i == 8: dma(1)
        if i == 20: dma(2)
    for u in range(4):
        d = DV+2*(24+u); s_ = S+2*(u & 1)
        a(f"v_pk_fma_f32 v[{s_}:{s_+1}], v[{d}:{d+1}], v[{d}:{d+1}], v[{s_}:{s_+1}]")
    a(f"v_add_f32 v{S}, v{S}, v{S+1}\n v_add_f32 v{S+2}, v{S+2}, v{S+3}\n v_add_f32 v{S}, v{S}, v{S+2}")
    for i in range(16): a(f"v_cvt_pk_bf16_f32 v{DV+i}, 0, v{DV+i}")
    red8(a, S)
    vRS = TMP+6; t = S+2
    a(f"v_sub_f32 v{t}, v{vM}, v{vMB}\n v_mul_f32 v{t}, v{t}, v{t}\n v_mov_b32 v{t+1}, {hex(f32bits(1.0/448))}\n v_fma_f32 v{t}, v{S}, v{t+1}, -v{t}\n v_max_f32 v{t}, 0, v{t}")
    n0 = len(a.lines); var_to_rs(a, t, vRS); a(f"v_mov_b32 v{vRS+1}, v{vRS}"); chain = a.lines[n0:]; del a.lines[n0:]
    for i in range(16, 56):
        a(f"v_cvt_pk_bf16_f32 v{DV+i}, 0, v{DV+i}")
        if chain and i % 3 == 0: a(chain.pop(0))
    for l in chain: a(l)
    dma(3)
    for i in range(0, 28, 4):
        for u in range(4):
            d = DV+2*(i+u); a(f"v_pk_mul_f32 v[{d}:{d+1}], v[{d}:{d+1}], v[{vRS}:{vRS+1}]")
        for u in range(4):
            d = DV+2*(i+u); a(f"v_cvt_pk_bf16_f32 v{BF+i+u}, v{d}, v{d+1}")
        a(f"ds_write_b128 v{vW}, v[{BF+i}:{BF+i+3}] offset:{32*i}")
    stg(2)
    dma(4); touch2()
    a("s_waitcnt lgkmcnt(0)")
    def capture(fn, *args):
        n0 = len(a.lines); fn(*args); out = a.lines[n0:]; del a.lines[n0:]; return out
    def trbase(idx, t):
        slot = (t % N1)*S1
        return (vTR+2*idx+(1 if slot >= 65536 else 0), slot-(65536 if slot >= 65536 else 0))
    def reads1(t):
        b = BF+16*(t & 1); vb, so = trbase(0, t)
        for k in range(4):
            c16 = 4*t+k
            a(f"ds_read_b128 v[{XF+4*c16}:{XF+4*c16+3}], v{vAA+(c16&3)} offset:{(c16>>2)*128}")
            for tt in range(2):
                a(f"ds_read_b64_tr_b16 v[{b+4*k+2*tt}:{b+4*k+2*tt+1}], v{vb} offset:{so+k*4096+tt*1024}")
    def mfma1(t):
        b = BF+16*(t & 1)
        for k in range(4):
            c16 = 4*t+k
            cin = "0" if c16 == 0 else f"v[{ACC}:{ACC+15}]"
            a(f"v_mfma_f32_32x32x16_bf16 v[{ACC}:{ACC+15}], v[{b+4*k}:{b+4*k+3}], v[{XF+4*c16}:{XF+4*c16+3}], {cin}")
    def body(mf, rd, issue, bgq=None, nbg=0):
        n = max(len(mf), 1); h = (len(rd)+1)//2 if n > 1 else len(rd)
        for i in range(n):
            if i < len(mf): a(mf[i])
            if i == 0:
                for l in rd[:h]: a(l)
            if i == 1:
                for l in rd[h:]: a(l)
            if i == min(2, n-1): issue()
            if bgq:
                for _ in range(nbg):
                    if bgq: a(bgq.pop(0))
    for t in range(7):
        n = vm.wait(('st', t))
        if t == 4: n = min(n, vm.wait("xn"))
        a(f"s_waitcnt vmcnt({n})")
        a("s_barrier")
        stg(3+t)
        if t == 0:
            a(f"ds_read_b128 v[{TMP}:{TMP+3}], v{vXP}")
            a(f"buffer_load_dword v{vPOLL}, v{vZERO}, s[{sDBG}:{sDBG+3}], 0 offen sc1"); vm.issue("nonce")
        if t == 4:
            get_nonce("L_NON"); set_flag("L_FX", 74)
        if t == 1:
            a(f"buffer_store_dwordx4 v[{TMP}:{TMP+3}], v{vF}, s[{sWS}:{sWS+3}], s57 offen sc1"); vm.issue("xn")
        body(capture(mfma1, t-1) if t > 0 else [], capture(reads1, t), lambda: dma(t+D))
        a("s_waitcnt lgkmcnt(0)")
    mfma1(6)
    dbgt(6)
    vPX = TMP+22
    a(f"v_and_b32 v{vPX}, 7, v1\n v_min_u32 v{vPX}, 6, v{vPX}\n v_and_b32 v{vPX+1}, 8, v1\n v_add_u32 v{vPX}, v{vPX}, v{vPX+1}\n v_lshlrev_b32 v{vPX}, 7, v{vPX}")
    NS_ = WSP_K2-WSP_K1; NLN = NS_*2048; PERW = -(-NLN//224)
    MATCH = int(os.environ.get("MATCH", "1"))
    if MATCH:
        a("s_bfe_u32 s49, s40, 0x10001\n s_lshl_b32 s49, s49, 2\n s_lshr_b32 s50, s40, 2\n s_lshl_b32 s50, s50, 1\n s_add_u32 s49, s49, s50\n s_and_b32 s50, s40, 1\n s_add_u32 s49, s49, s50")
        if MATCH == 2: a("s_bfe_u32 s50, s42, 0x10001\n s_lshl_b32 s50, s50, 1\n s_xor_b32 s49, s49, s50")
    else: a("s_mov_b32 s49, s40")
    a(f"s_mul_i32 s49, s49, 28\n s_add_u32 s49, s49, s41\n s_mul_i32 s49, s49, {PERW}\n v_and_b32 v{TMP}, 127, v0\n v_add_u32 v{TMP}, s49, v{TMP}")
    assert PERW == 128
    if MATCH == 2: PERW = 256
    MG = (2**32+NS_-1)//NS_
    a(f"s_mov_b32 s49, {MG}\n v_mul_hi_u32 v{TMP+1}, v{TMP}, s49\n v_mul_u32_u24 v{TMP+2}, {NS_}, v{TMP+1}\n v_sub_u32 v{TMP+2}, v{TMP}, v{TMP+2}")
    a(f"v_lshlrev_b32 v{TMP+1}, 12, v{TMP+1}\n v_lshl_add_u32 v{TMP+1}, v{TMP+2}, 7, v{TMP+1}")
    a(f"v_cmp_gt_u32 vcc, {PERW}, v0\n v_mov_b32 v{TMP+2}, 0x10000000\n v_cndmask_b32 v{TMP+1}, v{TMP+2}, v{TMP+1}, vcc")
    a(f"buffer_load_dword v{VPF+2}, v{TMP+1}, s[{sSP}:{sSP+3}], 0 offen offset:{128*WSP_K1}"); vm.issue("pf")
    srd(a, 92, 82, 896*896)
    a("s_cmp_lg_u32 s42, 7\n s_cbranch_scc1 L_WO1")
    pc_srd(a, 92, "TAB_TT", 7*56*1024)
    a("L_WO1:")
    a("s_mul_i32 s49, s40, 28\n s_add_u32 s49, s49, s41\n s_cmp_eq_u32 s42, 7\n s_cselect_b32 s50, 14, 28\n s_mul_i32 s49, s49, s50\n s_lshl_b32 s49, s49, 7\n s_cmp_lt_u32 s42, 6\n s_cselect_b32 s50, 0, s50")
    a(f"v_lshlrev_b32 v{TMP+1}, 7, v1\n v_cmp_gt_u32 vcc, s50, v1\n v_cndmask_b32 v{TMP+1}, v{TMP+2}, v{TMP+1}, vcc")
    a(f"buffer_load_dword v{VPF+3}, v{TMP+1}, s[92:95], s49 offen"); vm.issue("pf")
    pc_srd(a, sTT, "TAB_TT", 7*56*1024)
    a(f"s_mov_b32 s53, s52\n v_mov_b32 v{VC1+1}, v{VC1}")
    def gelu_pk(acc, tmp):
        P = lambda b, i: f"v[{b+2*i}:{b+2*i+1}]"
        for i in range(16): a(f"v_cvt_pk_bf16_f32 v{acc+i}, 0, v{acc+i}")
        for i in range(8): a(f"v_pk_mul_f32 {P(tmp,i)}, {P(acc,i)}, {P(acc,i)}")
        for i in range(8): a(f"v_pk_fma_f32 {P(tmp,i)}, {P(tmp,i)}, s[52:53], v[{VC1}:{VC1+1}]")
        for i in range(8): a(f"v_pk_mul_f32 {P(tmp,i)}, {P(tmp,i)}, {P(acc,i)}")
        for i in range(16): a(f"v_exp_f32 v{tmp+i}, v{tmp+i}")
        for i in range(8): a(f"v_pk_add_f32 {P(tmp,i)}, {P(tmp,i)}, 1.0 op_sel_hi:[1,0]")
        for i in range(16): a(f"v_rcp_f32 v{tmp+i}, v{tmp+i}")
        for i in range(8): a(f"v_pk_mul_f32 {P(tmp,i)}, {P(tmp,i)}, {P(acc,i)}")
        for i in range(16): a(f"v_cvt_pk_bf16_f32 v{acc+i}, 0, v{tmp+i}")
    Z2F = ACC
    gelu_pk(ACC, TMP)
    P_ = lambda b, i: f"v[{b+2*i}:{b+2*i+1}]"
    for i in range(4): a(f"v_pk_add_f32 {P_(TMP,i)}, {P_(ACC,i)}, {P_(ACC,i+4)}")
    for i in range(2): a(f"v_pk_add_f32 {P_(TMP,i)}, {P_(TMP,i)}, {P_(TMP,i+2)}")
    a(f"v_pk_add_f32 {P_(TMP,0)}, {P_(TMP,0)}, {P_(TMP,1)}\n v_add_f32 v{TMP}, v{TMP}, v{TMP+1}")
    halfsum(a, TMP, TMP+1)
    a(f"v_mul_f32 v{TMP+18}, {hex(f32bits(-1/32))}, v{TMP}")
    for i in range(8): a(f"v_pk_add_f32 {P_(TMP,i)}, {P_(ACC,i)}, v[{TMP+18}:{TMP+19}] op_sel_hi:[1,0]")
    for i in range(2): a(f"v_pk_mul_f32 {P_(PS,i)}, {P_(TMP,i)}, {P_(TMP,i)}")
    for i in range(2, 8): a(f"v_pk_fma_f32 {P_(PS,i&1)}, {P_(TMP,i)}, {P_(TMP,i)}, {P_(PS,i&1)}")
    a(f"v_pk_add_f32 {P_(PS,0)}, {P_(PS,0)}, {P_(PS,1)}\n v_add_f32 v{TMP+9}, v{PS}, v{PS+1}\n v_sub_f32 v{TMP+8}, 0, v{TMP+18}")
    halfsum(a, TMP+9, TMP+1)
    a(f"v_and_b32 v{TMP+10}, 31, v1\n v_lshlrev_b32 v{TMP+10}, 5, v{TMP+10}\n v_add_u32 v{TMP+10}, s56, v{TMP+10}")
    a(f"ds_write_b64 v{TMP+10}, v[{TMP+8}:{TMP+9}]")
    a(f"s_cmp_lg_u32 s42, 6\n s_cbranch_scc1 L_PX\n buffer_load_dword v{vPOLL}, v{vPX}, s[{sWS}:{sWS+3}], s90 offen sc1\nL_PX:")
    npx = len(vm.ops)
    a(f"v_and_b32 v{TMP+21}, 31, v1\n v_lshlrev_b32 v{TMP+21}, 4, v{TMP+21}\n v_lshrrev_b32 v{TMP+20}, 5, v1\n v_mul_u32_u24 v{TMP+20}, 1536, v{TMP+20}\n v_add_u32 v{TMP+20}, v{TMP+20}, v{TMP+21}\n v_add_u32 v{TMP+21}, 3072, v{TMP+21}")
    a("s_waitcnt lgkmcnt(0)")
    G = PS; ACC3 = ACC
    def is45(label): a(f"s_and_b32 s49, s42, 6\n s_cmp_lg_u32 s49, 4\n s_cbranch_scc1 {label}")
    def gloads():
        for i in range(4):
            a(f"buffer_load_dwordx4 v[{G+4*i}:{G+4*i+3}], v{TMP+20 if i < 3 else TMP+21}, s[{sWS}:{sWS+3}], s55 offen offset:{(i % 3)*512} sc1")
    def norm_job():
        A0 = TMP; T3 = PS
        a(f"s_and_b32 s29, s42, 1\n s_lshl_b32 s29, s29, 8\n s_add_u32 s29, s29, {SX+2048}\n v_and_b32 v{A0}, 31, v1\n v_lshlrev_b32 v{A0}, 3, v{A0}\n v_add_u32 v{A0}, s29, v{A0}")
        a(f"ds_read_b64 v[{A0+2}:{A0+3}], v{A0}")
        a("s_waitcnt lgkmcnt(0)")
        for i in range(8): a(f"v_pk_add_f32 {P_(Z2F,i)}, {P_(Z2F,i)}, v[{A0+2}:{A0+3}] op_sel_hi:[1,0]")
        for i in range(16): a(f"v_cvt_pk_bf16_f32 v{Z2F+i}, 0, v{Z2F+i}")
        for i in range(8): a(f"v_pk_mul_f32 {P_(Z2F,i)}, {P_(Z2F,i)}, v[{A0+2}:{A0+3}] op_sel:[0,1]")
        for p in range(8): a(f"v_cvt_pk_bf16_f32 v{ZP+p}, v{Z2F+2*p}, v{Z2F+2*p+1}")
    def norm_job2():
        A0 = TMP; T3 = PS
        a(f"s_lshl_b32 s29, s42, 11\n s_add_u32 s29, s29, {TSC}")
        a(f"v_and_b32 v{A0}, 31, v1\n v_lshlrev_b32 v{A0}, 6, v{A0}\n v_lshrrev_b32 v{A0+1}, 5, v1\n v_lshl_add_u32 v{A0}, v{A0+1}, 3, v{A0}\n v_add_u32 v{A0}, s29, v{A0}")
        a(f"v_bfe_u32 v{A0+2}, v1, 1, 2\n v_lshlrev_b32 v{A0+2}, 4, v{A0+2}")
        for j in range(4):
            a(f"v_xor_b32 v{A0+4+j}, {16*j}, v{A0+2}\n v_add_u32 v{A0+4+j}, v{A0+4+j}, v{A0}")
        for j in range(4): a(f"ds_write_b64 v{A0+4+j}, v[{ZP+2*j}:{ZP+2*j+1}]")
        a(f"v_bfe_u32 v{A0+2}, v1, 2, 2\n v_lshl_add_u32 v{A0+1}, v{A0+1}, 3, v{A0+2}\n v_lshlrev_b32 v{A0+1}, 6, v{A0+1}\n v_and_b32 v{A0+3}, 1, v1\n v_lshl_add_u32 v{A0+1}, v{A0+3}, 3, v{A0+1}\n v_add_u32 v{A0+1}, s29, v{A0+1}")
        a(f"v_bfe_u32 v{A0+3}, v1, 4, 1\n v_bfe_u32 v{A0+8}, v1, 1, 1\n v_lshl_add_u32 v{A0+3}, v{A0+3}, 1, v{A0+8}\n v_lshrrev_b32 v{A0+2}, 1, v{A0+2}\n v_xor_b32 v{A0+3}, v{A0+3}, v{A0+2}")
        a(f"v_lshl_add_u32 v{A0+8}, v{A0+3}, 4, v{A0+1}\n v_xor_b32 v{A0+3}, 2, v{A0+3}\n v_lshl_add_u32 v{A0+9}, v{A0+3}, 4, v{A0+1}")
        for c in range(2):
            for tt in range(2): a(f"ds_read_b64_tr_b16 v[{T3+4*c+2*tt}:{T3+4*c+2*tt+1}], v{A0+8+tt} offset:{c*1024+tt*256}")
        a("s_add_u32 s28, s58, 16384\n s_waitcnt lgkmcnt(0)")
    def check_stats():
        is45("L_NOCHK")
        a("s_mov_b32 s50, 0\nL_CHK:")
        a(f"v_cmp_eq_u32 vcc, s63, v{G+1}")
        for i in range(1, 8): a(f"v_cmp_eq_u32 s[30:31], s63, v{G+1+2*i}\n s_and_b64 vcc, vcc, s[30:31]")
        a("s_add_u32 s50, s50, 1\n s_cmp_eq_u64 vcc, exec\n s_cbranch_scc1 L_CHKOK")
        a(f"s_cmp_ge_u32 s50, {SPIN}\n s_cbranch_scc1 L_CHKOK")
        a("s_sleep 2"); gloads()
        a("s_waitcnt vmcnt(0)\n s_branch L_CHK\nL_CHKOK:")
        B0 = TMP
        a(f"v_mul_f32 v{B0}, 0.5, v{G+12}\n v_mul_f32 v{B0+1}, 0.5, v{G+14}")
        for i in range(3): a(f"v_add_f32 v{B0}, v{B0}, v{G+4*i}\n v_add_f32 v{B0+1}, v{B0+1}, v{G+4*i+2}")
        halfsum(a, B0, B0+2); halfsum(a, B0+1, B0+2)
        a(f"v_mul_f32 v{B0}, {hex(f32bits(1/7))}, v{B0}")
        a(f"v_sub_f32 v{B0+4}, v{G+12}, v{B0}\n v_mul_f32 v{B0+3}, v{B0+4}, v{B0+4}\n v_mul_f32 v{B0+3}, 0.5, v{B0+3}")
        for i in range(3): a(f"v_sub_f32 v{B0+4}, v{G+4*i}, v{B0}\n v_fmac_f32 v{B0+3}, v{B0+4}, v{B0+4}")
        halfsum(a, B0+3, B0+2)
        a(f"v_mov_b32 v{B0+2}, 0x43000000\n v_fma_f32 v{B0+1}, v{B0+3}, v{B0+2}, v{B0+1}")
        a(f"v_mul_f32 v{B0+1}, {hex(f32bits(1/896))}, v{B0+1}")
        var_to_rs(a, B0+1, B0+5)
        a(f"v_cvt_pk_bf16_f32 v{B0+4}, 0, v{B0}\n v_sub_f32 v{B0+4}, 0, v{B0+4}")
        a(f"s_and_b32 s49, s42, 1\n s_lshl_b32 s49, s49, 8\n s_add_u32 s49, s49, {SX+2048}\n v_and_b32 v{B0+6}, 31, v1\n v_lshlrev_b32 v{B0+6}, 3, v{B0+6}\n v_add_u32 v{B0+6}, s49, v{B0+6}")
        a(f"ds_write_b64 v{B0+6}, v[{B0+4}:{B0+5}]\n s_waitcnt lgkmcnt(0)")
        a("L_NOCHK:")
    a("s_cmp_ge_u32 s42, 4\n s_cbranch_scc1 L_P2Z")
    vm_save = list(vm.ops); vm_end = {}
    pend = stg.pending
    EARLY = {11: [-5], 12: [-4]}; EARLY[CX_T] = [-7, -6]+EARLY.get(CX_T, []); assert CX_T <= 11
    HB = [BF+16, PS, BF]
    assert HB[(2*(CHK_T-7)-1) % 3] != PS
    ACF = ACC2
    for path in ("F", "Z"):
        vm.ops = list(vm_save); stg.pending = pend
        if path == "Z": a("L_P2Z:")
        else:
            a(f"s_lshr_b32 s49, s42, 1\n s_lshl_b32 s49, s49, 12\n v_add_u32 v{vTR+2}, s49, v{vF}\n v_add_u32 v{vTR+3}, 0x10000, v{vTR+2}")
        def readsF(hh):
            b = HB[hh % 3]; vb, so = trbase(1, 7+(hh >> 1))
            return [f"ds_read_b128 v[{b+4*f}:{b+4*f+3}], v{vb} offset:{so+(hh & 1)*8192+f*1024}" for f in range(4)]
        def mfmaF(hh):
            if hh < 0: return []
            b = HB[hh % 3]; out = []
            for f in range(4):
                c16 = 2*hh+(f >> 1)
                cin = "0" if (hh == 0 and f == 0) else f"v[{ACF}:{ACF+15}]"
                out.append(f"v_mfma_f32_32x32x16_bf16 v[{ACF}:{ACF+15}], v[{XF+4*c16}:{XF+4*c16+3}], v[{b+4*f}:{b+4*f+3}], {cin}")
            return out
        for t in range(7, 14):
            n = vm.wait(("st", t))
            if t == CHK_T and path == "Z": n = min(n, vm.wait("gl"))
            a(f"s_waitcnt vmcnt({n})")
            if t == CHK_T and path == "Z": check_stats()
            if t == CX_T and path == "Z":
                a(f"s_cmp_lg_u32 s42, 6\n s_cbranch_scc1 L_CX_OK\n s_waitcnt vmcnt({len(vm.ops)-npx})\n v_mov_b32 v{vPA}, v{vPX}")
                poll_check("L_CX", 90, vPOLL, covered=True, allwaves=True)
            a("s_barrier")
            stg(3+t)
            if t == 7 and path == "Z":
                is45("L_NOSIG")
                B0 = TMP
                a(f"v_and_b32 v{B0+10}, 31, v1\n v_lshlrev_b32 v{B0+11}, 5, v{B0+10}\n s_sub_u32 s49, s56, 16\n v_add_u32 v{B0+11}, s49, v{B0+11}")
                a(f"ds_read_b128 v[{B0}:{B0+3}], v{B0+11}\n ds_read_b128 v[{B0+4}:{B0+7}], v{B0+11} offset:16\n s_waitcnt lgkmcnt(0)")
                a(f"v_add_f32 v{B0+8}, v{B0}, v{B0+2}\n v_add_f32 v{B0+9}, v{B0+4}, v{B0+6}\n v_add_f32 v{B0+8}, v{B0+8}, v{B0+9}\n v_mul_f32 v{B0+12}, 0.25, v{B0+8}")
                a(f"v_add_f32 v{B0+14}, v{B0+1}, v{B0+3}\n v_add_f32 v{B0+9}, v{B0+5}, v{B0+7}\n v_add_f32 v{B0+14}, v{B0+14}, v{B0+9}\n v_mov_b32 v{B0+8}, 0")
                for i in range(4): a(f"v_sub_f32 v{B0+9}, v{B0+2*i}, v{B0+12}\n v_fmac_f32 v{B0+8}, v{B0+9}, v{B0+9}")
                a(f"v_mov_b32 v{B0+9}, 0x42000000\n v_fma_f32 v{B0+14}, v{B0+8}, v{B0+9}, v{B0+14}")
                a(f"v_mov_b32 v{B0+13}, s63\n v_mov_b32 v{B0+15}, s63\n v_lshlrev_b32 v{B0+10}, 4, v{B0+10}")
                a(f"buffer_store_dwordx4 v[{B0+12}:{B0+15}], v{B0+10}, s[{sWS}:{sWS+3}], s61 offen sc1")
                a("s_nop 1\nL_NOSIG:")
            def issue():
                if t == LD_T and path == "Z":
                    gloads()
                    for i in range(4): vm.issue("gl")
                dma(t+D)
                if path == "Z":
                    for T_ in EARLY.get(t, []): dmaZ(T_); dmaZ(T_, True)
            if t == CHK_T:
                norm_job(); norm_job2()
                for q in range(2):
                    a(f"buffer_store_dwordx4 v[{PS+4*q}:{PS+4*q+3}], v{vB2}, s[{sWS}:{sWS+3}], s{58 if q == 0 else 28} offen sc1"); vm.issue("z2n")
            if path == "Z": issue()
            else:
                hh = 2*(t-7)
                body(mfmaF(hh-1), readsF(hh)+readsF(hh+1), issue)
                a("s_waitcnt lgkmcnt(4)")
                for l in mfmaF(hh): a(l)
                a("s_waitcnt lgkmcnt(0)")
        if path == "F":
            for l in mfmaF(13): a(l)
            a(f"v_and_b32 v{TMP}, 31, v1\n s_lshr_b32 s49, s42, 1\n s_lshl_b32 s49, s49, 5\n v_add_u32 v{TMP}, s49, v{TMP}")
            a(f"v_mul_u32_u24 v{TMP}, {UXP}, v{TMP}\n v_lshrrev_b32 v{TMP+1}, 5, v1\n v_lshl_add_u32 v{TMP}, v{TMP+1}, 6, v{TMP}")
            a(f"s_and_b32 s49, s42, 1\n s_lshl_b32 s49, s49, 3\n s_add_u32 s49, s49, {UX}\n v_add_u32 v{TMP}, s49, v{TMP}")
            a("s_branch L_J1")
        vm_end[path] = list(vm.ops)
    vm.fork(vm_end["F"], vm_end["Z"])
    a("L_J1:")
    dbgt(7)
    T = 100; ZR = 88; BS = 96; FR = 20; AC = 104; Z1F = 124; GT = 140; ACZ = 124
    vTR2 = 5; vWA = 8; vZA, vZB = 84, 92
    a("s_lshr_b32 s43, s42, 1\n s_and_b32 s44, s42, 1")
    a(f"v_bfe_u32 v{T}, v1, 2, 2\n v_lshrrev_b32 v{T+1}, 5, v1\n v_bfe_u32 v{T+2}, v1, 4, 1\n v_bfe_u32 v{T+3}, v1, 1, 1\n v_lshl_add_u32 v{T+2}, v{T+2}, 1, v{T+3}")
    a(f"v_lshrrev_b32 v{T+3}, 1, v{T}\n v_lshlrev_b32 v{T+3}, 2, v{T+3}\n v_xor_b32 v{T+2}, v{T+2}, v{T+3}\n s_lshl_b32 s46, s44, 2\n v_xor_b32 v{T+2}, s46, v{T+2}")
    a(f"v_and_b32 v{T+3}, 1, v1\n v_lshlrev_b32 v{T+3}, 3, v{T+3}\n v_lshl_add_u32 v{T+3}, v{T}, 7, v{T+3}\n v_lshl_add_u32 v{vZA}, v{T+2}, 4, v{T+3}\n v_lshl_add_u32 v{vZA}, v{T+1}, 10, v{vZA}")
    a(f"s_lshl_b32 s46, s43, 12\n v_add_u32 v{vZB}, s46, v{vF}")
    for b in (vZA, vZB): a(f"v_add_u32 v{b+1}, {2*S2}, v{b}\n v_add_u32 v{b+2}, {4*S2}, v{b}")
    a("s_cmp_ge_u32 s42, 4\n s_cbranch_scc1 L_NOUX")
    for r in range(4):
        a(f"v_cvt_pk_f16_f32 v{TMP+2+2*r}, v{ACF+r}, v{ACF+4+r}\n v_cvt_pk_f16_f32 v{TMP+3+2*r}, v{ACF+8+r}, v{ACF+12+r}")
        a(f"ds_write_b64 v{TMP}, v[{TMP+2+2*r}:{TMP+3+2*r}] offset:{16*r}")
    a("s_waitcnt lgkmcnt(0)\nL_NOUX:")
    def win(Tg): sl = pslot(Tg); return sl >> 1, (sl & 1)*S2
    def rdZ(Tg):
        b = FR+32*(Tg & 1); w_, so = win(Tg); out = []
        for k in range(4):
            out += [f"ds_read_b64_tr_b16 v[{b+8*k+2*tt}:{b+8*k+2*tt+1}], v{vZA+w_} offset:{so+16384+k*2048+tt*512}" for tt in range(2)]
            out.append(f"ds_read_b128 v[{b+8*k+4}:{b+8*k+7}], v{vZB+w_} offset:{so+k*1024}")
        return out
    def mfZ(Tg):
        b = FR+32*(Tg & 1)
        return [f"v_mfma_f32_32x32x16_bf16 v[{ACZ}:{ACZ+15}], v[{b+8*k}:{b+8*k+3}], v[{b+8*k+4}:{b+8*k+7}], " + ("0" if (Tg == -7 and k == 0) else f"v[{ACZ}:{ACZ+15}]") for k in range(4)]
    def p2_setup():
        a("s_lshl_b32 s45, s84, 2\n s_add_u32 s45, s45, s43\n s_mul_i32 s45, s45, 56\n s_lshl_b32 s46, s85, 2\n s_add_u32 s45, s45, s46\n s_lshl_b32 s46, s44, 1\n s_add_u32 s45, s45, s46\n s_lshl_b32 s45, s45, 10")
        a(f"s_lshl_b32 s46, s44, 10\n v_add_u32 v{vTR2}, s46, v{vF}")
        a(f"v_add_u32 v{vTR2+1}, {2*S2}, v{vTR2}\n v_add_u32 v{vTR2+2}, {4*S2}, v{vTR2}")
        a(f"v_and_b32 v{T}, 31, v1\n s_lshl_b32 s46, s43, 5\n v_add_u32 v{T}, s46, v{T}")
        a(f"v_bfe_u32 v{T+1}, v{T}, 1, 3\n v_lshrrev_b32 v{T+2}, 5, v1\n v_xor_b32 v{T+1}, v{T+1}, v{T+2}\n v_lshlrev_b32 v{T}, 7, v{T}")
        for k in range(4):
            a(f"v_xor_b32 v{T+2}, {2*k}, v{T+1}\n v_lshl_add_u32 v{vWA+k}, v{T+2}, 4, v{T}")
            a(f"v_add_u32 v{vWA+4+k}, {2*S2}, v{vWA+k}\n v_add_u32 v{vWA+8+k}, {4*S2}, v{vWA+k}")
    for gi in range(7):
        Tg = gi-7
        n = vm.wait(("g", Tg))
        if gi == 4: n = min(n, vm.wait("u"))
        if gi == FZ_G: n = min(n, vm.wait("z2n"))
        a(f"s_waitcnt vmcnt({n})")
        a("s_barrier")
        stg(17+gi)
        if gi == 4: set_flag("L_FU", 60)
        if gi == FZ_G: set_flag("L_FZ", 59)
        if gi == 0:
            a(f"v_lshrrev_b32 v{TMP+12}, 3, v0\n v_and_b32 v{TMP+13}, 7, v0")
            a(f"v_mul_u32_u24 v{TMP+14}, {UXP}, v{TMP+12}\n v_lshl_add_u32 v{TMP+14}, v{TMP+13}, 4, v{TMP+14}\n v_add_u32 v{TMP+14}, {UX}, v{TMP+14}")
            a(f"ds_read_b128 v[{TMP+16}:{TMP+19}], v{TMP+14}")
            a(f"v_lshlrev_b32 v{TMP+12}, 12, v{TMP+12}\n v_lshl_add_u32 v{TMP+12}, v{TMP+13}, 4, v{TMP+12}")
        if gi == 0: bgq = []
        if gi == 2: bgq = capture(p2_setup)
        def issue():
            if gi == 0: dmaZ(-3)
            Tn = Tg+D
            if Tn < 0: dmaZ(Tn)
            else: dmaA(Tn)
        body(mfZ(Tg-1) if gi > 0 else [], rdZ(Tg), issue, bgq, 3)
        if gi == 6:
            for l in bgq: a(l)
        a("s_waitcnt lgkmcnt(0)")
        if gi == 0:
            a(f"buffer_store_dwordx4 v[{TMP+16}:{TMP+19}], v{TMP+12}, s[{sWS}:{sWS+3}], s75 offen sc1"); vm.issue("u")
    for l in mfZ(-1): a(l)
    stg(24)
    def gelu_z1(): gelu_pk(ACZ, TMP)
    a("s_cmp_eq_u32 s42, 0\n s_cbranch_scc1 L_G0")
    gelu_z1()
    a("L_G0:")
    poll_pipe("L_CZ", 89, 240, gap=2)
    a("s_barrier")
    stg(25); dbgt(8)
    for Tg in range(D): dmaB(Tg)
    a("s_cmp_lg_u32 s42, 0\n s_cbranch_scc1 L_G1")
    gelu_z1()
    a("L_G1:")
    n_p3 = len(a.lines)
    vB3, vY3, vO3, XR = 150, 151, 152, 156
    srd(a, sWO, 82, 896*896)
    a("s_lshl_b32 s51, s40, 2\n s_and_b32 s52, s41, 3\n s_add_u32 s51, s51, s52\n s_lshr_b32 s52, s41, 2")
    a("s_lshr_b32 s53, s51, 4\n s_lshl_b32 s53, s53, 4\n s_bfe_u32 s54, s51, 0x10003\n s_lshl_b32 s54, s54, 2\n s_add_u32 s53, s53, s54")
    a(f"v_lshrrev_b32 v{T}, 3, v1\n v_and_b32 v{T+1}, 7, v1\n v_bfe_u32 v{T+2}, v1, 4, 1\n v_lshlrev_b32 v{T+2}, 2, v{T+2}\n v_xor_b32 v{T+2}, v{T+1}, v{T+2}")
    a(f"v_mul_u32_u24 v{vB3}, 896, v{T}\n v_lshl_add_u32 v{vO3}, v{T+1}, 4, v{vB3}\n v_lshl_add_u32 v{vB3}, v{T+2}, 4, v{vB3}")
    a(f"v_lshrrev_b32 v{T+1}, 2, v{T+2}\n v_and_b32 v{T+3}, 3, v{T+2}\n v_lshl_add_u32 v{T+1}, v{T+1}, 3, v{T+3}\n v_lshlrev_b32 v{vY3}, 12, v{T}\n v_lshl_add_u32 v{vY3}, v{T+1}, 4, v{vY3}")
    a(f"s_lshl_b32 s54, s51, 1\n s_lshr_b32 s55, s42, 2\n s_add_u32 s54, s54, s55\n s_mul_i32 s54, s54, 56\n s_and_b32 s55, s42, 3\n s_add_u32 s54, s54, s55\n s_lshl_b32 s54, s54, 10\n s_add_u32 s54, s54, {H}")
    a("s_mul_i32 s55, s42, 7168\n s_lshl_b32 s56, s52, 7\n s_add_u32 s55, s55, s56")
    a(f"s_lshl_b32 s56, s42, 15\n s_and_b32 s57, s51, 7\n s_lshl_b32 s57, s57, 9\n s_add_u32 s56, s56, s57\n s_lshl_b32 s57, s53, 4\n s_add_u32 s56, s56, s57\n s_add_u32 s56, s56, {YT}")
    a("s_mul_i32 s57, s52, 56\n s_add_u32 s57, s57, s42\n s_lshl_b32 s57, s57, 10")
    a("s_lshr_b32 s58, s42, 2\n s_lshl_b32 s58, s58, 3\n s_add_u32 s58, s58, s53\n s_and_b32 s59, s42, 3\n s_add_u32 s58, s58, s59\n s_lshl_b32 s58, s58, 6")
    a("s_and_b32 s59, s51, 7\n s_lshl_b32 s59, s59, 3\n s_add_u32 s58, s58, s59\n s_mul_i32 s58, s58, 896\n s_lshl_b32 s59, s52, 7\n s_add_u32 s58, s58, s59")
    a(f"s_lshl_b32 s59, s84, 11\n s_lshl_b32 s61, s85, 7\n s_add_u32 s59, s59, s61\n s_add_u32 s59, s59, {FLH}")
    a(f"s_lshr_b32 s61, s51, 1\n s_lshl_b32 s61, s61, 11\n s_add_u32 s61, s61, {FLH}\n s_mov_b32 s62, {FLY}")
    p3_setup = a.lines[n_p3:]; del a.lines[n_p3:]
    blk = {}
    free = []
    def unit(kind, i):
        b = free.pop(0); blk[(kind, i)] = b
        a(f"s_add_u32 m0, s48, {b*8192}")
        if kind == "T":
            a(f"s_add_u32 s49, s57, {i*8192}\n buffer_load_dwordx4 v{vF}, s[{sTT}:{sTT+3}], s49 offen lds")
        elif kind == "W":
            a(f"s_add_u32 s49, s55, {64*i*896}\n buffer_load_dwordx4 v{vB3}, s[{sWO}:{sWO+3}], s49 offen lds")
        elif kind == "Y":
            a(f"s_add_u32 s49, s56, {i*64*4096}\n buffer_load_dwordx4 v{vY3}, s[{sWS}:{sWS+3}], s49 offen sc1 lds")
        else:
            a(f"s_add_u32 s49, s54, {4*i*1024}\n buffer_load_dwordx4 v{vF}, s[{sWS}:{sWS+3}], s49 offen sc1 lds")
        vm.issue((kind, i))
    PRE = {27: [("T", 0), ("T", 1), ("T", 2)], 28: [("T", 3), ("T", 4), ("T", 5)], 29: [("T", 6), ("W", 0), ("W", 1)],
           30: [("W", 2), ("W", 3)], 31: [("Y", 0), ("Y", 1), ("Y", 2), ("Y", 3)], 32: [("Y", 4), ("Y", 5), ("Y", 6)]}
    POST = []
    def rd2(Tg, k):
        b = FR+32*(Tg & 1); w_, so = win(Tg)
        return [f"ds_read_b128 v[{b+8*k}:{b+8*k+3}], v{vTR2+w_} offset:{so+16384+2048*k}"] + \
               [f"ds_read_b128 v[{b+8*k+4}:{b+8*k+7}], v{vWA+4*w_+k} offset:{so}"]
    def mf2(Tg):
        b = FR+32*(Tg & 1)
        return [f"v_mfma_f32_32x32x16_bf16 v[{AC}:{AC+15}], v[{b+8*k}:{b+8*k+3}], v[{b+8*k+4}:{b+8*k+7}], " + ("0" if (Tg == 0 and k == 0) else f"v[{AC}:{AC+15}]") for k in range(4)]
    def late_loads():
        SK = os.environ.get("SKIP", "")
        a("s_and_b32 s46, s43, 1\n s_lshl_b32 s46, s46, 3\n s_add_u32 s46, s46, s86\n s_lshl_b32 s46, s46, 6")
        a("s_and_b32 s47, s84, 3\n s_lshl_b32 s47, s47, 1\n s_lshr_b32 s49, s43, 1\n s_add_u32 s47, s47, s49\n s_lshl_b32 s47, s47, 3\n s_add_u32 s46, s46, s47\n s_lshl_b32 s46, s46, 1")
        a(f"v_bfe_u32 v{T}, v1, 3, 2\n v_and_b32 v{T+1}, 7, v1\n v_lshlrev_b32 v{T}, 7, v{T}\n v_lshl_add_u32 v{T}, v{T+1}, 1, v{T}")
        if "b" in SK: a("s_mov_b32 s46, 0x20000000")
        a(f"buffer_load_ushort v{BS}, v{T}, s[{sBS}:{sBS+3}], s46 offen"); vm.issue("z1")
        a("s_mov_b32 s49, s58" if "x" not in SK else "s_mov_b32 s49, 0x20000000")
        a(f"buffer_load_dwordx4 v[{XR}:{XR+3}], v{vO3}, s[{sX}:{sX+3}], s49 offen"); vm.issue("z1")
    gl = []
    PY = 160
    WM = 164
    U_T, Y_T = int(os.environ.get("UT", "27")), 31
    for Tg in range(32):
        n = vm.wait(("g", Tg))
        a(f"s_waitcnt vmcnt({n})")
        if Tg == 31:
            a(f"s_waitcnt vmcnt({vm.wait(('T', 2))})")
            poll_check("L_CY", 62, PY, covered=True)
            a(f"v_and_b32 v{vPA}, 15, v1\n v_min_u32 v{vPA}, 13, v{vPA}\n v_lshlrev_b32 v{vPA}, 7, v{vPA}")
        a("s_barrier")
        stg(26+Tg)
        def issue():
            if Tg == 28: poll_issue("L_PY", 62, PY)
            if Tg == 31:
                a(f"s_mov_b32 s49, {WMAX}")
                a(f"buffer_load_dwordx4 v[{WM}:{WM+3}], v{vF}, s[{sWS}:{sWS+3}], s49 offen sc1"); vm.issue("wm")
            if Tg == U_T: late_loads()
            if Tg+D < 32:
                dmaA(Tg+D); dmaB(Tg+D)
            else:
                free.extend(3*pslot(Tg-1)+i for i in range(3))
                for u_ in PRE[Tg]: unit(*u_)
        rd = rd2(Tg, 0)+rd2(Tg, 1)+rd2(Tg, 2)+rd2(Tg, 3)
        body(mf2(Tg-1) if Tg > 0 else [], rd, issue, p3_setup if Tg >= 2 else None, 3)
        a("s_waitcnt lgkmcnt(0)")
    assert not p3_setup
    dbgt(9)
    vTRo, vFRo, vTRs, vFRs = 168, 171, 224, 227; FG = 176; AC3 = 208; ACO = AC
    W3 = 49152
    a(f"v_bfe_u32 v{T}, v1, 2, 2\n v_lshrrev_b32 v{T+1}, 5, v1")
    a(f"v_bfe_u32 v{T+2}, v1, 4, 1\n v_bfe_u32 v{T+3}, v1, 1, 1\n v_lshl_add_u32 v{T+2}, v{T+2}, 1, v{T+3}")
    a(f"v_lshrrev_b32 v{T+3}, 1, v{T}\n v_lshlrev_b32 v{T+3}, 2, v{T+3}\n v_xor_b32 v{T+2}, v{T+2}, v{T+3}")
    a(f"v_and_b32 v{T+3}, 1, v1\n v_lshlrev_b32 v{T+3}, 3, v{T+3}\n v_lshl_add_u32 v{T+3}, v{T}, 7, v{T+3}")
    a("s_and_b32 s46, s42, 1\n s_bfe_u32 s47, s42, 0x10001")
    a(f"s_lshl_b32 s49, s47, 2\n v_xor_b32 v{T}, s49, v{T+2}\n v_lshl_add_u32 v{vTRo}, v{T}, 4, v{T+3}\n v_lshl_add_u32 v{vTRo}, v{T+1}, 9, v{vTRo}")
    a(f"s_lshl_b32 s49, s46, 12\n v_add_u32 v{vFRo}, s49, v{vF}")
    a(f"s_lshl_b32 s49, s46, 2\n v_xor_b32 v{T}, s49, v{T+2}\n v_lshl_add_u32 v{vTRs}, v{T}, 4, v{T+3}\n v_lshl_add_u32 v{vTRs}, v{T+1}, 10, v{vTRs}")
    a(f"s_lshl_b32 s49, s47, 10\n v_add_u32 v{vFRs}, s49, v{vF}")
    for b in (vTRo, vFRo, vTRs, vFRs): a(f"v_add_u32 v{b+1}, {W3}, v{b}\n v_add_u32 v{b+2}, {2*W3}, v{b}")
    a("s_cmp_ge_u32 s42, 4\n s_cbranch_scc1 L_S")
    vm_save = list(vm.ops); free_save = list(free); blk_save = dict(blk)
    HF_T, HC_T, NWPRE = 36, 40, 11; SS = 33; OS = 41
    EXO = 272; EXA, EXB, EXS = 0, 64*EXO, 128*EXO
    LAST = OS+7
    for path in ("O", "S"):
        vm.ops = list(vm_save); stg2.pending = None; free[:] = free_save; blk.clear(); blk.update(blk_save)
        if path == "S": a("L_S:")
        grp = 0 if path == "O" else 1
        def work(it):
            if SS <= it < SS+7: return ("S", it-SS) if path == "S" else None
            if OS <= it < OS+7: return ("O", 2*(it-OS)+grp)
            return None
        def fb(it): return FG if (it & 1) else FR
        def rd3(it):
            wk = work(it)
            if wk is None: return []
            b = fb(it); out = []
            if wk[0] == "S": b1, b2, vt, vf, ts, ks = blk[("Y", wk[1])], blk[("T", wk[1])], vTRs, vFRs, 512, 2048
            else: b1, b2, vt, vf, ts, ks = blk[("W", wk[1])], blk[("H", wk[1])], vTRo, vFRo, 1024, 1024
            for k in range(4):
                for tt in range(2):
                    out.append(f"ds_read_b64_tr_b16 v[{b+8*k+2*tt}:{b+8*k+2*tt+1}], v{vt+b1//6} offset:{(b1 % 6)*8192+k*2048+tt*ts}")
                out.append(f"ds_read_b128 v[{b+8*k+4}:{b+8*k+7}], v{vf+b2//6} offset:{(b2 % 6)*8192+k*ks}")
            return out
        def mf3(it):
            wk = work(it)
            if wk is None: return []
            b = fb(it); out = []
            for k in range(4):
                if wk[0] == "O":
                    cin = "0" if (it == OS and k == 0) else f"v[{ACO}:{ACO+15}]"
                    out.append(f"v_mfma_f32_32x32x16_bf16 v[{ACO}:{ACO+15}], v[{b+8*k}:{b+8*k+3}], v[{b+8*k+4}:{b+8*k+7}], {cin}")
                else:
                    cin = "0" if (it == SS and k == 0) else f"v[{AC3}:{AC3+15}]"
                    out.append(f"v_mfma_f32_32x32x16_f16 v[{AC3}:{AC3+15}], v[{b+8*k+4}:{b+8*k+7}], v[{b+8*k}:{b+8*k+3}], {cin}")
            return out
        nextW, nextH = [4], [0]; post = list(POST); CAP = int(os.environ.get("CAP", "9"))
        for it in range(32, LAST):
            need = []
            if SS <= it < SS+7: need = [("Y", it-SS), ("T", it-SS)]
            if OS <= it < OS+7: need = [(k_, 2*(it-OS)+g_) for k_ in "WH" for g_ in range(2)]
            if it == HF_T: need.append("h")
            if need: a(f"s_waitcnt vmcnt({min(vm.wait(x) for x in need)})")
            if it == HC_T and path == "O": poll_pipe("L_CH", 61, 240)
            a("s_barrier")
            stg2(it-32)
            if it == HF_T and path == "O": set_flag("L_FH", 59)
            def issue():
                if it == 32:
                    free.extend(3*pslot(31)+i for i in range(3))
                    for u_ in PRE[32]: unit(*u_)
                if SS+1 <= it < SS+8: free.extend([blk[("Y", it-SS-1)], blk[("T", it-SS-1)]])
                if OS+1 <= it < OS+7: free.extend(blk[(k_, 2*(it-OS-1)+g_)] for k_ in "WH" for g_ in range(2))
                cap = CAP
                while free and it > 32:
                    if it < HC_T:
                        if cap == 0: break
                        cap -= 1
                        if post: unit(*post.pop(0))
                        elif nextW[0] < NWPRE: unit("W", nextW[0]); nextW[0] += 1
                        else: break
                    else:
                        if nextH[0] < 14 and (nextH[0] < nextW[0] or nextW[0] >= 14): unit("H", nextH[0]); nextH[0] += 1
                        elif nextW[0] < 14: unit("W", nextW[0]); nextW[0] += 1
                        else: break
            body(mf2(31) if it == 32 else mf3(it-1), rd3(it), issue)
            if it == 32:
                E = FR+32
                a(f"s_waitcnt vmcnt({vm.wait('z1')})")
                a(f"v_lshlrev_b32 v{BS}, 16, v{BS}")
                for i in range(16): a(f"v_cvt_pk_bf16_f32 v{E+i}, 0, v{AC+i}")
                for i in range(8): a(f"v_pk_add_f32 {P_(E,i)}, {P_(E,i)}, v[{BS}:{BS+1}] op_sel_hi:[1,0]")
                for i in range(16): a(f"v_cvt_pk_bf16_f32 v{E+i}, 0, v{E+i}")
                for i in range(8): a(f"v_pk_mul_f32 {P_(E,i)}, {P_(E,i)}, {P_(Z1F,i)}")
                for p in range(8): a(f"v_cvt_pk_bf16_f32 v{E+16+p}, v{E+2*p}, v{E+2*p+1}")
                a(f"s_add_u32 s49, s45, {H}")
                for q in range(2):
                    a(f"buffer_store_dwordx4 v[{E+16+4*q}:{E+19+4*q}], v{vF}, s[{sWS}:{sWS+3}], s49 offen offset:{q*1024} sc1"); vm.issue("h")
            if it == OS and path == "S":
                wmax_reduce(a, WM, 28, 29)
                a(f"s_lshl_b32 s28, s28, 23\n v_mov_b32 v174, {hex(f32bits(1/28))}\n v_mul_f32 v174, s28, v174")
            if it == OS+1 and path == "S":
                for i in range(16): a(f"v_mul_f32 v{AC3+i}, v{AC3+i}, v174")
                for p in range(8): a(f"v_cvt_pk_bf16_f32 v{ZR+p}, v{AC3+2*p}, v{AC3+2*p+1}")
            a("s_waitcnt lgkmcnt(0)")
        a("s_barrier")
        for l in mf3(LAST-1): a(l)
        a(f"v_and_b32 v{T}, 31, v1\n s_lshl_b32 s49, s46, 5\n v_add_u32 v{T}, s49, v{T}\n v_lshrrev_b32 v{T+1}, 5, v1")
        if path == "S":
            a(f"v_mul_u32_u24 v{T+2}, {EXP}, v{T}\n v_lshl_add_u32 v{T+2}, v{T+1}, 3, v{T+2}\n s_lshl_b32 s49, s47, 6\n s_add_u32 s49, s49, {EXS}\n v_add_u32 v{T+2}, s49, v{T+2}")
            for j in range(4): a(f"ds_write_b64 v{T+2}, v[{ZR+2*j}:{ZR+2*j+1}] offset:{16*j}")
        a(f"v_mul_u32_u24 v{T}, {EXO}, v{T}\n v_lshl_add_u32 v{T}, v{T+1}, 4, v{T}\n s_lshl_b32 s49, s47, 7\n s_add_u32 s49, s49, {EXA if path == 'O' else EXB}\n v_add_u32 v{T}, s49, v{T}")
        for j in range(4): a(f"ds_write_b128 v{T}, v[{ACO+4*j}:{ACO+4*j+3}] offset:{32*j}")
        if path == "O": a("s_branch L_J3")
    a("L_J3:")
    stg2(21)
    a("s_waitcnt lgkmcnt(0)\n s_barrier")
    a(f"v_lshrrev_b32 v{T}, 3, v0\n v_and_b32 v{T+1}, 7, v0\n v_mul_u32_u24 v{T+2}, {EXP}, v{T}\n v_lshl_add_u32 v{T+2}, v{T+1}, 4, v{T+2}")
    a(f"v_mul_u32_u24 v{T}, {EXO}, v{T}\n v_lshl_add_u32 v{T}, v{T+1}, 5, v{T}")
    O_, S_ = 20, 24; A_, B_ = 32, 40
    a(f"ds_read_b128 v[{A_}:{A_+3}], v{T}\n ds_read_b128 v[{A_+4}:{A_+7}], v{T} offset:16")
    a(f"ds_read_b128 v[{B_}:{B_+3}], v{T} offset:{EXB}\n ds_read_b128 v[{B_+4}:{B_+7}], v{T} offset:{EXB+16}")
    a(f"ds_read_b128 v[{S_}:{S_+3}], v{T+2} offset:{EXS}")
    a(f"s_mov_b32 s46, {hex(f32bits(-math.log2(math.e)))}\n s_mov_b32 s47, s46")
    a("s_waitcnt lgkmcnt(0)")
    for p in range(4): a(f"v_pk_add_f32 v[{A_+2*p}:{A_+2*p+1}], v[{A_+2*p}:{A_+2*p+1}], v[{B_+2*p}:{B_+2*p+1}]")
    for i in range(8): a(f"v_cvt_pk_bf16_f32 v{A_+i}, 0, v{A_+i}")
    for p in range(4): a(f"v_pk_mul_f32 v[{B_+2*p}:{B_+2*p+1}], v[{A_+2*p}:{A_+2*p+1}], s[46:47]")
    for i in range(8): a(f"v_exp_f32 v{B_+i}, v{B_+i}")
    for p in range(4): a(f"v_pk_add_f32 v[{B_+2*p}:{B_+2*p+1}], v[{B_+2*p}:{B_+2*p+1}], 1.0 op_sel_hi:[1,0]")
    for i in range(8): a(f"v_rcp_f32 v{B_+i}, v{B_+i}")
    for p in range(4): a(f"v_pk_mul_f32 v[{A_+2*p}:{A_+2*p+1}], v[{A_+2*p}:{A_+2*p+1}], v[{B_+2*p}:{B_+2*p+1}]")
    for i in range(8): a(f"v_cvt_pk_bf16_f32 v{A_+i}, 0, v{A_+i}")
    for p in range(4): a(f"v_lshlrev_b32 v{B_+2*p}, 16, v{S_+p}\n v_and_b32 v{B_+2*p+1}, 0xffff0000, v{S_+p}")
    for p in range(4): a(f"v_pk_mul_f32 v[{A_+2*p}:{A_+2*p+1}], v[{A_+2*p}:{A_+2*p+1}], v[{B_+2*p}:{B_+2*p+1}]")
    for i in range(8): a(f"v_cvt_pk_bf16_f32 v{A_+i}, 0, v{A_+i}")
    for p in range(4): a(f"v_lshlrev_b32 v{B_+2*p}, 16, v{XR+p}\n v_and_b32 v{B_+2*p+1}, 0xffff0000, v{XR+p}")
    for p in range(4): a(f"v_pk_add_f32 v[{A_+2*p}:{A_+2*p+1}], v[{A_+2*p}:{A_+2*p+1}], v[{B_+2*p}:{B_+2*p+1}]")
    for p in range(4): a(f"v_cvt_pk_bf16_f32 v{O_+p}, v{A_+2*p}, v{A_+2*p+1}")
    a(f"buffer_store_dwordx4 v[{O_}:{O_+3}], v{vO3}, s[{sOUT}:{sOUT+3}], s58 offen")
    def prof_end():
        if not PROF: return
        stg2(22); a("s_waitcnt vmcnt(0)"); stg2(23)
        a("s_memrealtime s[28:29]\n s_waitcnt lgkmcnt(0)")
        a("v_writelane_b32 v247, s100, 23\n v_writelane_b32 v247, s96, 62\n v_writelane_b32 v247, s28, 63")
        a(f"s_lshl_b32 s98, s2, 3\n s_add_u32 s98, s98, s42\n s_lshl_b32 s98, s98, 9\n s_add_u32 s98, s98, {TS}")
        a(f"v_lshlrev_b32 v251, 2, v1\n buffer_store_dword v246, v251, s[{sWS}:{sWS+3}], s98 offen\n buffer_store_dword v247, v251, s[{sWS}:{sWS+3}], s98 offen offset:256")
    prof_end()
    dbgt(10); dbg_flush()
    a("s_endpgm")
    gen_aux(a, locals())
    a("L_END:\n s_endpgm")
    a.raw(kd(NAME, 256, 102))

def gen_aux(a, L):
    sWS, sDBG, sSP, sBS = L["sWS"], L["sDBG"], L["sSP"], L["sBS"]
    vZERO, vPOLL, vPA, vF = L["vZERO"], L["vPOLL"], L["vPA"], L["vF"]
    stg, stg2 = L["stg"], L["stg2"]
    get_nonce, poll_check = L["get_nonce"], L["poll_check"]
    a("L_AUX:")
    stg.pending = 0; stg2.pending = None
    sWR, sWI, sTB = 4, 8, 16
    srd(a, sWR, 28, 2048*450); srd(a, sWI, 30, 2048*450)
    pc_srd(a, sTB, "TAB_FFT", FT_BYTES)
    a("s_sub_u32 s41, s41, 28")
    a("s_lshl_b32 s43, s41, 3\n s_add_u32 s43, s43, s40")
    a("s_cmp_lg_u32 s41, 0\n s_cbranch_scc1 L_NOCODE")
    pc_srd(a, 44, NAME, "L_END-"+NAME)
    a("v_lshlrev_b32 v5, 7, v0\n buffer_load_dword v254, v5, s[44:47], 0 offen")
    a("L_NOCODE:")
    a("s_lshr_b32 s44, s43, 1\n s_lshl_b32 s44, s44, 2\n s_and_b32 s45, s42, 3\n s_add_u32 s44, s44, s45\n s_lshl_b32 s44, s44, 5")
    a("s_and_b32 s45, s43, 1\n s_lshl_b32 s45, s45, 4\n s_add_u32 s44, s44, s45\n s_mul_i32 s44, s44, 450")
    WL = 65536
    a(f"s_lshl_b32 s46, s42, 13\n s_add_u32 s46, s46, {WL}")
    a("s_cmp_ge_u32 s42, 4\n s_cbranch_scc1 L_AUXI")
    for arr, sr in (("R", sWR), ("I", sWI)):
        if arr == "I": a("L_AUXI:")
        for i in range(8):
            a(f"s_add_u32 m0, s46, {i*1024}\n s_add_u32 s47, s44, {i*1024}")
            a(f"buffer_load_dwordx4 v{vF}, s[{sr}:{sr+3}], s47 offen lds")
        if arr == "R": a("s_branch L_AUXJ")
    a("L_AUXJ:")
    a("s_mul_i32 s45, s42, 7168")
    for i in range(7):
        a(f"s_add_u32 m0, s45, {i*1024}\n s_add_u32 s46, s45, {i*1024}")
        a(f"buffer_load_dwordx4 v{vF}, s[{sTB}:{sTB+3}], s46 offen lds")
    a(f"buffer_load_dword v{vPOLL}, v{vZERO}, s[{sDBG}:{sDBG+3}], 0 offen sc1")
    a("v_and_b32 v5, 63, v0\n v_lshlrev_b32 v5, 12, v5\n v_lshrrev_b32 v6, 6, v0\n v_lshl_add_u32 v5, v6, 7, v5\n s_lshl_b32 s47, s43, 18")
    if int(os.environ.get("MATCH", "1")):
        a("s_bfe_u32 s47, s40, 0x10001\n s_lshl_b32 s47, s47, 2\n s_lshr_b32 s50, s40, 2\n s_lshl_b32 s50, s50, 1\n s_add_u32 s47, s47, s50\n s_and_b32 s50, s40, 1\n s_add_u32 s47, s47, s50")
        a("s_lshl_b32 s47, s47, 2\n s_add_u32 s47, s47, s41\n s_lshl_b32 s47, s47, 18")
    a(f"buffer_load_dword v252, v5, s[{sSP}:{sSP+3}], s47 offen")
    a("s_waitcnt vmcnt(1)\n s_barrier")
    stg(1)
    a("v_and_b32 v6, 15, v0\n v_lshrrev_b32 v7, 4, v0")
    a(f"v_mul_u32_u24 v8, 450, v6\n v_lshl_add_u32 v8, v7, 1, v8\n v_add_u32 v8, {WL}, v8")
    a("v_lshlrev_b32 v9, 13, v7\n v_lshl_add_u32 v9, v6, 4, v9")
    a(f"s_lshl_b32 s48, s43, 8\n s_add_u32 s48, s48, {WP}")
    a("v_mov_b32 v10, 0")
    for it in range(8):
        d = 16+4*it
        for r in range(4):
            a(f"ds_read_u16 v{d+r}, v8 offset:{r*8192+64*it}")
            a(f"ds_read_u16 v{d+r+96}, v8 offset:{(4+r)*8192+64*it}")
    get_nonce("L_ANON")
    a("s_waitcnt lgkmcnt(0)")
    for it in range(8):
        d = 16+4*it
        for r in range(4): a(f"v_lshl_or_b32 v{d+r}, v{d+r+96}, 16, v{d+r}")
        if it == 7:
            a("v_cmp_gt_u32 vcc, 16, v0\n s_and_saveexec_b64 s[50:51], vcc\n s_cbranch_execz L_AUXSK")
        a(f"buffer_store_dwordx4 v[{d}:{d+3}], v9, s[{sWS}:{sWS+3}], s48 offen sc1")
        for r in range(4):
            a(f"v_and_b32 v{12+(r&1)}, 0x7fff7fff, v{d+r}\n v_pk_max_u16 v10, v10, v{12+(r&1)}")
        if it < 7: a(f"s_add_u32 s48, s48, {32*8192}")
    a("L_AUXSK:\n s_mov_b64 exec, -1")
    a("v_lshrrev_b32 v11, 16, v10\n v_and_b32 v10, 0xffff, v10\n v_max_u32 v10, v10, v11")
    a("v_max_u32_dpp v10, v10, v10 quad_perm:[1,0,3,2] row_mask:0xf bank_mask:0xf")
    a("v_max_u32_dpp v10, v10, v10 quad_perm:[2,3,0,1] row_mask:0xf bank_mask:0xf")
    a("v_max_u32_dpp v10, v10, v10 row_half_mirror row_mask:0xf bank_mask:0xf")
    a("v_max_u32_dpp v10, v10, v10 row_mirror row_mask:0xf bank_mask:0xf")
    a("v_readlane_b32 s50, v10, 0\n v_readlane_b32 s51, v10, 16\n v_readlane_b32 s52, v10, 32\n v_readlane_b32 s53, v10, 48")
    a("s_max_u32 s50, s50, s51\n s_max_u32 s52, s52, s53\n s_max_u32 s50, s50, s52")
    a(f"s_lshl_b32 s49, s43, 3\n s_add_u32 s49, s49, s42\n s_lshl_b32 s49, s49, 2\n s_add_u32 s49, s49, {WMAX}")
    a("v_mov_b32 v10, s50\n s_mov_b64 exec, 1")
    a(f"buffer_store_dword v10, v{vZERO}, s[{sWS}:{sWS+3}], s49 offen sc1")
    a("s_mov_b64 exec, -1")
    a("s_waitcnt vmcnt(0)\n s_barrier")
    stg(2)
    a(f"s_lshl_b32 s49, s43, 7\n s_add_u32 s49, s49, {FLW}")
    L["set_flag"]("L_FW", 49)
    for rnd in range(1, -(-WSP_K1//8)):
        if 8*rnd+8 > WSP_K1: a(f"s_cmp_ge_u32 s42, {WSP_K1-8*rnd}\n s_cselect_b32 s47, 0x10000000, s47")
        a(f"buffer_load_dword v{252+rnd}, v5, s[{sSP}:{sSP+3}], s47 offen offset:{1024*rnd}")
    a("v_lshlrev_b32 v5, 7, v0")
    a(f"buffer_load_dword v255, v5, s[{sBS}:{sBS+3}], 0 offen")
    a(f"v_mov_b32 v8, {SX}\n ds_write_b32 v8, v{vZERO}")
    a(f"v_and_b32 v{vPA}, 31, v1\n v_lshlrev_b32 v{vPA}, 7, v{vPA}\n s_mov_b32 s59, {FLW}")
    L["poll_issue"]("L_PW", 59, vPOLL)
    poll_check("L_CW", 59, vPOLL, sleep=16)
    a("s_barrier")
    a("s_mul_i32 s44, s43, 7\n s_add_u32 s44, s44, s42\n s_cmp_eq_u32 s42, 7\n s_cselect_b32 s44, 224, s44")
    a(f"s_mov_b32 s53, {WMAX}\n buffer_load_dwordx4 v[12:15], v{vF}, s[{sWS}:{sWS+3}], s53 offen sc1")
    a(f"s_lshl_b32 s54, s44, 13\n s_add_u32 s54, s54, {WP}")
    a("s_cmp_eq_u32 s42, 7\n s_cselect_b32 s55, s43, 0\n s_cmp_lg_u32 s55, 0\n s_cselect_b32 s54, 0x20000000, s54\n s_add_u32 s55, s54, 4096")
    for i in range(8):
        a(f"buffer_load_dwordx4 v[{128+4*i}:{131+4*i}], v{vF}, s[{sWS}:{sWS+3}], s{54 if i < 4 else 55} offen offset:{(i&3)*1024} sc1")
    a("s_mul_i32 s51, s43, 14\n s_add_u32 s52, s51, 13\n s_lshr_b32 s51, s51, 6\n s_lshr_b32 s52, s52, 6\n s_lshl_b32 s51, s51, 12\n s_lshl_b32 s52, s52, 12")
    a(f"v_mov_b32 v8, s51\n v_mov_b32 v9, s52\n v_cmp_gt_u32 vcc, 32, v1\n v_cndmask_b32 v8, v9, v8, vcc\n v_add_u32 v{vPA}, v{vPA}, v8\n s_mov_b32 s59, {FLU}")
    L["poll_pipe"]("L_CF", 59, 240, gap=8)
    a("s_waitcnt lgkmcnt(0)\n s_barrier")
    stg(3)
    a("s_cmp_lg_u32 s42, 7\n s_cbranch_scc1 L_FFT0\n s_cmp_lg_u32 s43, 0\n s_cbranch_scc1 L_PFW\nL_FFT0:")

    vL = vF
    OPR, OPI, OPN = 16, 32, 48
    DR, DI = 64, 96
    WV = 128; C32 = 160; CF = 184; TWB = 216
    a("s_lshl_b32 s48, s44, 1\n s_add_u32 s49, s48, 1\n s_min_u32 s49, s49, 447\n s_cmp_eq_u32 s44, 224\n s_cselect_b32 s48, 1, s48")
    a("s_cmp_eq_u32 s44, 224\n s_cselect_b32 s58, 1, 0\n s_cmp_eq_u32 s44, 0\n s_cselect_b32 s58, 1, s58")
    a(f"s_lshl_b32 s48, s48, 12\n s_lshl_b32 s49, s49, 12\n s_add_u32 s51, s48, {U}\n s_add_u32 s52, s49, {U}")
    a(f"v_and_b32 v5, 31, v1\n v_lshrrev_b32 v6, 5, v1\n v_lshlrev_b32 v7, 4, v5\n v_lshl_add_u32 v7, v6, 10, v7")
    for mt in range(2):
        for c in range(2):
            f = 2*mt+c
            a(f"buffer_load_dwordx4 v[{OPR+4*f}:{OPR+4*f+3}], v7, s[{sWS}:{sWS+3}], s51 offen offset:{(32*mt+128*c)*16} sc1")
            a(f"buffer_load_dwordx4 v[{OPI+4*f}:{OPI+4*f+3}], v7, s[{sWS}:{sWS+3}], s52 offen offset:{(32*mt+128*c)*16} sc1")
    for i in range(6): a(f"ds_read_b128 v[{C32+4*i}:{C32+4*i+3}], v{vL} offset:{O_C32+i*1024}")
    CR = lambda c: f"v[{C32+4*c}:{C32+4*c+3}]"
    CI = lambda c: f"v[{C32+8+4*c}:{C32+8+4*c+3}]"
    CN = lambda c: f"v[{C32+16+4*c}:{C32+16+4*c+3}]"
    op = lambda base, f: f"v[{base+4*f}:{base+4*f+3}]"
    dd = lambda base, t: f"v[{base+16*t}:{base+16*t+15}]"
    a("s_waitcnt vmcnt(8)")
    wmax_reduce(a, 12, 53, 28)
    a("s_sub_u32 s56, 254, s53\n s_sub_u32 s56, s56, s58\n s_lshl_b32 s56, s56, 23\n s_mov_b32 s57, s56")
    a("s_waitcnt vmcnt(0)")
    a("s_cmp_eq_u32 s58, 0\n s_cbranch_scc1 L_NSP")
    for i in range(16): a(f"v_mov_b32 v{OPI+i}, 0")
    a("L_NSP:")
    a("s_waitcnt lgkmcnt(0)")
    stg(4)
    def mfma(d, x, y, first): a(f"v_mfma_f32_32x32x16_f16 {d}, {x}, {y}, {'0' if first else d}")
    for mt in range(2):
        for c in range(2):
            f = 2*mt+c
            mfma(dd(DR, mt), op(OPR, f), CR(c), c == 0); mfma(dd(DI, mt), op(OPR, f), CI(c), c == 0)
            mfma(dd(DR, mt), op(OPI, f), CN(c), False); mfma(dd(DI, mt), op(OPI, f), CR(c), False)
    def twiddle(otab, neg):
        def ld(g):
            b = TWB+8*(g % 3)
            a(f"ds_read_b128 v[{b}:{b+3}], v{vL} offset:{otab+g*2048}")
            a(f"ds_read_b128 v[{b+4}:{b+7}], v{vL} offset:{otab+g*2048+1024}")
        for g in range(2): ld(g)
        for g in range(8):
            if g+2 < 8: ld(g+2)
            a(f"s_waitcnt lgkmcnt({2*min(2, 7-g)})")
            b = TWB+8*(g % 3)
            v = 4*g
            for i in range(4): a(f"v_mul_f32 v{8+i}, v{DR+v+i}, v{b+i}\n v_mul_f32 v{12+i}, v{DR+v+i}, v{b+4+i}")
            for i in range(4): a(f"v_fma_f32 v{8+i}, -v{DI+v+i}, v{b+4+i}, v{8+i}\n v_fmac_f32 v{12+i}, v{DI+v+i}, v{b+i}")
            for pr in range(2):
                a(f"v_cvt_pk_f16_f32 v{OPR+v//2+pr}, v{8+2*pr}, v{9+2*pr}\n v_cvt_pk_f16_f32 v{OPI+v//2+pr}, v{12+2*pr}, v{13+2*pr}")
            if neg:
                for pr in range(2): a(f"v_xor_b32 v{OPN+v//2+pr}, 0x80008000, v{OPI+v//2+pr}")
    def big(step):
        def ld(i):
            b = CF+8*(i & 3)
            a(f"ds_read_b128 v[{b}:{b+3}], v{vL} offset:{O_C64R+i*1024}")
            a(f"ds_read_b128 v[{b+4}:{b+7}], v{vL} offset:{O_C64I+i*1024}")
        for i in range(3): ld(i)
        for i in range(8):
            if i+3 < 8: ld(i+3)
            a(f"s_waitcnt lgkmcnt({2*min(3, 7-i)})")
            b = CF+8*(i & 3); cr = f"v[{b}:{b+3}]"; ci = f"v[{b+4}:{b+7}]"
            t = i >> 2; c = i & 3
            if step == 3:
                mfma(dd(DR, t), cr, op(OPR, c), c == 0); mfma(dd(DI, t), ci, op(OPR, c), c == 0)
                mfma(dd(DR, t), ci, op(OPN, c), False); mfma(dd(DI, t), cr, op(OPI, c), False)
            else:
                mfma(dd(DR, t), op(OPR, c), cr, c == 0); mfma(dd(DI, t), op(OPI, c), cr, c == 0)
                mfma(dd(DR, t), op(OPI, c), ci, False); mfma(dd(DI, t), op(OPN, c), ci, False)
    twiddle(O_TW1, True)
    stg(5)
    big(3)
    stg(6)
    a("s_waitcnt vmcnt(0)")
    for v in range(0, 32, 4):
        b = TWB+8*((v >> 2) % 3)
        for i in range(4): a(f"v_lshlrev_b32 v{b+i}, 16, v{WV+v+i}\n v_and_b32 v{b+4+i}, 0xffff0000, v{WV+v+i}")
        for i in range(8): a(f"v_mul_f32 v{b+i}, s56, v{b+i}")
        for i in range(4): a(f"v_mul_f32 v{8+i}, v{DR+v+i}, v{b+i}\n v_mul_f32 v{12+i}, v{DR+v+i}, v{b+4+i}")
        for i in range(4): a(f"v_fma_f32 v{8+i}, -v{DI+v+i}, v{b+4+i}, v{8+i}\n v_fmac_f32 v{12+i}, v{DI+v+i}, v{b+i}")
        for pr in range(2):
            a(f"v_cvt_pk_f16_f32 v{OPR+v//2+pr}, v{8+2*pr}, v{9+2*pr}\n v_cvt_pk_f16_f32 v{OPI+v//2+pr}, v{12+2*pr}, v{13+2*pr}")
        for pr in range(2): a(f"v_xor_b32 v{OPN+v//2+pr}, 0x80008000, v{OPR+v//2+pr}")
    stg(7)
    big(5)
    stg(8)
    twiddle(O_TW2, False)
    stg(9)
    for nt in range(2):
        for c in range(2):
            f = 2*nt+c
            mfma(dd(DR, nt), op(OPR, f), CR(c), c == 0); mfma(dd(DI, nt), op(OPI, f), CR(c), c == 0)
            mfma(dd(DR, nt), op(OPI, f), CI(c), False); mfma(dd(DI, nt), op(OPR, f), CN(c), False)
    a("v_lshlrev_b32 v7, 4, v5\n v_lshl_add_u32 v7, v6, 9, v7")
    a(f"s_add_u32 s51, s48, {YT}\n s_add_u32 s52, s49, {YT}")
    for part, base, sreg in ((0, DR, 51), (1, DI, 52)):
        if part == 1: a("s_cmp_lg_u32 s58, 0\n s_cbranch_scc1 L_FDONE")
        for nt in range(2):
            for q in range(2):
                o = WV+16*part+8*nt+4*q; v = base+16*nt+8*q
                for i in range(4): a(f"v_cvt_pk_f16_f32 v{o+i}, v{v+2*i}, v{v+2*i+1}")
                a(f"v_permlane32_swap_b32 v{o}, v{o+2}\n v_permlane32_swap_b32 v{o+1}, v{o+3}")
                a(f"buffer_store_dwordx4 v[{o}:{o+3}], v7, s[{sWS}:{sWS+3}], s{sreg} offen offset:{(4*nt+2*q)*512} sc1")
    a("L_FDONE:")
    stg(10)
    a("s_waitcnt vmcnt(0)")
    a(f"v_mov_b32 v8, {SX}\n v_mov_b32 v9, 1\n s_mov_b64 exec, 1\n ds_add_rtn_u32 v9, v8, v9\n s_waitcnt lgkmcnt(0)\n v_readfirstlane_b32 s49, v9")
    a("s_cmp_eq_u32 s43, 0\n s_cselect_b32 s50, 7, 6\n s_cmp_lg_u32 s49, s50\n s_cbranch_scc1 L_NFY")
    a(f"s_lshl_b32 s49, s43, 7\n s_add_u32 s49, s49, {FLY}\n v_mov_b32 v{vPOLL}, s63")
    a(f"buffer_store_dword v{vPOLL}, v{vZERO}, s[{sWS}:{sWS+3}], s49 offen sc1")
    a("L_NFY:\n s_mov_b64 exec, -1")
    stg(11)
    if PROF:
        a("s_waitcnt lgkmcnt(0)\n v_writelane_b32 v246, s100, 11")
        stg2.pending = None
        L["prof_end"]()
    a("s_endpgm")
    a("L_PFW:")
    a("s_sleep 8")
    NL = (32-WSP_K2)*2048
    a("s_sub_u32 s58, s43, 1\n s_lshl_b32 s58, s58, 6\n v_add_u32 v13, s58, v1")
    for it in range(-(-NL//(31*64))):
        a(f"v_and_b32 v14, 2047, v13\n v_lshrrev_b32 v15, 11, v13\n v_min_u32 v15, {31-WSP_K2}, v15\n v_lshlrev_b32 v14, 12, v14\n v_lshl_add_u32 v14, v15, 7, v14")
        a(f"buffer_load_dword v{20+it}, v14, s[{sSP}:{sSP+3}], 0 offen offset:{128*WSP_K2}")
        a(f"v_add_u32 v13, {31*64}, v13")
    a("s_endpgm")
```

```python
from asmlib import Asm, Vm
from common import *
from k1 import gelu_pairs, red8, halfsum, var_to_rs, C1, C2
from k2 import O_C64R, O_C64I, O_TW1, O_TW2, O_C32, FT_BYTES, wmax_reduce
import math

NAME = "recurrent_scan__spectral_gfnet__mixer_gmlp__prompt_kernel"
S1 = 16384; N1 = 6; XN = N1*S1
S2 = 24576; PERM = [4, 5, 2, 3, 0, 1]
UX = 147456; UXP = 144
SX = 156672
LDS_BYTES = 163840
TSC = 98304
EXP = 144
FL = 0x1310000
FLZ, FLU, FLW, FLH, FLY, FL1 = FL, FL+0x8000, FL+0x10000, FL+0x18000, FL+0x20000, FL+0x28000
LD_T = int(os.environ.get("LDT", "10")); CHK_T = int(os.environ.get("CHKT", "13")); FZ_G = int(os.environ.get("FZG", "2")); CX_T = int(os.environ.get("CXT", "11"))
WSP_K1 = int(os.environ.get("WSPK", "8"))
WSP_K2 = int(os.environ.get("WSPK2", "22"))
SPIN = 0x4000
CODE_BYTES = 40960
D = 5

XA = os.environ.get("XA", ""); XB = os.environ.get("XB", "sc1")
DBGT = bool(int(os.environ.get("DBGT", "0")))
def gen(a):
    a(f".text\n.globl {NAME}\n.p2align 8\n.type {NAME},@function\n{NAME}:")
    sX, sWIN, sWS, sFT, sDBG, sSP = 4, 8, 12, 16, 20, 24
    sWO, sTT, sOUT, sBS = 8, 92, 64, 68
    stg = StageStamps(a, 246); stg2 = StageStamps(a, 247)
    a("s_cmp_ge_u32 s2, 256\n s_cbranch_scc1 L_END")
    if PROF or DBGT: a("s_memrealtime s[96:97]")
    stg(0)
    a("s_load_dwordx2 s[76:77], s[0:1], 0")
    a("s_load_dwordx4 s[28:31], s[0:1], 8")
    a("s_load_dwordx4 s[32:35], s[0:1], 32")
    a("s_load_dwordx4 s[36:39], s[0:1], 72")
    a("s_load_dwordx4 s[80:83], s[0:1], 48")
    a("s_load_dwordx2 s[78:79], s[0:1], 64")
    a("s_and_b32 s40, s2, 7\n s_lshr_b32 s41, s2, 3")
    a("v_lshrrev_b32 v2, 6, v0\n v_and_b32 v1, 63, v0")
    a("v_readfirstlane_b32 s42, v2")
    pc_srd(a, sFT, "TAB_FT", 7*14*8*1024)
    if os.environ.get("PRIO", "0") == "1": a("s_cmp_lt_u32 s42, 4\n s_cbranch_scc1 L_PRIO\n s_setprio 1\nL_PRIO:")
    vXo, vZ, vF, vW = 2, 3, 4, 5
    vTR = 6; vAA = 12
    XF = 16; BF = 128; ACC = 160; ACC2 = 176; ZP = 192; TMP = 200; VC1 = 226; PS = 228
    vA2, vB2 = 244, 245; VPF = 252; vZERO = 248; vPOLL = 249; vPA = 250
    a("s_and_b32 s62, s40, 1\n s_mul_i32 s43, s62, 28\n s_add_u32 s43, s43, s41\n s_lshr_b32 s44, s43, 3\n s_and_b32 s43, s43, 7")
    a("s_lshr_b32 s45, s40, 1\n s_lshl_b32 s45, s45, 3\n s_add_u32 s43, s43, s45")
    a("s_lshr_b32 s45, s43, 4\n s_lshl_b32 s45, s45, 4")
    a("s_lshr_b32 s46, s42, 2\n s_lshl_b32 s46, s46, 3\n s_add_u32 s45, s45, s46")
    a("s_bfe_u32 s46, s43, 0x10003\n s_lshl_b32 s46, s46, 2\n s_add_u32 s45, s45, s46")
    a("s_and_b32 s46, s42, 3\n s_add_u32 s45, s45, s46")
    a("s_lshl_b32 s45, s45, 6\n s_and_b32 s46, s43, 7\n s_lshl_b32 s46, s46, 3\n s_add_u32 s45, s45, s46")
    a("s_lshl_b32 s87, s45, 12\n s_mul_i32 s45, s45, 896")
    a(f"v_lshrrev_b32 v{TMP}, 3, v1\n v_and_b32 v{TMP+1}, 7, v1")
    a(f"v_mul_u32_u24 v{vXo}, 896, v{TMP}\n v_lshl_add_u32 v{vXo}, v{TMP+1}, 4, v{vXo}")
    a(f"v_mov_b32 v{vZERO}, 0\n v_lshlrev_b32 v{vF}, 4, v1")
    a("s_waitcnt lgkmcnt(0)")
    srd(a, sX, 76, 2048*896)
    a("s_cmp_ge_u32 s41, 28\n s_cbranch_scc1 L_AUX0")
    vm = Vm()
    for cc in range(7):
        a(f"buffer_load_dwordx4 v[{BF+4*cc}:{BF+4*cc+3}], v{vXo}, s[{sX}:{sX+3}], s45 offen offset:{128*cc}"); vm.issue("x")
    a("L_AUX0:")
    srd(a, sWIN, 32, 448*3584); srd(a, sWS, 38, WS_BYTES); srd(a, sDBG, 36, 256); srd(a, sSP, 34, 2048*4096)
    srd(a, sOUT, 78, 2048*896); srd(a, sBS, 80, 4096)
    a("s_cmp_ge_u32 s41, 28\n s_cbranch_scc1 L_AUX")

    dlist = []
    def dbgt(idx, op=None):
        if not DBGT or op is not None: return
        a(f"s_memrealtime s[98:99]\n s_waitcnt lgkmcnt(0)\n v_writelane_b32 v247, s98, {idx}")
    def dbg_flush():
        if not DBGT: return
        a("s_cmp_lg_u32 s42, 0\n s_cbranch_scc1 L_DBGE")
        a("v_writelane_b32 v247, s96, 4")
        a("v_not_b32 v246, v247\n v_lshlrev_b32 v251, 3, v1\n v_subrev_u32 v251, 24, v251")
        a("s_mov_b64 exec, 0x7f0")
        a(f"buffer_atomic_umax v247, v251, s[{sDBG}:{sDBG+3}], 0 offen\n buffer_atomic_umax v246, v251, s[{sDBG}:{sDBG+3}], 0 offen offset:4")
        a("s_mov_b64 exec, -1\nL_DBGE:")
    def get_nonce(lbl):
        a(f"s_mov_b32 s50, 0\n{lbl}:")
        a(f"v_readfirstlane_b32 s63, v{vPOLL}")
        a(f"s_add_u32 s50, s50, 1\n s_cmp_lg_u32 s63, 0\n s_cbranch_scc1 {lbl}_OK")
        a(f"s_cmp_ge_u32 s50, {SPIN}\n s_cbranch_scc1 {lbl}_OK")
        a(f"s_sleep 4\n buffer_load_dword v{vPOLL}, v{vZERO}, s[{sDBG}:{sDBG+3}], 0 offen sc1\n s_waitcnt vmcnt(0)\n s_branch {lbl}")
        a(f"{lbl}_OK:")
    def set_flag(lbl, soff):
        a(f"s_cmp_lg_u32 s42, 0\n s_cbranch_scc1 {lbl}")
        a(f"v_mov_b32 v{vPOLL}, s63\n s_mov_b64 exec, 1")
        a(f"buffer_store_dword v{vPOLL}, v{vZERO}, s[{sWS}:{sWS+3}], s{soff} offen sc1")
        a(f"s_mov_b64 exec, -1\n{lbl}:")
    def poll_issue(lbl, soff, vdst, wide=False):
        a(f"s_cmp_lg_u32 s42, 0\n s_cbranch_scc1 {lbl}")
        if wide: a(f"buffer_load_dwordx4 v[{vdst}:{vdst+3}], v{vF}, s[{sWS}:{sWS+3}], s{soff} offen sc1")
        else: a(f"buffer_load_dword v{vdst}, v{vPA}, s[{sWS}:{sWS+3}], s{soff} offen sc1")
        a(f"{lbl}:")
    def poll_check(lbl, soff, vdst, wide=False, allwaves=False, sleep=2, covered=False):
        if not allwaves: a(f"s_cmp_lg_u32 s42, 0\n s_cbranch_scc1 {lbl}_OK")
        a("s_mov_b32 s50, 0")
        if covered: a(f"s_branch {lbl}_1")
        a(f"{lbl}:\n s_waitcnt vmcnt(0)\n{lbl}_1:")
        a(f"v_cmp_eq_u32 vcc, s63, v{vdst}")
        if wide:
            for i in range(1, 4): a(f"v_cmp_eq_u32 s[30:31], s63, v{vdst+i}\n s_and_b64 vcc, vcc, s[30:31]")
        a(f"s_add_u32 s50, s50, 1\n s_cmp_eq_u64 vcc, exec\n s_cbranch_scc1 {lbl}_OK")
        a(f"s_cmp_ge_u32 s50, {SPIN}\n s_cbranch_scc1 {lbl}_OK")
        a(f"s_sleep {sleep}")
        if wide: a(f"buffer_load_dwordx4 v[{vdst}:{vdst+3}], v{vF}, s[{sWS}:{sWS+3}], s{soff} offen sc1")
        else: a(f"buffer_load_dword v{vdst}, v{vPA}, s[{sWS}:{sWS+3}], s{soff} offen sc1")
        a(f"s_branch {lbl}\n{lbl}_OK:")

    def poll_pipe(lbl, soff, r0, gap=4, pre=0):
        a(f"s_cmp_lg_u32 s42, 0\n s_cbranch_scc1 {lbl}_OK")
        a("s_mov_b32 s50, 0")
        for i in range(pre, 4):
            a(f"buffer_load_dword v{r0+i}, v{vPA}, s[{sWS}:{sWS+3}], s{soff} offen sc1")
            if i < 3: a(f"s_sleep {gap}")
        a(f"{lbl}:")
        for i in range(4):
            a("s_waitcnt vmcnt(3)")
            a(f"v_cmp_eq_u32 vcc, s63, v{r0+i}")
            a(f"s_cmp_eq_u64 vcc, exec\n s_cbranch_scc1 {lbl}_OK")
            a(f"buffer_load_dword v{r0+i}, v{vPA}, s[{sWS}:{sWS+3}], s{soff} offen sc1")
            a(f"s_sleep {gap//2}")
        a(f"s_add_u32 s50, s50, 1\n s_cmp_lt_u32 s50, {SPIN}\n s_cbranch_scc1 {lbl}")
        a(f"{lbl}_OK:")

    a("s_add_u32 s49, s2, s42\n s_cmp_lg_u32 s49, 0\n s_cbranch_scc1 L_NN")
    a("s_memrealtime s[50:51]\n s_waitcnt lgkmcnt(0)\n s_or_b32 s50, s50, 1")
    a(f"v_mov_b32 v{vPOLL}, s50\n s_mov_b64 exec, 1")
    a(f"buffer_store_dword v{vPOLL}, v{vZERO}, s[{sDBG}:{sDBG+3}], 0 offen sc1")
    a("s_mov_b64 exec, -1\nL_NN:")
    vT = TMP+8
    a("s_mul_i32 s46, s62, 28\n s_lshr_b32 s46, s46, 3")
    a("s_mul_i32 s47, s62, 28\n s_add_u32 s47, s47, 27\n s_lshr_b32 s47, s47, 3")
    a("s_lshl_b32 s48, s41, 4\n s_lshl_b32 s49, s42, 1\n s_add_u32 s48, s48, s49\n s_mul_i32 s48, s48, 3584\n s_lshl_b32 s49, s46, 8\n s_add_u32 s48, s48, s49\n s_add_u32 s48, s48, 1792")
    ZT = os.environ.get("ZT", "vec")
    if ZT == "smem":
        for rr in range(2):
            for ln in range(6):
                a(f"s_buffer_load_dword s28, s[{sWIN}:{sWIN+3}], s48 offset:{rr*3584+ln*128}")
    a(f"v_and_b32 v{vT}, 127, v0\n v_lshrrev_b32 v{vT+1}, 5, v{vT}\n v_add_u32 v{vT+1}, s46, v{vT+1}\n v_cmp_lt_u32 vcc, s47, v{vT+1}\n v_mov_b32 v{vT+5}, 0x8000\n v_cndmask_b32 v{vT+1}, v{vT+1}, v{vT+5}, vcc")
    a(f"s_lshl_b32 s48, s41, 5\n v_and_b32 v{vT+2}, 31, v0\n v_add_u32 v{vT+2}, s48, v{vT+2}")
    a(f"v_lshrrev_b32 v{VPF}, 1, v{vT+2}\n v_mul_u32_u24 v{VPF}, 3584, v{VPF}\n v_lshl_add_u32 v{VPF}, v{vT+1}, 8, v{VPF}\n v_and_b32 v{vT+3}, 1, v{vT+2}\n v_lshl_add_u32 v{VPF}, v{vT+3}, 7, v{VPF}")
    a(f"s_mov_b32 s48, 114688\n v_mul_lo_u32 v{VPF+1}, v{vT+1}, s48\n v_lshl_add_u32 v{VPF+1}, v{vT+2}, 7, v{VPF+1}")
    def touch2():
        a("s_cmp_ge_u32 s42, 2\n s_cbranch_scc1 L_PFB")
        a(f"buffer_load_dword v{VPF+2}, v{VPF}, s[{sWIN}:{sWIN+3}], 0 offen")
        a("s_branch L_PFD\nL_PFB:")
        a("s_cmp_ge_u32 s42, 4\n s_cselect_b32 s49, 0x10000000, 0")
        a(f"buffer_load_dword v{VPF+2}, v{VPF+1}, s[{sFT}:{sFT+3}], s49 offen")
        a("L_PFD:"); vm.issue("pf")
    a("s_barrier")
    if ZT == "vec":
        a("s_cmp_ge_u32 s42, 2\n s_cselect_b32 s49, 0x10000000, 0")
        a(f"buffer_load_dword v{VPF+3}, v{VPF}, s[{sWIN}:{sWIN+3}], s49 offen offset:1792"); vm.issue("pf")
    a(f"v_lshrrev_b32 v{TMP+2}, 4, v1\n v_and_b32 v{TMP+3}, 15, v1\n v_lshlrev_b32 v{TMP+4}, 2, v{TMP+2}\n v_xor_b32 v{TMP+3}, v{TMP+3}, v{TMP+4}")
    a(f"v_mul_u32_u24 v{vZ}, 3584, v{TMP+2}\n v_lshl_add_u32 v{vZ}, v{TMP+3}, 4, v{vZ}")
    a("s_mul_i32 s46, s42, 14336\n s_lshl_b32 s47, s44, 8\n s_add_u32 s46, s46, s47")
    a(f"s_mul_i32 s47, s44, {14*8192}\n s_lshl_b32 s48, s42, 10\n s_add_u32 s47, s47, s48")
    def dma(t):
        if t >= 21: return
        slot = (t % N1)*S1
        for u in range(2):
            a(f"s_add_u32 m0, s48, {slot+u*8192}")
            if t < 7 or t >= 14:
                a(f"s_add_u32 s49, s46, {(1792 if t < 7 else 0)+(64*(t % 7)+32*u)*3584}")
                a(f"buffer_load_dwordx4 v{vZ}, s[{sWIN}:{sWIN+3}], s49 offen lds"); vm.issue(("st", t))
            else:
                a(f"s_add_u32 s49, s47, {(2*(t-7)+u)*8192}")
                a(f"buffer_load_dwordx4 v{vF}, s[{sFT}:{sFT+3}], s49 offen lds"); vm.issue(("st", t))
    a(f"s_lshl_b32 s49, s42, 3\n v_add_u32 v{TMP+2}, s49, v{TMP}")
    a(f"v_bfe_u32 v{TMP+3}, v{TMP+2}, 1, 3\n v_xor_b32 v{TMP+3}, v{TMP+3}, v{TMP+1}")
    a(f"v_mul_u32_u24 v{vW}, 896, v{TMP+2}\n v_lshl_add_u32 v{vW}, v{TMP+3}, 4, v{vW}\n v_add_u32 v{vW}, {XN}, v{vW}")
    a(f"v_lshrrev_b32 v{TMP+2}, 1, v{TMP}\n s_and_b32 s88, s42, 1\n s_lshl_b32 s88, s88, 2\n v_add_u32 v{TMP+2}, s88, v{TMP+2}\n v_xor_b32 v{TMP+2}, v{TMP+1}, v{TMP+2}")
    a(f"v_lshlrev_b32 v{vA2}, 12, v{TMP}\n v_lshl_add_u32 v{vA2}, v{TMP+2}, 4, v{vA2}")
    a(f"v_lshrrev_b32 v{TMP+2}, 5, v1\n v_lshlrev_b32 v{vB2}, 14, v{TMP+2}\n v_and_b32 v{TMP+2}, 31, v1\n v_lshl_add_u32 v{vB2}, v{TMP+2}, 4, v{vB2}")
    a(f"s_lshl_b32 s88, s44, 19\n s_add_u32 s88, s88, s48\n s_add_u32 s88, s88, {Z2N}")
    a("s_lshr_b32 s86, s43, 4\n s_lshl_b32 s86, s86, 4\n s_bfe_u32 s49, s43, 0x10003\n s_lshl_b32 s49, s49, 2\n s_add_u32 s86, s86, s49\n s_and_b32 s49, s42, 1\n s_lshl_b32 s49, s49, 3\n s_add_u32 s86, s86, s49")
    def pslot(T): return PERM[T % 6]
    def slot2(T): return pslot(T)*S2
    def dmaA(T):
        a(f"s_add_u32 m0, s48, {slot2(T)+16384}\n s_add_u32 s49, s87, {T*128}")
        a(f"buffer_load_dwordx4 v{vA2}, s[{sSP}:{sSP+3}], s49 offen lds"); vm.issue(("g", T))
    def dmaB(T):
        for u in range(2):
            a(f"s_add_u32 m0, s48, {slot2(T)+u*8192}\n s_add_u32 s49, s88, {T*16384+u*8192}")
            a(f"buffer_load_dwordx4 v{vF}, s[{sWS}:{sWS+3}], s49 offen sc1 lds"); vm.issue(("g", T))
    a(f"s_and_b32 s49, s42, 1\n s_lshl_b32 s49, s49, 5\n v_and_b32 v{TMP+2}, 31, v1\n v_add_u32 v{TMP+2}, s49, v{TMP+2}")
    a(f"v_bfe_u32 v{TMP+3}, v{TMP+2}, 1, 3\n v_lshrrev_b32 v{TMP+4}, 5, v1\n v_xor_b32 v{TMP+3}, v{TMP+3}, v{TMP+4}")
    a(f"v_mul_u32_u24 v{TMP+2}, 896, v{TMP+2}\n v_add_u32 v{TMP+2}, {XN}, v{TMP+2}")
    for c in range(4):
        a(f"v_xor_b32 v{TMP+4}, {2*c}, v{TMP+3}\n v_lshl_add_u32 v{vAA+c}, v{TMP+4}, 4, v{TMP+2}")
    a(f"v_lshrrev_b32 v{TMP+2}, 5, v1\n v_bfe_u32 v{TMP+3}, v1, 2, 2")
    a(f"v_lshl_add_u32 v{TMP+2}, v{TMP+2}, 3, v{TMP+3}")
    a(f"v_and_b32 v{TMP+6}, 1, v1\n v_lshlrev_b32 v{TMP+6}, 3, v{TMP+6}")
    a(f"v_bfe_u32 v{TMP+4}, v1, 4, 1\n v_bfe_u32 v{TMP+5}, v1, 1, 1\n v_lshl_add_u32 v{TMP+4}, v{TMP+4}, 1, v{TMP+5}")
    a(f"v_lshlrev_b32 v{TMP+5}, 2, v{TMP+3}\n v_xor_b32 v{TMP+5}, v{TMP+4}, v{TMP+5}")
    a("s_lshr_b32 s51, s42, 1\n s_lshl_b32 s51, s51, 2\n s_and_b32 s49, s42, 2\n s_lshl_b32 s49, s49, 2\n s_add_u32 s50, s49, 4")
    for idx, sreg in ((0, 51),):
        a(f"v_xor_b32 v{TMP+7}, s{sreg}, v{TMP+5}\n v_lshl_add_u32 v{vTR+2*idx}, v{TMP+2}, 8, v{TMP+6}\n v_lshl_add_u32 v{vTR+2*idx}, v{TMP+7}, 4, v{vTR+2*idx}\n v_add_u32 v{vTR+2*idx+1}, 0x10000, v{vTR+2*idx}")
    a(f"s_mov_b32 s52, {hex(f32bits(C2))}\n s_mov_b32 s54, 0x3f803f80")
    a(f"v_mov_b32 v{VC1}, {hex(f32bits(C1))}")
    a(f"s_lshl_b32 s55, s43, 1\n s_and_b32 s57, s42, 1\n s_add_u32 s55, s55, s57\n s_mul_i32 s55, s55, 3584\n s_add_u32 s55, s55, {ST}")
    a("s_lshl_b32 s61, s44, 9\n s_add_u32 s61, s61, s55")
    a(f"s_lshl_b32 s56, s57, 10\n s_lshr_b32 s57, s42, 1\n s_lshl_b32 s57, s57, 3\n s_add_u32 s56, s56, s57\n s_add_u32 s56, s56, {SX}")
    a("s_and_b32 s49, s42, 6\n s_cmp_eq_u32 s49, 4\n s_cselect_b32 s55, s55, 0x20000000")
    a(f"s_lshl_b32 s72, s43, 1\n s_and_b32 s49, s42, 1\n s_add_u32 s72, s72, s49\n s_mul_i32 s72, s72, 56\n s_lshl_b32 s49, s44, 3\n s_add_u32 s72, s72, s49\n s_and_b32 s49, s42, 6\n s_add_u32 s72, s72, s49\n s_lshl_b32 s72, s72, 10\n s_add_u32 s72, s72, {H}")
    a(f"s_lshl_b32 s74, s43, 3\n s_add_u32 s74, s74, s44\n s_lshl_b32 s74, s74, 7\n s_add_u32 s74, s74, {FLH}")
    a(f"s_lshl_b32 s75, s44, 18\n s_lshl_b32 s49, s43, 7\n s_add_u32 s75, s75, s49\n s_add_u32 s75, s75, {U}")
    a("s_lshl_b32 s73, s86, 6\n s_and_b32 s49, s43, 7\n s_lshl_b32 s49, s49, 3\n s_add_u32 s73, s73, s49\n s_lshl_b32 s73, s73, 1")
    a("s_lshl_b32 s58, s44, 5\n s_add_u32 s58, s58, s86\n s_lshl_b32 s58, s58, 14")
    a("s_bfe_u32 s49, s43, 0x20001\n s_lshl_b32 s49, s49, 12\n s_add_u32 s58, s58, s49\n s_and_b32 s49, s43, 1\n s_lshl_b32 s49, s49, 9\n s_add_u32 s58, s58, s49")
    a(f"s_lshr_b32 s49, s42, 1\n s_lshl_b32 s49, s49, 10\n s_add_u32 s58, s58, s49\n s_add_u32 s58, s58, {Z2N}")
    a(f"s_lshl_b32 s59, s44, 5\n s_add_u32 s59, s59, s43\n s_lshl_b32 s59, s59, 7\n s_add_u32 s60, s59, {FLU}\n s_add_u32 s59, s59, {FLZ}")
    a(f"s_lshl_b32 s89, s44, 12\n s_add_u32 s89, s89, {FLZ}")
    a(f"v_and_b32 v{vPA}, 31, v1\n v_lshlrev_b32 v{vPA}, 7, v{vPA}")
    a(f"s_waitcnt vmcnt({vm.wait('x')})")
    stg(1); dbgt(5)
    S = TMP; DV = XF
    a("s_mov_b32 s50, 0x00003f80\n s_mov_b32 s51, 0x3f800000")
    for i in range(4): a(f"v_mov_b32 v{S+i}, 0")
    for i in range(28): a(f"v_dot2_f32_bf16 v{S+(i&3)}, v{BF+i}, s54, v{S+(i&3)}")
    dma(0)
    a(f"v_add_f32 v{S}, v{S}, v{S+1}\n v_add_f32 v{S+2}, v{S+2}, v{S+3}\n v_add_f32 v{S}, v{S}, v{S+2}")
    red8(a, S)
    vM, vMB, vNM = TMP+4, TMP+5, TMP+6
    a(f"v_mul_f32 v{vM}, {hex(f32bits(1/448))}, v{S}")
    a(f"v_cvt_pk_bf16_f32 v{vMB}, 0, v{vM}\n v_sub_f32 v{vNM}, 0, v{vMB}")
    for i in range(4): a(f"v_mov_b32 v{S+i}, 0")
    for i in range(0, 28, 4):
        for u in range(4):
            d = DV+2*(i+u)
            a(f"v_dot2_f32_bf16 v{d}, v{BF+i+u}, s50, v{vNM}\n v_dot2_f32_bf16 v{d+1}, v{BF+i+u}, s51, v{vNM}")
        if i >= 4:
            for u in range(4):
                d = DV+2*(i-4+u); s_ = S+2*(u & 1)
                a(f"v_pk_fma_f32 v[{s_}:{s_+1}], v[{d}:{d+1}], v[{d}:{d+1}], v[{s_}:{s_+1}]")
        if i == 8: dma(1)
        if i == 20: dma(2)
    for u in range(4):
        d = DV+2*(24+u); s_ = S+2*(u & 1)
        a(f"v_pk_fma_f32 v[{s_}:{s_+1}], v[{d}:{d+1}], v[{d}:{d+1}], v[{s_}:{s_+1}]")
    a(f"v_add_f32 v{S}, v{S}, v{S+1}\n v_add_f32 v{S+2}, v{S+2}, v{S+3}\n v_add_f32 v{S}, v{S}, v{S+2}")
    for i in range(16): a(f"v_cvt_pk_bf16_f32 v{DV+i}, 0, v{DV+i}")
    red8(a, S)
    vRS = TMP+6; t = S+2
    a(f"v_sub_f32 v{t}, v{vM}, v{vMB}\n v_mul_f32 v{t}, v{t}, v{t}\n v_mov_b32 v{t+1}, {hex(f32bits(1.0/448))}\n v_fma_f32 v{t}, v{S}, v{t+1}, -v{t}\n v_max_f32 v{t}, 0, v{t}")
    n0 = len(a.lines); var_to_rs(a, t, vRS); a(f"v_mov_b32 v{vRS+1}, v{vRS}"); chain = a.lines[n0:]; del a.lines[n0:]
    for i in range(16, 56):
        a(f"v_cvt_pk_bf16_f32 v{DV+i}, 0, v{DV+i}")
        if chain and i % 3 == 0: a(chain.pop(0))
    for l in chain: a(l)
    dma(3)
    for i in range(0, 28, 4):
        for u in range(4):
            d = DV+2*(i+u); a(f"v_pk_mul_f32 v[{d}:{d+1}], v[{d}:{d+1}], v[{vRS}:{vRS+1}]")
        for u in range(4):
            d = DV+2*(i+u); a(f"v_cvt_pk_bf16_f32 v{BF+i+u}, v{d}, v{d+1}")
        a(f"ds_write_b128 v{vW}, v[{BF+i}:{BF+i+3}] offset:{32*i}")
    stg(2)
    dma(4); touch2()
    a("s_waitcnt lgkmcnt(0)")
    def capture(fn, *args):
        n0 = len(a.lines); fn(*args); out = a.lines[n0:]; del a.lines[n0:]; return out
    def trbase(idx, t):
        slot = (t % N1)*S1
        return (vTR+2*idx+(1 if slot >= 65536 else 0), slot-(65536 if slot >= 65536 else 0))
    def reads1(t):
        b = BF+16*(t & 1); vb, so = trbase(0, t)
        for k in range(4):
            c16 = 4*(t % 7)+k
            if t < 7: a(f"ds_read_b128 v[{XF+4*c16}:{XF+4*c16+3}], v{vAA+(c16&3)} offset:{(c16>>2)*128}")
            for tt in range(2):
                a(f"ds_read_b64_tr_b16 v[{b+4*k+2*tt}:{b+4*k+2*tt+1}], v{vb} offset:{so+k*4096+tt*1024}")
    def mfma1(t):
        b = BF+16*(t & 1)
        for k in range(4):
            c16 = 4*(t % 7)+k
            cin = "0" if c16 == 0 else f"v[{ACC}:{ACC+15}]"
            a(f"v_mfma_f32_32x32x16_bf16 v[{ACC}:{ACC+15}], v[{b+4*k}:{b+4*k+3}], v[{XF+4*c16}:{XF+4*c16+3}], {cin}")
    def body(mf, rd, issue, bgq=None, nbg=0):
        n = max(len(mf), 1); h = (len(rd)+1)//2 if n > 1 else len(rd)
        for i in range(n):
            if i < len(mf): a(mf[i])
            if i == 0:
                for l in rd[:h]: a(l)
            if i == 1:
                for l in rd[h:]: a(l)
            if i == min(2, n-1): issue()
            if bgq:
                for _ in range(nbg):
                    if bgq: a(bgq.pop(0))
    for t in range(7):
        a(f"s_waitcnt vmcnt({vm.wait(('st', t))})")
        a("s_barrier")
        stg(3+t)
        if t == 0:
            a(f"buffer_load_dword v{vPOLL}, v{vZERO}, s[{sDBG}:{sDBG+3}], 0 offen sc1"); vm.issue("nonce")
        if t == 6: get_nonce("L_NON")
        body(capture(mfma1, t-1) if t > 0 else [], capture(reads1, t), lambda: dma(t+D))
        a("s_waitcnt lgkmcnt(0)")
    mfma1(6)
    dbgt(6)
    def late_touch():
        NS_ = WSP_K2-WSP_K1; NLN = NS_*2048; PERW = -(-NLN//224)
        MATCH = int(os.environ.get("MATCH", "1"))
        if MATCH:
            a("s_and_b32 s49, s40, 4\n s_and_b32 s50, s40, 1\n s_lshl_b32 s50, s50, 1\n s_add_u32 s49, s49, s50\n s_bfe_u32 s50, s40, 0x10001\n s_add_u32 s49, s49, s50")
            if MATCH == 2: a("s_bfe_u32 s50, s42, 0x10001\n s_lshl_b32 s50, s50, 1\n s_xor_b32 s49, s49, s50")
        else: a("s_mov_b32 s49, s40")
        a(f"s_mul_i32 s49, s49, 28\n s_add_u32 s49, s49, s41\n s_mul_i32 s49, s49, {PERW}\n v_and_b32 v{TMP}, 127, v0\n v_add_u32 v{TMP}, s49, v{TMP}")
        assert PERW == 128
        if MATCH == 2: PERW = 256
        MG = (2**32+NS_-1)//NS_
        a(f"s_mov_b32 s49, {MG}\n v_mul_hi_u32 v{TMP+1}, v{TMP}, s49\n v_mul_u32_u24 v{TMP+2}, {NS_}, v{TMP+1}\n v_sub_u32 v{TMP+2}, v{TMP}, v{TMP+2}")
        a(f"v_lshlrev_b32 v{TMP+1}, 12, v{TMP+1}\n v_lshl_add_u32 v{TMP+1}, v{TMP+2}, 7, v{TMP+1}")
        a(f"v_cmp_gt_u32 vcc, {PERW}, v0\n v_mov_b32 v{TMP+2}, 0x10000000\n v_cndmask_b32 v{TMP+1}, v{TMP+2}, v{TMP+1}, vcc")
        a(f"buffer_load_dword v{VPF+2}, v{TMP+1}, s[{sSP}:{sSP+3}], 0 offen offset:{128*WSP_K1}"); vm.issue("pf")
        srd(a, 92, 82, 896*896)
        a("s_cmp_lg_u32 s42, 7\n s_cbranch_scc1 L_WO1")
        pc_srd(a, 92, "TAB_TT", 7*56*1024)
        a("L_WO1:")
        a("s_mul_i32 s49, s40, 28\n s_add_u32 s49, s49, s41\n s_cmp_eq_u32 s42, 7\n s_cselect_b32 s50, 14, 28\n s_mul_i32 s49, s49, s50\n s_lshl_b32 s49, s49, 7\n s_cmp_lt_u32 s42, 6\n s_cselect_b32 s50, 0, s50")
        a(f"v_lshlrev_b32 v{TMP+1}, 7, v1\n v_cmp_gt_u32 vcc, s50, v1\n v_cndmask_b32 v{TMP+1}, v{TMP+2}, v{TMP+1}, vcc")
        a(f"buffer_load_dword v{VPF+3}, v{TMP+1}, s[92:95], s49 offen"); vm.issue("pf")
        pc_srd(a, sTT, "TAB_TT", 7*56*1024)
    WT_T = int(os.environ.get("WTT", "0"))
    if WT_T == 0: late_touch()
    a(f"s_mov_b32 s53, s52\n v_mov_b32 v{VC1+1}, v{VC1}")
    def gelu_pk(acc, tmp, dst=None):
        P = lambda b, i: f"v[{b+2*i}:{b+2*i+1}]"
        for i in range(16): a(f"v_cvt_pk_bf16_f32 v{acc+i}, 0, v{acc+i}")
        for i in range(8): a(f"v_pk_mul_f32 {P(tmp,i)}, {P(acc,i)}, {P(acc,i)}")
        for i in range(8): a(f"v_pk_fma_f32 {P(tmp,i)}, {P(tmp,i)}, s[52:53], v[{VC1}:{VC1+1}]")
        for i in range(8): a(f"v_pk_mul_f32 {P(tmp,i)}, {P(tmp,i)}, {P(acc,i)}")
        for i in range(16): a(f"v_exp_f32 v{tmp+i}, v{tmp+i}")
        for i in range(8): a(f"v_pk_add_f32 {P(tmp,i)}, {P(tmp,i)}, 1.0 op_sel_hi:[1,0]")
        for i in range(16): a(f"v_rcp_f32 v{tmp+i}, v{tmp+i}")
        for i in range(8): a(f"v_pk_mul_f32 {P(tmp,i)}, {P(tmp,i)}, {P(acc,i)}")
        for i in range(16): a(f"v_cvt_pk_bf16_f32 v{(acc if dst is None else dst)+i}, 0, v{tmp+i}")
    Z2F = ACC
    gelu_pk(ACC, TMP)
    P_ = lambda b, i: f"v[{b+2*i}:{b+2*i+1}]"
    for i in range(4): a(f"v_pk_add_f32 {P_(TMP,i)}, {P_(ACC,i)}, {P_(ACC,i+4)}")
    for i in range(2): a(f"v_pk_add_f32 {P_(TMP,i)}, {P_(TMP,i)}, {P_(TMP,i+2)}")
    a(f"v_pk_add_f32 {P_(TMP,0)}, {P_(TMP,0)}, {P_(TMP,1)}\n v_add_f32 v{TMP}, v{TMP}, v{TMP+1}")
    halfsum(a, TMP, TMP+1)
    a(f"v_mul_f32 v{TMP+18}, {hex(f32bits(-1/32))}, v{TMP}")
    for i in range(8): a(f"v_pk_add_f32 {P_(TMP,i)}, {P_(ACC,i)}, v[{TMP+18}:{TMP+19}] op_sel_hi:[1,0]")
    for i in range(2): a(f"v_pk_mul_f32 {P_(PS,i)}, {P_(TMP,i)}, {P_(TMP,i)}")
    for i in range(2, 8): a(f"v_pk_fma_f32 {P_(PS,i&1)}, {P_(TMP,i)}, {P_(TMP,i)}, {P_(PS,i&1)}")
    a(f"v_pk_add_f32 {P_(PS,0)}, {P_(PS,0)}, {P_(PS,1)}\n v_add_f32 v{TMP+9}, v{PS}, v{PS+1}\n v_sub_f32 v{TMP+8}, 0, v{TMP+18}")
    halfsum(a, TMP+9, TMP+1)
    a(f"v_and_b32 v{TMP+10}, 31, v1\n v_lshlrev_b32 v{TMP+10}, 5, v{TMP+10}\n v_add_u32 v{TMP+10}, s56, v{TMP+10}")
    a(f"ds_write_b64 v{TMP+10}, v[{TMP+8}:{TMP+9}]")
    a(f"v_and_b32 v{TMP+21}, 31, v1\n v_lshlrev_b32 v{TMP+21}, 4, v{TMP+21}\n v_lshrrev_b32 v{TMP+20}, 5, v1\n v_mul_u32_u24 v{TMP+20}, 1536, v{TMP+20}\n v_add_u32 v{TMP+20}, v{TMP+20}, v{TMP+21}\n v_add_u32 v{TMP+21}, 3072, v{TMP+21}")
    a("s_waitcnt lgkmcnt(0)")
    G = PS; ACC3 = ACC
    def is45(label): a(f"s_and_b32 s49, s42, 6\n s_cmp_lg_u32 s49, 4\n s_cbranch_scc1 {label}")
    def gloads():
        for i in range(4):
            a(f"buffer_load_dwordx4 v[{G+4*i}:{G+4*i+3}], v{TMP+20 if i < 3 else TMP+21}, s[{sWS}:{sWS+3}], s55 offen offset:{(i % 3)*512} sc1")
    def norm_job():
        A0 = TMP; T3 = PS
        a(f"s_and_b32 s29, s42, 1\n s_lshl_b32 s29, s29, 8\n s_add_u32 s29, s29, {SX+2048}\n v_and_b32 v{A0}, 31, v1\n v_lshlrev_b32 v{A0}, 3, v{A0}\n v_add_u32 v{A0}, s29, v{A0}")
        a(f"ds_read_b64 v[{A0+2}:{A0+3}], v{A0}")
        a("s_waitcnt lgkmcnt(0)")
        for i in range(8): a(f"v_pk_add_f32 {P_(Z2F,i)}, {P_(Z2F,i)}, v[{A0+2}:{A0+3}] op_sel_hi:[1,0]")
        for i in range(16): a(f"v_cvt_pk_bf16_f32 v{Z2F+i}, 0, v{Z2F+i}")
        for i in range(8): a(f"v_pk_mul_f32 {P_(Z2F,i)}, {P_(Z2F,i)}, v[{A0+2}:{A0+3}] op_sel:[0,1]")
        for p in range(8): a(f"v_cvt_pk_bf16_f32 v{ZP+p}, v{Z2F+2*p}, v{Z2F+2*p+1}")
    def norm_job2():
        A0 = TMP; T3 = PS
        a(f"s_lshl_b32 s29, s42, 11\n s_add_u32 s29, s29, {TSC}")
        a(f"v_and_b32 v{A0}, 31, v1\n v_lshlrev_b32 v{A0}, 6, v{A0}\n v_lshrrev_b32 v{A0+1}, 5, v1\n v_lshl_add_u32 v{A0}, v{A0+1}, 3, v{A0}\n v_add_u32 v{A0}, s29, v{A0}")
        a(f"v_bfe_u32 v{A0+2}, v1, 1, 2\n v_lshlrev_b32 v{A0+2}, 4, v{A0+2}")
        for j in range(4):
            a(f"v_xor_b32 v{A0+4+j}, {16*j}, v{A0+2}\n v_add_u32 v{A0+4+j}, v{A0+4+j}, v{A0}")
        for j in range(4): a(f"ds_write_b64 v{A0+4+j}, v[{ZP+2*j}:{ZP+2*j+1}]")
        a(f"v_bfe_u32 v{A0+2}, v1, 2, 2\n v_lshl_add_u32 v{A0+1}, v{A0+1}, 3, v{A0+2}\n v_lshlrev_b32 v{A0+1}, 6, v{A0+1}\n v_and_b32 v{A0+3}, 1, v1\n v_lshl_add_u32 v{A0+1}, v{A0+3}, 3, v{A0+1}\n v_add_u32 v{A0+1}, s29, v{A0+1}")
        a(f"v_bfe_u32 v{A0+3}, v1, 4, 1\n v_bfe_u32 v{A0+8}, v1, 1, 1\n v_lshl_add_u32 v{A0+3}, v{A0+3}, 1, v{A0+8}\n v_lshrrev_b32 v{A0+2}, 1, v{A0+2}\n v_xor_b32 v{A0+3}, v{A0+3}, v{A0+2}")
        a(f"v_lshl_add_u32 v{A0+8}, v{A0+3}, 4, v{A0+1}\n v_xor_b32 v{A0+3}, 2, v{A0+3}\n v_lshl_add_u32 v{A0+9}, v{A0+3}, 4, v{A0+1}")
        for c in range(2):
            for tt in range(2): a(f"ds_read_b64_tr_b16 v[{T3+4*c+2*tt}:{T3+4*c+2*tt+1}], v{A0+8+tt} offset:{c*1024+tt*256}")
        a("s_add_u32 s28, s58, 32768\n s_waitcnt lgkmcnt(0)")
    def check_stats():
        is45("L_NOCHK")
        a("s_mov_b32 s50, 0\nL_CHK:")
        a(f"v_cmp_eq_u32 vcc, s63, v{G+1}")
        for i in range(1, 8): a(f"v_cmp_eq_u32 s[30:31], s63, v{G+1+2*i}\n s_and_b64 vcc, vcc, s[30:31]")
        a("s_add_u32 s50, s50, 1\n s_cmp_eq_u64 vcc, exec\n s_cbranch_scc1 L_CHKOK")
        a(f"s_cmp_ge_u32 s50, {SPIN}\n s_cbranch_scc1 L_CHKOK")
        a("s_sleep 2"); gloads()
        a("s_waitcnt vmcnt(0)\n s_branch L_CHK\nL_CHKOK:")
        B0 = TMP
        a(f"v_mul_f32 v{B0}, 0.5, v{G+12}\n v_mul_f32 v{B0+1}, 0.5, v{G+14}")
        for i in range(3): a(f"v_add_f32 v{B0}, v{B0}, v{G+4*i}\n v_add_f32 v{B0+1}, v{B0+1}, v{G+4*i+2}")
        halfsum(a, B0, B0+2); halfsum(a, B0+1, B0+2)
        a(f"v_mul_f32 v{B0}, {hex(f32bits(1/7))}, v{B0}")
        a(f"v_sub_f32 v{B0+4}, v{G+12}, v{B0}\n v_mul_f32 v{B0+3}, v{B0+4}, v{B0+4}\n v_mul_f32 v{B0+3}, 0.5, v{B0+3}")
        for i in range(3): a(f"v_sub_f32 v{B0+4}, v{G+4*i}, v{B0}\n v_fmac_f32 v{B0+3}, v{B0+4}, v{B0+4}")
        halfsum(a, B0+3, B0+2)
        a(f"v_mov_b32 v{B0+2}, 0x43000000\n v_fma_f32 v{B0+1}, v{B0+3}, v{B0+2}, v{B0+1}")
        a(f"v_mul_f32 v{B0+1}, {hex(f32bits(1/896))}, v{B0+1}")
        var_to_rs(a, B0+1, B0+5)
        a(f"v_cvt_pk_bf16_f32 v{B0+4}, 0, v{B0}\n v_sub_f32 v{B0+4}, 0, v{B0+4}")
        a(f"s_and_b32 s49, s42, 1\n s_lshl_b32 s49, s49, 8\n s_add_u32 s49, s49, {SX+2048}\n v_and_b32 v{B0+6}, 31, v1\n v_lshlrev_b32 v{B0+6}, 3, v{B0+6}\n v_add_u32 v{B0+6}, s49, v{B0+6}")
        a(f"ds_write_b64 v{B0+6}, v[{B0+4}:{B0+5}]\n s_waitcnt lgkmcnt(0)")
        a("L_NOCHK:")
    a("s_cmp_ge_u32 s42, 4\n s_cbranch_scc1 L_P2Z")
    vm_save = list(vm.ops); vm_end = {}
    pend = stg.pending
    EARLY = {16: [0, 1], 17: [2], 18: [3], 20: [4]}
    HB = [BF+16, PS, BF]
    assert CHK_T == 14 or HB[(2*(CHK_T-7)-1) % 3] != PS
    ACF = ACC2
    for path in ("F", "Z"):
        vm.ops = list(vm_save); stg.pending = pend
        if path == "Z": a("L_P2Z:")
        else:
            a(f"s_lshr_b32 s49, s42, 1\n s_lshl_b32 s49, s49, 12\n v_add_u32 v{vTR+2}, s49, v{vF}\n v_add_u32 v{vTR+3}, 0x10000, v{vTR+2}")
        def readsF(hh):
            b = HB[hh % 3]; vb, so = trbase(1, 7+(hh >> 1))
            return [f"ds_read_b128 v[{b+4*f}:{b+4*f+3}], v{vb} offset:{so+(hh & 1)*8192+f*1024}" for f in range(4)]
        def mfmaF(hh):
            if hh < 0: return []
            b = HB[hh % 3]; out = []
            for f in range(4):
                c16 = 2*hh+(f >> 1)
                cin = "0" if (hh == 0 and f == 0) else f"v[{ACF}:{ACF+15}]"
                out.append(f"v_mfma_f32_32x32x16_bf16 v[{ACF}:{ACF+15}], v[{XF+4*c16}:{XF+4*c16+3}], v[{b+4*f}:{b+4*f+3}], {cin}")
            return out
        for t in range(7, 14):
            n = vm.wait(("st", t))
            if t == CHK_T and path == "Z": n = min(n, vm.wait("gl"))
            a(f"s_waitcnt vmcnt({n})")
            if t == CHK_T and path == "Z": check_stats()
            a("s_barrier")
            stg(3+t)
            if t == 7 and path == "Z":
                is45("L_NOSIG")
                B0 = TMP
                a(f"v_and_b32 v{B0+10}, 31, v1\n v_lshlrev_b32 v{B0+11}, 5, v{B0+10}\n s_sub_u32 s49, s56, 16\n v_add_u32 v{B0+11}, s49, v{B0+11}")
                a(f"ds_read_b128 v[{B0}:{B0+3}], v{B0+11}\n ds_read_b128 v[{B0+4}:{B0+7}], v{B0+11} offset:16\n s_waitcnt lgkmcnt(0)")
                a(f"v_add_f32 v{B0+8}, v{B0}, v{B0+2}\n v_add_f32 v{B0+9}, v{B0+4}, v{B0+6}\n v_add_f32 v{B0+8}, v{B0+8}, v{B0+9}\n v_mul_f32 v{B0+12}, 0.25, v{B0+8}")
                a(f"v_add_f32 v{B0+14}, v{B0+1}, v{B0+3}\n v_add_f32 v{B0+9}, v{B0+5}, v{B0+7}\n v_add_f32 v{B0+14}, v{B0+14}, v{B0+9}\n v_mov_b32 v{B0+8}, 0")
                for i in range(4): a(f"v_sub_f32 v{B0+9}, v{B0+2*i}, v{B0+12}\n v_fmac_f32 v{B0+8}, v{B0+9}, v{B0+9}")
                a(f"v_mov_b32 v{B0+9}, 0x42000000\n v_fma_f32 v{B0+14}, v{B0+8}, v{B0+9}, v{B0+14}")
                a(f"v_mov_b32 v{B0+13}, s63\n v_mov_b32 v{B0+15}, s63\n v_lshlrev_b32 v{B0+10}, 4, v{B0+10}")
                a(f"buffer_store_dwordx4 v[{B0+12}:{B0+15}], v{B0+10}, s[{sWS}:{sWS+3}], s61 offen sc1")
                a("s_nop 1\nL_NOSIG:")
            def issue():
                if t == LD_T and path == "Z":
                    gloads()
                    for i in range(4): vm.issue("gl")
                dma(t+D)
            if t == CHK_T:
                norm_job(); norm_job2()
                for q in range(2):
                    a(f"buffer_store_dwordx4 v[{PS+4*q}:{PS+4*q+3}], v{vB2}, s[{sWS}:{sWS+3}], s{58 if q == 0 else 28} offen sc1"); vm.issue("z2n")
            if path == "Z": issue()
            else:
                hh = 2*(t-7)
                body(mfmaF(hh-1), readsF(hh)+readsF(hh+1), issue)
                a("s_waitcnt lgkmcnt(4)")
                for l in mfmaF(hh): a(l)
                a("s_waitcnt lgkmcnt(0)")
        if path == "F":
            for l in mfmaF(13): a(l)
            a(f"v_and_b32 v{TMP}, 31, v1\n s_lshr_b32 s49, s42, 1\n s_lshl_b32 s49, s49, 5\n v_add_u32 v{TMP}, s49, v{TMP}")
            a(f"v_mul_u32_u24 v{TMP}, {UXP}, v{TMP}\n v_lshrrev_b32 v{TMP+1}, 5, v1\n v_lshl_add_u32 v{TMP}, v{TMP+1}, 6, v{TMP}")
            a(f"s_and_b32 s49, s42, 1\n s_lshl_b32 s49, s49, 3\n s_add_u32 s49, s49, {UX}\n v_add_u32 v{TMP}, s49, v{TMP}")
            a("s_branch L_J1")
        vm_end[path] = list(vm.ops)
    vm.fork(vm_end["F"], vm_end["Z"])
    a("L_J1:")
    dbgt(7)
    T = 100; ZR = 88; BS = 96; FR = 20; AC = 104; Z1F = 124
    vTR2 = 84; vWA = 140
    a("s_cmp_ge_u32 s42, 4\n s_cbranch_scc1 L_NOUX")
    for r in range(4):
        a(f"v_cvt_pk_f16_f32 v{TMP+2+2*r}, v{ACF+r}, v{ACF+4+r}\n v_cvt_pk_f16_f32 v{TMP+3+2*r}, v{ACF+8+r}, v{ACF+12+r}")
        a(f"ds_write_b64 v{TMP}, v[{TMP+2+2*r}:{TMP+3+2*r}] offset:{16*r}")
    a("s_waitcnt lgkmcnt(0)\nL_NOUX:")
    def win(Tg): sl = pslot(Tg); return sl >> 1, (sl & 1)*S2
    FZ_T, FU_T = 14+FZ_G, 18
    for t in range(14, 21):
        n = vm.wait(("st", t))
        if t == FU_T: n = min(n, vm.wait("u"))
        if t == FZ_T: n = min(n, vm.wait("z2n"))
        if t == CHK_T: n = min(n, vm.wait("gl"))
        a(f"s_waitcnt vmcnt({n})")
        if t == CHK_T: check_stats()
        a("s_barrier")
        stg(3+t)
        if t == FU_T: set_flag("L_FU", 60)
        if t == FZ_T: set_flag("L_FZ", 59)
        if t == CHK_T:
            norm_job(); norm_job2()
            for q in range(2):
                a(f"buffer_store_dwordx4 v[{PS+4*q}:{PS+4*q+3}], v{vB2}, s[{sWS}:{sWS+3}], s{58 if q == 0 else 28} offen sc1"); vm.issue("z2n")
        if t == 14:
            a(f"v_lshrrev_b32 v{TMP+12}, 3, v0\n v_and_b32 v{TMP+13}, 7, v0")
            a(f"v_mul_u32_u24 v{TMP+14}, {UXP}, v{TMP+12}\n v_lshl_add_u32 v{TMP+14}, v{TMP+13}, 4, v{TMP+14}\n v_add_u32 v{TMP+14}, {UX}, v{TMP+14}")
            a(f"ds_read_b128 v[{TMP+16}:{TMP+19}], v{TMP+14}")
            a(f"v_lshlrev_b32 v{TMP+12}, 12, v{TMP+12}\n v_lshl_add_u32 v{TMP+12}, v{TMP+13}, 4, v{TMP+12}")
        def issue():
            dma(t+D)
            for T_ in EARLY.get(t, []): dmaA(T_)
            if t == WT_T: late_touch()
        body(capture(mfma1, t-1) if t > 14 else [], capture(reads1, t), issue)
        a("s_waitcnt lgkmcnt(0)")
        if t == 14:
            a(f"buffer_store_dwordx4 v[{TMP+16}:{TMP+19}], v{TMP+12}, s[{sWS}:{sWS+3}], s75 offen sc1"); vm.issue("u")
    mfma1(20)
    stg(24)
    def p2_setup():
        a(f"s_lshr_b32 s46, s42, 1\n s_lshl_b32 s46, s46, 10\n v_add_u32 v{vTR2}, s46, v{vF}")
        a(f"v_add_u32 v{vTR2+1}, {2*S2}, v{vTR2}\n v_add_u32 v{vTR2+2}, {4*S2}, v{vTR2}")
        a(f"v_and_b32 v{T}, 31, v1\n s_and_b32 s46, s42, 1\n s_lshl_b32 s46, s46, 5\n v_add_u32 v{T}, s46, v{T}")
        a(f"v_bfe_u32 v{T+1}, v{T}, 1, 3\n v_lshrrev_b32 v{T+2}, 5, v1\n v_xor_b32 v{T+1}, v{T+1}, v{T+2}\n v_lshlrev_b32 v{T}, 7, v{T}\n v_add_u32 v{T}, 16384, v{T}")
        for k in range(4):
            a(f"v_xor_b32 v{T+2}, {2*k}, v{T+1}\n v_lshl_add_u32 v{vWA+k}, v{T+2}, 4, v{T}")
            a(f"v_add_u32 v{vWA+4+k}, {2*S2}, v{vWA+k}\n v_add_u32 v{vWA+8+k}, {4*S2}, v{vWA+k}")
    def gelu_z1(): gelu_pk(ACC, TMP, Z1F); p2_setup()
    a("s_cmp_eq_u32 s42, 0\n s_cbranch_scc1 L_G0")
    gelu_z1()
    a("L_G0:")
    poll_pipe("L_CZ", 89, 240, gap=2)
    a("s_barrier")
    stg(25); dbgt(8)
    for Tg in range(D): dmaB(Tg)
    a("s_cmp_lg_u32 s42, 0\n s_cbranch_scc1 L_G1")
    gelu_z1()
    a("L_G1:")
    n_p3 = len(a.lines)
    vB3, vY3, vO3, XR = 152, 153, 154, 156
    srd(a, sWO, 82, 896*896)
    a("s_lshl_b32 s51, s40, 2\n s_and_b32 s52, s41, 3\n s_add_u32 s51, s51, s52\n s_lshr_b32 s52, s41, 2")
    a("s_lshr_b32 s53, s51, 4\n s_lshl_b32 s53, s53, 4\n s_bfe_u32 s54, s51, 0x10003\n s_lshl_b32 s54, s54, 2\n s_add_u32 s53, s53, s54")
    a(f"v_lshrrev_b32 v{T}, 3, v1\n v_and_b32 v{T+1}, 7, v1\n v_bfe_u32 v{T+2}, v1, 4, 1\n v_lshlrev_b32 v{T+2}, 2, v{T+2}\n v_xor_b32 v{T+2}, v{T+1}, v{T+2}")
    a(f"v_mul_u32_u24 v{vB3}, 896, v{T}\n v_lshl_add_u32 v{vO3}, v{T+1}, 4, v{vB3}\n v_lshl_add_u32 v{vB3}, v{T+2}, 4, v{vB3}")
    a(f"s_lshl_b32 s54, s51, 1\n s_lshr_b32 s55, s42, 2\n s_add_u32 s54, s54, s55\n s_mul_i32 s54, s54, 56\n s_and_b32 s55, s42, 3\n s_add_u32 s54, s54, s55\n s_lshl_b32 s54, s54, 10\n s_add_u32 s54, s54, {H}")
    a("s_mul_i32 s55, s42, 7168\n s_lshl_b32 s56, s52, 7\n s_add_u32 s55, s55, s56")
    a(f"s_mul_i32 s56, s51, 57344\n s_add_u32 s56, s56, s48\n s_add_u32 s56, s56, {YT}")
    a("s_mul_i32 s57, s52, 56\n s_add_u32 s57, s57, s42\n s_lshl_b32 s57, s57, 10")
    a("s_lshr_b32 s58, s42, 2\n s_lshl_b32 s58, s58, 3\n s_add_u32 s58, s58, s53\n s_and_b32 s59, s42, 3\n s_add_u32 s58, s58, s59\n s_lshl_b32 s58, s58, 6")
    a("s_and_b32 s59, s51, 7\n s_lshl_b32 s59, s59, 3\n s_add_u32 s58, s58, s59\n s_mul_i32 s58, s58, 896\n s_lshl_b32 s59, s52, 7\n s_add_u32 s58, s58, s59")
    a(f"s_lshl_b32 s61, s51, 10\n s_add_u32 s61, s61, {FLH}\n s_mov_b32 s62, {FLY}")
    p3_setup = a.lines[n_p3:]; del a.lines[n_p3:]
    blk = {}
    free = []
    def unit(kind, i):
        b = free.pop(0); blk[(kind, i)] = b
        a(f"s_add_u32 m0, s48, {b*8192}")
        if kind == "T":
            a(f"s_add_u32 s49, s57, {i*8192}\n buffer_load_dwordx4 v{vF}, s[{sTT}:{sTT+3}], s49 offen lds")
        elif kind == "W":
            a(f"s_add_u32 s49, s55, {64*i*896}\n buffer_load_dwordx4 v{vB3}, s[{sWO}:{sWO+3}], s49 offen lds")
        elif kind == "Y":
            a(f"s_add_u32 s49, s56, {i*8192}\n buffer_load_dwordx4 v{vF}, s[{sWS}:{sWS+3}], s49 offen sc1 lds")
        else:
            a(f"s_add_u32 s49, s54, {4*i*1024}\n buffer_load_dwordx4 v{vF}, s[{sWS}:{sWS+3}], s49 offen sc1 lds")
        vm.issue((kind, i))
    PRE = {27: [("T", 0), ("T", 1), ("T", 2)], 28: [("T", 3), ("T", 4), ("T", 5)], 29: [("T", 6), ("W", 0), ("W", 1)],
           30: [("W", 2), ("W", 3)], 31: [], 32: []}
    POST = []
    def rd2(Tg, k):
        b = FR+32*(Tg & 1); w_, so = win(Tg)
        return [f"ds_read_b128 v[{b+8*k}:{b+8*k+3}], v{vTR2+w_} offset:{so+4096*k}"] + \
               [f"ds_read_b128 v[{b+8*k+4}:{b+8*k+7}], v{vWA+4*w_+k} offset:{so}"]
    def mf2(Tg):
        b = FR+32*(Tg & 1)
        return [f"v_mfma_f32_32x32x16_bf16 v[{AC}:{AC+15}], v[{b+8*k}:{b+8*k+3}], v[{b+8*k+4}:{b+8*k+7}], " + ("0" if (Tg == 0 and k == 0) else f"v[{AC}:{AC+15}]") for k in range(4)]
    def late_loads():
        SK = os.environ.get("SKIP", "")
        a("s_mov_b32 s46, s73")
        a(f"v_bfe_u32 v{T}, v1, 3, 2\n v_and_b32 v{T+1}, 7, v1\n v_lshlrev_b32 v{T}, 7, v{T}\n v_lshl_add_u32 v{T}, v{T+1}, 1, v{T}")
        if "b" in SK: a("s_mov_b32 s46, 0x20000000")
        a(f"buffer_load_ushort v{BS}, v{T}, s[{sBS}:{sBS+3}], s46 offen"); vm.issue("z1")
        a("s_mov_b32 s49, s58" if "x" not in SK else "s_mov_b32 s49, 0x20000000")
        a(f"buffer_load_dwordx4 v[{XR}:{XR+3}], v{vO3}, s[{sX}:{sX+3}], s49 offen"); vm.issue("z1")
    gl = []
    PY = 160
    WM = 164
    U_T, Y_T = int(os.environ.get("UT", "27")), 31
    for Tg in range(32):
        n = vm.wait(("g", Tg))
        a(f"s_waitcnt vmcnt({n})")
        a("s_barrier")
        stg(26+Tg)
        def issue():
            if Tg == 31: poll_issue("L_PY", 62, PY)
            if Tg == U_T: late_loads()
            if Tg+D < 32:
                dmaA(Tg+D); dmaB(Tg+D)
            else:
                free.extend(3*pslot(Tg-1)+i for i in range(3))
                for u_ in PRE[Tg]: unit(*u_)
        rd = rd2(Tg, 0)+rd2(Tg, 1)+rd2(Tg, 2)+rd2(Tg, 3)
        body(mf2(Tg-1) if Tg > 0 else [], rd, issue, p3_setup if Tg >= 2 else None, 3)
        a("s_waitcnt lgkmcnt(0)")
    assert not p3_setup
    dbgt(9)
    vTRo, vFRo, vTRs, vFRs = 168, 171, 224, 227; FG = 176; AC3 = 208; ACO = AC
    W3 = 49152
    a(f"v_bfe_u32 v{T}, v1, 2, 2\n v_lshrrev_b32 v{T+1}, 5, v1")
    a(f"v_bfe_u32 v{T+2}, v1, 4, 1\n v_bfe_u32 v{T+3}, v1, 1, 1\n v_lshl_add_u32 v{T+2}, v{T+2}, 1, v{T+3}")
    a(f"v_lshrrev_b32 v{T+3}, 1, v{T}\n v_lshlrev_b32 v{T+3}, 2, v{T+3}\n v_xor_b32 v{T+2}, v{T+2}, v{T+3}")
    a(f"v_and_b32 v{T+3}, 1, v1\n v_lshlrev_b32 v{T+3}, 3, v{T+3}\n v_lshl_add_u32 v{T+3}, v{T}, 7, v{T+3}")
    a("s_and_b32 s46, s42, 1\n s_bfe_u32 s47, s42, 0x10001")
    a(f"s_lshl_b32 s49, s47, 2\n v_xor_b32 v{T}, s49, v{T+2}\n v_lshl_add_u32 v{vTRo}, v{T}, 4, v{T+3}\n v_lshl_add_u32 v{vTRo}, v{T+1}, 9, v{vTRo}")
    a(f"s_lshl_b32 s49, s46, 12\n v_add_u32 v{vFRo}, s49, v{vF}")
    a(f"s_lshl_b32 s49, s46, 2\n v_xor_b32 v{T}, s49, v{T+2}\n v_lshl_add_u32 v{vTRs}, v{T}, 4, v{T+3}\n v_lshl_add_u32 v{vTRs}, v{T+1}, 10, v{vTRs}")
    a(f"s_lshl_b32 s49, s47, 10\n v_add_u32 v{vFRs}, s49, v{vF}")
    for b in (vTRo, vFRo, vTRs, vFRs): a(f"v_add_u32 v{b+1}, {W3}, v{b}\n v_add_u32 v{b+2}, {2*W3}, v{b}")
    a("s_cmp_ge_u32 s42, 4\n s_cbranch_scc1 L_S")
    vm_save = list(vm.ops); free_save = list(free); blk_save = dict(blk)
    HF_T, HC_T, NWPRE = 34, int(os.environ.get("HC", "40")), int(os.environ.get("NWP", "8")); SS = 35; OS = 43
    EXO = 272; EXA, EXB, EXS = 0, 64*EXO, 128*EXO
    LAST = OS+7
    for path in ("O", "S"):
        vm.ops = list(vm_save); stg2.pending = None; free[:] = free_save; blk.clear(); blk.update(blk_save)
        if path == "S": a("L_S:")
        grp = 0 if path == "O" else 1
        def work(it):
            if SS <= it < SS+7: return ("S", it-SS) if path == "S" else None
            if OS <= it < OS+7: return ("O", 2*(it-OS)+grp)
            return None
        def fb(it): return FG if (it & 1) else FR
        def rd3(it):
            wk = work(it)
            if wk is None: return []
            b = fb(it); out = []
            if wk[0] == "S": b1, b2, vt, vf, ts, ks = blk[("Y", wk[1])], blk[("T", wk[1])], vTRs, vFRs, 512, 2048
            else: b1, b2, vt, vf, ts, ks = blk[("W", wk[1])], blk[("H", wk[1])], vTRo, vFRo, 1024, 1024
            for k in range(4):
                for tt in range(2):
                    out.append(f"ds_read_b64_tr_b16 v[{b+8*k+2*tt}:{b+8*k+2*tt+1}], v{vt+b1//6} offset:{(b1 % 6)*8192+k*2048+tt*ts}")
                out.append(f"ds_read_b128 v[{b+8*k+4}:{b+8*k+7}], v{vf+b2//6} offset:{(b2 % 6)*8192+k*ks}")
            return out
        def mf3(it):
            wk = work(it)
            if wk is None: return []
            b = fb(it); out = []
            for k in range(4):
                if wk[0] == "O":
                    cin = "0" if (it == OS and k == 0) else f"v[{ACO}:{ACO+15}]"
                    out.append(f"v_mfma_f32_32x32x16_bf16 v[{ACO}:{ACO+15}], v[{b+8*k}:{b+8*k+3}], v[{b+8*k+4}:{b+8*k+7}], {cin}")
                else:
                    cin = "0" if (it == SS and k == 0) else f"v[{AC3}:{AC3+15}]"
                    out.append(f"v_mfma_f32_32x32x16_f16 v[{AC3}:{AC3+15}], v[{b+8*k+4}:{b+8*k+7}], v[{b+8*k}:{b+8*k+3}], {cin}")
            return out
        nextW, nextH = [4], [0]; post = list(POST); CAP = int(os.environ.get("CAP", "9"))
        for it in range(32, LAST):
            need = []
            if SS <= it < SS+7: need = [("Y", it-SS), ("T", it-SS)]
            if OS <= it < OS+7: need = [(k_, 2*(it-OS)+g_) for k_ in "WH" for g_ in range(2)]
            if it == HF_T: need.append("h")
            if need: a(f"s_waitcnt vmcnt({min(vm.wait(x) for x in need)})")
            if it == 33 and path == "O":
                a("s_waitcnt vmcnt(2)")
                poll_check("L_CY", 62, PY, covered=True)
                a(f"v_and_b32 v{vPA}, 7, v1\n v_min_u32 v{vPA}, 6, v{vPA}\n v_lshlrev_b32 v{vPA}, 7, v{vPA}")
            if it == HC_T and path == "O": poll_pipe("L_CH", 61, 240, pre=3)
            a("s_barrier")
            stg2(it-32)
            if it == HF_T and path == "O": set_flag("L_FH", 74)
            def issue():
                if it == 32:
                    free.extend(3*pslot(31)+i for i in range(3))
                    for u_ in PRE[32]: unit(*u_)
                if it == 33:
                    for i_ in range(7): unit("Y", i_)
                    a(f"s_mov_b32 s49, {WMAX}")
                    a(f"buffer_load_dwordx4 v[{WM}:{WM+3}], v{vF}, s[{sWS}:{sWS+3}], s49 offen sc1"); vm.issue("wm")
                if SS+1 <= it < SS+8: free.extend([blk[("Y", it-SS-1)], blk[("T", it-SS-1)]])
                if OS+1 <= it < OS+7: free.extend(blk[(k_, 2*(it-OS-1)+g_)] for k_ in "WH" for g_ in range(2))
                cap = CAP
                while free and it > 33:
                    if it < HC_T:
                        if cap == 0: break
                        cap -= 1
                        if post: unit(*post.pop(0))
                        elif nextW[0] < NWPRE: unit("W", nextW[0]); nextW[0] += 1
                        else: break
                    else:
                        if nextH[0] < 14 and (nextH[0] < nextW[0] or nextW[0] >= 14): unit("H", nextH[0]); nextH[0] += 1
                        elif nextW[0] < 14: unit("W", nextW[0]); nextW[0] += 1
                        else: break
            body(mf2(31) if it == 32 else mf3(it-1), rd3(it), issue)
            if HC_T-3 <= it < HC_T and path == "O": poll_issue(f"L_PH{it}", 61, 240+it-(HC_T-3))
            if it == 32:
                E = FR+32
                a(f"s_waitcnt vmcnt({vm.wait('z1')})")
                a(f"v_lshlrev_b32 v{BS}, 16, v{BS}")
                for i in range(16): a(f"v_cvt_pk_bf16_f32 v{E+i}, 0, v{AC+i}")
                for i in range(8): a(f"v_pk_add_f32 {P_(E,i)}, {P_(E,i)}, v[{BS}:{BS+1}] op_sel_hi:[1,0]")
                for i in range(16): a(f"v_cvt_pk_bf16_f32 v{E+i}, 0, v{E+i}")
                for i in range(8): a(f"v_pk_mul_f32 {P_(E,i)}, {P_(E,i)}, {P_(Z1F,i)}")
                for p in range(8): a(f"v_cvt_pk_bf16_f32 v{E+16+p}, v{E+2*p}, v{E+2*p+1}")
                a("s_mov_b32 s49, s72")
                for q in range(2):
                    a(f"buffer_store_dwordx4 v[{E+16+4*q}:{E+19+4*q}], v{vF}, s[{sWS}:{sWS+3}], s49 offen offset:{q*1024} sc1"); vm.issue("h")
            if it == OS and path == "S":
                wmax_reduce(a, WM, 28, 29)
                a(f"s_lshl_b32 s28, s28, 23\n v_mov_b32 v174, {hex(f32bits(1/28))}\n v_mul_f32 v174, s28, v174")
            if it == OS+1 and path == "S":
                for i in range(16): a(f"v_mul_f32 v{AC3+i}, v{AC3+i}, v174")
                for p in range(8): a(f"v_cvt_pk_bf16_f32 v{ZR+p}, v{AC3+2*p}, v{AC3+2*p+1}")
            a("s_waitcnt lgkmcnt(0)")
        a("s_barrier")
        for l in mf3(LAST-1): a(l)
        a(f"v_and_b32 v{T}, 31, v1\n s_lshl_b32 s49, s46, 5\n v_add_u32 v{T}, s49, v{T}\n v_lshrrev_b32 v{T+1}, 5, v1")
        if path == "S":
            a(f"v_mul_u32_u24 v{T+2}, {EXP}, v{T}\n v_lshl_add_u32 v{T+2}, v{T+1}, 3, v{T+2}\n s_lshl_b32 s49, s47, 6\n s_add_u32 s49, s49, {EXS}\n v_add_u32 v{T+2}, s49, v{T+2}")
            for j in range(4): a(f"ds_write_b64 v{T+2}, v[{ZR+2*j}:{ZR+2*j+1}] offset:{16*j}")
        a(f"v_mul_u32_u24 v{T}, {EXO}, v{T}\n v_lshl_add_u32 v{T}, v{T+1}, 4, v{T}\n s_lshl_b32 s49, s47, 7\n s_add_u32 s49, s49, {EXA if path == 'O' else EXB}\n v_add_u32 v{T}, s49, v{T}")
        for j in range(4): a(f"ds_write_b128 v{T}, v[{ACO+4*j}:{ACO+4*j+3}] offset:{32*j}")
        if path == "O": a("s_branch L_J3")
    a("L_J3:")
    stg2(21)
    a("s_waitcnt lgkmcnt(0)\n s_barrier")
    a(f"v_lshrrev_b32 v{T}, 3, v0\n v_and_b32 v{T+1}, 7, v0\n v_mul_u32_u24 v{T+2}, {EXP}, v{T}\n v_lshl_add_u32 v{T+2}, v{T+1}, 4, v{T+2}")
    a(f"v_mul_u32_u24 v{T}, {EXO}, v{T}\n v_lshl_add_u32 v{T}, v{T+1}, 5, v{T}")
    O_, S_ = 20, 24; A_, B_ = 32, 40
    a(f"ds_read_b128 v[{A_}:{A_+3}], v{T}\n ds_read_b128 v[{A_+4}:{A_+7}], v{T} offset:16")
    a(f"ds_read_b128 v[{B_}:{B_+3}], v{T} offset:{EXB}\n ds_read_b128 v[{B_+4}:{B_+7}], v{T} offset:{EXB+16}")
    a(f"ds_read_b128 v[{S_}:{S_+3}], v{T+2} offset:{EXS}")
    a(f"s_mov_b32 s46, {hex(f32bits(-math.log2(math.e)))}\n s_mov_b32 s47, s46")
    a("s_waitcnt lgkmcnt(0)")
    for p in range(4): a(f"v_pk_add_f32 v[{A_+2*p}:{A_+2*p+1}], v[{A_+2*p}:{A_+2*p+1}], v[{B_+2*p}:{B_+2*p+1}]")
    for i in range(8): a(f"v_cvt_pk_bf16_f32 v{A_+i}, 0, v{A_+i}")
    for p in range(4): a(f"v_pk_mul_f32 v[{B_+2*p}:{B_+2*p+1}], v[{A_+2*p}:{A_+2*p+1}], s[46:47]")
    for i in range(8): a(f"v_exp_f32 v{B_+i}, v{B_+i}")
    for p in range(4): a(f"v_pk_add_f32 v[{B_+2*p}:{B_+2*p+1}], v[{B_+2*p}:{B_+2*p+1}], 1.0 op_sel_hi:[1,0]")
    for i in range(8): a(f"v_rcp_f32 v{B_+i}, v{B_+i}")
    for p in range(4): a(f"v_pk_mul_f32 v[{A_+2*p}:{A_+2*p+1}], v[{A_+2*p}:{A_+2*p+1}], v[{B_+2*p}:{B_+2*p+1}]")
    for i in range(8): a(f"v_cvt_pk_bf16_f32 v{A_+i}, 0, v{A_+i}")
    for p in range(4): a(f"v_lshlrev_b32 v{B_+2*p}, 16, v{S_+p}\n v_and_b32 v{B_+2*p+1}, 0xffff0000, v{S_+p}")
    for p in range(4): a(f"v_pk_mul_f32 v[{A_+2*p}:{A_+2*p+1}], v[{A_+2*p}:{A_+2*p+1}], v[{B_+2*p}:{B_+2*p+1}]")
    for i in range(8): a(f"v_cvt_pk_bf16_f32 v{A_+i}, 0, v{A_+i}")
    for p in range(4): a(f"v_lshlrev_b32 v{B_+2*p}, 16, v{XR+p}\n v_and_b32 v{B_+2*p+1}, 0xffff0000, v{XR+p}")
    for p in range(4): a(f"v_pk_add_f32 v[{A_+2*p}:{A_+2*p+1}], v[{A_+2*p}:{A_+2*p+1}], v[{B_+2*p}:{B_+2*p+1}]")
    for p in range(4): a(f"v_cvt_pk_bf16_f32 v{O_+p}, v{A_+2*p}, v{A_+2*p+1}")
    a(f"buffer_store_dwordx4 v[{O_}:{O_+3}], v{vO3}, s[{sOUT}:{sOUT+3}], s58 offen")
    def prof_end():
        if not PROF: return
        stg2(22); a("s_waitcnt vmcnt(0)"); stg2(23)
        a("s_memrealtime s[28:29]\n s_waitcnt lgkmcnt(0)")
        a("v_writelane_b32 v247, s100, 23\n v_writelane_b32 v247, s96, 62\n v_writelane_b32 v247, s28, 63")
        a(f"s_lshl_b32 s98, s2, 3\n s_add_u32 s98, s98, s42\n s_lshl_b32 s98, s98, 9\n s_add_u32 s98, s98, {TS}")
        a(f"v_lshlrev_b32 v251, 2, v1\n buffer_store_dword v246, v251, s[{sWS}:{sWS+3}], s98 offen\n buffer_store_dword v247, v251, s[{sWS}:{sWS+3}], s98 offen offset:256")
    prof_end()
    dbgt(10); dbg_flush()
    a("s_endpgm")
    gen_aux(a, locals())
    a("L_END:\n s_endpgm")
    a.raw(kd(NAME, 256, 102))

def gen_aux(a, L):
    sWS, sDBG, sSP, sBS = L["sWS"], L["sDBG"], L["sSP"], L["sBS"]
    vZERO, vPOLL, vPA, vF = L["vZERO"], L["vPOLL"], L["vPA"], L["vF"]
    stg, stg2 = L["stg"], L["stg2"]
    get_nonce, poll_check = L["get_nonce"], L["poll_check"]
    a("L_AUX:")
    stg.pending = 0; stg2.pending = None
    sWR, sWI, sTB = 4, 8, 16
    srd(a, sWR, 28, 2048*450); srd(a, sWI, 30, 2048*450)
    pc_srd(a, sTB, "TAB_FFT", FT_BYTES)
    a("s_sub_u32 s41, s41, 28")
    a("s_lshl_b32 s43, s41, 3\n s_add_u32 s43, s43, s40")
    a("s_cmp_lg_u32 s41, 0\n s_cbranch_scc1 L_NOCODE")
    pc_srd(a, 44, NAME, "L_END-"+NAME)
    a("v_lshlrev_b32 v5, 7, v0\n buffer_load_dword v254, v5, s[44:47], 0 offen")
    a("L_NOCODE:")
    a("s_lshr_b32 s44, s43, 1\n s_lshl_b32 s44, s44, 2\n s_and_b32 s45, s42, 3\n s_add_u32 s44, s44, s45\n s_lshl_b32 s44, s44, 5")
    a("s_and_b32 s45, s43, 1\n s_lshl_b32 s45, s45, 4\n s_add_u32 s44, s44, s45\n s_mul_i32 s44, s44, 450")
    WL = 65536
    a(f"s_lshl_b32 s46, s42, 13\n s_add_u32 s46, s46, {WL}")
    a("s_cmp_ge_u32 s42, 4\n s_cbranch_scc1 L_AUXI")
    for arr, sr in (("R", sWR), ("I", sWI)):
        if arr == "I": a("L_AUXI:")
        for i in range(8):
            a(f"s_add_u32 m0, s46, {i*1024}\n s_add_u32 s47, s44, {i*1024}")
            a(f"buffer_load_dwordx4 v{vF}, s[{sr}:{sr+3}], s47 offen lds")
        if arr == "R": a("s_branch L_AUXJ")
    a("L_AUXJ:")
    a("s_mul_i32 s45, s42, 7168")
    for i in range(7):
        a(f"s_add_u32 m0, s45, {i*1024}\n s_add_u32 s46, s45, {i*1024}")
        a(f"buffer_load_dwordx4 v{vF}, s[{sTB}:{sTB+3}], s46 offen lds")
    a(f"buffer_load_dword v{vPOLL}, v{vZERO}, s[{sDBG}:{sDBG+3}], 0 offen sc1")
    a("v_and_b32 v5, 63, v0\n v_lshlrev_b32 v5, 12, v5\n v_lshrrev_b32 v6, 6, v0\n v_lshl_add_u32 v5, v6, 7, v5\n s_lshl_b32 s47, s43, 18")
    if int(os.environ.get("MATCH", "1")):
        a("s_and_b32 s47, s40, 4\n s_and_b32 s50, s40, 1\n s_lshl_b32 s50, s50, 1\n s_add_u32 s47, s47, s50\n s_bfe_u32 s50, s40, 0x10001\n s_add_u32 s47, s47, s50")
        a("s_lshl_b32 s47, s47, 2\n s_add_u32 s47, s47, s41\n s_lshl_b32 s47, s47, 18")
    a(f"buffer_load_dword v252, v5, s[{sSP}:{sSP+3}], s47 offen")
    a("s_waitcnt vmcnt(1)\n s_barrier")
    stg(1)
    a("v_and_b32 v6, 15, v0\n v_lshrrev_b32 v7, 4, v0")
    a(f"v_mul_u32_u24 v8, 450, v6\n v_lshl_add_u32 v8, v7, 1, v8\n v_add_u32 v8, {WL}, v8")
    a("v_lshlrev_b32 v9, 13, v7\n v_lshl_add_u32 v9, v6, 4, v9")
    a(f"s_lshl_b32 s48, s43, 8\n s_add_u32 s48, s48, {WP}")
    a("v_mov_b32 v10, 0")
    for it in range(8):
        d = 16+4*it
        for r in range(4):
            a(f"ds_read_u16 v{d+r}, v8 offset:{r*8192+64*it}")
            a(f"ds_read_u16 v{d+r+96}, v8 offset:{(4+r)*8192+64*it}")
    get_nonce("L_ANON")
    a("s_waitcnt lgkmcnt(0)")
    for it in range(8):
        d = 16+4*it
        for r in range(4): a(f"v_lshl_or_b32 v{d+r}, v{d+r+96}, 16, v{d+r}")
        if it == 7:
            a("v_cmp_gt_u32 vcc, 16, v0\n s_and_saveexec_b64 s[50:51], vcc\n s_cbranch_execz L_AUXSK")
        a(f"buffer_store_dwordx4 v[{d}:{d+3}], v9, s[{sWS}:{sWS+3}], s48 offen sc1")
        for r in range(4):
            a(f"v_and_b32 v{12+(r&1)}, 0x7fff7fff, v{d+r}\n v_pk_max_u16 v10, v10, v{12+(r&1)}")
        if it < 7: a(f"s_add_u32 s48, s48, {32*8192}")
    a("L_AUXSK:\n s_mov_b64 exec, -1")
    a("v_lshrrev_b32 v11, 16, v10\n v_and_b32 v10, 0xffff, v10\n v_max_u32 v10, v10, v11")
    a("v_max_u32_dpp v10, v10, v10 quad_perm:[1,0,3,2] row_mask:0xf bank_mask:0xf")
    a("v_max_u32_dpp v10, v10, v10 quad_perm:[2,3,0,1] row_mask:0xf bank_mask:0xf")
    a("v_max_u32_dpp v10, v10, v10 row_half_mirror row_mask:0xf bank_mask:0xf")
    a("v_max_u32_dpp v10, v10, v10 row_mirror row_mask:0xf bank_mask:0xf")
    a("v_readlane_b32 s50, v10, 0\n v_readlane_b32 s51, v10, 16\n v_readlane_b32 s52, v10, 32\n v_readlane_b32 s53, v10, 48")
    a("s_max_u32 s50, s50, s51\n s_max_u32 s52, s52, s53\n s_max_u32 s50, s50, s52")
    a(f"s_lshl_b32 s49, s43, 3\n s_add_u32 s49, s49, s42\n s_lshl_b32 s49, s49, 2\n s_add_u32 s49, s49, {WMAX}")
    a("v_mov_b32 v10, s50\n s_mov_b64 exec, 1")
    a(f"buffer_store_dword v10, v{vZERO}, s[{sWS}:{sWS+3}], s49 offen sc1")
    a("s_mov_b64 exec, -1")
    a("s_waitcnt vmcnt(0)\n s_barrier")
    stg(2)
    a(f"s_lshl_b32 s49, s43, 7\n s_add_u32 s49, s49, {FLW}")
    L["set_flag"]("L_FW", 49)
    for rnd in range(1, -(-WSP_K1//8)):
        if 8*rnd+8 > WSP_K1: a(f"s_cmp_ge_u32 s42, {WSP_K1-8*rnd}\n s_cselect_b32 s47, 0x10000000, s47")
        a(f"buffer_load_dword v{252+rnd}, v5, s[{sSP}:{sSP+3}], s47 offen offset:{1024*rnd}")
    a("v_lshlrev_b32 v5, 7, v0")
    a(f"buffer_load_dword v255, v5, s[{sBS}:{sBS+3}], 0 offen")
    a(f"v_mov_b32 v8, {SX}\n ds_write_b32 v8, v{vZERO}")
    a(f"v_and_b32 v{vPA}, 31, v1\n v_lshlrev_b32 v{vPA}, 7, v{vPA}\n s_mov_b32 s59, {FLW}")
    L["poll_issue"]("L_PW", 59, vPOLL)
    poll_check("L_CW", 59, vPOLL, sleep=16)
    a("s_barrier")
    a("s_mul_i32 s44, s43, 7\n s_add_u32 s44, s44, s42\n s_cmp_eq_u32 s42, 7\n s_cselect_b32 s44, 224, s44")
    a(f"s_mov_b32 s53, {WMAX}\n buffer_load_dwordx4 v[12:15], v{vF}, s[{sWS}:{sWS+3}], s53 offen sc1")
    a(f"s_lshl_b32 s54, s44, 13\n s_add_u32 s54, s54, {WP}")
    a("s_cmp_eq_u32 s42, 7\n s_cselect_b32 s55, s43, 0\n s_cmp_lg_u32 s55, 0\n s_cselect_b32 s54, 0x20000000, s54\n s_add_u32 s55, s54, 4096")
    for i in range(8):
        a(f"buffer_load_dwordx4 v[{128+4*i}:{131+4*i}], v{vF}, s[{sWS}:{sWS+3}], s{54 if i < 4 else 55} offen offset:{(i&3)*1024} sc1")
    a("s_mul_i32 s51, s43, 14\n s_add_u32 s52, s51, 13\n s_lshr_b32 s51, s51, 6\n s_lshr_b32 s52, s52, 6\n s_lshl_b32 s51, s51, 12\n s_lshl_b32 s52, s52, 12")
    a(f"v_mov_b32 v8, s51\n v_mov_b32 v9, s52\n v_cmp_gt_u32 vcc, 32, v1\n v_cndmask_b32 v8, v9, v8, vcc\n v_add_u32 v{vPA}, v{vPA}, v8\n s_mov_b32 s59, {FLU}")
    L["poll_pipe"]("L_CF", 59, 240, gap=8)
    a("s_waitcnt lgkmcnt(0)\n s_barrier")
    stg(3)
    a("s_cmp_lg_u32 s42, 7\n s_cbranch_scc1 L_FFT0\n s_cmp_lg_u32 s43, 0\n s_cbranch_scc1 L_PFW\nL_FFT0:")

    vL = vF
    OPR, OPI, OPN = 16, 32, 48
    DR, DI = 64, 96
    WV = 128; C32 = 160; CF = 184; TWB = 216
    a("s_lshl_b32 s48, s44, 1\n s_add_u32 s49, s48, 1\n s_min_u32 s49, s49, 447\n s_cmp_eq_u32 s44, 224\n s_cselect_b32 s48, 1, s48")
    a("s_cmp_eq_u32 s44, 224\n s_cselect_b32 s58, 1, 0\n s_cmp_eq_u32 s44, 0\n s_cselect_b32 s58, 1, s58")
    a(f"s_lshl_b32 s48, s48, 12\n s_lshl_b32 s49, s49, 12\n s_add_u32 s51, s48, {U}\n s_add_u32 s52, s49, {U}")
    a(f"v_and_b32 v5, 31, v1\n v_lshrrev_b32 v6, 5, v1\n v_lshlrev_b32 v7, 4, v5\n v_lshl_add_u32 v7, v6, 10, v7")
    for mt in range(2):
        for c in range(2):
            f = 2*mt+c
            a(f"buffer_load_dwordx4 v[{OPR+4*f}:{OPR+4*f+3}], v7, s[{sWS}:{sWS+3}], s51 offen offset:{(32*mt+128*c)*16} sc1")
            a(f"buffer_load_dwordx4 v[{OPI+4*f}:{OPI+4*f+3}], v7, s[{sWS}:{sWS+3}], s52 offen offset:{(32*mt+128*c)*16} sc1")
    for i in range(6): a(f"ds_read_b128 v[{C32+4*i}:{C32+4*i+3}], v{vL} offset:{O_C32+i*1024}")
    CR = lambda c: f"v[{C32+4*c}:{C32+4*c+3}]"
    CI = lambda c: f"v[{C32+8+4*c}:{C32+8+4*c+3}]"
    CN = lambda c: f"v[{C32+16+4*c}:{C32+16+4*c+3}]"
    op = lambda base, f: f"v[{base+4*f}:{base+4*f+3}]"
    dd = lambda base, t: f"v[{base+16*t}:{base+16*t+15}]"
    a("s_waitcnt vmcnt(8)")
    wmax_reduce(a, 12, 53, 28)
    a("s_sub_u32 s56, 254, s53\n s_sub_u32 s56, s56, s58\n s_lshl_b32 s56, s56, 23\n s_mov_b32 s57, s56")
    a("s_waitcnt vmcnt(0)")
    a("s_cmp_eq_u32 s58, 0\n s_cbranch_scc1 L_NSP")
    for i in range(16): a(f"v_mov_b32 v{OPI+i}, 0")
    a("L_NSP:")
    a("s_waitcnt lgkmcnt(0)")
    stg(4)
    def mfma(d, x, y, first): a(f"v_mfma_f32_32x32x16_f16 {d}, {x}, {y}, {'0' if first else d}")
    for mt in range(2):
        for c in range(2):
            f = 2*mt+c
            mfma(dd(DR, mt), op(OPR, f), CR(c), c == 0); mfma(dd(DI, mt), op(OPR, f), CI(c), c == 0)
            mfma(dd(DR, mt), op(OPI, f), CN(c), False); mfma(dd(DI, mt), op(OPI, f), CR(c), False)
    def twiddle(otab, neg):
        def ld(g):
            b = TWB+8*(g % 3)
            a(f"ds_read_b128 v[{b}:{b+3}], v{vL} offset:{otab+g*2048}")
            a(f"ds_read_b128 v[{b+4}:{b+7}], v{vL} offset:{otab+g*2048+1024}")
        for g in range(2): ld(g)
        for g in range(8):
            if g+2 < 8: ld(g+2)
            a(f"s_waitcnt lgkmcnt({2*min(2, 7-g)})")
            b = TWB+8*(g % 3)
            v = 4*g
            for i in range(4): a(f"v_mul_f32 v{8+i}, v{DR+v+i}, v{b+i}\n v_mul_f32 v{12+i}, v{DR+v+i}, v{b+4+i}")
            for i in range(4): a(f"v_fma_f32 v{8+i}, -v{DI+v+i}, v{b+4+i}, v{8+i}\n v_fmac_f32 v{12+i}, v{DI+v+i}, v{b+i}")
            for pr in range(2):
                a(f"v_cvt_pk_f16_f32 v{OPR+v//2+pr}, v{8+2*pr}, v{9+2*pr}\n v_cvt_pk_f16_f32 v{OPI+v//2+pr}, v{12+2*pr}, v{13+2*pr}")
            if neg:
                for pr in range(2): a(f"v_xor_b32 v{OPN+v//2+pr}, 0x80008000, v{OPI+v//2+pr}")
    def big(step):
        def ld(i):
            b = CF+8*(i & 3)
            a(f"ds_read_b128 v[{b}:{b+3}], v{vL} offset:{O_C64R+i*1024}")
            a(f"ds_read_b128 v[{b+4}:{b+7}], v{vL} offset:{O_C64I+i*1024}")
        for i in range(3): ld(i)
        for i in range(8):
            if i+3 < 8: ld(i+3)
            a(f"s_waitcnt lgkmcnt({2*min(3, 7-i)})")
            b = CF+8*(i & 3); cr = f"v[{b}:{b+3}]"; ci = f"v[{b+4}:{b+7}]"
            t = i >> 2; c = i & 3
            if step == 3:
                mfma(dd(DR, t), cr, op(OPR, c), c == 0); mfma(dd(DI, t), ci, op(OPR, c), c == 0)
                mfma(dd(DR, t), ci, op(OPN, c), False); mfma(dd(DI, t), cr, op(OPI, c), False)
            else:
                mfma(dd(DR, t), op(OPR, c), cr, c == 0); mfma(dd(DI, t), op(OPI, c), cr, c == 0)
                mfma(dd(DR, t), op(OPI, c), ci, False); mfma(dd(DI, t), op(OPN, c), ci, False)
    twiddle(O_TW1, True)
    stg(5)
    big(3)
    stg(6)
    a("s_waitcnt vmcnt(0)")
    for v in range(0, 32, 4):
        b = TWB+8*((v >> 2) % 3)
        for i in range(4): a(f"v_lshlrev_b32 v{b+i}, 16, v{WV+v+i}\n v_and_b32 v{b+4+i}, 0xffff0000, v{WV+v+i}")
        for i in range(8): a(f"v_mul_f32 v{b+i}, s56, v{b+i}")
        for i in range(4): a(f"v_mul_f32 v{8+i}, v{DR+v+i}, v{b+i}\n v_mul_f32 v{12+i}, v{DR+v+i}, v{b+4+i}")
        for i in range(4): a(f"v_fma_f32 v{8+i}, -v{DI+v+i}, v{b+4+i}, v{8+i}\n v_fmac_f32 v{12+i}, v{DI+v+i}, v{b+i}")
        for pr in range(2):
            a(f"v_cvt_pk_f16_f32 v{OPR+v//2+pr}, v{8+2*pr}, v{9+2*pr}\n v_cvt_pk_f16_f32 v{OPI+v//2+pr}, v{12+2*pr}, v{13+2*pr}")
        for pr in range(2): a(f"v_xor_b32 v{OPN+v//2+pr}, 0x80008000, v{OPR+v//2+pr}")
    stg(7)
    big(5)
    stg(8)
    twiddle(O_TW2, False)
    stg(9)
    for nt in range(2):
        for c in range(2):
            f = 2*nt+c
            mfma(dd(DR, nt), op(OPR, f), CR(c), c == 0); mfma(dd(DI, nt), op(OPI, f), CR(c), c == 0)
            mfma(dd(DR, nt), op(OPI, f), CI(c), False); mfma(dd(DI, nt), op(OPR, f), CN(c), False)
    a("v_and_b32 v7, 16, v5\n v_bfe_u32 v8, v5, 2, 1\n v_lshl_add_u32 v7, v8, 3, v7\n v_add_u32 v7, v7, v6\n s_mov_b32 s53, 57344\n v_mul_lo_u32 v7, v7, s53")
    a("v_bfe_u32 v8, v5, 3, 1\n v_lshl_add_u32 v7, v8, 6, v7\n v_and_b32 v8, 3, v5\n v_lshl_add_u32 v7, v8, 4, v7")
    for part, base, sk in ((0, DR, 48), (1, DI, 49)):
        if part == 1: a("s_cmp_lg_u32 s58, 0\n s_cbranch_scc1 L_FDONE")
        a(f"s_lshr_b32 s51, s{sk}, 5\n s_add_u32 s51, s51, {YT}\n s_bfe_u32 s52, s{sk}, 0x1000d\n s_lshl_b32 s52, s52, 6\n v_xor_b32 v9, s52, v7")
        for nt in range(2):
            for q in range(2):
                o = WV+16*part+8*nt+4*q; v = base+16*nt+8*q
                for i in range(4): a(f"v_cvt_pk_f16_f32 v{o+i}, v{v+2*i}, v{v+2*i+1}")
                a(f"v_permlane32_swap_b32 v{o}, v{o+2}\n v_permlane32_swap_b32 v{o+1}, v{o+3}")
                a(f"s_add_u32 s53, s51, {(4*nt+2*q)*57344}")
                a(f"buffer_store_dwordx4 v[{o}:{o+3}], v9, s[{sWS}:{sWS+3}], s53 offen sc1")
    a("L_FDONE:")
    stg(10)
    a("s_waitcnt vmcnt(0)")
    a(f"v_mov_b32 v8, {SX}\n v_mov_b32 v9, 1\n s_mov_b64 exec, 1\n ds_add_rtn_u32 v9, v8, v9\n s_waitcnt lgkmcnt(0)\n v_readfirstlane_b32 s49, v9")
    a("s_cmp_eq_u32 s43, 0\n s_cselect_b32 s50, 7, 6\n s_cmp_lg_u32 s49, s50\n s_cbranch_scc1 L_NFY")
    a(f"s_lshl_b32 s49, s43, 7\n s_add_u32 s49, s49, {FLY}\n v_mov_b32 v{vPOLL}, s63")
    a(f"buffer_store_dword v{vPOLL}, v{vZERO}, s[{sWS}:{sWS+3}], s49 offen sc1")
    a("L_NFY:\n s_mov_b64 exec, -1")
    stg(11)
    if PROF:
        a("s_waitcnt lgkmcnt(0)\n v_writelane_b32 v246, s100, 11")
        stg2.pending = None
        L["prof_end"]()
    a("s_endpgm")
    a("L_PFW:")
    NL = (32-WSP_K2)*2048
    a("s_sub_u32 s58, s43, 1\n s_lshl_b32 s58, s58, 6\n v_add_u32 v13, s58, v1")
    for it in range(-(-NL//(31*64))):
        a(f"v_and_b32 v14, 2047, v13\n v_lshrrev_b32 v15, 11, v13\n v_min_u32 v15, {31-WSP_K2}, v15\n v_lshlrev_b32 v14, 12, v14\n v_lshl_add_u32 v14, v15, 7, v14")
        a(f"buffer_load_dword v{20+it}, v14, s[{sSP}:{sSP+3}], 0 offen offset:{128*WSP_K2}")
        a(f"v_add_u32 v13, {31*64}, v13")
    a("s_endpgm")
```

```python
from asmlib import Asm, Vm
from common import *
from k1 import gelu_pairs, red8, halfsum, var_to_rs, C1, C2
from k2 import O_C64R, O_C64I, O_TW1, O_TW2, O_C32, FT_BYTES, wmax_reduce
import math

NAME = "recurrent_scan__spectral_gfnet__mixer_gmlp__prompt_kernel"
S1 = 16384; N1 = 6; XN = N1*S1
S2 = 24576; PERM = [4, 5, 2, 3, 0, 1]
UX = 147456; UXP = 144
SX = 156672
LDS_BYTES = 163840
TSC = 98304
EXP = 144
FL = 0x1310000
FLZ, FLU, FLW, FLH, FLY, FL1 = FL, FL+0x8000, FL+0x10000, FL+0x18000, FL+0x20000, FL+0x28000
LD_T = int(os.environ.get("LDT", "10")); CHK_T = int(os.environ.get("CHKT", "13")); FZ_G = int(os.environ.get("FZG", "2")); CX_T = int(os.environ.get("CXT", "11"))
WSP_K1 = int(os.environ.get("WSPK", "8"))
WSP_K2 = int(os.environ.get("WSPK2", "22"))
SPIN = 0x4000
CODE_BYTES = 40960
D = 5

XA = os.environ.get("XA", ""); XB = os.environ.get("XB", "sc1")
DBGT = bool(int(os.environ.get("DBGT", "0")))
def gen(a):
    a(f".text\n.globl {NAME}\n.p2align 8\n.type {NAME},@function\n{NAME}:")
    sX, sWIN, sWS, sFT, sDBG, sSP = 4, 8, 12, 16, 20, 24
    sWO, sTT, sOUT, sBS = 8, 92, 64, 68
    stg = StageStamps(a, 246); stg2 = StageStamps(a, 247)
    a("s_cmp_ge_u32 s2, 256\n s_cbranch_scc1 L_END")
    if PROF or DBGT: a("s_memrealtime s[96:97]")
    stg(0)
    a("s_load_dwordx2 s[76:77], s[0:1], 0")
    a("s_load_dwordx4 s[28:31], s[0:1], 8")
    a("s_load_dwordx4 s[32:35], s[0:1], 32")
    a("s_load_dwordx4 s[36:39], s[0:1], 72")
    a("s_load_dwordx4 s[80:83], s[0:1], 48")
    a("s_load_dwordx2 s[78:79], s[0:1], 64")
    a("s_and_b32 s40, s2, 7\n s_lshr_b32 s41, s2, 3")
    a("v_lshrrev_b32 v2, 6, v0\n v_and_b32 v1, 63, v0")
    a("v_readfirstlane_b32 s42, v2")
    pc_srd(a, sFT, "TAB_FT", 7*14*8*1024)
    if os.environ.get("PRIO", "0") == "1": a("s_cmp_lt_u32 s42, 4\n s_cbranch_scc1 L_PRIO\n s_setprio 1\nL_PRIO:")
    vXo, vZ, vF, vW = 2, 3, 4, 5
    vTR = 6; vAA = 12
    XF = 16; BF = 128; ACC = 160; ACC2 = 176; ZP = 192; TMP = 200; VC1 = 226; PS = 228
    vA2, vB2 = 244, 245; VPF = 252; vZERO = 248; vPOLL = 249; vPA = 250
    a("s_and_b32 s62, s40, 1\n s_mul_i32 s43, s62, 28\n s_add_u32 s43, s43, s41\n s_lshr_b32 s44, s43, 3\n s_and_b32 s43, s43, 7")
    a("s_lshr_b32 s45, s40, 1\n s_lshl_b32 s45, s45, 3\n s_add_u32 s43, s43, s45")
    a("s_lshr_b32 s45, s43, 4\n s_lshl_b32 s45, s45, 4")
    a("s_lshr_b32 s46, s42, 2\n s_lshl_b32 s46, s46, 3\n s_add_u32 s45, s45, s46")
    a("s_bfe_u32 s46, s43, 0x10003\n s_lshl_b32 s46, s46, 2\n s_add_u32 s45, s45, s46")
    a("s_and_b32 s46, s42, 3\n s_add_u32 s45, s45, s46")
    a("s_lshl_b32 s45, s45, 6\n s_and_b32 s46, s43, 7\n s_lshl_b32 s46, s46, 3\n s_add_u32 s45, s45, s46")
    a("s_lshl_b32 s87, s45, 12\n s_mul_i32 s45, s45, 896")
    a(f"v_lshrrev_b32 v{TMP}, 3, v1\n v_and_b32 v{TMP+1}, 7, v1")
    a(f"v_mul_u32_u24 v{vXo}, 896, v{TMP}\n v_lshl_add_u32 v{vXo}, v{TMP+1}, 4, v{vXo}")
    a(f"v_mov_b32 v{vZERO}, 0\n v_lshlrev_b32 v{vF}, 4, v1")
    a("s_waitcnt lgkmcnt(0)")
    srd(a, sX, 76, 2048*896)
    a("s_cmp_ge_u32 s41, 28\n s_cbranch_scc1 L_AUX0")
    vm = Vm()
    for cc in range(7):
        a(f"buffer_load_dwordx4 v[{BF+4*cc}:{BF+4*cc+3}], v{vXo}, s[{sX}:{sX+3}], s45 offen offset:{128*cc}"); vm.issue("x")
    a("L_AUX0:")
    srd(a, sWIN, 32, 448*3584); srd(a, sWS, 38, WS_BYTES); srd(a, sDBG, 36, 256); srd(a, sSP, 34, 2048*4096)
    srd(a, sOUT, 78, 2048*896); srd(a, sBS, 80, 4096)
    a("s_cmp_ge_u32 s41, 28\n s_cbranch_scc1 L_AUX")

    dlist = []
    def dbgt(idx, op=None):
        if not DBGT or op is not None: return
        a(f"s_memrealtime s[98:99]\n s_waitcnt lgkmcnt(0)\n v_writelane_b32 v247, s98, {idx}")
    def dbg_flush():
        if not DBGT: return
        a("s_cmp_lg_u32 s42, 0\n s_cbranch_scc1 L_DBGE")
        a("v_writelane_b32 v247, s96, 4")
        a("v_not_b32 v246, v247\n v_lshlrev_b32 v251, 3, v1\n v_subrev_u32 v251, 24, v251")
        a("s_mov_b64 exec, 0x7f0")
        a(f"buffer_atomic_umax v247, v251, s[{sDBG}:{sDBG+3}], 0 offen\n buffer_atomic_umax v246, v251, s[{sDBG}:{sDBG+3}], 0 offen offset:4")
        a("s_mov_b64 exec, -1\nL_DBGE:")
    def get_nonce(lbl):
        a(f"s_mov_b32 s50, 0\n{lbl}:")
        a(f"v_readfirstlane_b32 s63, v{vPOLL}")
        a(f"s_add_u32 s50, s50, 1\n s_cmp_lg_u32 s63, 0\n s_cbranch_scc1 {lbl}_OK")
        a(f"s_cmp_ge_u32 s50, {SPIN}\n s_cbranch_scc1 {lbl}_OK")
        a(f"s_sleep 4\n buffer_load_dword v{vPOLL}, v{vZERO}, s[{sDBG}:{sDBG+3}], 0 offen sc1\n s_waitcnt vmcnt(0)\n s_branch {lbl}")
        a(f"{lbl}_OK:")
    def set_flag(lbl, soff):
        a(f"s_cmp_lg_u32 s42, 0\n s_cbranch_scc1 {lbl}")
        a(f"v_mov_b32 v{vPOLL}, s63\n s_mov_b64 exec, 1")
        a(f"buffer_store_dword v{vPOLL}, v{vZERO}, s[{sWS}:{sWS+3}], s{soff} offen sc1")
        a(f"s_mov_b64 exec, -1\n{lbl}:")
    def poll_issue(lbl, soff, vdst, wide=False):
        a(f"s_cmp_lg_u32 s42, 0\n s_cbranch_scc1 {lbl}")
        if wide: a(f"buffer_load_dwordx4 v[{vdst}:{vdst+3}], v{vF}, s[{sWS}:{sWS+3}], s{soff} offen sc1")
        else: a(f"buffer_load_dword v{vdst}, v{vPA}, s[{sWS}:{sWS+3}], s{soff} offen sc1")
        a(f"{lbl}:")
    def poll_check(lbl, soff, vdst, wide=False, allwaves=False, sleep=2, covered=False):
        if not allwaves: a(f"s_cmp_lg_u32 s42, 0\n s_cbranch_scc1 {lbl}_OK")
        a("s_mov_b32 s50, 0")
        if covered: a(f"s_branch {lbl}_1")
        a(f"{lbl}:\n s_waitcnt vmcnt(0)\n{lbl}_1:")
        a(f"v_cmp_eq_u32 vcc, s63, v{vdst}")
        if wide:
            for i in range(1, 4): a(f"v_cmp_eq_u32 s[30:31], s63, v{vdst+i}\n s_and_b64 vcc, vcc, s[30:31]")
        a(f"s_add_u32 s50, s50, 1\n s_cmp_eq_u64 vcc, exec\n s_cbranch_scc1 {lbl}_OK")
        a(f"s_cmp_ge_u32 s50, {SPIN}\n s_cbranch_scc1 {lbl}_OK")
        a(f"s_sleep {sleep}")
        if wide: a(f"buffer_load_dwordx4 v[{vdst}:{vdst+3}], v{vF}, s[{sWS}:{sWS+3}], s{soff} offen sc1")
        else: a(f"buffer_load_dword v{vdst}, v{vPA}, s[{sWS}:{sWS+3}], s{soff} offen sc1")
        a(f"s_branch {lbl}\n{lbl}_OK:")

    def poll_pipe(lbl, soff, r0, gap=4, pre=0):
        a(f"s_cmp_lg_u32 s42, 0\n s_cbranch_scc1 {lbl}_OK")
        a("s_mov_b32 s50, 0")
        for i in range(pre, 4):
            a(f"buffer_load_dword v{r0+i}, v{vPA}, s[{sWS}:{sWS+3}], s{soff} offen sc1")
            if i < 3: a(f"s_sleep {gap}")
        a(f"{lbl}:")
        for i in range(4):
            a("s_waitcnt vmcnt(3)")
            a(f"v_cmp_eq_u32 vcc, s63, v{r0+i}")
            a(f"s_cmp_eq_u64 vcc, exec\n s_cbranch_scc1 {lbl}_OK")
            a(f"buffer_load_dword v{r0+i}, v{vPA}, s[{sWS}:{sWS+3}], s{soff} offen sc1")
            a(f"s_sleep {gap//2}")
        a(f"s_add_u32 s50, s50, 1\n s_cmp_lt_u32 s50, {SPIN}\n s_cbranch_scc1 {lbl}")
        a(f"{lbl}_OK:")

    a("s_add_u32 s49, s2, s42\n s_cmp_lg_u32 s49, 0\n s_cbranch_scc1 L_NN")
    a("s_memrealtime s[50:51]\n s_waitcnt lgkmcnt(0)\n s_or_b32 s50, s50, 1")
    a(f"v_mov_b32 v{vPOLL}, s50\n s_mov_b64 exec, 1")
    a(f"buffer_store_dword v{vPOLL}, v{vZERO}, s[{sDBG}:{sDBG+3}], 0 offen sc1")
    a("s_mov_b64 exec, -1\nL_NN:")
    vT = TMP+8
    a("s_mul_i32 s46, s62, 28\n s_lshr_b32 s46, s46, 3")
    a("s_mul_i32 s47, s62, 28\n s_add_u32 s47, s47, 27\n s_lshr_b32 s47, s47, 3")
    a("s_lshl_b32 s48, s41, 4\n s_lshl_b32 s49, s42, 1\n s_add_u32 s48, s48, s49\n s_mul_i32 s48, s48, 3584\n s_lshl_b32 s49, s46, 8\n s_add_u32 s48, s48, s49\n s_add_u32 s48, s48, 1792")
    ZT = os.environ.get("ZT", "vec")
    if ZT == "smem":
        for rr in range(2):
            for ln in range(6):
                a(f"s_buffer_load_dword s28, s[{sWIN}:{sWIN+3}], s48 offset:{rr*3584+ln*128}")
    a(f"v_and_b32 v{vT}, 127, v0\n v_lshrrev_b32 v{vT+1}, 5, v{vT}\n v_add_u32 v{vT+1}, s46, v{vT+1}\n v_cmp_lt_u32 vcc, s47, v{vT+1}\n v_mov_b32 v{vT+5}, 0x8000\n v_cndmask_b32 v{vT+1}, v{vT+1}, v{vT+5}, vcc")
    a(f"s_lshl_b32 s48, s41, 5\n v_and_b32 v{vT+2}, 31, v0\n v_add_u32 v{vT+2}, s48, v{vT+2}")
    a(f"v_lshrrev_b32 v{VPF}, 1, v{vT+2}\n v_mul_u32_u24 v{VPF}, 3584, v{VPF}\n v_lshl_add_u32 v{VPF}, v{vT+1}, 8, v{VPF}\n v_and_b32 v{vT+3}, 1, v{vT+2}\n v_lshl_add_u32 v{VPF}, v{vT+3}, 7, v{VPF}")
    a(f"s_mov_b32 s48, 114688\n v_mul_lo_u32 v{VPF+1}, v{vT+1}, s48\n v_lshl_add_u32 v{VPF+1}, v{vT+2}, 7, v{VPF+1}")
    def touch2():
        a("s_cmp_ge_u32 s42, 2\n s_cbranch_scc1 L_PFB")
        a(f"buffer_load_dword v{VPF+2}, v{VPF}, s[{sWIN}:{sWIN+3}], 0 offen")
        a("s_branch L_PFD\nL_PFB:")
        a("s_cmp_ge_u32 s42, 4\n s_cselect_b32 s49, 0x10000000, 0")
        a(f"buffer_load_dword v{VPF+2}, v{VPF+1}, s[{sFT}:{sFT+3}], s49 offen")
        a("L_PFD:"); vm.issue("pf")
    a("s_barrier")
    if ZT == "vec":
        a("s_cmp_ge_u32 s42, 2\n s_cselect_b32 s49, 0x10000000, 0")
        a(f"buffer_load_dword v{VPF+3}, v{VPF}, s[{sWIN}:{sWIN+3}], s49 offen offset:1792"); vm.issue("pf")
    a(f"v_lshrrev_b32 v{TMP+2}, 4, v1\n v_and_b32 v{TMP+3}, 15, v1\n v_lshlrev_b32 v{TMP+4}, 2, v{TMP+2}\n v_xor_b32 v{TMP+3}, v{TMP+3}, v{TMP+4}")
    a(f"v_mul_u32_u24 v{vZ}, 3584, v{TMP+2}\n v_lshl_add_u32 v{vZ}, v{TMP+3}, 4, v{vZ}")
    a("s_mul_i32 s46, s42, 14336\n s_lshl_b32 s47, s44, 8\n s_add_u32 s46, s46, s47")
    a(f"s_mul_i32 s47, s44, {14*8192}\n s_lshl_b32 s48, s42, 10\n s_add_u32 s47, s47, s48")
    def dma(t):
        if t >= 21: return
        slot = (t % N1)*S1
        for u in range(2):
            a(f"s_add_u32 m0, s48, {slot+u*8192}")
            if t < 7 or t >= 14:
                a(f"s_add_u32 s49, s46, {(1792 if t < 7 else 0)+(64*(t % 7)+32*u)*3584}")
                a(f"buffer_load_dwordx4 v{vZ}, s[{sWIN}:{sWIN+3}], s49 offen lds"); vm.issue(("st", t))
            else:
                a(f"s_add_u32 s49, s47, {(2*(t-7)+u)*8192}")
                a(f"buffer_load_dwordx4 v{vF}, s[{sFT}:{sFT+3}], s49 offen lds"); vm.issue(("st", t))
    a(f"s_lshl_b32 s49, s42, 3\n v_add_u32 v{TMP+2}, s49, v{TMP}")
    a(f"v_bfe_u32 v{TMP+3}, v{TMP+2}, 1, 3\n v_xor_b32 v{TMP+3}, v{TMP+3}, v{TMP+1}")
    a(f"v_mul_u32_u24 v{vW}, 896, v{TMP+2}\n v_lshl_add_u32 v{vW}, v{TMP+3}, 4, v{vW}\n v_add_u32 v{vW}, {XN}, v{vW}")
    a(f"v_lshrrev_b32 v{TMP+2}, 1, v{TMP}\n s_and_b32 s88, s42, 1\n s_lshl_b32 s88, s88, 2\n v_add_u32 v{TMP+2}, s88, v{TMP+2}\n v_xor_b32 v{TMP+2}, v{TMP+1}, v{TMP+2}")
    a(f"v_lshlrev_b32 v{vA2}, 12, v{TMP}\n v_lshl_add_u32 v{vA2}, v{TMP+2}, 4, v{vA2}")
    a(f"v_lshrrev_b32 v{TMP+2}, 5, v1\n v_lshlrev_b32 v{vB2}, 14, v{TMP+2}\n v_and_b32 v{TMP+2}, 31, v1\n v_lshl_add_u32 v{vB2}, v{TMP+2}, 4, v{vB2}")
    a(f"s_lshl_b32 s88, s44, 19\n s_add_u32 s88, s88, s48\n s_add_u32 s88, s88, {Z2N}")
    a("s_lshr_b32 s86, s43, 4\n s_lshl_b32 s86, s86, 4\n s_bfe_u32 s49, s43, 0x10003\n s_lshl_b32 s49, s49, 2\n s_add_u32 s86, s86, s49\n s_and_b32 s49, s42, 1\n s_lshl_b32 s49, s49, 3\n s_add_u32 s86, s86, s49")
    def pslot(T): return PERM[T % 6]
    def slot2(T): return pslot(T)*S2
    def dmaA(T):
        a(f"s_add_u32 m0, s48, {slot2(T)+16384}\n s_add_u32 s49, s87, {T*128}")
        a(f"buffer_load_dwordx4 v{vA2}, s[{sSP}:{sSP+3}], s49 offen lds"); vm.issue(("g", T))
    def dmaB(T):
        for u in range(2):
            a(f"s_add_u32 m0, s48, {slot2(T)+u*8192}\n s_add_u32 s49, s88, {T*16384+u*8192}")
            a(f"buffer_load_dwordx4 v{vF}, s[{sWS}:{sWS+3}], s49 offen sc1 lds"); vm.issue(("g", T))
    a(f"s_and_b32 s49, s42, 1\n s_lshl_b32 s49, s49, 5\n v_and_b32 v{TMP+2}, 31, v1\n v_add_u32 v{TMP+2}, s49, v{TMP+2}")
    a(f"v_bfe_u32 v{TMP+3}, v{TMP+2}, 1, 3\n v_lshrrev_b32 v{TMP+4}, 5, v1\n v_xor_b32 v{TMP+3}, v{TMP+3}, v{TMP+4}")
    a(f"v_mul_u32_u24 v{TMP+2}, 896, v{TMP+2}\n v_add_u32 v{TMP+2}, {XN}, v{TMP+2}")
    for c in range(4):
        a(f"v_xor_b32 v{TMP+4}, {2*c}, v{TMP+3}\n v_lshl_add_u32 v{vAA+c}, v{TMP+4}, 4, v{TMP+2}")
    a(f"v_lshrrev_b32 v{TMP+2}, 5, v1\n v_bfe_u32 v{TMP+3}, v1, 2, 2")
    a(f"v_lshl_add_u32 v{TMP+2}, v{TMP+2}, 3, v{TMP+3}")
    a(f"v_and_b32 v{TMP+6}, 1, v1\n v_lshlrev_b32 v{TMP+6}, 3, v{TMP+6}")
    a(f"v_bfe_u32 v{TMP+4}, v1, 4, 1\n v_bfe_u32 v{TMP+5}, v1, 1, 1\n v_lshl_add_u32 v{TMP+4}, v{TMP+4}, 1, v{TMP+5}")
    a(f"v_lshlrev_b32 v{TMP+5}, 2, v{TMP+3}\n v_xor_b32 v{TMP+5}, v{TMP+4}, v{TMP+5}")
    a("s_lshr_b32 s51, s42, 1\n s_lshl_b32 s51, s51, 2\n s_and_b32 s49, s42, 2\n s_lshl_b32 s49, s49, 2\n s_add_u32 s50, s49, 4")
    for idx, sreg in ((0, 51),):
        a(f"v_xor_b32 v{TMP+7}, s{sreg}, v{TMP+5}\n v_lshl_add_u32 v{vTR+2*idx}, v{TMP+2}, 8, v{TMP+6}\n v_lshl_add_u32 v{vTR+2*idx}, v{TMP+7}, 4, v{vTR+2*idx}\n v_add_u32 v{vTR+2*idx+1}, 0x10000, v{vTR+2*idx}")
    a(f"s_mov_b32 s52, {hex(f32bits(C2))}\n s_mov_b32 s54, 0x3f803f80")
    a(f"v_mov_b32 v{VC1}, {hex(f32bits(C1))}")
    a(f"s_lshl_b32 s55, s43, 1\n s_and_b32 s57, s42, 1\n s_add_u32 s55, s55, s57\n s_mul_i32 s55, s55, 3584\n s_add_u32 s55, s55, {ST}")
    a("s_lshl_b32 s61, s44, 9\n s_add_u32 s61, s61, s55")
    a(f"s_lshl_b32 s56, s57, 10\n s_lshr_b32 s57, s42, 1\n s_lshl_b32 s57, s57, 3\n s_add_u32 s56, s56, s57\n s_add_u32 s56, s56, {SX}")
    a("s_and_b32 s49, s42, 6\n s_cmp_eq_u32 s49, 4\n s_cselect_b32 s55, s55, 0x20000000")
    a(f"s_lshl_b32 s72, s43, 1\n s_and_b32 s49, s42, 1\n s_add_u32 s72, s72, s49\n s_mul_i32 s72, s72, 56\n s_lshl_b32 s49, s44, 3\n s_add_u32 s72, s72, s49\n s_and_b32 s49, s42, 6\n s_add_u32 s72, s72, s49\n s_lshl_b32 s72, s72, 10\n s_add_u32 s72, s72, {H}")
    a(f"s_lshl_b32 s74, s43, 3\n s_add_u32 s74, s74, s44\n s_lshl_b32 s74, s74, 7\n s_add_u32 s74, s74, {FLH}")
    a(f"s_lshl_b32 s75, s44, 18\n s_lshl_b32 s49, s43, 7\n s_add_u32 s75, s75, s49\n s_add_u32 s75, s75, {U}")
    a("s_lshl_b32 s73, s86, 6\n s_and_b32 s49, s43, 7\n s_lshl_b32 s49, s49, 3\n s_add_u32 s73, s73, s49\n s_lshl_b32 s73, s73, 1")
    a("s_lshl_b32 s58, s44, 5\n s_add_u32 s58, s58, s86\n s_lshl_b32 s58, s58, 14")
    a("s_bfe_u32 s49, s43, 0x20001\n s_lshl_b32 s49, s49, 12\n s_add_u32 s58, s58, s49\n s_and_b32 s49, s43, 1\n s_lshl_b32 s49, s49, 9\n s_add_u32 s58, s58, s49")
    a(f"s_lshr_b32 s49, s42, 1\n s_lshl_b32 s49, s49, 10\n s_add_u32 s58, s58, s49\n s_add_u32 s58, s58, {Z2N}")
    a(f"s_lshl_b32 s59, s44, 5\n s_add_u32 s59, s59, s43\n s_lshl_b32 s59, s59, 7\n s_add_u32 s60, s59, {FLU}\n s_add_u32 s59, s59, {FLZ}")
    a(f"s_lshl_b32 s89, s44, 12\n s_add_u32 s89, s89, {FLZ}")
    a(f"v_and_b32 v{vPA}, 31, v1\n v_lshlrev_b32 v{vPA}, 7, v{vPA}")
    a(f"s_waitcnt vmcnt({vm.wait('x')})")
    stg(1); dbgt(5)
    S = TMP; DV = XF
    a("s_mov_b32 s50, 0x00003f80\n s_mov_b32 s51, 0x3f800000")
    for i in range(4): a(f"v_mov_b32 v{S+i}, 0")
    for i in range(28): a(f"v_dot2_f32_bf16 v{S+(i&3)}, v{BF+i}, s54, v{S+(i&3)}")
    dma(0)
    a(f"v_add_f32 v{S}, v{S}, v{S+1}\n v_add_f32 v{S+2}, v{S+2}, v{S+3}\n v_add_f32 v{S}, v{S}, v{S+2}")
    red8(a, S)
    vM, vMB, vNM = TMP+4, TMP+5, TMP+6
    a(f"v_mul_f32 v{vM}, {hex(f32bits(1/448))}, v{S}")
    a(f"v_cvt_pk_bf16_f32 v{vMB}, 0, v{vM}\n v_sub_f32 v{vNM}, 0, v{vMB}")
    for i in range(4): a(f"v_mov_b32 v{S+i}, 0")
    for i in range(0, 28, 4):
        for u in range(4):
            d = DV+2*(i+u)
            a(f"v_dot2_f32_bf16 v{d}, v{BF+i+u}, s50, v{vNM}\n v_dot2_f32_bf16 v{d+1}, v{BF+i+u}, s51, v{vNM}")
        if i >= 4:
            for u in range(4):
                d = DV+2*(i-4+u); s_ = S+2*(u & 1)
                a(f"v_pk_fma_f32 v[{s_}:{s_+1}], v[{d}:{d+1}], v[{d}:{d+1}], v[{s_}:{s_+1}]")
        if i == 8: dma(1)
        if i == 20: dma(2)
    for u in range(4):
        d = DV+2*(24+u); s_ = S+2*(u & 1)
        a(f"v_pk_fma_f32 v[{s_}:{s_+1}], v[{d}:{d+1}], v[{d}:{d+1}], v[{s_}:{s_+1}]")
    a(f"v_add_f32 v{S}, v{S}, v{S+1}\n v_add_f32 v{S+2}, v{S+2}, v{S+3}\n v_add_f32 v{S}, v{S}, v{S+2}")
    for i in range(16): a(f"v_cvt_pk_bf16_f32 v{DV+i}, 0, v{DV+i}")
    red8(a, S)
    vRS = TMP+6; t = S+2
    a(f"v_sub_f32 v{t}, v{vM}, v{vMB}\n v_mul_f32 v{t}, v{t}, v{t}\n v_mov_b32 v{t+1}, {hex(f32bits(1.0/448))}\n v_fma_f32 v{t}, v{S}, v{t+1}, -v{t}\n v_max_f32 v{t}, 0, v{t}")
    n0 = len(a.lines); var_to_rs(a, t, vRS); a(f"v_mov_b32 v{vRS+1}, v{vRS}"); chain = a.lines[n0:]; del a.lines[n0:]
    for i in range(16, 56):
        a(f"v_cvt_pk_bf16_f32 v{DV+i}, 0, v{DV+i}")
        if chain and i % 3 == 0: a(chain.pop(0))
    for l in chain: a(l)
    dma(3)
    for i in range(0, 28, 4):
        for u in range(4):
            d = DV+2*(i+u); a(f"v_pk_mul_f32 v[{d}:{d+1}], v[{d}:{d+1}], v[{vRS}:{vRS+1}]")
        for u in range(4):
            d = DV+2*(i+u); a(f"v_cvt_pk_bf16_f32 v{BF+i+u}, v{d}, v{d+1}")
        a(f"ds_write_b128 v{vW}, v[{BF+i}:{BF+i+3}] offset:{32*i}")
    stg(2)
    dma(4); touch2()
    a("s_waitcnt lgkmcnt(0)")
    def capture(fn, *args):
        n0 = len(a.lines); fn(*args); out = a.lines[n0:]; del a.lines[n0:]; return out
    def trbase(idx, t):
        slot = (t % N1)*S1
        return (vTR+2*idx+(1 if slot >= 65536 else 0), slot-(65536 if slot >= 65536 else 0))
    def reads1(t):
        b = BF+16*(t & 1); vb, so = trbase(0, t)
        for k in range(4):
            c16 = 4*(t % 7)+k
            if t < 7: a(f"ds_read_b128 v[{XF+4*c16}:{XF+4*c16+3}], v{vAA+(c16&3)} offset:{(c16>>2)*128}")
            for tt in range(2):
                a(f"ds_read_b64_tr_b16 v[{b+4*k+2*tt}:{b+4*k+2*tt+1}], v{vb} offset:{so+k*4096+tt*1024}")
    def mfma1(t):
        b = BF+16*(t & 1)
        for k in range(4):
            c16 = 4*(t % 7)+k
            cin = "0" if c16 == 0 else f"v[{ACC}:{ACC+15}]"
            a(f"v_mfma_f32_32x32x16_bf16 v[{ACC}:{ACC+15}], v[{b+4*k}:{b+4*k+3}], v[{XF+4*c16}:{XF+4*c16+3}], {cin}")
    def body(mf, rd, issue, bgq=None, nbg=0):
        n = max(len(mf), 1); h = (len(rd)+1)//2 if n > 1 else len(rd)
        for i in range(n):
            if i < len(mf): a(mf[i])
            if i == 0:
                for l in rd[:h]: a(l)
            if i == 1:
                for l in rd[h:]: a(l)
            if i == min(2, n-1): issue()
            if bgq:
                for _ in range(nbg):
                    if bgq: a(bgq.pop(0))
    for t in range(7):
        a(f"s_waitcnt vmcnt({vm.wait(('st', t))})")
        a("s_barrier")
        stg(3+t)
        if t == 0:
            a(f"buffer_load_dword v{vPOLL}, v{vZERO}, s[{sDBG}:{sDBG+3}], 0 offen sc1"); vm.issue("nonce")
        if t == 6: get_nonce("L_NON")
        body(capture(mfma1, t-1) if t > 0 else [], capture(reads1, t), lambda: dma(t+D))
        a("s_waitcnt lgkmcnt(0)")
    mfma1(6)
    dbgt(6)
    def late_touch():
        NS_ = WSP_K2-WSP_K1
        a(f"v_mov_b32 v{TMP+2}, 0x10000000")
        if NS_ > 0:
            PERW = -(-NS_*256//28)
            a("s_and_b32 s49, s40, 4\n s_and_b32 s50, s40, 1\n s_lshl_b32 s50, s50, 1\n s_add_u32 s49, s49, s50\n s_bfe_u32 s50, s40, 0x10001\n s_add_u32 s49, s49, s50\n s_lshl_b32 s49, s49, 20")
            a(f"s_mul_i32 s50, s41, {PERW}\n v_add_u32 v{TMP}, s50, v0")
            MG = (2**32+NS_-1)//NS_
            a(f"s_mov_b32 s50, {MG}\n v_mul_hi_u32 v{TMP+1}, v{TMP}, s50\n v_mul_u32_u24 v{TMP+3}, {NS_}, v{TMP+1}\n v_sub_u32 v{TMP+3}, v{TMP}, v{TMP+3}")
            a(f"v_lshlrev_b32 v{TMP+1}, 12, v{TMP+1}\n v_lshl_add_u32 v{TMP+1}, v{TMP+3}, 7, v{TMP+1}")
            a(f"v_cmp_gt_u32 vcc, {PERW}, v0\n v_cndmask_b32 v{TMP+1}, v{TMP+2}, v{TMP+1}, vcc")
            a(f"buffer_load_dword v{VPF+2}, v{TMP+1}, s[{sSP}:{sSP+3}], s49 offen offset:{128*WSP_K1}"); vm.issue("pf")
        srd(a, 92, 82, 896*896)
        a("s_cmp_lg_u32 s42, 7\n s_cbranch_scc1 L_WO1")
        pc_srd(a, 92, "TAB_TT", 7*56*1024)
        a("L_WO1:")
        a("s_mul_i32 s49, s40, 28\n s_add_u32 s49, s49, s41\n s_cmp_eq_u32 s42, 7\n s_cselect_b32 s50, 14, 28\n s_mul_i32 s49, s49, s50\n s_lshl_b32 s49, s49, 7\n s_cmp_lt_u32 s42, 6\n s_cselect_b32 s50, 0, s50")
        a(f"v_lshlrev_b32 v{TMP+1}, 7, v1\n v_cmp_gt_u32 vcc, s50, v1\n v_cndmask_b32 v{TMP+1}, v{TMP+2}, v{TMP+1}, vcc")
        a(f"buffer_load_dword v{VPF+3}, v{TMP+1}, s[92:95], s49 offen"); vm.issue("pf")
        pc_srd(a, sTT, "TAB_TT", 7*56*1024)
    WT_T = int(os.environ.get("WTT", "0"))
    if WT_T == 0: late_touch()
    a(f"s_mov_b32 s53, s52\n v_mov_b32 v{VC1+1}, v{VC1}")
    def gelu_pk(acc, tmp, dst=None):
        P = lambda b, i: f"v[{b+2*i}:{b+2*i+1}]"
        for i in range(16): a(f"v_cvt_pk_bf16_f32 v{acc+i}, 0, v{acc+i}")
        for i in range(8): a(f"v_pk_mul_f32 {P(tmp,i)}, {P(acc,i)}, {P(acc,i)}")
        for i in range(8): a(f"v_pk_fma_f32 {P(tmp,i)}, {P(tmp,i)}, s[52:53], v[{VC1}:{VC1+1}]")
        for i in range(8): a(f"v_pk_mul_f32 {P(tmp,i)}, {P(tmp,i)}, {P(acc,i)}")
        for i in range(16): a(f"v_exp_f32 v{tmp+i}, v{tmp+i}")
        for i in range(8): a(f"v_pk_add_f32 {P(tmp,i)}, {P(tmp,i)}, 1.0 op_sel_hi:[1,0]")
        for i in range(16): a(f"v_rcp_f32 v{tmp+i}, v{tmp+i}")
        for i in range(8): a(f"v_pk_mul_f32 {P(tmp,i)}, {P(tmp,i)}, {P(acc,i)}")
        for i in range(16): a(f"v_cvt_pk_bf16_f32 v{(acc if dst is None else dst)+i}, 0, v{tmp+i}")
    Z2F = ACC
    gelu_pk(ACC, TMP)
    P_ = lambda b, i: f"v[{b+2*i}:{b+2*i+1}]"
    for i in range(4): a(f"v_pk_add_f32 {P_(TMP,i)}, {P_(ACC,i)}, {P_(ACC,i+4)}")
    for i in range(2): a(f"v_pk_add_f32 {P_(TMP,i)}, {P_(TMP,i)}, {P_(TMP,i+2)}")
    a(f"v_pk_add_f32 {P_(TMP,0)}, {P_(TMP,0)}, {P_(TMP,1)}\n v_add_f32 v{TMP}, v{TMP}, v{TMP+1}")
    halfsum(a, TMP, TMP+1)
    a(f"v_mul_f32 v{TMP+18}, {hex(f32bits(-1/32))}, v{TMP}")
    for i in range(8): a(f"v_pk_add_f32 {P_(TMP,i)}, {P_(ACC,i)}, v[{TMP+18}:{TMP+19}] op_sel_hi:[1,0]")
    for i in range(2): a(f"v_pk_mul_f32 {P_(PS,i)}, {P_(TMP,i)}, {P_(TMP,i)}")
    for i in range(2, 8): a(f"v_pk_fma_f32 {P_(PS,i&1)}, {P_(TMP,i)}, {P_(TMP,i)}, {P_(PS,i&1)}")
    a(f"v_pk_add_f32 {P_(PS,0)}, {P_(PS,0)}, {P_(PS,1)}\n v_add_f32 v{TMP+9}, v{PS}, v{PS+1}\n v_sub_f32 v{TMP+8}, 0, v{TMP+18}")
    halfsum(a, TMP+9, TMP+1)
    a(f"v_and_b32 v{TMP+10}, 31, v1\n v_lshlrev_b32 v{TMP+10}, 5, v{TMP+10}\n v_add_u32 v{TMP+10}, s56, v{TMP+10}")
    a(f"ds_write_b64 v{TMP+10}, v[{TMP+8}:{TMP+9}]")
    a(f"v_and_b32 v{TMP+21}, 31, v1\n v_lshlrev_b32 v{TMP+21}, 4, v{TMP+21}\n v_lshrrev_b32 v{TMP+20}, 5, v1\n v_mul_u32_u24 v{TMP+20}, 1536, v{TMP+20}\n v_add_u32 v{TMP+20}, v{TMP+20}, v{TMP+21}\n v_add_u32 v{TMP+21}, 3072, v{TMP+21}")
    a("s_waitcnt lgkmcnt(0)")
    G = PS; ACC3 = ACC
    def is45(label): a(f"s_and_b32 s49, s42, 6\n s_cmp_lg_u32 s49, 4\n s_cbranch_scc1 {label}")
    def gloads():
        for i in range(4):
            a(f"buffer_load_dwordx4 v[{G+4*i}:{G+4*i+3}], v{TMP+20 if i < 3 else TMP+21}, s[{sWS}:{sWS+3}], s55 offen offset:{(i % 3)*512} sc1")
    def norm_job():
        A0 = TMP; T3 = PS
        a(f"s_and_b32 s29, s42, 1\n s_lshl_b32 s29, s29, 8\n s_add_u32 s29, s29, {SX+2048}\n v_and_b32 v{A0}, 31, v1\n v_lshlrev_b32 v{A0}, 3, v{A0}\n v_add_u32 v{A0}, s29, v{A0}")
        a(f"ds_read_b64 v[{A0+2}:{A0+3}], v{A0}")
        a("s_waitcnt lgkmcnt(0)")
        for i in range(8): a(f"v_pk_add_f32 {P_(Z2F,i)}, {P_(Z2F,i)}, v[{A0+2}:{A0+3}] op_sel_hi:[1,0]")
        for i in range(16): a(f"v_cvt_pk_bf16_f32 v{Z2F+i}, 0, v{Z2F+i}")
        for i in range(8): a(f"v_pk_mul_f32 {P_(Z2F,i)}, {P_(Z2F,i)}, v[{A0+2}:{A0+3}] op_sel:[0,1]")
        for p in range(8): a(f"v_cvt_pk_bf16_f32 v{ZP+p}, v{Z2F+2*p}, v{Z2F+2*p+1}")
    def norm_job2():
        A0 = TMP; T3 = PS
        a(f"s_lshl_b32 s29, s42, 11\n s_add_u32 s29, s29, {TSC}")
        a(f"v_and_b32 v{A0}, 31, v1\n v_lshlrev_b32 v{A0}, 6, v{A0}\n v_lshrrev_b32 v{A0+1}, 5, v1\n v_lshl_add_u32 v{A0}, v{A0+1}, 3, v{A0}\n v_add_u32 v{A0}, s29, v{A0}")
        a(f"v_bfe_u32 v{A0+2}, v1, 1, 2\n v_lshlrev_b32 v{A0+2}, 4, v{A0+2}")
        for j in range(4):
            a(f"v_xor_b32 v{A0+4+j}, {16*j}, v{A0+2}\n v_add_u32 v{A0+4+j}, v{A0+4+j}, v{A0}")
        for j in range(4): a(f"ds_write_b64 v{A0+4+j}, v[{ZP+2*j}:{ZP+2*j+1}]")
        a(f"v_bfe_u32 v{A0+2}, v1, 2, 2\n v_lshl_add_u32 v{A0+1}, v{A0+1}, 3, v{A0+2}\n v_lshlrev_b32 v{A0+1}, 6, v{A0+1}\n v_and_b32 v{A0+3}, 1, v1\n v_lshl_add_u32 v{A0+1}, v{A0+3}, 3, v{A0+1}\n v_add_u32 v{A0+1}, s29, v{A0+1}")
        a(f"v_bfe_u32 v{A0+3}, v1, 4, 1\n v_bfe_u32 v{A0+8}, v1, 1, 1\n v_lshl_add_u32 v{A0+3}, v{A0+3}, 1, v{A0+8}\n v_lshrrev_b32 v{A0+2}, 1, v{A0+2}\n v_xor_b32 v{A0+3}, v{A0+3}, v{A0+2}")
        a(f"v_lshl_add_u32 v{A0+8}, v{A0+3}, 4, v{A0+1}\n v_xor_b32 v{A0+3}, 2, v{A0+3}\n v_lshl_add_u32 v{A0+9}, v{A0+3}, 4, v{A0+1}")
        for c in range(2):
            for tt in range(2): a(f"ds_read_b64_tr_b16 v[{T3+4*c+2*tt}:{T3+4*c+2*tt+1}], v{A0+8+tt} offset:{c*1024+tt*256}")
        a("s_add_u32 s28, s58, 32768\n s_waitcnt lgkmcnt(0)")
    def check_stats():
        is45("L_NOCHK")
        a("s_mov_b32 s50, 0\nL_CHK:")
        a(f"v_cmp_eq_u32 vcc, s63, v{G+1}")
        for i in range(1, 8): a(f"v_cmp_eq_u32 s[30:31], s63, v{G+1+2*i}\n s_and_b64 vcc, vcc, s[30:31]")
        a("s_add_u32 s50, s50, 1\n s_cmp_eq_u64 vcc, exec\n s_cbranch_scc1 L_CHKOK")
        a(f"s_cmp_ge_u32 s50, {SPIN}\n s_cbranch_scc1 L_CHKOK")
        a("s_sleep 2"); gloads()
        a("s_waitcnt vmcnt(0)\n s_branch L_CHK\nL_CHKOK:")
        B0 = TMP
        a(f"v_mul_f32 v{B0}, 0.5, v{G+12}\n v_mul_f32 v{B0+1}, 0.5, v{G+14}")
        for i in range(3): a(f"v_add_f32 v{B0}, v{B0}, v{G+4*i}\n v_add_f32 v{B0+1}, v{B0+1}, v{G+4*i+2}")
        halfsum(a, B0, B0+2); halfsum(a, B0+1, B0+2)
        a(f"v_mul_f32 v{B0}, {hex(f32bits(1/7))}, v{B0}")
        a(f"v_sub_f32 v{B0+4}, v{G+12}, v{B0}\n v_mul_f32 v{B0+3}, v{B0+4}, v{B0+4}\n v_mul_f32 v{B0+3}, 0.5, v{B0+3}")
        for i in range(3): a(f"v_sub_f32 v{B0+4}, v{G+4*i}, v{B0}\n v_fmac_f32 v{B0+3}, v{B0+4}, v{B0+4}")
        halfsum(a, B0+3, B0+2)
        a(f"v_mov_b32 v{B0+2}, 0x43000000\n v_fma_f32 v{B0+1}, v{B0+3}, v{B0+2}, v{B0+1}")
        a(f"v_mul_f32 v{B0+1}, {hex(f32bits(1/896))}, v{B0+1}")
        var_to_rs(a, B0+1, B0+5)
        a(f"v_cvt_pk_bf16_f32 v{B0+4}, 0, v{B0}\n v_sub_f32 v{B0+4}, 0, v{B0+4}")
        a(f"s_and_b32 s49, s42, 1\n s_lshl_b32 s49, s49, 8\n s_add_u32 s49, s49, {SX+2048}\n v_and_b32 v{B0+6}, 31, v1\n v_lshlrev_b32 v{B0+6}, 3, v{B0+6}\n v_add_u32 v{B0+6}, s49, v{B0+6}")
        a(f"ds_write_b64 v{B0+6}, v[{B0+4}:{B0+5}]\n s_waitcnt lgkmcnt(0)")
        a("L_NOCHK:")
    a("s_cmp_ge_u32 s42, 4\n s_cbranch_scc1 L_P2Z")
    vm_save = list(vm.ops); vm_end = {}
    pend = stg.pending
    EARLY = {16: [0, 1], 17: [2], 18: [3], 20: [4]}
    HB = [BF+16, PS, BF]
    assert CHK_T == 14 or HB[(2*(CHK_T-7)-1) % 3] != PS
    ACF = ACC2
    for path in ("F", "Z"):
        vm.ops = list(vm_save); stg.pending = pend
        if path == "Z": a("L_P2Z:")
        else:
            a(f"s_lshr_b32 s49, s42, 1\n s_lshl_b32 s49, s49, 12\n v_add_u32 v{vTR+2}, s49, v{vF}\n v_add_u32 v{vTR+3}, 0x10000, v{vTR+2}")
        def readsF(hh):
            b = HB[hh % 3]; vb, so = trbase(1, 7+(hh >> 1))
            return [f"ds_read_b128 v[{b+4*f}:{b+4*f+3}], v{vb} offset:{so+(hh & 1)*8192+f*1024}" for f in range(4)]
        def mfmaF(hh):
            if hh < 0: return []
            b = HB[hh % 3]; out = []
            for f in range(4):
                c16 = 2*hh+(f >> 1)
                cin = "0" if (hh == 0 and f == 0) else f"v[{ACF}:{ACF+15}]"
                out.append(f"v_mfma_f32_32x32x16_bf16 v[{ACF}:{ACF+15}], v[{XF+4*c16}:{XF+4*c16+3}], v[{b+4*f}:{b+4*f+3}], {cin}")
            return out
        for t in range(7, 14):
            n = vm.wait(("st", t))
            if t == CHK_T and path == "Z": n = min(n, vm.wait("gl"))
            a(f"s_waitcnt vmcnt({n})")
            if t == CHK_T and path == "Z": check_stats()
            a("s_barrier")
            stg(3+t)
            if t == 7 and path == "Z":
                is45("L_NOSIG")
                B0 = TMP
                a(f"v_and_b32 v{B0+10}, 31, v1\n v_lshlrev_b32 v{B0+11}, 5, v{B0+10}\n s_sub_u32 s49, s56, 16\n v_add_u32 v{B0+11}, s49, v{B0+11}")
                a(f"ds_read_b128 v[{B0}:{B0+3}], v{B0+11}\n ds_read_b128 v[{B0+4}:{B0+7}], v{B0+11} offset:16\n s_waitcnt lgkmcnt(0)")
                a(f"v_add_f32 v{B0+8}, v{B0}, v{B0+2}\n v_add_f32 v{B0+9}, v{B0+4}, v{B0+6}\n v_add_f32 v{B0+8}, v{B0+8}, v{B0+9}\n v_mul_f32 v{B0+12}, 0.25, v{B0+8}")
                a(f"v_add_f32 v{B0+14}, v{B0+1}, v{B0+3}\n v_add_f32 v{B0+9}, v{B0+5}, v{B0+7}\n v_add_f32 v{B0+14}, v{B0+14}, v{B0+9}\n v_mov_b32 v{B0+8}, 0")
                for i in range(4): a(f"v_sub_f32 v{B0+9}, v{B0+2*i}, v{B0+12}\n v_fmac_f32 v{B0+8}, v{B0+9}, v{B0+9}")
                a(f"v_mov_b32 v{B0+9}, 0x42000000\n v_fma_f32 v{B0+14}, v{B0+8}, v{B0+9}, v{B0+14}")
                a(f"v_mov_b32 v{B0+13}, s63\n v_mov_b32 v{B0+15}, s63\n v_lshlrev_b32 v{B0+10}, 4, v{B0+10}")
                a(f"buffer_store_dwordx4 v[{B0+12}:{B0+15}], v{B0+10}, s[{sWS}:{sWS+3}], s61 offen sc1")
                a("s_nop 1\nL_NOSIG:")
            def issue():
                if t == LD_T and path == "Z":
                    gloads()
                    for i in range(4): vm.issue("gl")
                dma(t+D)
            if t == CHK_T:
                norm_job(); norm_job2()
                for q in range(2):
                    a(f"buffer_store_dwordx4 v[{PS+4*q}:{PS+4*q+3}], v{vB2}, s[{sWS}:{sWS+3}], s{58 if q == 0 else 28} offen sc1"); vm.issue("z2n")
            if path == "Z": issue()
            else:
                hh = 2*(t-7)
                body(mfmaF(hh-1), readsF(hh)+readsF(hh+1), issue)
                a("s_waitcnt lgkmcnt(4)")
                for l in mfmaF(hh): a(l)
                a("s_waitcnt lgkmcnt(0)")
        if path == "F":
            for l in mfmaF(13): a(l)
            a(f"v_and_b32 v{TMP}, 31, v1\n s_lshr_b32 s49, s42, 1\n s_lshl_b32 s49, s49, 5\n v_add_u32 v{TMP}, s49, v{TMP}")
            a(f"v_mul_u32_u24 v{TMP}, {UXP}, v{TMP}\n v_lshrrev_b32 v{TMP+1}, 5, v1\n v_lshl_add_u32 v{TMP}, v{TMP+1}, 6, v{TMP}")
            a(f"s_and_b32 s49, s42, 1\n s_lshl_b32 s49, s49, 3\n s_add_u32 s49, s49, {UX}\n v_add_u32 v{TMP}, s49, v{TMP}")
            a("s_branch L_J1")
        vm_end[path] = list(vm.ops)
    vm.fork(vm_end["F"], vm_end["Z"])
    a("L_J1:")
    dbgt(7)
    T = 100; ZR = 88; BS = 96; FR = 20; AC = 104; Z1F = 124
    vTR2 = 84; vWA = 140
    a("s_cmp_ge_u32 s42, 4\n s_cbranch_scc1 L_NOUX")
    for r in range(4):
        a(f"v_cvt_pk_f16_f32 v{TMP+2+2*r}, v{ACF+r}, v{ACF+4+r}\n v_cvt_pk_f16_f32 v{TMP+3+2*r}, v{ACF+8+r}, v{ACF+12+r}")
        a(f"ds_write_b64 v{TMP}, v[{TMP+2+2*r}:{TMP+3+2*r}] offset:{16*r}")
    a("s_waitcnt lgkmcnt(0)\nL_NOUX:")
    def win(Tg): sl = pslot(Tg); return sl >> 1, (sl & 1)*S2
    FZ_T, FU_T = 14+FZ_G, int(os.environ.get("FUT", "17"))
    for t in range(14, 21):
        n = vm.wait(("st", t))
        if t == FU_T: n = min(n, vm.wait("u"))
        if t == FZ_T: n = min(n, vm.wait("z2n"))
        if t == CHK_T: n = min(n, vm.wait("gl"))
        a(f"s_waitcnt vmcnt({n})")
        if t == CHK_T: check_stats()
        a("s_barrier")
        stg(3+t)
        if t == FU_T: set_flag("L_FU", 60)
        if t == FZ_T: set_flag("L_FZ", 59)
        if t == CHK_T:
            norm_job(); norm_job2()
            for q in range(2):
                a(f"buffer_store_dwordx4 v[{PS+4*q}:{PS+4*q+3}], v{vB2}, s[{sWS}:{sWS+3}], s{58 if q == 0 else 28} offen sc1"); vm.issue("z2n")
        if t == 14:
            a(f"v_lshrrev_b32 v{TMP+12}, 3, v0\n v_and_b32 v{TMP+13}, 7, v0")
            a(f"v_mul_u32_u24 v{TMP+14}, {UXP}, v{TMP+12}\n v_lshl_add_u32 v{TMP+14}, v{TMP+13}, 4, v{TMP+14}\n v_add_u32 v{TMP+14}, {UX}, v{TMP+14}")
            a(f"ds_read_b128 v[{TMP+16}:{TMP+19}], v{TMP+14}")
            a(f"v_lshlrev_b32 v{TMP+12}, 12, v{TMP+12}\n v_lshl_add_u32 v{TMP+12}, v{TMP+13}, 4, v{TMP+12}")
        def issue():
            dma(t+D)
            for T_ in EARLY.get(t, []): dmaA(T_)
            if t == WT_T: late_touch()
        body(capture(mfma1, t-1) if t > 14 else [], capture(reads1, t), issue)
        a("s_waitcnt lgkmcnt(0)")
        if t == 14:
            a(f"buffer_store_dwordx4 v[{TMP+16}:{TMP+19}], v{TMP+12}, s[{sWS}:{sWS+3}], s75 offen sc1"); vm.issue("u")
    mfma1(20)
    stg(24)
    def p2_setup():
        a(f"s_lshr_b32 s46, s42, 1\n s_lshl_b32 s46, s46, 10\n v_add_u32 v{vTR2}, s46, v{vF}")
        a(f"v_add_u32 v{vTR2+1}, {2*S2}, v{vTR2}\n v_add_u32 v{vTR2+2}, {4*S2}, v{vTR2}")
        a(f"v_and_b32 v{T}, 31, v1\n s_and_b32 s46, s42, 1\n s_lshl_b32 s46, s46, 5\n v_add_u32 v{T}, s46, v{T}")
        a(f"v_bfe_u32 v{T+1}, v{T}, 1, 3\n v_lshrrev_b32 v{T+2}, 5, v1\n v_xor_b32 v{T+1}, v{T+1}, v{T+2}\n v_lshlrev_b32 v{T}, 7, v{T}\n v_add_u32 v{T}, 16384, v{T}")
        for k in range(4):
            a(f"v_xor_b32 v{T+2}, {2*k}, v{T+1}\n v_lshl_add_u32 v{vWA+k}, v{T+2}, 4, v{T}")
            a(f"v_add_u32 v{vWA+4+k}, {2*S2}, v{vWA+k}\n v_add_u32 v{vWA+8+k}, {4*S2}, v{vWA+k}")
    def gelu_z1(): gelu_pk(ACC, TMP, Z1F); p2_setup()
    a("s_cmp_eq_u32 s42, 0\n s_cbranch_scc1 L_G0")
    gelu_z1()
    a("L_G0:")
    poll_pipe("L_CZ", 89, 240, gap=2)
    a("s_barrier")
    stg(25); dbgt(8)
    for Tg in range(D): dmaB(Tg)
    a("s_cmp_lg_u32 s42, 0\n s_cbranch_scc1 L_G1")
    gelu_z1()
    a("L_G1:")
    n_p3 = len(a.lines)
    vB3, vY3, vO3, XR = 152, 153, 154, 156
    srd(a, sWO, 82, 896*896)
    a("s_lshl_b32 s51, s40, 2\n s_and_b32 s52, s41, 3\n s_add_u32 s51, s51, s52\n s_lshr_b32 s52, s41, 2")
    a("s_lshr_b32 s53, s51, 4\n s_lshl_b32 s53, s53, 4\n s_bfe_u32 s54, s51, 0x10003\n s_lshl_b32 s54, s54, 2\n s_add_u32 s53, s53, s54")
    a(f"v_lshrrev_b32 v{T}, 3, v1\n v_and_b32 v{T+1}, 7, v1\n v_bfe_u32 v{T+2}, v1, 4, 1\n v_lshlrev_b32 v{T+2}, 2, v{T+2}\n v_xor_b32 v{T+2}, v{T+1}, v{T+2}")
    a(f"v_mul_u32_u24 v{vB3}, 896, v{T}\n v_lshl_add_u32 v{vO3}, v{T+1}, 4, v{vB3}\n v_lshl_add_u32 v{vB3}, v{T+2}, 4, v{vB3}")
    a(f"s_lshl_b32 s54, s51, 1\n s_lshr_b32 s55, s42, 2\n s_add_u32 s54, s54, s55\n s_mul_i32 s54, s54, 56\n s_and_b32 s55, s42, 3\n s_add_u32 s54, s54, s55\n s_lshl_b32 s54, s54, 10\n s_add_u32 s54, s54, {H}")
    a("s_mul_i32 s55, s42, 7168\n s_lshl_b32 s56, s52, 7\n s_add_u32 s55, s55, s56")
    a(f"s_mul_i32 s56, s51, 57344\n s_add_u32 s56, s56, s48\n s_add_u32 s56, s56, {YT}")
    a("s_mul_i32 s57, s52, 56\n s_add_u32 s57, s57, s42\n s_lshl_b32 s57, s57, 10")
    a("s_lshr_b32 s58, s42, 2\n s_lshl_b32 s58, s58, 3\n s_add_u32 s58, s58, s53\n s_and_b32 s59, s42, 3\n s_add_u32 s58, s58, s59\n s_lshl_b32 s58, s58, 6")
    a("s_and_b32 s59, s51, 7\n s_lshl_b32 s59, s59, 3\n s_add_u32 s58, s58, s59\n s_mul_i32 s58, s58, 896\n s_lshl_b32 s59, s52, 7\n s_add_u32 s58, s58, s59")
    a(f"s_lshl_b32 s61, s51, 10\n s_add_u32 s61, s61, {FLH}\n s_mov_b32 s62, {FLY}")
    p3_setup = a.lines[n_p3:]; del a.lines[n_p3:]
    blk = {}
    free = []
    def unit(kind, i):
        b = free.pop(0); blk[(kind, i)] = b
        a(f"s_add_u32 m0, s48, {b*8192}")
        if kind == "T":
            a(f"s_add_u32 s49, s57, {i*8192}\n buffer_load_dwordx4 v{vF}, s[{sTT}:{sTT+3}], s49 offen lds")
        elif kind == "W":
            a(f"s_add_u32 s49, s55, {64*i*896}\n buffer_load_dwordx4 v{vB3}, s[{sWO}:{sWO+3}], s49 offen lds")
        elif kind == "Y":
            a(f"s_add_u32 s49, s56, {i*8192}\n buffer_load_dwordx4 v{vF}, s[{sWS}:{sWS+3}], s49 offen sc1 lds")
        else:
            a(f"s_add_u32 s49, s54, {4*i*1024}\n buffer_load_dwordx4 v{vF}, s[{sWS}:{sWS+3}], s49 offen sc1 lds")
        vm.issue((kind, i))
    PRE = {27: [("T", 0), ("T", 1), ("T", 2)], 28: [("T", 3), ("T", 4), ("T", 5)], 29: [("T", 6), ("W", 0), ("W", 1)],
           30: [("W", 2), ("W", 3)], 31: [], 32: []}
    POST = []
    def rd2(Tg, k):
        b = FR+32*(Tg & 1); w_, so = win(Tg)
        return [f"ds_read_b128 v[{b+8*k}:{b+8*k+3}], v{vTR2+w_} offset:{so+4096*k}"] + \
               [f"ds_read_b128 v[{b+8*k+4}:{b+8*k+7}], v{vWA+4*w_+k} offset:{so}"]
    def mf2(Tg):
        b = FR+32*(Tg & 1)
        return [f"v_mfma_f32_32x32x16_bf16 v[{AC}:{AC+15}], v[{b+8*k}:{b+8*k+3}], v[{b+8*k+4}:{b+8*k+7}], " + ("0" if (Tg == 0 and k == 0) else f"v[{AC}:{AC+15}]") for k in range(4)]
    def late_loads():
        SK = os.environ.get("SKIP", "")
        a("s_mov_b32 s46, s73")
        a(f"v_bfe_u32 v{T}, v1, 3, 2\n v_and_b32 v{T+1}, 7, v1\n v_lshlrev_b32 v{T}, 7, v{T}\n v_lshl_add_u32 v{T}, v{T+1}, 1, v{T}")
        if "b" in SK: a("s_mov_b32 s46, 0x20000000")
        a(f"buffer_load_ushort v{BS}, v{T}, s[{sBS}:{sBS+3}], s46 offen"); vm.issue("z1")
        a("s_mov_b32 s49, s58" if "x" not in SK else "s_mov_b32 s49, 0x20000000")
        a(f"buffer_load_dwordx4 v[{XR}:{XR+3}], v{vO3}, s[{sX}:{sX+3}], s49 offen"); vm.issue("z1")
    gl = []
    PY = 160
    WM = 164
    U_T, Y_T = int(os.environ.get("UT", "27")), 31
    for Tg in range(32):
        n = vm.wait(("g", Tg))
        a(f"s_waitcnt vmcnt({n})")
        a("s_barrier")
        stg(26+Tg)
        def issue():
            if Tg == 31: poll_issue("L_PY", 62, PY)
            if Tg == U_T: late_loads()
            if Tg+D < 32:
                dmaA(Tg+D); dmaB(Tg+D)
            else:
                free.extend(3*pslot(Tg-1)+i for i in range(3))
                for u_ in PRE[Tg]: unit(*u_)
        rd = rd2(Tg, 0)+rd2(Tg, 1)+rd2(Tg, 2)+rd2(Tg, 3)
        body(mf2(Tg-1) if Tg > 0 else [], rd, issue, p3_setup if Tg >= 2 else None, 3)
        a("s_waitcnt lgkmcnt(0)")
    assert not p3_setup
    dbgt(9)
    vTRo, vFRo, vTRs, vFRs = 168, 171, 224, 227; FG = 176; AC3 = 208; ACO = AC
    W3 = 49152
    a(f"v_bfe_u32 v{T}, v1, 2, 2\n v_lshrrev_b32 v{T+1}, 5, v1")
    a(f"v_bfe_u32 v{T+2}, v1, 4, 1\n v_bfe_u32 v{T+3}, v1, 1, 1\n v_lshl_add_u32 v{T+2}, v{T+2}, 1, v{T+3}")
    a(f"v_lshrrev_b32 v{T+3}, 1, v{T}\n v_lshlrev_b32 v{T+3}, 2, v{T+3}\n v_xor_b32 v{T+2}, v{T+2}, v{T+3}")
    a(f"v_and_b32 v{T+3}, 1, v1\n v_lshlrev_b32 v{T+3}, 3, v{T+3}\n v_lshl_add_u32 v{T+3}, v{T}, 7, v{T+3}")
    a("s_and_b32 s46, s42, 1\n s_bfe_u32 s47, s42, 0x10001")
    a(f"s_lshl_b32 s49, s47, 2\n v_xor_b32 v{T}, s49, v{T+2}\n v_lshl_add_u32 v{vTRo}, v{T}, 4, v{T+3}\n v_lshl_add_u32 v{vTRo}, v{T+1}, 9, v{vTRo}")
    a(f"s_lshl_b32 s49, s46, 12\n v_add_u32 v{vFRo}, s49, v{vF}")
    a(f"s_lshl_b32 s49, s46, 2\n v_xor_b32 v{T}, s49, v{T+2}\n v_lshl_add_u32 v{vTRs}, v{T}, 4, v{T+3}\n v_lshl_add_u32 v{vTRs}, v{T+1}, 10, v{vTRs}")
    a(f"s_lshl_b32 s49, s47, 10\n v_add_u32 v{vFRs}, s49, v{vF}")
    for b in (vTRo, vFRo, vTRs, vFRs): a(f"v_add_u32 v{b+1}, {W3}, v{b}\n v_add_u32 v{b+2}, {2*W3}, v{b}")
    a("s_cmp_ge_u32 s42, 4\n s_cbranch_scc1 L_S")
    vm_save = list(vm.ops); free_save = list(free); blk_save = dict(blk)
    HF_T, HC_T, NWPRE = 34, int(os.environ.get("HC", "40")), int(os.environ.get("NWP", "8")); SS = 35; OS = 43
    EXO = 272; EXA, EXB, EXS = 0, 64*EXO, 128*EXO
    LAST = OS+7
    for path in ("O", "S"):
        vm.ops = list(vm_save); stg2.pending = None; free[:] = free_save; blk.clear(); blk.update(blk_save)
        if path == "S": a("L_S:")
        grp = 0 if path == "O" else 1
        def work(it):
            if SS <= it < SS+7: return ("S", it-SS) if path == "S" else None
            if OS <= it < OS+7: return ("O", 2*(it-OS)+grp)
            return None
        def fb(it): return FG if (it & 1) else FR
        def rd3(it):
            wk = work(it)
            if wk is None: return []
            b = fb(it); out = []
            if wk[0] == "S": b1, b2, vt, vf, ts, ks = blk[("Y", wk[1])], blk[("T", wk[1])], vTRs, vFRs, 512, 2048
            else: b1, b2, vt, vf, ts, ks = blk[("W", wk[1])], blk[("H", wk[1])], vTRo, vFRo, 1024, 1024
            for k in range(4):
                for tt in range(2):
                    out.append(f"ds_read_b64_tr_b16 v[{b+8*k+2*tt}:{b+8*k+2*tt+1}], v{vt+b1//6} offset:{(b1 % 6)*8192+k*2048+tt*ts}")
                out.append(f"ds_read_b128 v[{b+8*k+4}:{b+8*k+7}], v{vf+b2//6} offset:{(b2 % 6)*8192+k*ks}")
            return out
        def mf3(it):
            wk = work(it)
            if wk is None: return []
            b = fb(it); out = []
            for k in range(4):
                if wk[0] == "O":
                    cin = "0" if (it == OS and k == 0) else f"v[{ACO}:{ACO+15}]"
                    out.append(f"v_mfma_f32_32x32x16_bf16 v[{ACO}:{ACO+15}], v[{b+8*k}:{b+8*k+3}], v[{b+8*k+4}:{b+8*k+7}], {cin}")
                else:
                    cin = "0" if (it == SS and k == 0) else f"v[{AC3}:{AC3+15}]"
                    out.append(f"v_mfma_f32_32x32x16_f16 v[{AC3}:{AC3+15}], v[{b+8*k+4}:{b+8*k+7}], v[{b+8*k}:{b+8*k+3}], {cin}")
            return out
        nextW, nextH = [4], [0]; post = list(POST); CAP = int(os.environ.get("CAP", "9"))
        for it in range(32, LAST):
            need = []
            if SS <= it < SS+7: need = [("Y", it-SS), ("T", it-SS)]
            if OS <= it < OS+7: need = [(k_, 2*(it-OS)+g_) for k_ in "WH" for g_ in range(2)]
            if it == HF_T: need.append("h")
            if need: a(f"s_waitcnt vmcnt({min(vm.wait(x) for x in need)})")
            if it == 33 and path == "O":
                a("s_waitcnt vmcnt(2)")
                poll_check("L_CY", 62, PY, covered=True)
                a(f"v_and_b32 v{vPA}, 7, v1\n v_min_u32 v{vPA}, 6, v{vPA}\n v_lshlrev_b32 v{vPA}, 7, v{vPA}")
            if it == HC_T and path == "O": poll_pipe("L_CH", 61, 240, pre=3)
            a("s_barrier")
            stg2(it-32)
            if it == HF_T and path == "O": set_flag("L_FH", 74)
            def issue():
                if it == 32:
                    free.extend(3*pslot(31)+i for i in range(3))
                    for u_ in PRE[32]: unit(*u_)
                if it == 33:
                    for i_ in range(7): unit("Y", i_)
                    a(f"s_mov_b32 s49, {WMAX}")
                    a(f"buffer_load_dwordx4 v[{WM}:{WM+3}], v{vF}, s[{sWS}:{sWS+3}], s49 offen sc1"); vm.issue("wm")
                if SS+1 <= it < SS+8: free.extend([blk[("Y", it-SS-1)], blk[("T", it-SS-1)]])
                if OS+1 <= it < OS+7: free.extend(blk[(k_, 2*(it-OS-1)+g_)] for k_ in "WH" for g_ in range(2))
                cap = CAP
                while free and it > 33:
                    if it < HC_T:
                        if cap == 0: break
                        cap -= 1
                        if post: unit(*post.pop(0))
                        elif nextW[0] < NWPRE: unit("W", nextW[0]); nextW[0] += 1
                        else: break
                    else:
                        if nextH[0] < 14 and (nextH[0] < nextW[0] or nextW[0] >= 14): unit("H", nextH[0]); nextH[0] += 1
                        elif nextW[0] < 14: unit("W", nextW[0]); nextW[0] += 1
                        else: break
            body(mf2(31) if it == 32 else mf3(it-1), rd3(it), issue)
            if HC_T-3 <= it < HC_T and path == "O": poll_issue(f"L_PH{it}", 61, 240+it-(HC_T-3))
            if it == 32:
                E = FR+32
                a(f"s_waitcnt vmcnt({vm.wait('z1')})")
                a(f"v_lshlrev_b32 v{BS}, 16, v{BS}")
                for i in range(16): a(f"v_cvt_pk_bf16_f32 v{E+i}, 0, v{AC+i}")
                for i in range(8): a(f"v_pk_add_f32 {P_(E,i)}, {P_(E,i)}, v[{BS}:{BS+1}] op_sel_hi:[1,0]")
                for i in range(16): a(f"v_cvt_pk_bf16_f32 v{E+i}, 0, v{E+i}")
                for i in range(8): a(f"v_pk_mul_f32 {P_(E,i)}, {P_(E,i)}, {P_(Z1F,i)}")
                for p in range(8): a(f"v_cvt_pk_bf16_f32 v{E+16+p}, v{E+2*p}, v{E+2*p+1}")
                a("s_mov_b32 s49, s72")
                for q in range(2):
                    a(f"buffer_store_dwordx4 v[{E+16+4*q}:{E+19+4*q}], v{vF}, s[{sWS}:{sWS+3}], s49 offen offset:{q*1024} sc1"); vm.issue("h")
            if it == OS and path == "S":
                wmax_reduce(a, WM, 28, 29)
                a(f"s_lshl_b32 s28, s28, 23\n v_mov_b32 v174, {hex(f32bits(1/28))}\n v_mul_f32 v174, s28, v174")
            if it == OS+1 and path == "S":
                for i in range(16): a(f"v_mul_f32 v{AC3+i}, v{AC3+i}, v174")
                for p in range(8): a(f"v_cvt_pk_bf16_f32 v{ZR+p}, v{AC3+2*p}, v{AC3+2*p+1}")
            a("s_waitcnt lgkmcnt(0)")
        a("s_barrier")
        for l in mf3(LAST-1): a(l)
        a(f"v_and_b32 v{T}, 31, v1\n s_lshl_b32 s49, s46, 5\n v_add_u32 v{T}, s49, v{T}\n v_lshrrev_b32 v{T+1}, 5, v1")
        if path == "S":
            a(f"v_mul_u32_u24 v{T+2}, {EXP}, v{T}\n v_lshl_add_u32 v{T+2}, v{T+1}, 3, v{T+2}\n s_lshl_b32 s49, s47, 6\n s_add_u32 s49, s49, {EXS}\n v_add_u32 v{T+2}, s49, v{T+2}")
            for j in range(4): a(f"ds_write_b64 v{T+2}, v[{ZR+2*j}:{ZR+2*j+1}] offset:{16*j}")
        a(f"v_mul_u32_u24 v{T}, {EXO}, v{T}\n v_lshl_add_u32 v{T}, v{T+1}, 4, v{T}\n s_lshl_b32 s49, s47, 7\n s_add_u32 s49, s49, {EXA if path == 'O' else EXB}\n v_add_u32 v{T}, s49, v{T}")
        for j in range(4): a(f"ds_write_b128 v{T}, v[{ACO+4*j}:{ACO+4*j+3}] offset:{32*j}")
        if path == "O": a("s_branch L_J3")
    a("L_J3:")
    stg2(21)
    a("s_waitcnt lgkmcnt(0)\n s_barrier")
    a(f"v_lshrrev_b32 v{T}, 3, v0\n v_and_b32 v{T+1}, 7, v0\n v_mul_u32_u24 v{T+2}, {EXP}, v{T}\n v_lshl_add_u32 v{T+2}, v{T+1}, 4, v{T+2}")
    a(f"v_mul_u32_u24 v{T}, {EXO}, v{T}\n v_lshl_add_u32 v{T}, v{T+1}, 5, v{T}")
    O_, S_ = 20, 24; A_, B_ = 32, 40
    a(f"ds_read_b128 v[{A_}:{A_+3}], v{T}\n ds_read_b128 v[{A_+4}:{A_+7}], v{T} offset:16")
    a(f"ds_read_b128 v[{B_}:{B_+3}], v{T} offset:{EXB}\n ds_read_b128 v[{B_+4}:{B_+7}], v{T} offset:{EXB+16}")
    a(f"ds_read_b128 v[{S_}:{S_+3}], v{T+2} offset:{EXS}")
    a(f"s_mov_b32 s46, {hex(f32bits(-math.log2(math.e)))}\n s_mov_b32 s47, s46")
    a("s_waitcnt lgkmcnt(0)")
    for p in range(4): a(f"v_pk_add_f32 v[{A_+2*p}:{A_+2*p+1}], v[{A_+2*p}:{A_+2*p+1}], v[{B_+2*p}:{B_+2*p+1}]")
    for i in range(8): a(f"v_cvt_pk_bf16_f32 v{A_+i}, 0, v{A_+i}")
    for p in range(4): a(f"v_pk_mul_f32 v[{B_+2*p}:{B_+2*p+1}], v[{A_+2*p}:{A_+2*p+1}], s[46:47]")
    for i in range(8): a(f"v_exp_f32 v{B_+i}, v{B_+i}")
    for p in range(4): a(f"v_pk_add_f32 v[{B_+2*p}:{B_+2*p+1}], v[{B_+2*p}:{B_+2*p+1}], 1.0 op_sel_hi:[1,0]")
    for i in range(8): a(f"v_rcp_f32 v{B_+i}, v{B_+i}")
    for p in range(4): a(f"v_pk_mul_f32 v[{A_+2*p}:{A_+2*p+1}], v[{A_+2*p}:{A_+2*p+1}], v[{B_+2*p}:{B_+2*p+1}]")
    for i in range(8): a(f"v_cvt_pk_bf16_f32 v{A_+i}, 0, v{A_+i}")
    for p in range(4): a(f"v_lshlrev_b32 v{B_+2*p}, 16, v{S_+p}\n v_and_b32 v{B_+2*p+1}, 0xffff0000, v{S_+p}")
    for p in range(4): a(f"v_pk_mul_f32 v[{A_+2*p}:{A_+2*p+1}], v[{A_+2*p}:{A_+2*p+1}], v[{B_+2*p}:{B_+2*p+1}]")
    for i in range(8): a(f"v_cvt_pk_bf16_f32 v{A_+i}, 0, v{A_+i}")
    for p in range(4): a(f"v_lshlrev_b32 v{B_+2*p}, 16, v{XR+p}\n v_and_b32 v{B_+2*p+1}, 0xffff0000, v{XR+p}")
    for p in range(4): a(f"v_pk_add_f32 v[{A_+2*p}:{A_+2*p+1}], v[{A_+2*p}:{A_+2*p+1}], v[{B_+2*p}:{B_+2*p+1}]")
    for p in range(4): a(f"v_cvt_pk_bf16_f32 v{O_+p}, v{A_+2*p}, v{A_+2*p+1}")
    a(f"buffer_store_dwordx4 v[{O_}:{O_+3}], v{vO3}, s[{sOUT}:{sOUT+3}], s58 offen")
    def prof_end():
        if not PROF: return
        stg2(22); a("s_waitcnt vmcnt(0)"); stg2(23)
        a("s_memrealtime s[28:29]\n s_waitcnt lgkmcnt(0)")
        a("v_writelane_b32 v247, s100, 23\n v_writelane_b32 v247, s96, 62\n v_writelane_b32 v247, s28, 63")
        a(f"s_lshl_b32 s98, s2, 3\n s_add_u32 s98, s98, s42\n s_lshl_b32 s98, s98, 9\n s_add_u32 s98, s98, {TS}")
        a(f"v_lshlrev_b32 v251, 2, v1\n buffer_store_dword v246, v251, s[{sWS}:{sWS+3}], s98 offen\n buffer_store_dword v247, v251, s[{sWS}:{sWS+3}], s98 offen offset:256")
    prof_end()
    dbgt(10); dbg_flush()
    a("s_endpgm")
    gen_aux(a, locals())
    a("L_END:\n s_endpgm")
    a.raw(kd(NAME, 256, 102))

def gen_aux(a, L):
    sWS, sDBG, sSP, sBS = L["sWS"], L["sDBG"], L["sSP"], L["sBS"]
    vZERO, vPOLL, vPA, vF = L["vZERO"], L["vPOLL"], L["vPA"], L["vF"]
    stg, stg2 = L["stg"], L["stg2"]
    get_nonce, poll_check = L["get_nonce"], L["poll_check"]
    a("L_AUX:")
    stg.pending = 0; stg2.pending = None
    sWR, sWI, sTB = 4, 8, 16
    srd(a, sWR, 28, 2048*450); srd(a, sWI, 30, 2048*450)
    pc_srd(a, sTB, "TAB_FFT", FT_BYTES)
    a("s_sub_u32 s41, s41, 28")
    a("s_lshl_b32 s43, s41, 3\n s_add_u32 s43, s43, s40")
    a("s_cmp_lg_u32 s41, 0\n s_cbranch_scc1 L_NOCODE")
    pc_srd(a, 44, NAME, "L_END-"+NAME)
    a("v_lshlrev_b32 v5, 7, v0\n buffer_load_dword v254, v5, s[44:47], 0 offen")
    a("L_NOCODE:")
    AD = int(os.environ.get("AD", "1"))
    if AD:
        a(f"buffer_load_dword v{vPOLL}, v{vZERO}, s[{sDBG}:{sDBG+3}], 0 offen sc1\n s_waitcnt vmcnt(0)")
        get_nonce("L_ANON")
    a("s_lshr_b32 s44, s43, 1\n s_lshl_b32 s44, s44, 2\n s_and_b32 s45, s42, 3\n s_add_u32 s44, s44, s45\n s_lshl_b32 s44, s44, 5")
    a("s_and_b32 s45, s43, 1\n s_lshl_b32 s45, s45, 4\n s_add_u32 s44, s44, s45\n s_mul_i32 s44, s44, 450")
    WL = 65536
    a(f"s_lshl_b32 s46, s42, 13\n s_add_u32 s46, s46, {WL}")
    a("s_cmp_ge_u32 s42, 4\n s_cbranch_scc1 L_AUXI")
    for arr, sr in (("R", sWR), ("I", sWI)):
        if arr == "I": a("L_AUXI:")
        for i in range(8):
            a(f"s_add_u32 m0, s46, {i*1024}\n s_add_u32 s47, s44, {i*1024}")
            a(f"buffer_load_dwordx4 v{vF}, s[{sr}:{sr+3}], s47 offen lds")
        if arr == "R": a("s_branch L_AUXJ")
    a("L_AUXJ:")
    if not AD: a(f"buffer_load_dword v{vPOLL}, v{vZERO}, s[{sDBG}:{sDBG+3}], 0 offen sc1")
    a("v_and_b32 v5, 63, v0\n v_lshlrev_b32 v5, 12, v5\n v_lshrrev_b32 v6, 6, v0\n v_lshl_add_u32 v5, v6, 7, v5\n s_lshl_b32 s47, s43, 18")
    if int(os.environ.get("MATCH", "1")):
        a("s_and_b32 s47, s40, 4\n s_and_b32 s50, s40, 1\n s_lshl_b32 s50, s50, 1\n s_add_u32 s47, s47, s50\n s_bfe_u32 s50, s40, 0x10001\n s_add_u32 s47, s47, s50")
        a("s_lshl_b32 s47, s47, 2\n s_add_u32 s47, s47, s41\n s_lshl_b32 s47, s47, 18")
    AO = int(os.environ.get("AO", "1"))
    if AO == 2: a(f"buffer_load_dword v252, v5, s[{sSP}:{sSP+3}], s47 offen")
    a(f"s_waitcnt vmcnt({1 if AO == 2 else 0})\n s_barrier")
    stg(1)
    a("v_and_b32 v6, 15, v0\n v_lshrrev_b32 v7, 4, v0")
    a(f"v_mul_u32_u24 v8, 450, v6\n v_lshl_add_u32 v8, v7, 1, v8\n v_add_u32 v8, {WL}, v8")
    a("v_lshlrev_b32 v9, 13, v7\n v_lshl_add_u32 v9, v6, 4, v9")
    a(f"s_lshl_b32 s48, s43, 8\n s_add_u32 s48, s48, {WP}")
    a("v_mov_b32 v10, 0")
    for it in range(8):
        d = 16+4*it
        for r in range(4):
            a(f"ds_read_u16 v{d+r}, v8 offset:{r*8192+64*it}")
            a(f"ds_read_u16 v{d+r+96}, v8 offset:{(4+r)*8192+64*it}")
    if not AD: get_nonce("L_ANON")
    a("s_waitcnt lgkmcnt(0)")
    for it in range(8):
        d = 16+4*it
        for r in range(4): a(f"v_lshl_or_b32 v{d+r}, v{d+r+96}, 16, v{d+r}")
        if it == 7:
            a("v_cmp_gt_u32 vcc, 16, v0\n s_and_saveexec_b64 s[50:51], vcc\n s_cbranch_execz L_AUXSK")
        a(f"buffer_store_dwordx4 v[{d}:{d+3}], v9, s[{sWS}:{sWS+3}], s48 offen sc1")
        for r in range(4):
            a(f"v_and_b32 v{12+(r&1)}, 0x7fff7fff, v{d+r}\n v_pk_max_u16 v10, v10, v{12+(r&1)}")
        if it < 7: a(f"s_add_u32 s48, s48, {32*8192}")
    a("L_AUXSK:\n s_mov_b64 exec, -1")
    a("v_lshrrev_b32 v11, 16, v10\n v_and_b32 v10, 0xffff, v10\n v_max_u32 v10, v10, v11")
    a("v_max_u32_dpp v10, v10, v10 quad_perm:[1,0,3,2] row_mask:0xf bank_mask:0xf")
    a("v_max_u32_dpp v10, v10, v10 quad_perm:[2,3,0,1] row_mask:0xf bank_mask:0xf")
    a("v_max_u32_dpp v10, v10, v10 row_half_mirror row_mask:0xf bank_mask:0xf")
    a("v_max_u32_dpp v10, v10, v10 row_mirror row_mask:0xf bank_mask:0xf")
    a("v_readlane_b32 s50, v10, 0\n v_readlane_b32 s51, v10, 16\n v_readlane_b32 s52, v10, 32\n v_readlane_b32 s53, v10, 48")
    a("s_max_u32 s50, s50, s51\n s_max_u32 s52, s52, s53\n s_max_u32 s50, s50, s52")
    a(f"s_lshl_b32 s49, s43, 3\n s_add_u32 s49, s49, s42\n s_lshl_b32 s49, s49, 2\n s_add_u32 s49, s49, {WMAX}")
    a("v_mov_b32 v10, s50\n s_mov_b64 exec, 1")
    a(f"buffer_store_dword v10, v{vZERO}, s[{sWS}:{sWS+3}], s49 offen sc1")
    a("s_mov_b64 exec, -1")
    a("s_waitcnt vmcnt(0)\n s_barrier")
    stg(2)
    a(f"s_lshl_b32 s49, s43, 7\n s_add_u32 s49, s49, {FLW}")
    L["set_flag"]("L_FW", 49)
    if AO != 2: a(f"buffer_load_dword v252, v5, s[{sSP}:{sSP+3}], s47 offen")
    a("s_mul_i32 s45, s42, 7168")
    for i in range(7):
        a(f"s_add_u32 m0, s45, {i*1024}\n s_add_u32 s46, s45, {i*1024}")
        a(f"buffer_load_dwordx4 v{vF}, s[{sTB}:{sTB+3}], s46 offen lds")
    for rnd in range(1, -(-WSP_K1//8)):
        if 8*rnd+8 > WSP_K1: a(f"s_cmp_ge_u32 s42, {WSP_K1-8*rnd}\n s_cselect_b32 s47, 0x10000000, s47")
        a(f"buffer_load_dword v{252+rnd}, v5, s[{sSP}:{sSP+3}], s47 offen offset:{1024*rnd}")
    a("v_lshlrev_b32 v5, 7, v0")
    a(f"buffer_load_dword v255, v5, s[{sBS}:{sBS+3}], 0 offen")
    a(f"v_mov_b32 v8, {SX}\n ds_write_b32 v8, v{vZERO}")
    a(f"v_and_b32 v{vPA}, 31, v1\n v_lshlrev_b32 v{vPA}, 7, v{vPA}\n s_mov_b32 s59, {FLW}")
    L["poll_issue"]("L_PW", 59, vPOLL)
    poll_check("L_CW", 59, vPOLL, sleep=16)
    a("s_barrier")
    a("s_mul_i32 s44, s43, 7\n s_add_u32 s44, s44, s42\n s_cmp_eq_u32 s42, 7\n s_cselect_b32 s44, 224, s44")
    a(f"s_mov_b32 s53, {WMAX}\n buffer_load_dwordx4 v[12:15], v{vF}, s[{sWS}:{sWS+3}], s53 offen sc1")
    a(f"s_lshl_b32 s54, s44, 13\n s_add_u32 s54, s54, {WP}")
    a("s_cmp_eq_u32 s42, 7\n s_cselect_b32 s55, s43, 0\n s_cmp_lg_u32 s55, 0\n s_cselect_b32 s54, 0x20000000, s54\n s_add_u32 s55, s54, 4096")
    for i in range(8):
        a(f"buffer_load_dwordx4 v[{128+4*i}:{131+4*i}], v{vF}, s[{sWS}:{sWS+3}], s{54 if i < 4 else 55} offen offset:{(i&3)*1024} sc1")
    a("s_mul_i32 s51, s43, 14\n s_add_u32 s52, s51, 13\n s_lshr_b32 s51, s51, 6\n s_lshr_b32 s52, s52, 6\n s_lshl_b32 s51, s51, 12\n s_lshl_b32 s52, s52, 12")
    a(f"v_mov_b32 v8, s51\n v_mov_b32 v9, s52\n v_cmp_gt_u32 vcc, 32, v1\n v_cndmask_b32 v8, v9, v8, vcc\n v_add_u32 v{vPA}, v{vPA}, v8\n s_mov_b32 s59, {FLU}")
    L["poll_pipe"]("L_CF", 59, 240, gap=8)
    a("s_waitcnt vmcnt(9) lgkmcnt(0)\n s_barrier")
    stg(3)
    a("s_cmp_lg_u32 s42, 7\n s_cbranch_scc1 L_FFT0\n s_cmp_lg_u32 s43, 0\n s_cbranch_scc1 L_PFW\nL_FFT0:")

    vL = vF
    OPR, OPI, OPN = 16, 32, 48
    DR, DI = 64, 96
    WV = 128; C32 = 160; CF = 184; TWB = 216
    a("s_lshl_b32 s48, s44, 1\n s_add_u32 s49, s48, 1\n s_min_u32 s49, s49, 447\n s_cmp_eq_u32 s44, 224\n s_cselect_b32 s48, 1, s48")
    a("s_cmp_eq_u32 s44, 224\n s_cselect_b32 s58, 1, 0\n s_cmp_eq_u32 s44, 0\n s_cselect_b32 s58, 1, s58")
    a(f"s_lshl_b32 s48, s48, 12\n s_lshl_b32 s49, s49, 12\n s_add_u32 s51, s48, {U}\n s_add_u32 s52, s49, {U}")
    a(f"v_and_b32 v5, 31, v1\n v_lshrrev_b32 v6, 5, v1\n v_lshlrev_b32 v7, 4, v5\n v_lshl_add_u32 v7, v6, 10, v7")
    for mt in range(2):
        for c in range(2):
            f = 2*mt+c
            a(f"buffer_load_dwordx4 v[{OPR+4*f}:{OPR+4*f+3}], v7, s[{sWS}:{sWS+3}], s51 offen offset:{(32*mt+128*c)*16} sc1")
            a(f"buffer_load_dwordx4 v[{OPI+4*f}:{OPI+4*f+3}], v7, s[{sWS}:{sWS+3}], s52 offen offset:{(32*mt+128*c)*16} sc1")
    for i in range(6): a(f"ds_read_b128 v[{C32+4*i}:{C32+4*i+3}], v{vL} offset:{O_C32+i*1024}")
    CR = lambda c: f"v[{C32+4*c}:{C32+4*c+3}]"
    CI = lambda c: f"v[{C32+8+4*c}:{C32+8+4*c+3}]"
    CN = lambda c: f"v[{C32+16+4*c}:{C32+16+4*c+3}]"
    op = lambda base, f: f"v[{base+4*f}:{base+4*f+3}]"
    dd = lambda base, t: f"v[{base+16*t}:{base+16*t+15}]"
    a("s_waitcnt vmcnt(8)")
    wmax_reduce(a, 12, 53, 28)
    a("s_sub_u32 s56, 254, s53\n s_sub_u32 s56, s56, s58\n s_lshl_b32 s56, s56, 23\n s_mov_b32 s57, s56")
    a("s_waitcnt vmcnt(0)")
    a("s_cmp_eq_u32 s58, 0\n s_cbranch_scc1 L_NSP")
    for i in range(16): a(f"v_mov_b32 v{OPI+i}, 0")
    a("L_NSP:")
    a("s_waitcnt lgkmcnt(0)")
    stg(4)
    def mfma(d, x, y, first): a(f"v_mfma_f32_32x32x16_f16 {d}, {x}, {y}, {'0' if first else d}")
    for mt in range(2):
        for c in range(2):
            f = 2*mt+c
            mfma(dd(DR, mt), op(OPR, f), CR(c), c == 0); mfma(dd(DI, mt), op(OPR, f), CI(c), c == 0)
            mfma(dd(DR, mt), op(OPI, f), CN(c), False); mfma(dd(DI, mt), op(OPI, f), CR(c), False)
    def twiddle(otab, neg):
        def ld(g):
            b = TWB+8*(g % 3)
            a(f"ds_read_b128 v[{b}:{b+3}], v{vL} offset:{otab+g*2048}")
            a(f"ds_read_b128 v[{b+4}:{b+7}], v{vL} offset:{otab+g*2048+1024}")
        for g in range(2): ld(g)
        for g in range(8):
            if g+2 < 8: ld(g+2)
            a(f"s_waitcnt lgkmcnt({2*min(2, 7-g)})")
            b = TWB+8*(g % 3)
            v = 4*g
            for i in range(4): a(f"v_mul_f32 v{8+i}, v{DR+v+i}, v{b+i}\n v_mul_f32 v{12+i}, v{DR+v+i}, v{b+4+i}")
            for i in range(4): a(f"v_fma_f32 v{8+i}, -v{DI+v+i}, v{b+4+i}, v{8+i}\n v_fmac_f32 v{12+i}, v{DI+v+i}, v{b+i}")
            for pr in range(2):
                a(f"v_cvt_pk_f16_f32 v{OPR+v//2+pr}, v{8+2*pr}, v{9+2*pr}\n v_cvt_pk_f16_f32 v{OPI+v//2+pr}, v{12+2*pr}, v{13+2*pr}")
            if neg:
                for pr in range(2): a(f"v_xor_b32 v{OPN+v//2+pr}, 0x80008000, v{OPI+v//2+pr}")
    def big(step):
        def ld(i):
            b = CF+8*(i & 3)
            a(f"ds_read_b128 v[{b}:{b+3}], v{vL} offset:{O_C64R+i*1024}")
            a(f"ds_read_b128 v[{b+4}:{b+7}], v{vL} offset:{O_C64I+i*1024}")
        for i in range(3): ld(i)
        for i in range(8):
            if i+3 < 8: ld(i+3)
            a(f"s_waitcnt lgkmcnt({2*min(3, 7-i)})")
            b = CF+8*(i & 3); cr = f"v[{b}:{b+3}]"; ci = f"v[{b+4}:{b+7}]"
            t = i >> 2; c = i & 3
            if step == 3:
                mfma(dd(DR, t), cr, op(OPR, c), c == 0); mfma(dd(DI, t), ci, op(OPR, c), c == 0)
                mfma(dd(DR, t), ci, op(OPN, c), False); mfma(dd(DI, t), cr, op(OPI, c), False)
            else:
                mfma(dd(DR, t), op(OPR, c), cr, c == 0); mfma(dd(DI, t), op(OPI, c), cr, c == 0)
                mfma(dd(DR, t), op(OPI, c), ci, False); mfma(dd(DI, t), op(OPN, c), ci, False)
    twiddle(O_TW1, True)
    stg(5)
    big(3)
    stg(6)
    a("s_waitcnt vmcnt(0)")
    for v in range(0, 32, 4):
        b = TWB+8*((v >> 2) % 3)
        for i in range(4): a(f"v_lshlrev_b32 v{b+i}, 16, v{WV+v+i}\n v_and_b32 v{b+4+i}, 0xffff0000, v{WV+v+i}")
        for i in range(8): a(f"v_mul_f32 v{b+i}, s56, v{b+i}")
        for i in range(4): a(f"v_mul_f32 v{8+i}, v{DR+v+i}, v{b+i}\n v_mul_f32 v{12+i}, v{DR+v+i}, v{b+4+i}")
        for i in range(4): a(f"v_fma_f32 v{8+i}, -v{DI+v+i}, v{b+4+i}, v{8+i}\n v_fmac_f32 v{12+i}, v{DI+v+i}, v{b+i}")
        for pr in range(2):
            a(f"v_cvt_pk_f16_f32 v{OPR+v//2+pr}, v{8+2*pr}, v{9+2*pr}\n v_cvt_pk_f16_f32 v{OPI+v//2+pr}, v{12+2*pr}, v{13+2*pr}")
        for pr in range(2): a(f"v_xor_b32 v{OPN+v//2+pr}, 0x80008000, v{OPR+v//2+pr}")
    stg(7)
    big(5)
    stg(8)
    twiddle(O_TW2, False)
    stg(9)
    for nt in range(2):
        for c in range(2):
            f = 2*nt+c
            mfma(dd(DR, nt), op(OPR, f), CR(c), c == 0); mfma(dd(DI, nt), op(OPI, f), CR(c), c == 0)
            mfma(dd(DR, nt), op(OPI, f), CI(c), False); mfma(dd(DI, nt), op(OPR, f), CN(c), False)
    a("v_and_b32 v7, 16, v5\n v_bfe_u32 v8, v5, 2, 1\n v_lshl_add_u32 v7, v8, 3, v7\n v_add_u32 v7, v7, v6\n s_mov_b32 s53, 57344\n v_mul_lo_u32 v7, v7, s53")
    a("v_bfe_u32 v8, v5, 3, 1\n v_lshl_add_u32 v7, v8, 6, v7\n v_and_b32 v8, 3, v5\n v_lshl_add_u32 v7, v8, 4, v7")
    for part, base, sk in ((0, DR, 48), (1, DI, 49)):
        if part == 1: a("s_cmp_lg_u32 s58, 0\n s_cbranch_scc1 L_FDONE")
        a(f"s_lshr_b32 s51, s{sk}, 5\n s_add_u32 s51, s51, {YT}\n s_bfe_u32 s52, s{sk}, 0x1000d\n s_lshl_b32 s52, s52, 6\n v_xor_b32 v9, s52, v7")
        for nt in range(2):
            for q in range(2):
                o = WV+16*part+8*nt+4*q; v = base+16*nt+8*q
                for i in range(4): a(f"v_cvt_pk_f16_f32 v{o+i}, v{v+2*i}, v{v+2*i+1}")
                a(f"v_permlane32_swap_b32 v{o}, v{o+2}\n v_permlane32_swap_b32 v{o+1}, v{o+3}")
                a(f"s_add_u32 s53, s51, {(4*nt+2*q)*57344}")
                a(f"buffer_store_dwordx4 v[{o}:{o+3}], v9, s[{sWS}:{sWS+3}], s53 offen sc1")
    a("L_FDONE:")
    stg(10)
    a("s_waitcnt vmcnt(0)")
    a(f"v_mov_b32 v8, {SX}\n v_mov_b32 v9, 1\n s_mov_b64 exec, 1\n ds_add_rtn_u32 v9, v8, v9\n s_waitcnt lgkmcnt(0)\n v_readfirstlane_b32 s49, v9")
    a("s_cmp_eq_u32 s43, 0\n s_cselect_b32 s50, 7, 6\n s_cmp_lg_u32 s49, s50\n s_cbranch_scc1 L_NFY")
    a(f"s_lshl_b32 s49, s43, 7\n s_add_u32 s49, s49, {FLY}\n v_mov_b32 v{vPOLL}, s63")
    a(f"buffer_store_dword v{vPOLL}, v{vZERO}, s[{sWS}:{sWS+3}], s49 offen sc1")
    a("L_NFY:\n s_mov_b64 exec, -1")
    stg(11)
    if PROF:
        a("s_waitcnt lgkmcnt(0)\n v_writelane_b32 v246, s100, 11")
        stg2.pending = None
        L["prof_end"]()
    a("s_endpgm")
    a("L_PFW:")
    NL = (32-WSP_K2)*2048
    a("s_sub_u32 s58, s43, 1\n s_lshl_b32 s58, s58, 6\n v_add_u32 v13, s58, v1")
    for it in range(-(-NL//(31*64))):
        a(f"v_and_b32 v14, 2047, v13\n v_lshrrev_b32 v15, 11, v13\n v_min_u32 v15, {31-WSP_K2}, v15\n v_lshlrev_b32 v14, 12, v14\n v_lshl_add_u32 v14, v15, 7, v14")
        a(f"buffer_load_dword v{20+it}, v14, s[{sSP}:{sSP+3}], 0 offen offset:{128*WSP_K2}")
        a(f"v_add_u32 v13, {31*64}, v13")
    a("s_endpgm")
```

```python
from asmlib import Asm, Vm
from common import *
from k1 import gelu_pairs, red8, halfsum, var_to_rs, C1, C2
from k2 import O_C64R, O_C64I, O_TW1, O_TW2, O_C32, FT_BYTES, wmax_reduce
import math

NAME = "recurrent_scan__spectral_gfnet__mixer_gmlp__prompt_kernel"
S1 = 16384; N1 = 6; XN = N1*S1
S2 = 24576; PERM = [4, 5, 2, 3, 0, 1]
UX = 147456; UXP = 144
SX = 156672
LDS_BYTES = 163840
TSC = 98304
EXP = 144
FL = 0x1310000
FLZ, FLU, FLW, FLH, FLY, FL1 = FL, FL+0x8000, FL+0x10000, FL+0x18000, FL+0x20000, FL+0x28000
LD_T = int(os.environ.get("LDT", "10")); CHK_T = int(os.environ.get("CHKT", "13")); FZ_G = int(os.environ.get("FZG", "2")); CX_T = int(os.environ.get("CXT", "11"))
WSP_K1 = int(os.environ.get("WSPK", "8"))
WSP_K2 = int(os.environ.get("WSPK2", "22"))
SPIN = 0x4000
CODE_BYTES = 40960
D = 5

XA = os.environ.get("XA", ""); XB = os.environ.get("XB", "sc1")
DBGT = bool(int(os.environ.get("DBGT", "0")))
def gen(a):
    a(f".text\n.globl {NAME}\n.p2align 8\n.type {NAME},@function\n{NAME}:")
    sX, sWIN, sWS, sFT, sDBG, sSP = 4, 8, 12, 16, 20, 24
    sWO, sTT, sOUT, sBS = 8, 92, 64, 68
    stg = StageStamps(a, 246); stg2 = StageStamps(a, 247)
    a("s_cmp_ge_u32 s2, 256\n s_cbranch_scc1 L_END")
    if PROF or DBGT: a("s_memrealtime s[96:97]")
    stg(0)
    a("s_load_dwordx2 s[76:77], s[0:1], 0")
    a("s_load_dwordx4 s[28:31], s[0:1], 8")
    a("s_load_dwordx4 s[32:35], s[0:1], 32")
    a("s_load_dwordx4 s[36:39], s[0:1], 72")
    a("s_load_dwordx4 s[80:83], s[0:1], 48")
    a("s_load_dwordx2 s[78:79], s[0:1], 64")
    a("s_and_b32 s40, s2, 7\n s_lshr_b32 s41, s2, 3")
    a("v_lshrrev_b32 v2, 6, v0\n v_and_b32 v1, 63, v0")
    a("v_readfirstlane_b32 s42, v2")
    pc_srd(a, sFT, "TAB_FT", 7*14*8*1024)
    if os.environ.get("PRIO", "0") == "1": a("s_cmp_lt_u32 s42, 4\n s_cbranch_scc1 L_PRIO\n s_setprio 1\nL_PRIO:")
    vXo, vZ, vF, vW = 2, 3, 4, 5
    vTR = 6; vAA = 12
    XF = 16; BF = 128; ACC = 160; ACC2 = 176; ZP = 192; TMP = 200; VC1 = 226; PS = 228
    vA2, vB2 = 244, 245; VPF = 252; vZERO = 248; vPOLL = 249; vPA = 250
    a("s_and_b32 s62, s40, 1\n s_mul_i32 s43, s62, 28\n s_add_u32 s43, s43, s41\n s_lshr_b32 s44, s43, 3\n s_and_b32 s43, s43, 7")
    a("s_lshr_b32 s45, s40, 1\n s_lshl_b32 s45, s45, 3\n s_add_u32 s43, s43, s45")
    a("s_lshr_b32 s45, s43, 4\n s_lshl_b32 s45, s45, 4")
    a("s_lshr_b32 s46, s42, 2\n s_lshl_b32 s46, s46, 3\n s_add_u32 s45, s45, s46")
    a("s_bfe_u32 s46, s43, 0x10003\n s_lshl_b32 s46, s46, 2\n s_add_u32 s45, s45, s46")
    a("s_and_b32 s46, s42, 3\n s_add_u32 s45, s45, s46")
    a("s_lshl_b32 s45, s45, 6\n s_and_b32 s46, s43, 7\n s_lshl_b32 s46, s46, 3\n s_add_u32 s45, s45, s46")
    a("s_lshl_b32 s87, s45, 12\n s_mul_i32 s45, s45, 896")
    a(f"v_lshrrev_b32 v{TMP}, 3, v1\n v_and_b32 v{TMP+1}, 7, v1")
    a(f"v_mul_u32_u24 v{vXo}, 896, v{TMP}\n v_lshl_add_u32 v{vXo}, v{TMP+1}, 4, v{vXo}")
    a(f"v_mov_b32 v{vZERO}, 0\n v_lshlrev_b32 v{vF}, 4, v1")
    a("s_waitcnt lgkmcnt(0)")
    srd(a, sX, 76, 2048*896)
    a("s_cmp_ge_u32 s41, 28\n s_cbranch_scc1 L_AUX0")
    vm = Vm()
    for cc in range(7):
        a(f"buffer_load_dwordx4 v[{BF+4*cc}:{BF+4*cc+3}], v{vXo}, s[{sX}:{sX+3}], s45 offen offset:{128*cc}"); vm.issue("x")
    a("L_AUX0:")
    srd(a, sWIN, 32, 448*3584); srd(a, sWS, 38, WS_BYTES); srd(a, sDBG, 36, 256); srd(a, sSP, 34, 2048*4096)
    srd(a, sOUT, 78, 2048*896); srd(a, sBS, 80, 4096)
    a("s_cmp_ge_u32 s41, 28\n s_cbranch_scc1 L_AUX")

    dlist = []
    def dbgt(idx, op=None):
        if not DBGT or op is not None: return
        a(f"s_memrealtime s[98:99]\n s_waitcnt lgkmcnt(0)\n v_writelane_b32 v247, s98, {idx}")
    def dbg_flush():
        if not DBGT: return
        a("s_cmp_lg_u32 s42, 0\n s_cbranch_scc1 L_DBGE")
        a("v_writelane_b32 v247, s96, 4")
        a("v_not_b32 v246, v247\n v_lshlrev_b32 v251, 3, v1\n v_subrev_u32 v251, 24, v251")
        a("s_mov_b64 exec, 0x7f0")
        a(f"buffer_atomic_umax v247, v251, s[{sDBG}:{sDBG+3}], 0 offen\n buffer_atomic_umax v246, v251, s[{sDBG}:{sDBG+3}], 0 offen offset:4")
        a("s_mov_b64 exec, -1\nL_DBGE:")
    def get_nonce(lbl):
        a(f"s_mov_b32 s50, 0\n{lbl}:")
        a(f"v_readfirstlane_b32 s63, v{vPOLL}")
        a(f"s_add_u32 s50, s50, 1\n s_cmp_lg_u32 s63, 0\n s_cbranch_scc1 {lbl}_OK")
        a(f"s_cmp_ge_u32 s50, {SPIN}\n s_cbranch_scc1 {lbl}_OK")
        a(f"s_sleep 4\n buffer_load_dword v{vPOLL}, v{vZERO}, s[{sDBG}:{sDBG+3}], 0 offen sc1\n s_waitcnt vmcnt(0)\n s_branch {lbl}")
        a(f"{lbl}_OK:")
    def set_flag(lbl, soff):
        a(f"s_cmp_lg_u32 s42, 0\n s_cbranch_scc1 {lbl}")
        a(f"v_mov_b32 v{vPOLL}, s63\n s_mov_b64 exec, 1")
        a(f"buffer_store_dword v{vPOLL}, v{vZERO}, s[{sWS}:{sWS+3}], s{soff} offen sc1")
        a(f"s_mov_b64 exec, -1\n{lbl}:")
    def poll_issue(lbl, soff, vdst, wide=False):
        a(f"s_cmp_lg_u32 s42, 0\n s_cbranch_scc1 {lbl}")
        if wide: a(f"buffer_load_dwordx4 v[{vdst}:{vdst+3}], v{vF}, s[{sWS}:{sWS+3}], s{soff} offen sc1")
        else: a(f"buffer_load_dword v{vdst}, v{vPA}, s[{sWS}:{sWS+3}], s{soff} offen sc1")
        a(f"{lbl}:")
    def poll_check(lbl, soff, vdst, wide=False, allwaves=False, sleep=2, covered=False):
        if not allwaves: a(f"s_cmp_lg_u32 s42, 0\n s_cbranch_scc1 {lbl}_OK")
        a("s_mov_b32 s50, 0")
        if covered: a(f"s_branch {lbl}_1")
        a(f"{lbl}:\n s_waitcnt vmcnt(0)\n{lbl}_1:")
        a(f"v_cmp_eq_u32 vcc, s63, v{vdst}")
        if wide:
            for i in range(1, 4): a(f"v_cmp_eq_u32 s[30:31], s63, v{vdst+i}\n s_and_b64 vcc, vcc, s[30:31]")
        a(f"s_add_u32 s50, s50, 1\n s_cmp_eq_u64 vcc, exec\n s_cbranch_scc1 {lbl}_OK")
        a(f"s_cmp_ge_u32 s50, {SPIN}\n s_cbranch_scc1 {lbl}_OK")
        a(f"s_sleep {sleep}")
        if wide: a(f"buffer_load_dwordx4 v[{vdst}:{vdst+3}], v{vF}, s[{sWS}:{sWS+3}], s{soff} offen sc1")
        else: a(f"buffer_load_dword v{vdst}, v{vPA}, s[{sWS}:{sWS+3}], s{soff} offen sc1")
        a(f"s_branch {lbl}\n{lbl}_OK:")

    def poll_pipe(lbl, soff, r0, gap=4, pre=0):
        a(f"s_cmp_lg_u32 s42, 0\n s_cbranch_scc1 {lbl}_OK")
        a("s_mov_b32 s50, 0")
        for i in range(pre, 4):
            a(f"buffer_load_dword v{r0+i}, v{vPA}, s[{sWS}:{sWS+3}], s{soff} offen sc1")
            if i < 3: a(f"s_sleep {gap}")
        a(f"{lbl}:")
        for i in range(4):
            a("s_waitcnt vmcnt(3)")
            a(f"v_cmp_eq_u32 vcc, s63, v{r0+i}")
            a(f"s_cmp_eq_u64 vcc, exec\n s_cbranch_scc1 {lbl}_OK")
            a(f"buffer_load_dword v{r0+i}, v{vPA}, s[{sWS}:{sWS+3}], s{soff} offen sc1")
            a(f"s_sleep {gap//2}")
        a(f"s_add_u32 s50, s50, 1\n s_cmp_lt_u32 s50, {SPIN}\n s_cbranch_scc1 {lbl}")
        a(f"{lbl}_OK:")

    a("s_add_u32 s49, s2, s42\n s_cmp_lg_u32 s49, 0\n s_cbranch_scc1 L_NN")
    a("s_memrealtime s[50:51]\n s_waitcnt lgkmcnt(0)\n s_or_b32 s50, s50, 1")
    a(f"v_mov_b32 v{vPOLL}, s50\n s_mov_b64 exec, 1")
    a(f"buffer_store_dword v{vPOLL}, v{vZERO}, s[{sDBG}:{sDBG+3}], 0 offen sc1")
    a("s_mov_b64 exec, -1\nL_NN:")
    vT = TMP+8
    a("s_mul_i32 s46, s62, 28\n s_lshr_b32 s46, s46, 3")
    a("s_mul_i32 s47, s62, 28\n s_add_u32 s47, s47, 27\n s_lshr_b32 s47, s47, 3")
    a("s_lshl_b32 s48, s41, 4\n s_lshl_b32 s49, s42, 1\n s_add_u32 s48, s48, s49\n s_mul_i32 s48, s48, 3584\n s_lshl_b32 s49, s46, 8\n s_add_u32 s48, s48, s49\n s_add_u32 s48, s48, 1792")
    ZT = os.environ.get("ZT", "vec")
    if ZT == "smem":
        for rr in range(2):
            for ln in range(6):
                a(f"s_buffer_load_dword s28, s[{sWIN}:{sWIN+3}], s48 offset:{rr*3584+ln*128}")
    a(f"v_and_b32 v{vT}, 127, v0\n v_lshrrev_b32 v{vT+1}, 5, v{vT}\n v_add_u32 v{vT+1}, s46, v{vT+1}\n v_cmp_lt_u32 vcc, s47, v{vT+1}\n v_mov_b32 v{vT+5}, 0x8000\n v_cndmask_b32 v{vT+1}, v{vT+1}, v{vT+5}, vcc")
    a(f"s_lshl_b32 s48, s41, 5\n v_and_b32 v{vT+2}, 31, v0\n v_add_u32 v{vT+2}, s48, v{vT+2}")
    a(f"v_lshrrev_b32 v{VPF}, 1, v{vT+2}\n v_mul_u32_u24 v{VPF}, 3584, v{VPF}\n v_lshl_add_u32 v{VPF}, v{vT+1}, 8, v{VPF}\n v_and_b32 v{vT+3}, 1, v{vT+2}\n v_lshl_add_u32 v{VPF}, v{vT+3}, 7, v{VPF}")
    a(f"s_mov_b32 s48, 114688\n v_mul_lo_u32 v{VPF+1}, v{vT+1}, s48\n v_lshl_add_u32 v{VPF+1}, v{vT+2}, 7, v{VPF+1}")
    def touch2():
        a("s_cmp_ge_u32 s42, 2\n s_cbranch_scc1 L_PFB")
        a(f"buffer_load_dword v{VPF+2}, v{VPF}, s[{sWIN}:{sWIN+3}], 0 offen")
        a("s_branch L_PFD\nL_PFB:")
        a("s_cmp_ge_u32 s42, 4\n s_cselect_b32 s49, 0x10000000, 0")
        a(f"buffer_load_dword v{VPF+2}, v{VPF+1}, s[{sFT}:{sFT+3}], s49 offen")
        a("L_PFD:"); vm.issue("pf")
    a("s_barrier")
    if ZT == "vec":
        a("s_cmp_ge_u32 s42, 2\n s_cselect_b32 s49, 0x10000000, 0")
        a(f"buffer_load_dword v{VPF+3}, v{VPF}, s[{sWIN}:{sWIN+3}], s49 offen offset:1792"); vm.issue("pf")
    a(f"v_lshrrev_b32 v{TMP+2}, 4, v1\n v_and_b32 v{TMP+3}, 15, v1\n v_lshlrev_b32 v{TMP+4}, 2, v{TMP+2}\n v_xor_b32 v{TMP+3}, v{TMP+3}, v{TMP+4}")
    a(f"v_mul_u32_u24 v{vZ}, 3584, v{TMP+2}\n v_lshl_add_u32 v{vZ}, v{TMP+3}, 4, v{vZ}")
    a("s_mul_i32 s46, s42, 14336\n s_lshl_b32 s47, s44, 8\n s_add_u32 s46, s46, s47")
    a(f"s_mul_i32 s47, s44, {14*8192}\n s_lshl_b32 s48, s42, 10\n s_add_u32 s47, s47, s48")
    def dma(t):
        if t >= 21: return
        slot = (t % N1)*S1
        for u in range(2):
            a(f"s_add_u32 m0, s48, {slot+u*8192}")
            if t < 7 or t >= 14:
                a(f"s_add_u32 s49, s46, {(1792 if t < 7 else 0)+(64*(t % 7)+32*u)*3584}")
                a(f"buffer_load_dwordx4 v{vZ}, s[{sWIN}:{sWIN+3}], s49 offen lds"); vm.issue(("st", t))
            else:
                a(f"s_add_u32 s49, s47, {(2*(t-7)+u)*8192}")
                a(f"buffer_load_dwordx4 v{vF}, s[{sFT}:{sFT+3}], s49 offen lds"); vm.issue(("st", t))
    a(f"s_lshl_b32 s49, s42, 3\n v_add_u32 v{TMP+2}, s49, v{TMP}")
    a(f"v_bfe_u32 v{TMP+3}, v{TMP+2}, 1, 3\n v_xor_b32 v{TMP+3}, v{TMP+3}, v{TMP+1}")
    a(f"v_mul_u32_u24 v{vW}, 896, v{TMP+2}\n v_lshl_add_u32 v{vW}, v{TMP+3}, 4, v{vW}\n v_add_u32 v{vW}, {XN}, v{vW}")
    a(f"v_lshrrev_b32 v{TMP+2}, 1, v{TMP}\n s_and_b32 s88, s42, 1\n s_lshl_b32 s88, s88, 2\n v_add_u32 v{TMP+2}, s88, v{TMP+2}\n v_xor_b32 v{TMP+2}, v{TMP+1}, v{TMP+2}")
    a(f"v_lshlrev_b32 v{vA2}, 12, v{TMP}\n v_lshl_add_u32 v{vA2}, v{TMP+2}, 4, v{vA2}")
    a(f"v_lshrrev_b32 v{TMP+2}, 5, v1\n v_lshlrev_b32 v{vB2}, 14, v{TMP+2}\n v_and_b32 v{TMP+2}, 31, v1\n v_lshl_add_u32 v{vB2}, v{TMP+2}, 4, v{vB2}")
    a(f"s_lshl_b32 s88, s44, 19\n s_add_u32 s88, s88, s48\n s_add_u32 s88, s88, {Z2N}")
    a("s_lshr_b32 s86, s43, 4\n s_lshl_b32 s86, s86, 4\n s_bfe_u32 s49, s43, 0x10003\n s_lshl_b32 s49, s49, 2\n s_add_u32 s86, s86, s49\n s_and_b32 s49, s42, 1\n s_lshl_b32 s49, s49, 3\n s_add_u32 s86, s86, s49")
    def pslot(T): return PERM[T % 6]
    def slot2(T): return pslot(T)*S2
    def dmaA(T):
        a(f"s_add_u32 m0, s48, {slot2(T)+16384}\n s_add_u32 s49, s87, {T*128}")
        a(f"buffer_load_dwordx4 v{vA2}, s[{sSP}:{sSP+3}], s49 offen lds"); vm.issue(("g", T))
    def dmaB(T):
        for u in range(2):
            a(f"s_add_u32 m0, s48, {slot2(T)+u*8192}\n s_add_u32 s49, s88, {T*16384+u*8192}")
            a(f"buffer_load_dwordx4 v{vF}, s[{sWS}:{sWS+3}], s49 offen sc1 lds"); vm.issue(("g", T))
    a(f"s_and_b32 s49, s42, 1\n s_lshl_b32 s49, s49, 5\n v_and_b32 v{TMP+2}, 31, v1\n v_add_u32 v{TMP+2}, s49, v{TMP+2}")
    a(f"v_bfe_u32 v{TMP+3}, v{TMP+2}, 1, 3\n v_lshrrev_b32 v{TMP+4}, 5, v1\n v_xor_b32 v{TMP+3}, v{TMP+3}, v{TMP+4}")
    a(f"v_mul_u32_u24 v{TMP+2}, 896, v{TMP+2}\n v_add_u32 v{TMP+2}, {XN}, v{TMP+2}")
    for c in range(4):
        a(f"v_xor_b32 v{TMP+4}, {2*c}, v{TMP+3}\n v_lshl_add_u32 v{vAA+c}, v{TMP+4}, 4, v{TMP+2}")
    a(f"v_lshrrev_b32 v{TMP+2}, 5, v1\n v_bfe_u32 v{TMP+3}, v1, 2, 2")
    a(f"v_lshl_add_u32 v{TMP+2}, v{TMP+2}, 3, v{TMP+3}")
    a(f"v_and_b32 v{TMP+6}, 1, v1\n v_lshlrev_b32 v{TMP+6}, 3, v{TMP+6}")
    a(f"v_bfe_u32 v{TMP+4}, v1, 4, 1\n v_bfe_u32 v{TMP+5}, v1, 1, 1\n v_lshl_add_u32 v{TMP+4}, v{TMP+4}, 1, v{TMP+5}")
    a(f"v_lshlrev_b32 v{TMP+5}, 2, v{TMP+3}\n v_xor_b32 v{TMP+5}, v{TMP+4}, v{TMP+5}")
    a("s_lshr_b32 s51, s42, 1\n s_lshl_b32 s51, s51, 2\n s_and_b32 s49, s42, 2\n s_lshl_b32 s49, s49, 2\n s_add_u32 s50, s49, 4")
    for idx, sreg in ((0, 51),):
        a(f"v_xor_b32 v{TMP+7}, s{sreg}, v{TMP+5}\n v_lshl_add_u32 v{vTR+2*idx}, v{TMP+2}, 8, v{TMP+6}\n v_lshl_add_u32 v{vTR+2*idx}, v{TMP+7}, 4, v{vTR+2*idx}\n v_add_u32 v{vTR+2*idx+1}, 0x10000, v{vTR+2*idx}")
    a(f"s_mov_b32 s52, {hex(f32bits(C2))}\n s_mov_b32 s54, 0x3f803f80")
    a(f"v_mov_b32 v{VC1}, {hex(f32bits(C1))}")
    a(f"s_lshl_b32 s55, s43, 1\n s_and_b32 s57, s42, 1\n s_add_u32 s55, s55, s57\n s_mul_i32 s55, s55, 3584\n s_add_u32 s55, s55, {ST}")
    a("s_lshl_b32 s61, s44, 9\n s_add_u32 s61, s61, s55")
    a(f"s_lshl_b32 s56, s57, 10\n s_lshr_b32 s57, s42, 1\n s_lshl_b32 s57, s57, 3\n s_add_u32 s56, s56, s57\n s_add_u32 s56, s56, {SX}")
    a("s_and_b32 s49, s42, 6\n s_cmp_eq_u32 s49, 4\n s_cselect_b32 s55, s55, 0x20000000")
    a(f"s_lshl_b32 s72, s43, 1\n s_and_b32 s49, s42, 1\n s_add_u32 s72, s72, s49\n s_mul_i32 s72, s72, 56\n s_lshl_b32 s49, s44, 3\n s_add_u32 s72, s72, s49\n s_and_b32 s49, s42, 6\n s_add_u32 s72, s72, s49\n s_lshl_b32 s72, s72, 10\n s_add_u32 s72, s72, {H}")
    a(f"s_lshl_b32 s74, s43, 3\n s_add_u32 s74, s74, s44\n s_lshl_b32 s74, s74, 7\n s_add_u32 s74, s74, {FLH}")
    a(f"s_lshl_b32 s75, s44, 18\n s_lshl_b32 s49, s43, 7\n s_add_u32 s75, s75, s49\n s_add_u32 s75, s75, {U}")
    a("s_lshl_b32 s73, s86, 6\n s_and_b32 s49, s43, 7\n s_lshl_b32 s49, s49, 3\n s_add_u32 s73, s73, s49\n s_lshl_b32 s73, s73, 1")
    a("s_lshl_b32 s58, s44, 5\n s_add_u32 s58, s58, s86\n s_lshl_b32 s58, s58, 14")
    a("s_bfe_u32 s49, s43, 0x20001\n s_lshl_b32 s49, s49, 12\n s_add_u32 s58, s58, s49\n s_and_b32 s49, s43, 1\n s_lshl_b32 s49, s49, 9\n s_add_u32 s58, s58, s49")
    a(f"s_lshr_b32 s49, s42, 1\n s_lshl_b32 s49, s49, 10\n s_add_u32 s58, s58, s49\n s_add_u32 s58, s58, {Z2N}")
    a(f"s_lshl_b32 s59, s44, 5\n s_add_u32 s59, s59, s43\n s_lshl_b32 s59, s59, 7\n s_add_u32 s60, s59, {FLU}\n s_add_u32 s59, s59, {FLZ}")
    a(f"s_lshl_b32 s89, s44, 12\n s_add_u32 s89, s89, {FLZ}")
    a(f"v_and_b32 v{vPA}, 31, v1\n v_lshlrev_b32 v{vPA}, 7, v{vPA}")
    a(f"s_waitcnt vmcnt({vm.wait('x')})")
    stg(1); dbgt(5)
    S = TMP; DV = XF
    a("s_mov_b32 s50, 0x00003f80\n s_mov_b32 s51, 0x3f800000")
    for i in range(4): a(f"v_mov_b32 v{S+i}, 0")
    for i in range(28): a(f"v_dot2_f32_bf16 v{S+(i&3)}, v{BF+i}, s54, v{S+(i&3)}")
    dma(0)
    a(f"v_add_f32 v{S}, v{S}, v{S+1}\n v_add_f32 v{S+2}, v{S+2}, v{S+3}\n v_add_f32 v{S}, v{S}, v{S+2}")
    red8(a, S)
    vM, vMB, vNM = TMP+4, TMP+5, TMP+6
    a(f"v_mul_f32 v{vM}, {hex(f32bits(1/448))}, v{S}")
    a(f"v_cvt_pk_bf16_f32 v{vMB}, 0, v{vM}\n v_sub_f32 v{vNM}, 0, v{vMB}")
    for i in range(4): a(f"v_mov_b32 v{S+i}, 0")
    for i in range(0, 28, 4):
        for u in range(4):
            d = DV+2*(i+u)
            a(f"v_dot2_f32_bf16 v{d}, v{BF+i+u}, s50, v{vNM}\n v_dot2_f32_bf16 v{d+1}, v{BF+i+u}, s51, v{vNM}")
        if i >= 4:
            for u in range(4):
                d = DV+2*(i-4+u); s_ = S+2*(u & 1)
                a(f"v_pk_fma_f32 v[{s_}:{s_+1}], v[{d}:{d+1}], v[{d}:{d+1}], v[{s_}:{s_+1}]")
        if i == 8: dma(1)
        if i == 20: dma(2)
    for u in range(4):
        d = DV+2*(24+u); s_ = S+2*(u & 1)
        a(f"v_pk_fma_f32 v[{s_}:{s_+1}], v[{d}:{d+1}], v[{d}:{d+1}], v[{s_}:{s_+1}]")
    a(f"v_add_f32 v{S}, v{S}, v{S+1}\n v_add_f32 v{S+2}, v{S+2}, v{S+3}\n v_add_f32 v{S}, v{S}, v{S+2}")
    for i in range(16): a(f"v_cvt_pk_bf16_f32 v{DV+i}, 0, v{DV+i}")
    red8(a, S)
    vRS = TMP+6; t = S+2
    a(f"v_sub_f32 v{t}, v{vM}, v{vMB}\n v_mul_f32 v{t}, v{t}, v{t}\n v_mov_b32 v{t+1}, {hex(f32bits(1.0/448))}\n v_fma_f32 v{t}, v{S}, v{t+1}, -v{t}\n v_max_f32 v{t}, 0, v{t}")
    n0 = len(a.lines); var_to_rs(a, t, vRS); a(f"v_mov_b32 v{vRS+1}, v{vRS}"); chain = a.lines[n0:]; del a.lines[n0:]
    for i in range(16, 56):
        a(f"v_cvt_pk_bf16_f32 v{DV+i}, 0, v{DV+i}")
        if chain and i % 3 == 0: a(chain.pop(0))
    for l in chain: a(l)
    dma(3)
    for i in range(0, 28, 4):
        for u in range(4):
            d = DV+2*(i+u); a(f"v_pk_mul_f32 v[{d}:{d+1}], v[{d}:{d+1}], v[{vRS}:{vRS+1}]")
        for u in range(4):
            d = DV+2*(i+u); a(f"v_cvt_pk_bf16_f32 v{BF+i+u}, v{d}, v{d+1}")
        a(f"ds_write_b128 v{vW}, v[{BF+i}:{BF+i+3}] offset:{32*i}")
    stg(2)
    dma(4); touch2()
    a("s_waitcnt lgkmcnt(0)")
    def capture(fn, *args):
        n0 = len(a.lines); fn(*args); out = a.lines[n0:]; del a.lines[n0:]; return out
    def trbase(idx, t):
        slot = (t % N1)*S1
        return (vTR+2*idx+(1 if slot >= 65536 else 0), slot-(65536 if slot >= 65536 else 0))
    def reads1(t):
        b = BF+16*(t & 1); vb, so = trbase(0, t)
        for k in range(4):
            c16 = 4*(t % 7)+k
            if t < 7: a(f"ds_read_b128 v[{XF+4*c16}:{XF+4*c16+3}], v{vAA+(c16&3)} offset:{(c16>>2)*128}")
            for tt in range(2):
                a(f"ds_read_b64_tr_b16 v[{b+4*k+2*tt}:{b+4*k+2*tt+1}], v{vb} offset:{so+k*4096+tt*1024}")
    def mfma1(t):
        b = BF+16*(t & 1)
        for k in range(4):
            c16 = 4*(t % 7)+k
            cin = "0" if c16 == 0 else f"v[{ACC}:{ACC+15}]"
            a(f"v_mfma_f32_32x32x16_bf16 v[{ACC}:{ACC+15}], v[{b+4*k}:{b+4*k+3}], v[{XF+4*c16}:{XF+4*c16+3}], {cin}")
    def body(mf, rd, issue, bgq=None, nbg=0):
        n = max(len(mf), 1); h = (len(rd)+1)//2 if n > 1 else len(rd)
        for i in range(n):
            if i < len(mf): a(mf[i])
            if i == 0:
                for l in rd[:h]: a(l)
            if i == 1:
                for l in rd[h:]: a(l)
            if i == min(2, n-1): issue()
            if bgq:
                for _ in range(nbg):
                    if bgq: a(bgq.pop(0))
    for t in range(7):
        a(f"s_waitcnt vmcnt({vm.wait(('st', t))})")
        a("s_barrier")
        stg(3+t)
        if t == 0:
            a(f"buffer_load_dword v{vPOLL}, v{vZERO}, s[{sDBG}:{sDBG+3}], 0 offen sc1"); vm.issue("nonce")
        if t == 6: get_nonce("L_NON")
        body(capture(mfma1, t-1) if t > 0 else [], capture(reads1, t), lambda: dma(t+D))
        a("s_waitcnt lgkmcnt(0)")
    mfma1(6)
    dbgt(6)
    def late_touch():
        NS_ = WSP_K2-WSP_K1
        a(f"v_mov_b32 v{TMP+2}, 0x10000000")
        if NS_ > 0:
            PERW = -(-NS_*256//28)
            a("s_and_b32 s49, s40, 4\n s_and_b32 s50, s40, 1\n s_lshl_b32 s50, s50, 1\n s_add_u32 s49, s49, s50\n s_bfe_u32 s50, s40, 0x10001\n s_add_u32 s49, s49, s50\n s_lshl_b32 s49, s49, 20")
            a(f"s_mul_i32 s50, s41, {PERW}\n v_add_u32 v{TMP}, s50, v0")
            MG = (2**32+NS_-1)//NS_
            a(f"s_mov_b32 s50, {MG}\n v_mul_hi_u32 v{TMP+1}, v{TMP}, s50\n v_mul_u32_u24 v{TMP+3}, {NS_}, v{TMP+1}\n v_sub_u32 v{TMP+3}, v{TMP}, v{TMP+3}")
            a(f"v_lshlrev_b32 v{TMP+1}, 12, v{TMP+1}\n v_lshl_add_u32 v{TMP+1}, v{TMP+3}, 7, v{TMP+1}")
            a(f"v_cmp_gt_u32 vcc, {PERW}, v0\n v_cndmask_b32 v{TMP+1}, v{TMP+2}, v{TMP+1}, vcc")
            a(f"buffer_load_dword v{VPF+2}, v{TMP+1}, s[{sSP}:{sSP+3}], s49 offen offset:{128*WSP_K1}"); vm.issue("pf")
        srd(a, 92, 82, 896*896)
        a("s_cmp_lg_u32 s42, 7\n s_cbranch_scc1 L_WO1")
        pc_srd(a, 92, "TAB_TT", 7*56*1024)
        a("L_WO1:")
        a("s_mul_i32 s49, s40, 28\n s_add_u32 s49, s49, s41\n s_cmp_eq_u32 s42, 7\n s_cselect_b32 s50, 14, 28\n s_mul_i32 s49, s49, s50\n s_lshl_b32 s49, s49, 7\n s_cmp_lt_u32 s42, 6\n s_cselect_b32 s50, 0, s50")
        a(f"v_lshlrev_b32 v{TMP+1}, 7, v1\n v_cmp_gt_u32 vcc, s50, v1\n v_cndmask_b32 v{TMP+1}, v{TMP+2}, v{TMP+1}, vcc")
        a(f"buffer_load_dword v{VPF+3}, v{TMP+1}, s[92:95], s49 offen"); vm.issue("pf")
        pc_srd(a, sTT, "TAB_TT", 7*56*1024)
    WT_T = int(os.environ.get("WTT", "0"))
    if WT_T == 0: late_touch()
    a(f"s_mov_b32 s53, s52\n v_mov_b32 v{VC1+1}, v{VC1}")
    def gelu_pk(acc, tmp, dst=None):
        P = lambda b, i: f"v[{b+2*i}:{b+2*i+1}]"
        for i in range(16): a(f"v_cvt_pk_bf16_f32 v{acc+i}, 0, v{acc+i}")
        for i in range(8): a(f"v_pk_mul_f32 {P(tmp,i)}, {P(acc,i)}, {P(acc,i)}")
        for i in range(8): a(f"v_pk_fma_f32 {P(tmp,i)}, {P(tmp,i)}, s[52:53], v[{VC1}:{VC1+1}]")
        for i in range(8): a(f"v_pk_mul_f32 {P(tmp,i)}, {P(tmp,i)}, {P(acc,i)}")
        for i in range(16): a(f"v_exp_f32 v{tmp+i}, v{tmp+i}")
        for i in range(8): a(f"v_pk_add_f32 {P(tmp,i)}, {P(tmp,i)}, 1.0 op_sel_hi:[1,0]")
        for i in range(16): a(f"v_rcp_f32 v{tmp+i}, v{tmp+i}")
        for i in range(8): a(f"v_pk_mul_f32 {P(tmp,i)}, {P(tmp,i)}, {P(acc,i)}")
        for i in range(16): a(f"v_cvt_pk_bf16_f32 v{(acc if dst is None else dst)+i}, 0, v{tmp+i}")
    Z2F = ACC
    gelu_pk(ACC, TMP)
    P_ = lambda b, i: f"v[{b+2*i}:{b+2*i+1}]"
    for i in range(4): a(f"v_pk_add_f32 {P_(TMP,i)}, {P_(ACC,i)}, {P_(ACC,i+4)}")
    for i in range(2): a(f"v_pk_add_f32 {P_(TMP,i)}, {P_(TMP,i)}, {P_(TMP,i+2)}")
    a(f"v_pk_add_f32 {P_(TMP,0)}, {P_(TMP,0)}, {P_(TMP,1)}\n v_add_f32 v{TMP}, v{TMP}, v{TMP+1}")
    halfsum(a, TMP, TMP+1)
    a(f"v_mul_f32 v{TMP+18}, {hex(f32bits(-1/32))}, v{TMP}")
    for i in range(8): a(f"v_pk_add_f32 {P_(TMP,i)}, {P_(ACC,i)}, v[{TMP+18}:{TMP+19}] op_sel_hi:[1,0]")
    for i in range(2): a(f"v_pk_mul_f32 {P_(PS,i)}, {P_(TMP,i)}, {P_(TMP,i)}")
    for i in range(2, 8): a(f"v_pk_fma_f32 {P_(PS,i&1)}, {P_(TMP,i)}, {P_(TMP,i)}, {P_(PS,i&1)}")
    a(f"v_pk_add_f32 {P_(PS,0)}, {P_(PS,0)}, {P_(PS,1)}\n v_add_f32 v{TMP+9}, v{PS}, v{PS+1}\n v_sub_f32 v{TMP+8}, 0, v{TMP+18}")
    halfsum(a, TMP+9, TMP+1)
    a(f"v_and_b32 v{TMP+10}, 31, v1\n v_lshlrev_b32 v{TMP+10}, 5, v{TMP+10}\n v_add_u32 v{TMP+10}, s56, v{TMP+10}")
    a(f"ds_write_b64 v{TMP+10}, v[{TMP+8}:{TMP+9}]")
    a(f"v_and_b32 v{TMP+21}, 31, v1\n v_lshlrev_b32 v{TMP+21}, 4, v{TMP+21}\n v_lshrrev_b32 v{TMP+20}, 5, v1\n v_mul_u32_u24 v{TMP+20}, 1536, v{TMP+20}\n v_add_u32 v{TMP+20}, v{TMP+20}, v{TMP+21}\n v_add_u32 v{TMP+21}, 3072, v{TMP+21}")
    a("s_waitcnt lgkmcnt(0)")
    G = PS; ACC3 = ACC
    def is45(label): a(f"s_and_b32 s49, s42, 6\n s_cmp_lg_u32 s49, 4\n s_cbranch_scc1 {label}")
    def gloads():
        for i in range(4):
            a(f"buffer_load_dwordx4 v[{G+4*i}:{G+4*i+3}], v{TMP+20 if i < 3 else TMP+21}, s[{sWS}:{sWS+3}], s55 offen offset:{(i % 3)*512} sc1")
    def norm_job():
        A0 = TMP; T3 = PS
        a(f"s_and_b32 s29, s42, 1\n s_lshl_b32 s29, s29, 8\n s_add_u32 s29, s29, {SX+2048}\n v_and_b32 v{A0}, 31, v1\n v_lshlrev_b32 v{A0}, 3, v{A0}\n v_add_u32 v{A0}, s29, v{A0}")
        a(f"ds_read_b64 v[{A0+2}:{A0+3}], v{A0}")
        a("s_waitcnt lgkmcnt(0)")
        for i in range(8): a(f"v_pk_add_f32 {P_(Z2F,i)}, {P_(Z2F,i)}, v[{A0+2}:{A0+3}] op_sel_hi:[1,0]")
        for i in range(16): a(f"v_cvt_pk_bf16_f32 v{Z2F+i}, 0, v{Z2F+i}")
        for i in range(8): a(f"v_pk_mul_f32 {P_(Z2F,i)}, {P_(Z2F,i)}, v[{A0+2}:{A0+3}] op_sel:[0,1]")
        for p in range(8): a(f"v_cvt_pk_bf16_f32 v{ZP+p}, v{Z2F+2*p}, v{Z2F+2*p+1}")
    def norm_job2():
        A0 = TMP; T3 = PS
        a(f"s_lshl_b32 s29, s42, 11\n s_add_u32 s29, s29, {TSC}")
        a(f"v_and_b32 v{A0}, 31, v1\n v_lshlrev_b32 v{A0}, 6, v{A0}\n v_lshrrev_b32 v{A0+1}, 5, v1\n v_lshl_add_u32 v{A0}, v{A0+1}, 3, v{A0}\n v_add_u32 v{A0}, s29, v{A0}")
        a(f"v_bfe_u32 v{A0+2}, v1, 1, 2\n v_lshlrev_b32 v{A0+2}, 4, v{A0+2}")
        for j in range(4):
            a(f"v_xor_b32 v{A0+4+j}, {16*j}, v{A0+2}\n v_add_u32 v{A0+4+j}, v{A0+4+j}, v{A0}")
        for j in range(4): a(f"ds_write_b64 v{A0+4+j}, v[{ZP+2*j}:{ZP+2*j+1}]")
        a(f"v_bfe_u32 v{A0+2}, v1, 2, 2\n v_lshl_add_u32 v{A0+1}, v{A0+1}, 3, v{A0+2}\n v_lshlrev_b32 v{A0+1}, 6, v{A0+1}\n v_and_b32 v{A0+3}, 1, v1\n v_lshl_add_u32 v{A0+1}, v{A0+3}, 3, v{A0+1}\n v_add_u32 v{A0+1}, s29, v{A0+1}")
        a(f"v_bfe_u32 v{A0+3}, v1, 4, 1\n v_bfe_u32 v{A0+8}, v1, 1, 1\n v_lshl_add_u32 v{A0+3}, v{A0+3}, 1, v{A0+8}\n v_lshrrev_b32 v{A0+2}, 1, v{A0+2}\n v_xor_b32 v{A0+3}, v{A0+3}, v{A0+2}")
        a(f"v_lshl_add_u32 v{A0+8}, v{A0+3}, 4, v{A0+1}\n v_xor_b32 v{A0+3}, 2, v{A0+3}\n v_lshl_add_u32 v{A0+9}, v{A0+3}, 4, v{A0+1}")
        for c in range(2):
            for tt in range(2): a(f"ds_read_b64_tr_b16 v[{T3+4*c+2*tt}:{T3+4*c+2*tt+1}], v{A0+8+tt} offset:{c*1024+tt*256}")
        a("s_add_u32 s28, s58, 32768\n s_waitcnt lgkmcnt(0)")
    def check_stats():
        is45("L_NOCHK")
        a("s_mov_b32 s50, 0\nL_CHK:")
        a(f"v_cmp_eq_u32 vcc, s63, v{G+1}")
        for i in range(1, 8): a(f"v_cmp_eq_u32 s[30:31], s63, v{G+1+2*i}\n s_and_b64 vcc, vcc, s[30:31]")
        a("s_add_u32 s50, s50, 1\n s_cmp_eq_u64 vcc, exec\n s_cbranch_scc1 L_CHKOK")
        a(f"s_cmp_ge_u32 s50, {SPIN}\n s_cbranch_scc1 L_CHKOK")
        a("s_sleep 2"); gloads()
        a("s_waitcnt vmcnt(0)\n s_branch L_CHK\nL_CHKOK:")
        B0 = TMP
        a(f"v_mul_f32 v{B0}, 0.5, v{G+12}\n v_mul_f32 v{B0+1}, 0.5, v{G+14}")
        for i in range(3): a(f"v_add_f32 v{B0}, v{B0}, v{G+4*i}\n v_add_f32 v{B0+1}, v{B0+1}, v{G+4*i+2}")
        halfsum(a, B0, B0+2); halfsum(a, B0+1, B0+2)
        a(f"v_mul_f32 v{B0}, {hex(f32bits(1/7))}, v{B0}")
        a(f"v_sub_f32 v{B0+4}, v{G+12}, v{B0}\n v_mul_f32 v{B0+3}, v{B0+4}, v{B0+4}\n v_mul_f32 v{B0+3}, 0.5, v{B0+3}")
        for i in range(3): a(f"v_sub_f32 v{B0+4}, v{G+4*i}, v{B0}\n v_fmac_f32 v{B0+3}, v{B0+4}, v{B0+4}")
        halfsum(a, B0+3, B0+2)
        a(f"v_mov_b32 v{B0+2}, 0x43000000\n v_fma_f32 v{B0+1}, v{B0+3}, v{B0+2}, v{B0+1}")
        a(f"v_mul_f32 v{B0+1}, {hex(f32bits(1/896))}, v{B0+1}")
        var_to_rs(a, B0+1, B0+5)
        a(f"v_cvt_pk_bf16_f32 v{B0+4}, 0, v{B0}\n v_sub_f32 v{B0+4}, 0, v{B0+4}")
        a(f"s_and_b32 s49, s42, 1\n s_lshl_b32 s49, s49, 8\n s_add_u32 s49, s49, {SX+2048}\n v_and_b32 v{B0+6}, 31, v1\n v_lshlrev_b32 v{B0+6}, 3, v{B0+6}\n v_add_u32 v{B0+6}, s49, v{B0+6}")
        a(f"ds_write_b64 v{B0+6}, v[{B0+4}:{B0+5}]\n s_waitcnt lgkmcnt(0)")
        a("L_NOCHK:")
    a("s_cmp_ge_u32 s42, 4\n s_cbranch_scc1 L_P2Z")
    vm_save = list(vm.ops); vm_end = {}
    pend = stg.pending
    EARLY = {16: [0, 1], 17: [2], 18: [3], 20: [4]}
    HB = [BF+16, PS, BF]
    assert CHK_T == 14 or HB[(2*(CHK_T-7)-1) % 3] != PS
    ACF = ACC2
    for path in ("F", "Z"):
        vm.ops = list(vm_save); stg.pending = pend
        if path == "Z": a("L_P2Z:")
        else:
            a(f"s_lshr_b32 s49, s42, 1\n s_lshl_b32 s49, s49, 12\n v_add_u32 v{vTR+2}, s49, v{vF}\n v_add_u32 v{vTR+3}, 0x10000, v{vTR+2}")
        def readsF(hh):
            b = HB[hh % 3]; vb, so = trbase(1, 7+(hh >> 1))
            return [f"ds_read_b128 v[{b+4*f}:{b+4*f+3}], v{vb} offset:{so+(hh & 1)*8192+f*1024}" for f in range(4)]
        def mfmaF(hh):
            if hh < 0: return []
            b = HB[hh % 3]; out = []
            for f in range(4):
                c16 = 2*hh+(f >> 1)
                cin = "0" if (hh == 0 and f == 0) else f"v[{ACF}:{ACF+15}]"
                out.append(f"v_mfma_f32_32x32x16_bf16 v[{ACF}:{ACF+15}], v[{XF+4*c16}:{XF+4*c16+3}], v[{b+4*f}:{b+4*f+3}], {cin}")
            return out
        for t in range(7, 14):
            n = vm.wait(("st", t))
            if t == CHK_T and path == "Z": n = min(n, vm.wait("gl"))
            a(f"s_waitcnt vmcnt({n})")
            if t == CHK_T and path == "Z": check_stats()
            a("s_barrier")
            stg(3+t)
            if t == 7 and path == "Z":
                is45("L_NOSIG")
                B0 = TMP
                a(f"v_and_b32 v{B0+10}, 31, v1\n v_lshlrev_b32 v{B0+11}, 5, v{B0+10}\n s_sub_u32 s49, s56, 16\n v_add_u32 v{B0+11}, s49, v{B0+11}")
                a(f"ds_read_b128 v[{B0}:{B0+3}], v{B0+11}\n ds_read_b128 v[{B0+4}:{B0+7}], v{B0+11} offset:16\n s_waitcnt lgkmcnt(0)")
                a(f"v_add_f32 v{B0+8}, v{B0}, v{B0+2}\n v_add_f32 v{B0+9}, v{B0+4}, v{B0+6}\n v_add_f32 v{B0+8}, v{B0+8}, v{B0+9}\n v_mul_f32 v{B0+12}, 0.25, v{B0+8}")
                a(f"v_add_f32 v{B0+14}, v{B0+1}, v{B0+3}\n v_add_f32 v{B0+9}, v{B0+5}, v{B0+7}\n v_add_f32 v{B0+14}, v{B0+14}, v{B0+9}\n v_mov_b32 v{B0+8}, 0")
                for i in range(4): a(f"v_sub_f32 v{B0+9}, v{B0+2*i}, v{B0+12}\n v_fmac_f32 v{B0+8}, v{B0+9}, v{B0+9}")
                a(f"v_mov_b32 v{B0+9}, 0x42000000\n v_fma_f32 v{B0+14}, v{B0+8}, v{B0+9}, v{B0+14}")
                a(f"v_mov_b32 v{B0+13}, s63\n v_mov_b32 v{B0+15}, s63\n v_lshlrev_b32 v{B0+10}, 4, v{B0+10}")
                a(f"buffer_store_dwordx4 v[{B0+12}:{B0+15}], v{B0+10}, s[{sWS}:{sWS+3}], s61 offen sc1")
                a("s_nop 1\nL_NOSIG:")
            def issue():
                if t == LD_T and path == "Z":
                    gloads()
                    for i in range(4): vm.issue("gl")
                dma(t+D)
            if t == CHK_T:
                norm_job(); norm_job2()
                for q in range(2):
                    a(f"buffer_store_dwordx4 v[{PS+4*q}:{PS+4*q+3}], v{vB2}, s[{sWS}:{sWS+3}], s{58 if q == 0 else 28} offen sc1"); vm.issue("z2n")
            if path == "Z": issue()
            else:
                hh = 2*(t-7)
                body(mfmaF(hh-1), readsF(hh)+readsF(hh+1), issue)
                a("s_waitcnt lgkmcnt(4)")
                for l in mfmaF(hh): a(l)
                a("s_waitcnt lgkmcnt(0)")
        if path == "F":
            for l in mfmaF(13): a(l)
            a(f"v_and_b32 v{TMP}, 31, v1\n s_lshr_b32 s49, s42, 1\n s_lshl_b32 s49, s49, 5\n v_add_u32 v{TMP}, s49, v{TMP}")
            a(f"v_mul_u32_u24 v{TMP}, {UXP}, v{TMP}\n v_lshrrev_b32 v{TMP+1}, 5, v1\n v_lshl_add_u32 v{TMP}, v{TMP+1}, 6, v{TMP}")
            a(f"s_and_b32 s49, s42, 1\n s_lshl_b32 s49, s49, 3\n s_add_u32 s49, s49, {UX}\n v_add_u32 v{TMP}, s49, v{TMP}")
            a("s_branch L_J1")
        vm_end[path] = list(vm.ops)
    vm.fork(vm_end["F"], vm_end["Z"])
    a("L_J1:")
    dbgt(7)
    T = 100; ZR = 88; BS = 96; FR = 20; AC = 104; Z1F = 124
    vTR2 = 84; vWA = 140
    a("s_cmp_ge_u32 s42, 4\n s_cbranch_scc1 L_NOUX")
    for r in range(4):
        a(f"v_cvt_pk_f16_f32 v{TMP+2+2*r}, v{ACF+r}, v{ACF+4+r}\n v_cvt_pk_f16_f32 v{TMP+3+2*r}, v{ACF+8+r}, v{ACF+12+r}")
        a(f"ds_write_b64 v{TMP}, v[{TMP+2+2*r}:{TMP+3+2*r}] offset:{16*r}")
    a("s_waitcnt lgkmcnt(0)\nL_NOUX:")
    def win(Tg): sl = pslot(Tg); return sl >> 1, (sl & 1)*S2
    FZ_T, FU_T = 14+FZ_G, int(os.environ.get("FUT", "17"))
    for t in range(14, 21):
        n = vm.wait(("st", t))
        if t == FU_T: n = min(n, vm.wait("u"))
        if t == FZ_T: n = min(n, vm.wait("z2n"))
        if t == CHK_T: n = min(n, vm.wait("gl"))
        a(f"s_waitcnt vmcnt({n})")
        if t == CHK_T: check_stats()
        a("s_barrier")
        stg(3+t)
        if t == FU_T: set_flag("L_FU", 60)
        if t == FZ_T: set_flag("L_FZ", 59)
        if t == CHK_T:
            norm_job(); norm_job2()
            for q in range(2):
                a(f"buffer_store_dwordx4 v[{PS+4*q}:{PS+4*q+3}], v{vB2}, s[{sWS}:{sWS+3}], s{58 if q == 0 else 28} offen sc1"); vm.issue("z2n")
        if t == 14:
            a(f"v_lshrrev_b32 v{TMP+12}, 3, v0\n v_and_b32 v{TMP+13}, 7, v0")
            a(f"v_mul_u32_u24 v{TMP+14}, {UXP}, v{TMP+12}\n v_lshl_add_u32 v{TMP+14}, v{TMP+13}, 4, v{TMP+14}\n v_add_u32 v{TMP+14}, {UX}, v{TMP+14}")
            a(f"ds_read_b128 v[{TMP+16}:{TMP+19}], v{TMP+14}")
            a(f"v_lshlrev_b32 v{TMP+12}, 12, v{TMP+12}\n v_lshl_add_u32 v{TMP+12}, v{TMP+13}, 4, v{TMP+12}")
        def issue():
            dma(t+D)
            for T_ in EARLY.get(t, []): dmaA(T_)
            if t == WT_T: late_touch()
        body(capture(mfma1, t-1) if t > 14 else [], capture(reads1, t), issue)
        a("s_waitcnt lgkmcnt(0)")
        if t == 14:
            a(f"buffer_store_dwordx4 v[{TMP+16}:{TMP+19}], v{TMP+12}, s[{sWS}:{sWS+3}], s75 offen sc1"); vm.issue("u")
    mfma1(20)
    stg(24)
    def p2_setup():
        a(f"s_lshr_b32 s46, s42, 1\n s_lshl_b32 s46, s46, 10\n v_add_u32 v{vTR2}, s46, v{vF}")
        a(f"v_add_u32 v{vTR2+1}, {2*S2}, v{vTR2}\n v_add_u32 v{vTR2+2}, {4*S2}, v{vTR2}")
        a(f"v_and_b32 v{T}, 31, v1\n s_and_b32 s46, s42, 1\n s_lshl_b32 s46, s46, 5\n v_add_u32 v{T}, s46, v{T}")
        a(f"v_bfe_u32 v{T+1}, v{T}, 1, 3\n v_lshrrev_b32 v{T+2}, 5, v1\n v_xor_b32 v{T+1}, v{T+1}, v{T+2}\n v_lshlrev_b32 v{T}, 7, v{T}\n v_add_u32 v{T}, 16384, v{T}")
        for k in range(4):
            a(f"v_xor_b32 v{T+2}, {2*k}, v{T+1}\n v_lshl_add_u32 v{vWA+k}, v{T+2}, 4, v{T}")
            a(f"v_add_u32 v{vWA+4+k}, {2*S2}, v{vWA+k}\n v_add_u32 v{vWA+8+k}, {4*S2}, v{vWA+k}")
    def gelu_z1(): gelu_pk(ACC, TMP, Z1F); p2_setup()
    a("s_cmp_eq_u32 s42, 0\n s_cbranch_scc1 L_G0")
    gelu_z1()
    a("L_G0:")
    poll_pipe("L_CZ", 89, 240, gap=2)
    a("s_barrier")
    stg(25); dbgt(8)
    for Tg in range(D): dmaB(Tg)
    a("s_cmp_lg_u32 s42, 0\n s_cbranch_scc1 L_G1")
    gelu_z1()
    a("L_G1:")
    n_p3 = len(a.lines)
    vB3, vY3, vO3, XR = 152, 153, 154, 156
    srd(a, sWO, 82, 896*896)
    a("s_lshl_b32 s51, s40, 2\n s_and_b32 s52, s41, 3\n s_add_u32 s51, s51, s52\n s_lshr_b32 s52, s41, 2")
    a("s_lshr_b32 s53, s51, 4\n s_lshl_b32 s53, s53, 4\n s_bfe_u32 s54, s51, 0x10003\n s_lshl_b32 s54, s54, 2\n s_add_u32 s53, s53, s54")
    a(f"v_lshrrev_b32 v{T}, 3, v1\n v_and_b32 v{T+1}, 7, v1\n v_bfe_u32 v{T+2}, v1, 4, 1\n v_lshlrev_b32 v{T+2}, 2, v{T+2}\n v_xor_b32 v{T+2}, v{T+1}, v{T+2}")
    a(f"v_mul_u32_u24 v{vB3}, 896, v{T}\n v_lshl_add_u32 v{vO3}, v{T+1}, 4, v{vB3}\n v_lshl_add_u32 v{vB3}, v{T+2}, 4, v{vB3}")
    a(f"s_lshl_b32 s54, s51, 1\n s_lshr_b32 s55, s42, 2\n s_add_u32 s54, s54, s55\n s_mul_i32 s54, s54, 56\n s_and_b32 s55, s42, 3\n s_add_u32 s54, s54, s55\n s_lshl_b32 s54, s54, 10\n s_add_u32 s54, s54, {H}")
    a("s_mul_i32 s55, s42, 7168\n s_lshl_b32 s56, s52, 7\n s_add_u32 s55, s55, s56")
    a(f"s_mul_i32 s56, s51, 57344\n s_add_u32 s56, s56, s48\n s_add_u32 s56, s56, {YT}")
    a("s_mul_i32 s57, s52, 56\n s_add_u32 s57, s57, s42\n s_lshl_b32 s57, s57, 10")
    a("s_lshr_b32 s58, s42, 2\n s_lshl_b32 s58, s58, 3\n s_add_u32 s58, s58, s53\n s_and_b32 s59, s42, 3\n s_add_u32 s58, s58, s59\n s_lshl_b32 s58, s58, 6")
    a("s_and_b32 s59, s51, 7\n s_lshl_b32 s59, s59, 3\n s_add_u32 s58, s58, s59\n s_mul_i32 s58, s58, 896\n s_lshl_b32 s59, s52, 7\n s_add_u32 s58, s58, s59")
    a(f"s_lshl_b32 s61, s51, 10\n s_add_u32 s61, s61, {FLH}\n s_mov_b32 s62, {FLY}")
    p3_setup = a.lines[n_p3:]; del a.lines[n_p3:]
    blk = {}
    free = []
    def unit(kind, i):
        b = free.pop(0); blk[(kind, i)] = b
        a(f"s_add_u32 m0, s48, {b*8192}")
        if kind == "T":
            a(f"s_add_u32 s49, s57, {i*8192}\n buffer_load_dwordx4 v{vF}, s[{sTT}:{sTT+3}], s49 offen lds")
        elif kind == "W":
            a(f"s_add_u32 s49, s55, {64*i*896}\n buffer_load_dwordx4 v{vB3}, s[{sWO}:{sWO+3}], s49 offen lds")
        elif kind == "Y":
            a(f"s_add_u32 s49, s56, {i*8192}\n buffer_load_dwordx4 v{vF}, s[{sWS}:{sWS+3}], s49 offen sc1 lds")
        else:
            a(f"s_add_u32 s49, s54, {4*i*1024}\n buffer_load_dwordx4 v{vF}, s[{sWS}:{sWS+3}], s49 offen sc1 lds")
        vm.issue((kind, i))
    PRE = {27: [("T", 0), ("T", 1), ("T", 2)], 28: [("T", 3), ("T", 4), ("T", 5)], 29: [("T", 6), ("W", 0), ("W", 1)],
           30: [("W", 2), ("W", 3)], 31: [], 32: []}
    POST = []
    def rd2(Tg, k):
        b = FR+32*(Tg & 1); w_, so = win(Tg)
        return [f"ds_read_b128 v[{b+8*k}:{b+8*k+3}], v{vTR2+w_} offset:{so+4096*k}"] + \
               [f"ds_read_b128 v[{b+8*k+4}:{b+8*k+7}], v{vWA+4*w_+k} offset:{so}"]
    def mf2(Tg):
        b = FR+32*(Tg & 1)
        return [f"v_mfma_f32_32x32x16_bf16 v[{AC}:{AC+15}], v[{b+8*k}:{b+8*k+3}], v[{b+8*k+4}:{b+8*k+7}], " + ("0" if (Tg == 0 and k == 0) else f"v[{AC}:{AC+15}]") for k in range(4)]
    def late_loads():
        SK = os.environ.get("SKIP", "")
        a("s_mov_b32 s46, s73")
        a(f"v_bfe_u32 v{T}, v1, 3, 2\n v_and_b32 v{T+1}, 7, v1\n v_lshlrev_b32 v{T}, 7, v{T}\n v_lshl_add_u32 v{T}, v{T+1}, 1, v{T}")
        if "b" in SK: a("s_mov_b32 s46, 0x20000000")
        a(f"buffer_load_ushort v{BS}, v{T}, s[{sBS}:{sBS+3}], s46 offen"); vm.issue("z1")
        a("s_mov_b32 s49, s58" if "x" not in SK else "s_mov_b32 s49, 0x20000000")
        a(f"buffer_load_dwordx4 v[{XR}:{XR+3}], v{vO3}, s[{sX}:{sX+3}], s49 offen"); vm.issue("z1")
    gl = []
    PY = 160
    WM = 164
    U_T, Y_T = int(os.environ.get("UT", "27")), 31
    for Tg in range(32):
        n = vm.wait(("g", Tg))
        a(f"s_waitcnt vmcnt({n})")
        a("s_barrier")
        stg(26+Tg)
        def issue():
            if Tg == 31: poll_issue("L_PY", 62, PY)
            if Tg == U_T: late_loads()
            if Tg+D < 32:
                dmaA(Tg+D); dmaB(Tg+D)
            else:
                free.extend(3*pslot(Tg-1)+i for i in range(3))
                for u_ in PRE[Tg]: unit(*u_)
        rd = rd2(Tg, 0)+rd2(Tg, 1)+rd2(Tg, 2)+rd2(Tg, 3)
        body(mf2(Tg-1) if Tg > 0 else [], rd, issue, p3_setup if Tg >= 2 else None, 3)
        a("s_waitcnt lgkmcnt(0)")
    assert not p3_setup
    dbgt(9)
    vTRo, vFRo, vTRs, vFRs = 168, 171, 224, 227; FG = 176; AC3 = 208; ACO = AC
    W3 = 49152
    a(f"v_bfe_u32 v{T}, v1, 2, 2\n v_lshrrev_b32 v{T+1}, 5, v1")
    a(f"v_bfe_u32 v{T+2}, v1, 4, 1\n v_bfe_u32 v{T+3}, v1, 1, 1\n v_lshl_add_u32 v{T+2}, v{T+2}, 1, v{T+3}")
    a(f"v_lshrrev_b32 v{T+3}, 1, v{T}\n v_lshlrev_b32 v{T+3}, 2, v{T+3}\n v_xor_b32 v{T+2}, v{T+2}, v{T+3}")
    a(f"v_and_b32 v{T+3}, 1, v1\n v_lshlrev_b32 v{T+3}, 3, v{T+3}\n v_lshl_add_u32 v{T+3}, v{T}, 7, v{T+3}")
    a("s_and_b32 s46, s42, 1\n s_bfe_u32 s47, s42, 0x10001")
    a(f"s_lshl_b32 s49, s47, 2\n v_xor_b32 v{T}, s49, v{T+2}\n v_lshl_add_u32 v{vTRo}, v{T}, 4, v{T+3}\n v_lshl_add_u32 v{vTRo}, v{T+1}, 9, v{vTRo}")
    a(f"s_lshl_b32 s49, s46, 12\n v_add_u32 v{vFRo}, s49, v{vF}")
    a(f"s_lshl_b32 s49, s46, 2\n v_xor_b32 v{T}, s49, v{T+2}\n v_lshl_add_u32 v{vTRs}, v{T}, 4, v{T+3}\n v_lshl_add_u32 v{vTRs}, v{T+1}, 10, v{vTRs}")
    a(f"s_lshl_b32 s49, s47, 10\n v_add_u32 v{vFRs}, s49, v{vF}")
    for b in (vTRo, vFRo, vTRs, vFRs): a(f"v_add_u32 v{b+1}, {W3}, v{b}\n v_add_u32 v{b+2}, {2*W3}, v{b}")
    a("s_cmp_ge_u32 s42, 4\n s_cbranch_scc1 L_S")
    vm_save = list(vm.ops); free_save = list(free); blk_save = dict(blk)
    HF_T, HC_T, NWPRE = 34, int(os.environ.get("HC", "40")), int(os.environ.get("NWP", "8")); SS = 35; OS = 43
    EXO = 272; EXA, EXB, EXS = 0, 64*EXO, 128*EXO
    LAST = OS+7
    for path in ("O", "S"):
        vm.ops = list(vm_save); stg2.pending = None; free[:] = free_save; blk.clear(); blk.update(blk_save)
        if path == "S": a("L_S:")
        grp = 0 if path == "O" else 1
        def work(it):
            if SS <= it < SS+7: return ("S", it-SS) if path == "S" else None
            if OS <= it < OS+7: return ("O", 2*(it-OS)+grp)
            return None
        def fb(it): return FG if (it & 1) else FR
        def rd3(it):
            wk = work(it)
            if wk is None: return []
            b = fb(it); out = []
            if wk[0] == "S": b1, b2, vt, vf, ts, ks = blk[("Y", wk[1])], blk[("T", wk[1])], vTRs, vFRs, 512, 2048
            else: b1, b2, vt, vf, ts, ks = blk[("W", wk[1])], blk[("H", wk[1])], vTRo, vFRo, 1024, 1024
            for k in range(4):
                for tt in range(2):
                    out.append(f"ds_read_b64_tr_b16 v[{b+8*k+2*tt}:{b+8*k+2*tt+1}], v{vt+b1//6} offset:{(b1 % 6)*8192+k*2048+tt*ts}")
                out.append(f"ds_read_b128 v[{b+8*k+4}:{b+8*k+7}], v{vf+b2//6} offset:{(b2 % 6)*8192+k*ks}")
            return out
        def mf3(it):
            wk = work(it)
            if wk is None: return []
            b = fb(it); out = []
            for k in range(4):
                if wk[0] == "O":
                    cin = "0" if (it == OS and k == 0) else f"v[{ACO}:{ACO+15}]"
                    out.append(f"v_mfma_f32_32x32x16_bf16 v[{ACO}:{ACO+15}], v[{b+8*k}:{b+8*k+3}], v[{b+8*k+4}:{b+8*k+7}], {cin}")
                else:
                    cin = "0" if (it == SS and k == 0) else f"v[{AC3}:{AC3+15}]"
                    out.append(f"v_mfma_f32_32x32x16_f16 v[{AC3}:{AC3+15}], v[{b+8*k+4}:{b+8*k+7}], v[{b+8*k}:{b+8*k+3}], {cin}")
            return out
        nextW, nextH = [4], [0]; post = list(POST); CAP = int(os.environ.get("CAP", "9"))
        for it in range(32, LAST):
            need = []
            if SS <= it < SS+7: need = [("Y", it-SS), ("T", it-SS)]
            if OS <= it < OS+7: need = [(k_, 2*(it-OS)+g_) for k_ in "WH" for g_ in range(2)]
            if it == HF_T: need.append("h")
            if need: a(f"s_waitcnt vmcnt({min(vm.wait(x) for x in need)})")
            if it == 33 and path == "O":
                a("s_waitcnt vmcnt(2)")
                poll_check("L_CY", 62, PY, covered=True)
                a(f"v_and_b32 v{vPA}, 7, v1\n v_min_u32 v{vPA}, 6, v{vPA}\n v_lshlrev_b32 v{vPA}, 7, v{vPA}")
            if it == HC_T and path == "O": poll_pipe("L_CH", 61, 240, pre=3)
            a("s_barrier")
            stg2(it-32)
            if it == HF_T and path == "O": set_flag("L_FH", 74)
            def issue():
                if it == 32:
                    free.extend(3*pslot(31)+i for i in range(3))
                    for u_ in PRE[32]: unit(*u_)
                if it == 33:
                    for i_ in range(7): unit("Y", i_)
                    a(f"s_mov_b32 s49, {WMAX}")
                    a(f"buffer_load_dwordx4 v[{WM}:{WM+3}], v{vF}, s[{sWS}:{sWS+3}], s49 offen sc1"); vm.issue("wm")
                if SS+1 <= it < SS+8: free.extend([blk[("Y", it-SS-1)], blk[("T", it-SS-1)]])
                if OS+1 <= it < OS+7: free.extend(blk[(k_, 2*(it-OS-1)+g_)] for k_ in "WH" for g_ in range(2))
                cap = CAP
                while free and it > 33:
                    if it < HC_T:
                        if cap == 0: break
                        cap -= 1
                        if post: unit(*post.pop(0))
                        elif nextW[0] < NWPRE: unit("W", nextW[0]); nextW[0] += 1
                        else: break
                    else:
                        if nextH[0] < 14 and (nextH[0] < nextW[0] or nextW[0] >= 14): unit("H", nextH[0]); nextH[0] += 1
                        elif nextW[0] < 14: unit("W", nextW[0]); nextW[0] += 1
                        else: break
            body(mf2(31) if it == 32 else mf3(it-1), rd3(it), issue)
            if HC_T-3 <= it < HC_T and path == "O": poll_issue(f"L_PH{it}", 61, 240+it-(HC_T-3))
            if it == 32:
                E = FR+32
                a(f"s_waitcnt vmcnt({vm.wait('z1')})")
                a(f"v_lshlrev_b32 v{BS}, 16, v{BS}")
                for i in range(16): a(f"v_cvt_pk_bf16_f32 v{E+i}, 0, v{AC+i}")
                for i in range(8): a(f"v_pk_add_f32 {P_(E,i)}, {P_(E,i)}, v[{BS}:{BS+1}] op_sel_hi:[1,0]")
                for i in range(16): a(f"v_cvt_pk_bf16_f32 v{E+i}, 0, v{E+i}")
                for i in range(8): a(f"v_pk_mul_f32 {P_(E,i)}, {P_(E,i)}, {P_(Z1F,i)}")
                for p in range(8): a(f"v_cvt_pk_bf16_f32 v{E+16+p}, v{E+2*p}, v{E+2*p+1}")
                a("s_mov_b32 s49, s72")
                for q in range(2):
                    a(f"buffer_store_dwordx4 v[{E+16+4*q}:{E+19+4*q}], v{vF}, s[{sWS}:{sWS+3}], s49 offen offset:{q*1024} sc1"); vm.issue("h")
            if it == OS and path == "S":
                wmax_reduce(a, WM, 28, 29)
                a(f"s_lshl_b32 s28, s28, 23\n v_mov_b32 v174, {hex(f32bits(1/28))}\n v_mul_f32 v174, s28, v174")
            if it == OS+1 and path == "S":
                for i in range(16): a(f"v_mul_f32 v{AC3+i}, v{AC3+i}, v174")
                for p in range(8): a(f"v_cvt_pk_bf16_f32 v{ZR+p}, v{AC3+2*p}, v{AC3+2*p+1}")
            a("s_waitcnt lgkmcnt(0)")
        a("s_barrier")
        for l in mf3(LAST-1): a(l)
        a(f"v_and_b32 v{T}, 31, v1\n s_lshl_b32 s49, s46, 5\n v_add_u32 v{T}, s49, v{T}\n v_lshrrev_b32 v{T+1}, 5, v1")
        if path == "S":
            a(f"v_mul_u32_u24 v{T+2}, {EXP}, v{T}\n v_lshl_add_u32 v{T+2}, v{T+1}, 3, v{T+2}\n s_lshl_b32 s49, s47, 6\n s_add_u32 s49, s49, {EXS}\n v_add_u32 v{T+2}, s49, v{T+2}")
            for j in range(4): a(f"ds_write_b64 v{T+2}, v[{ZR+2*j}:{ZR+2*j+1}] offset:{16*j}")
        a(f"v_mul_u32_u24 v{T}, {EXO}, v{T}\n v_lshl_add_u32 v{T}, v{T+1}, 4, v{T}\n s_lshl_b32 s49, s47, 7\n s_add_u32 s49, s49, {EXA if path == 'O' else EXB}\n v_add_u32 v{T}, s49, v{T}")
        for j in range(4): a(f"ds_write_b128 v{T}, v[{ACO+4*j}:{ACO+4*j+3}] offset:{32*j}")
        if path == "O": a("s_branch L_J3")
    a("L_J3:")
    stg2(21)
    a("s_waitcnt lgkmcnt(0)\n s_barrier")
    a(f"v_lshrrev_b32 v{T}, 3, v0\n v_and_b32 v{T+1}, 7, v0\n v_mul_u32_u24 v{T+2}, {EXP}, v{T}\n v_lshl_add_u32 v{T+2}, v{T+1}, 4, v{T+2}")
    a(f"v_mul_u32_u24 v{T}, {EXO}, v{T}\n v_lshl_add_u32 v{T}, v{T+1}, 5, v{T}")
    O_, S_ = 20, 24; A_, B_ = 32, 40
    a(f"ds_read_b128 v[{A_}:{A_+3}], v{T}\n ds_read_b128 v[{A_+4}:{A_+7}], v{T} offset:16")
    a(f"ds_read_b128 v[{B_}:{B_+3}], v{T} offset:{EXB}\n ds_read_b128 v[{B_+4}:{B_+7}], v{T} offset:{EXB+16}")
    a(f"ds_read_b128 v[{S_}:{S_+3}], v{T+2} offset:{EXS}")
    a(f"s_mov_b32 s46, {hex(f32bits(-math.log2(math.e)))}\n s_mov_b32 s47, s46")
    a("s_waitcnt lgkmcnt(0)")
    for p in range(4): a(f"v_pk_add_f32 v[{A_+2*p}:{A_+2*p+1}], v[{A_+2*p}:{A_+2*p+1}], v[{B_+2*p}:{B_+2*p+1}]")
    for i in range(8): a(f"v_cvt_pk_bf16_f32 v{A_+i}, 0, v{A_+i}")
    for p in range(4): a(f"v_pk_mul_f32 v[{B_+2*p}:{B_+2*p+1}], v[{A_+2*p}:{A_+2*p+1}], s[46:47]")
    for i in range(8): a(f"v_exp_f32 v{B_+i}, v{B_+i}")
    for p in range(4): a(f"v_pk_add_f32 v[{B_+2*p}:{B_+2*p+1}], v[{B_+2*p}:{B_+2*p+1}], 1.0 op_sel_hi:[1,0]")
    for i in range(8): a(f"v_rcp_f32 v{B_+i}, v{B_+i}")
    for p in range(4): a(f"v_pk_mul_f32 v[{A_+2*p}:{A_+2*p+1}], v[{A_+2*p}:{A_+2*p+1}], v[{B_+2*p}:{B_+2*p+1}]")
    for i in range(8): a(f"v_cvt_pk_bf16_f32 v{A_+i}, 0, v{A_+i}")
    for p in range(4): a(f"v_lshlrev_b32 v{B_+2*p}, 16, v{S_+p}\n v_and_b32 v{B_+2*p+1}, 0xffff0000, v{S_+p}")
    for p in range(4): a(f"v_pk_mul_f32 v[{A_+2*p}:{A_+2*p+1}], v[{A_+2*p}:{A_+2*p+1}], v[{B_+2*p}:{B_+2*p+1}]")
    for i in range(8): a(f"v_cvt_pk_bf16_f32 v{A_+i}, 0, v{A_+i}")
    for p in range(4): a(f"v_lshlrev_b32 v{B_+2*p}, 16, v{XR+p}\n v_and_b32 v{B_+2*p+1}, 0xffff0000, v{XR+p}")
    for p in range(4): a(f"v_pk_add_f32 v[{A_+2*p}:{A_+2*p+1}], v[{A_+2*p}:{A_+2*p+1}], v[{B_+2*p}:{B_+2*p+1}]")
    for p in range(4): a(f"v_cvt_pk_bf16_f32 v{O_+p}, v{A_+2*p}, v{A_+2*p+1}")
    a(f"buffer_store_dwordx4 v[{O_}:{O_+3}], v{vO3}, s[{sOUT}:{sOUT+3}], s58 offen")
    def prof_end():
        if not PROF: return
        stg2(22); a("s_waitcnt vmcnt(0)"); stg2(23)
        a("s_memrealtime s[28:29]\n s_waitcnt lgkmcnt(0)")
        a("v_writelane_b32 v247, s100, 23\n v_writelane_b32 v247, s96, 62\n v_writelane_b32 v247, s28, 63")
        a(f"s_lshl_b32 s98, s2, 3\n s_add_u32 s98, s98, s42\n s_lshl_b32 s98, s98, 9\n s_add_u32 s98, s98, {TS}")
        a(f"v_lshlrev_b32 v251, 2, v1\n buffer_store_dword v246, v251, s[{sWS}:{sWS+3}], s98 offen\n buffer_store_dword v247, v251, s[{sWS}:{sWS+3}], s98 offen offset:256")
    prof_end()
    dbgt(10); dbg_flush()
    a("s_endpgm")
    gen_aux(a, locals())
    a("L_END:\n s_endpgm")
    a.raw(kd(NAME, 256, 102))

def gen_aux(a, L):
    sWS, sDBG, sSP, sBS = L["sWS"], L["sDBG"], L["sSP"], L["sBS"]
    vZERO, vPOLL, vPA, vF = L["vZERO"], L["vPOLL"], L["vPA"], L["vF"]
    stg, stg2 = L["stg"], L["stg2"]
    get_nonce, poll_check = L["get_nonce"], L["poll_check"]
    a("L_AUX:")
    stg.pending = 0; stg2.pending = None
    sWR, sWI, sTB = 4, 8, 16
    srd(a, sWR, 28, 2048*450); srd(a, sWI, 30, 2048*450)
    pc_srd(a, sTB, "TAB_FFT", FT_BYTES)
    a("s_sub_u32 s41, s41, 28")
    a("s_lshl_b32 s43, s41, 3\n s_add_u32 s43, s43, s40")
    a("s_cmp_lg_u32 s41, 0\n s_cbranch_scc1 L_NOCODE")
    pc_srd(a, 44, NAME, "L_END-"+NAME)
    a("v_lshlrev_b32 v5, 7, v0\n buffer_load_dword v254, v5, s[44:47], 0 offen")
    a("L_NOCODE:")
    AD = 0
    a(f"v_lshlrev_b32 v5, 7, v0\n buffer_load_dword v255, v5, s[{sBS}:{sBS+3}], 0 offen\n s_waitcnt vmcnt(0)\n s_barrier")
    a("s_lshr_b32 s44, s43, 1\n s_lshl_b32 s44, s44, 2\n s_and_b32 s45, s42, 3\n s_add_u32 s44, s44, s45\n s_lshl_b32 s44, s44, 5")
    a("s_and_b32 s45, s43, 1\n s_lshl_b32 s45, s45, 4\n s_add_u32 s44, s44, s45\n s_mul_i32 s44, s44, 450")
    WL = 65536
    a(f"s_lshl_b32 s46, s42, 13\n s_add_u32 s46, s46, {WL}")
    a("s_cmp_ge_u32 s42, 4\n s_cbranch_scc1 L_AUXI")
    for arr, sr in (("R", sWR), ("I", sWI)):
        if arr == "I": a("L_AUXI:")
        for i in range(8):
            a(f"s_add_u32 m0, s46, {i*1024}\n s_add_u32 s47, s44, {i*1024}")
            a(f"buffer_load_dwordx4 v{vF}, s[{sr}:{sr+3}], s47 offen lds")
        if arr == "R": a("s_branch L_AUXJ")
    a("L_AUXJ:")
    if not AD: a(f"buffer_load_dword v{vPOLL}, v{vZERO}, s[{sDBG}:{sDBG+3}], 0 offen sc1")
    a("v_and_b32 v5, 63, v0\n v_lshlrev_b32 v5, 12, v5\n v_lshrrev_b32 v6, 6, v0\n v_lshl_add_u32 v5, v6, 7, v5\n s_lshl_b32 s47, s43, 18")
    if int(os.environ.get("MATCH", "1")):
        a("s_and_b32 s47, s40, 4\n s_and_b32 s50, s40, 1\n s_lshl_b32 s50, s50, 1\n s_add_u32 s47, s47, s50\n s_bfe_u32 s50, s40, 0x10001\n s_add_u32 s47, s47, s50")
        a("s_lshl_b32 s47, s47, 2\n s_add_u32 s47, s47, s41\n s_lshl_b32 s47, s47, 18")
    AO = int(os.environ.get("AO", "1"))
    if AO == 2: a(f"buffer_load_dword v252, v5, s[{sSP}:{sSP+3}], s47 offen")
    a(f"s_waitcnt vmcnt({1 if AO == 2 else 0})\n s_barrier")
    stg(1)
    a("v_and_b32 v6, 15, v0\n v_lshrrev_b32 v7, 4, v0")
    a(f"v_mul_u32_u24 v8, 450, v6\n v_lshl_add_u32 v8, v7, 1, v8\n v_add_u32 v8, {WL}, v8")
    a("v_lshlrev_b32 v9, 13, v7\n v_lshl_add_u32 v9, v6, 4, v9")
    a(f"s_lshl_b32 s48, s43, 8\n s_add_u32 s48, s48, {WP}")
    a("v_mov_b32 v10, 0")
    for it in range(8):
        d = 16+4*it
        for r in range(4):
            a(f"ds_read_u16 v{d+r}, v8 offset:{r*8192+64*it}")
            a(f"ds_read_u16 v{d+r+96}, v8 offset:{(4+r)*8192+64*it}")
    if not AD: get_nonce("L_ANON")
    a("s_waitcnt lgkmcnt(0)")
    for it in range(8):
        d = 16+4*it
        for r in range(4): a(f"v_lshl_or_b32 v{d+r}, v{d+r+96}, 16, v{d+r}")
        if it == 7:
            a("v_cmp_gt_u32 vcc, 16, v0\n s_and_saveexec_b64 s[50:51], vcc\n s_cbranch_execz L_AUXSK")
        a(f"buffer_store_dwordx4 v[{d}:{d+3}], v9, s[{sWS}:{sWS+3}], s48 offen sc1")
        for r in range(4):
            a(f"v_and_b32 v{12+(r&1)}, 0x7fff7fff, v{d+r}\n v_pk_max_u16 v10, v10, v{12+(r&1)}")
        if it < 7: a(f"s_add_u32 s48, s48, {32*8192}")
    a("L_AUXSK:\n s_mov_b64 exec, -1")
    a("v_lshrrev_b32 v11, 16, v10\n v_and_b32 v10, 0xffff, v10\n v_max_u32 v10, v10, v11")
    a("v_max_u32_dpp v10, v10, v10 quad_perm:[1,0,3,2] row_mask:0xf bank_mask:0xf")
    a("v_max_u32_dpp v10, v10, v10 quad_perm:[2,3,0,1] row_mask:0xf bank_mask:0xf")
    a("v_max_u32_dpp v10, v10, v10 row_half_mirror row_mask:0xf bank_mask:0xf")
    a("v_max_u32_dpp v10, v10, v10 row_mirror row_mask:0xf bank_mask:0xf")
    a("v_readlane_b32 s50, v10, 0\n v_readlane_b32 s51, v10, 16\n v_readlane_b32 s52, v10, 32\n v_readlane_b32 s53, v10, 48")
    a("s_max_u32 s50, s50, s51\n s_max_u32 s52, s52, s53\n s_max_u32 s50, s50, s52")
    a(f"s_lshl_b32 s49, s43, 3\n s_add_u32 s49, s49, s42\n s_lshl_b32 s49, s49, 2\n s_add_u32 s49, s49, {WMAX}")
    a("v_mov_b32 v10, s50\n s_mov_b64 exec, 1")
    a(f"buffer_store_dword v10, v{vZERO}, s[{sWS}:{sWS+3}], s49 offen sc1")
    a("s_mov_b64 exec, -1")
    a("s_waitcnt vmcnt(0)\n s_barrier")
    stg(2)
    a(f"s_lshl_b32 s49, s43, 7\n s_add_u32 s49, s49, {FLW}")
    L["set_flag"]("L_FW", 49)
    if AO != 2: a(f"buffer_load_dword v252, v5, s[{sSP}:{sSP+3}], s47 offen")
    a("s_mul_i32 s45, s42, 7168")
    for i in range(7):
        a(f"s_add_u32 m0, s45, {i*1024}\n s_add_u32 s46, s45, {i*1024}")
        a(f"buffer_load_dwordx4 v{vF}, s[{sTB}:{sTB+3}], s46 offen lds")
    for rnd in range(1, -(-WSP_K1//8)):
        if 8*rnd+8 > WSP_K1: a(f"s_cmp_ge_u32 s42, {WSP_K1-8*rnd}\n s_cselect_b32 s47, 0x10000000, s47")
        a(f"buffer_load_dword v{252+rnd}, v5, s[{sSP}:{sSP+3}], s47 offen offset:{1024*rnd}")
    a(f"v_mov_b32 v8, {SX}\n ds_write_b32 v8, v{vZERO}")
    a(f"v_and_b32 v{vPA}, 31, v1\n v_lshlrev_b32 v{vPA}, 7, v{vPA}\n s_mov_b32 s59, {FLW}")
    L["poll_issue"]("L_PW", 59, vPOLL)
    poll_check("L_CW", 59, vPOLL, sleep=16)
    a("s_barrier")
    a("s_mul_i32 s44, s43, 7\n s_add_u32 s44, s44, s42\n s_cmp_eq_u32 s42, 7\n s_cselect_b32 s44, 224, s44")
    a(f"s_mov_b32 s53, {WMAX}\n buffer_load_dwordx4 v[12:15], v{vF}, s[{sWS}:{sWS+3}], s53 offen sc1")
    a(f"s_lshl_b32 s54, s44, 13\n s_add_u32 s54, s54, {WP}")
    a("s_cmp_eq_u32 s42, 7\n s_cselect_b32 s55, s43, 0\n s_cmp_lg_u32 s55, 0\n s_cselect_b32 s54, 0x20000000, s54\n s_add_u32 s55, s54, 4096")
    for i in range(8):
        a(f"buffer_load_dwordx4 v[{128+4*i}:{131+4*i}], v{vF}, s[{sWS}:{sWS+3}], s{54 if i < 4 else 55} offen offset:{(i&3)*1024} sc1")
    a("s_mul_i32 s51, s43, 14\n s_add_u32 s52, s51, 13\n s_lshr_b32 s51, s51, 6\n s_lshr_b32 s52, s52, 6\n s_lshl_b32 s51, s51, 12\n s_lshl_b32 s52, s52, 12")
    a(f"v_mov_b32 v8, s51\n v_mov_b32 v9, s52\n v_cmp_gt_u32 vcc, 32, v1\n v_cndmask_b32 v8, v9, v8, vcc\n v_add_u32 v{vPA}, v{vPA}, v8\n s_mov_b32 s59, {FLU}")
    L["poll_pipe"]("L_CF", 59, 240, gap=8)
    a("s_waitcnt vmcnt(9) lgkmcnt(0)\n s_barrier")
    stg(3)
    a("s_cmp_lg_u32 s42, 7\n s_cbranch_scc1 L_FFT0\n s_cmp_lg_u32 s43, 0\n s_cbranch_scc1 L_PFW\nL_FFT0:")

    vL = vF
    OPR, OPI, OPN = 16, 32, 48
    DR, DI = 64, 96
    WV = 128; C32 = 160; CF = 184; TWB = 216
    a("s_lshl_b32 s48, s44, 1\n s_add_u32 s49, s48, 1\n s_min_u32 s49, s49, 447\n s_cmp_eq_u32 s44, 224\n s_cselect_b32 s48, 1, s48")
    a("s_cmp_eq_u32 s44, 224\n s_cselect_b32 s58, 1, 0\n s_cmp_eq_u32 s44, 0\n s_cselect_b32 s58, 1, s58")
    a(f"s_lshl_b32 s48, s48, 12\n s_lshl_b32 s49, s49, 12\n s_add_u32 s51, s48, {U}\n s_add_u32 s52, s49, {U}")
    a(f"v_and_b32 v5, 31, v1\n v_lshrrev_b32 v6, 5, v1\n v_lshlrev_b32 v7, 4, v5\n v_lshl_add_u32 v7, v6, 10, v7")
    for mt in range(2):
        for c in range(2):
            f = 2*mt+c
            a(f"buffer_load_dwordx4 v[{OPR+4*f}:{OPR+4*f+3}], v7, s[{sWS}:{sWS+3}], s51 offen offset:{(32*mt+128*c)*16} sc1")
            a(f"buffer_load_dwordx4 v[{OPI+4*f}:{OPI+4*f+3}], v7, s[{sWS}:{sWS+3}], s52 offen offset:{(32*mt+128*c)*16} sc1")
    for i in range(6): a(f"ds_read_b128 v[{C32+4*i}:{C32+4*i+3}], v{vL} offset:{O_C32+i*1024}")
    CR = lambda c: f"v[{C32+4*c}:{C32+4*c+3}]"
    CI = lambda c: f"v[{C32+8+4*c}:{C32+8+4*c+3}]"
    CN = lambda c: f"v[{C32+16+4*c}:{C32+16+4*c+3}]"
    op = lambda base, f: f"v[{base+4*f}:{base+4*f+3}]"
    dd = lambda base, t: f"v[{base+16*t}:{base+16*t+15}]"
    a("s_waitcnt vmcnt(8)")
    wmax_reduce(a, 12, 53, 28)
    a("s_sub_u32 s56, 254, s53\n s_sub_u32 s56, s56, s58\n s_lshl_b32 s56, s56, 23\n s_mov_b32 s57, s56")
    a("s_waitcnt vmcnt(0)")
    a("s_cmp_eq_u32 s58, 0\n s_cbranch_scc1 L_NSP")
    for i in range(16): a(f"v_mov_b32 v{OPI+i}, 0")
    a("L_NSP:")
    a("s_waitcnt lgkmcnt(0)")
    stg(4)
    def mfma(d, x, y, first): a(f"v_mfma_f32_32x32x16_f16 {d}, {x}, {y}, {'0' if first else d}")
    for mt in range(2):
        for c in range(2):
            f = 2*mt+c
            mfma(dd(DR, mt), op(OPR, f), CR(c), c == 0); mfma(dd(DI, mt), op(OPR, f), CI(c), c == 0)
            mfma(dd(DR, mt), op(OPI, f), CN(c), False); mfma(dd(DI, mt), op(OPI, f), CR(c), False)
    def twiddle(otab, neg):
        def ld(g):
            b = TWB+8*(g % 3)
            a(f"ds_read_b128 v[{b}:{b+3}], v{vL} offset:{otab+g*2048}")
            a(f"ds_read_b128 v[{b+4}:{b+7}], v{vL} offset:{otab+g*2048+1024}")
        for g in range(2): ld(g)
        for g in range(8):
            if g+2 < 8: ld(g+2)
            a(f"s_waitcnt lgkmcnt({2*min(2, 7-g)})")
            b = TWB+8*(g % 3)
            v = 4*g
            for i in range(4): a(f"v_mul_f32 v{8+i}, v{DR+v+i}, v{b+i}\n v_mul_f32 v{12+i}, v{DR+v+i}, v{b+4+i}")
            for i in range(4): a(f"v_fma_f32 v{8+i}, -v{DI+v+i}, v{b+4+i}, v{8+i}\n v_fmac_f32 v{12+i}, v{DI+v+i}, v{b+i}")
            for pr in range(2):
                a(f"v_cvt_pk_f16_f32 v{OPR+v//2+pr}, v{8+2*pr}, v{9+2*pr}\n v_cvt_pk_f16_f32 v{OPI+v//2+pr}, v{12+2*pr}, v{13+2*pr}")
            if neg:
                for pr in range(2): a(f"v_xor_b32 v{OPN+v//2+pr}, 0x80008000, v{OPI+v//2+pr}")
    def big(step):
        def ld(i):
            b = CF+8*(i & 3)
            a(f"ds_read_b128 v[{b}:{b+3}], v{vL} offset:{O_C64R+i*1024}")
            a(f"ds_read_b128 v[{b+4}:{b+7}], v{vL} offset:{O_C64I+i*1024}")
        for i in range(3): ld(i)
        for i in range(8):
            if i+3 < 8: ld(i+3)
            a(f"s_waitcnt lgkmcnt({2*min(3, 7-i)})")
            b = CF+8*(i & 3); cr = f"v[{b}:{b+3}]"; ci = f"v[{b+4}:{b+7}]"
            t = i >> 2; c = i & 3
            if step == 3:
                mfma(dd(DR, t), cr, op(OPR, c), c == 0); mfma(dd(DI, t), ci, op(OPR, c), c == 0)
                mfma(dd(DR, t), ci, op(OPN, c), False); mfma(dd(DI, t), cr, op(OPI, c), False)
            else:
                mfma(dd(DR, t), op(OPR, c), cr, c == 0); mfma(dd(DI, t), op(OPI, c), cr, c == 0)
                mfma(dd(DR, t), op(OPI, c), ci, False); mfma(dd(DI, t), op(OPN, c), ci, False)
    twiddle(O_TW1, True)
    stg(5)
    big(3)
    stg(6)
    a("s_waitcnt vmcnt(0)")
    for v in range(0, 32, 4):
        b = TWB+8*((v >> 2) % 3)
        for i in range(4): a(f"v_lshlrev_b32 v{b+i}, 16, v{WV+v+i}\n v_and_b32 v{b+4+i}, 0xffff0000, v{WV+v+i}")
        for i in range(8): a(f"v_mul_f32 v{b+i}, s56, v{b+i}")
        for i in range(4): a(f"v_mul_f32 v{8+i}, v{DR+v+i}, v{b+i}\n v_mul_f32 v{12+i}, v{DR+v+i}, v{b+4+i}")
        for i in range(4): a(f"v_fma_f32 v{8+i}, -v{DI+v+i}, v{b+4+i}, v{8+i}\n v_fmac_f32 v{12+i}, v{DI+v+i}, v{b+i}")
        for pr in range(2):
            a(f"v_cvt_pk_f16_f32 v{OPR+v//2+pr}, v{8+2*pr}, v{9+2*pr}\n v_cvt_pk_f16_f32 v{OPI+v//2+pr}, v{12+2*pr}, v{13+2*pr}")
        for pr in range(2): a(f"v_xor_b32 v{OPN+v//2+pr}, 0x80008000, v{OPR+v//2+pr}")
    stg(7)
    big(5)
    stg(8)
    twiddle(O_TW2, False)
    stg(9)
    for nt in range(2):
        for c in range(2):
            f = 2*nt+c
            mfma(dd(DR, nt), op(OPR, f), CR(c), c == 0); mfma(dd(DI, nt), op(OPI, f), CR(c), c == 0)
            mfma(dd(DR, nt), op(OPI, f), CI(c), False); mfma(dd(DI, nt), op(OPR, f), CN(c), False)
    a("v_and_b32 v7, 16, v5\n v_bfe_u32 v8, v5, 2, 1\n v_lshl_add_u32 v7, v8, 3, v7\n v_add_u32 v7, v7, v6\n s_mov_b32 s53, 57344\n v_mul_lo_u32 v7, v7, s53")
    a("v_bfe_u32 v8, v5, 3, 1\n v_lshl_add_u32 v7, v8, 6, v7\n v_and_b32 v8, 3, v5\n v_lshl_add_u32 v7, v8, 4, v7")
    for part, base, sk in ((0, DR, 48), (1, DI, 49)):
        if part == 1: a("s_cmp_lg_u32 s58, 0\n s_cbranch_scc1 L_FDONE")
        a(f"s_lshr_b32 s51, s{sk}, 5\n s_add_u32 s51, s51, {YT}\n s_bfe_u32 s52, s{sk}, 0x1000d\n s_lshl_b32 s52, s52, 6\n v_xor_b32 v9, s52, v7")
        for nt in range(2):
            for q in range(2):
                o = WV+16*part+8*nt+4*q; v = base+16*nt+8*q
                for i in range(4): a(f"v_cvt_pk_f16_f32 v{o+i}, v{v+2*i}, v{v+2*i+1}")
                a(f"v_permlane32_swap_b32 v{o}, v{o+2}\n v_permlane32_swap_b32 v{o+1}, v{o+3}")
                a(f"s_add_u32 s53, s51, {(4*nt+2*q)*57344}")
                a(f"buffer_store_dwordx4 v[{o}:{o+3}], v9, s[{sWS}:{sWS+3}], s53 offen sc1")
    a("L_FDONE:")
    stg(10)
    a("s_waitcnt vmcnt(0)")
    a(f"v_mov_b32 v8, {SX}\n v_mov_b32 v9, 1\n s_mov_b64 exec, 1\n ds_add_rtn_u32 v9, v8, v9\n s_waitcnt lgkmcnt(0)\n v_readfirstlane_b32 s49, v9")
    a("s_cmp_eq_u32 s43, 0\n s_cselect_b32 s50, 7, 6\n s_cmp_lg_u32 s49, s50\n s_cbranch_scc1 L_NFY")
    a(f"s_lshl_b32 s49, s43, 7\n s_add_u32 s49, s49, {FLY}\n v_mov_b32 v{vPOLL}, s63")
    a(f"buffer_store_dword v{vPOLL}, v{vZERO}, s[{sWS}:{sWS+3}], s49 offen sc1")
    a("L_NFY:\n s_mov_b64 exec, -1")
    stg(11)
    if PROF:
        a("s_waitcnt lgkmcnt(0)\n v_writelane_b32 v246, s100, 11")
        stg2.pending = None
        L["prof_end"]()
    a("s_endpgm")
    a("L_PFW:")
    NL = (32-WSP_K2)*2048
    a("s_sub_u32 s58, s43, 1\n s_lshl_b32 s58, s58, 6\n v_add_u32 v13, s58, v1")
    for it in range(-(-NL//(31*64))):
        a(f"v_and_b32 v14, 2047, v13\n v_lshrrev_b32 v15, 11, v13\n v_min_u32 v15, {31-WSP_K2}, v15\n v_lshlrev_b32 v14, 12, v14\n v_lshl_add_u32 v14, v15, 7, v14")
        a(f"buffer_load_dword v{20+it}, v14, s[{sSP}:{sSP+3}], 0 offen offset:{128*WSP_K2}")
        a(f"v_add_u32 v13, {31*64}, v13")
    a("s_endpgm")
```
